```python
import torch

def _softmax(x, axis=-1):
    return torch.softmax(x, dim=axis)
def _gelu(x):
    return torch.nn.functional.gelu(x, approximate="tanh")
def _silu(x):
    return torch.nn.functional.silu(x)
def _sigmoid(x):
    return torch.sigmoid(x)
def _layernorm(x, axis=-1, eps=1e-5):
    m = x.mean(dim=axis, keepdim=True)
    v = x.var(dim=axis, keepdim=True, unbiased=False)
    return (x - m) / torch.sqrt(v + eps)
def _scatter_add(tgt, idx, src, axis=0):
    return tgt.clone().index_add_(axis, idx, src)
def _segment_sum(src, seg, n):
    out = torch.zeros((n,) + src.shape[1:], dtype=src.dtype)
    return out.index_add_(0, seg, src)
def _pad(x, pw):
    flat = tuple(v for pair in reversed(pw) for v in pair)
    return torch.nn.functional.pad(x, flat)

kernel_name = 'parallel_sum__sliding_block__glu_gated_reglu__prompt'

def setup_inputs():

    _w = (lambda a: (lambda t: t.to(torch.bfloat16) if t.is_floating_point() else t)(torch.as_tensor(a)))
    def _A_setup():
        B, S, D = 1, 2048, 640
        return {
            "x": _w((lambda *s: torch.randn(*s, dtype=torch.bfloat16) * 0.05)(B, S, D)),
            "wqkv": _w((lambda *s: torch.randn(*s, dtype=torch.bfloat16) * 0.05)(D, 3 * D)),
            "wo": _w((lambda *s: torch.randn(*s, dtype=torch.bfloat16) * 0.05)(D, D)),
        }
    _A_in = _A_setup()

    def _B_setup():
        B, S, D, F = 1, 2048, 640, 1728
        return {
            "x": _w((lambda *s: torch.randn(*s, dtype=torch.bfloat16) * 0.05)(B, S, D)),
            "W_gate": _w((lambda *s: torch.randn(*s, dtype=torch.bfloat16) * 0.8)(D, F) * (2.0 / D) ** 0.5),
            "W_up": _w((lambda *s: torch.randn(*s, dtype=torch.bfloat16) * 0.8)(D, F) * (2.0 / D) ** 0.5),
            "W_down": _w((lambda *s: torch.randn(*s, dtype=torch.bfloat16) * 0.8)(F, D) * (1.0 / F) ** 0.5),
        }
    _B_in = _B_setup()

    return {
        "A_x": _A_in["x"],
        "A_wqkv": _A_in["wqkv"],
        "A_wo": _A_in["wo"],
        "B_x": _B_in["x"],
        "B_W_gate": _B_in["W_gate"],
        "B_W_up": _B_in["W_up"],
        "B_W_down": _B_in["W_down"],
    }

def reference(A_x, A_wqkv, A_wo, B_x, B_W_gate, B_W_up, B_W_down):
    def _A_ref(x, wqkv, wo):
        B, S, D = x.shape
        H = 32; Dh = D // H; W = 256
        qkv = (lambda x, *d: x.permute(*d))((x @ wqkv).reshape(B, S, 3, H, Dh), 2, 0, 3, 1, 4)
        q, k, v = qkv[0], qkv[1], qkv[2]
        scores = torch.einsum("bhqd,bhkd->bhqk", q, k) * (Dh ** -0.5)
        idx = torch.arange(S)
        mask = (idx[:, None] - idx[None, :] >= 0) & (idx[:, None] - idx[None, :] < W)
        scores = torch.where(mask[None, None], scores, -1e9)
        p = _softmax(scores, axis=-1)
        o = torch.einsum("bhqk,bhkd->bhqd", p, v)
        return (lambda x, *d: x.permute(*d))(o, 0, 2, 1, 3).reshape(B, S, D) @ wo

    def _B_ref(x, W_gate, W_up, W_down):
        gate = torch.einsum("bsd,df->bsf", x, W_gate)
        up = torch.einsum("bsd,df->bsf", x, W_up)
        gate = gate * (lambda x, dt: x.to(dt))(gate > 0, gate.dtype)
        h = gate * up
        return torch.einsum("bsf,fd->bsd", h, W_down)

    x = A_x
    xn = _layernorm(x, axis=-1)
    return x + _A_ref(xn, A_wqkv, A_wo) + _B_ref(xn, B_W_gate, B_W_up, B_W_down)
```

```python
class Asm:
    def __init__(self):
        self.lines = []
        self.lbl = 0
    def __call__(self, s=""):
        for l in s.split("\n"):
            self.lines.append(l)
    def label(self, base="L"):
        self.lbl += 1
        return f"{base}_{self.lbl}"
    def text(self):
        return "\n".join(self.lines) + "\n"

LAYOUT_HDR = """; Kernarg layout for this problem (80 bytes, ptrs only, base s[0:1]):
"""

def file_header(launches):
    s = LAYOUT_HDR
    for (k, g, b, lds) in launches:
        s += f"; @launch kernel={k} grid=({g[0]},{g[1]},{g[2]}) block=({b[0]},{b[1]},{b[2]}) lds={lds}\n"
    s += '.amdgcn_target "amdgcn-amd-amdhsa--gfx950"\n.text\n'
    return s

def kernel_begin(name):
    return f".globl {name}\n.p2align 8\n.type {name},@function\n{name}:\n"

def kernel_desc(name, vgpr, sgpr=102, accum=None, wg_y=False):
    if accum is None:
        accum = (vgpr + 3) // 4 * 4
    s = f".amdhsa_kernel {name}\n"
    s += f"  .amdhsa_next_free_vgpr {vgpr}\n  .amdhsa_next_free_sgpr {sgpr}\n  .amdhsa_accum_offset {accum}\n"
    s += "  .amdhsa_group_segment_fixed_size 0\n  .amdhsa_kernarg_size 80\n  .amdhsa_user_sgpr_count 2\n"
    s += "  .amdhsa_user_sgpr_kernarg_segment_ptr 1\n  .amdhsa_system_sgpr_workgroup_id_x 1\n"
    if wg_y:
        s += "  .amdhsa_system_sgpr_workgroup_id_y 1\n"
    s += "  .amdhsa_float_denorm_mode_32 3\n"
    s += ".end_amdhsa_kernel\n"
    return s

def rodata(descs):
    return '.section .rodata,"a"\n.p2align 6\n' + "\n".join(".p2align 6\n" + d for d in descs)
```

```python
import sys
from asmgen import *

XN, QKV, HH, OO = 0x0, 0x300000, 0xB00000, 0x1200000

def srd(a, d, ptr, nbytes):
    a(f"s_mov_b32 s{d}, s{ptr}\ns_and_b32 s{d+1}, s{ptr+1}, 0xffff\ns_mov_b32 s{d+2}, {nbytes}\ns_mov_b32 s{d+3}, 0x20000")

def cvt_bf16(a, dst, src):
    a(f"v_cvt_pk_bf16_f32 v{dst}, v{src}, v{src}")
def rnd(a, r):
    a(f"v_cvt_pk_bf16_f32 v{r}, v{r}, v{r}\nv_lshlrev_b32 v{r}, 16, v{r}")

def k_ln():
    a = Asm(); n = "ln_kernel"
    a(kernel_begin(n))
    a("s_cmp_ge_u32 s2, 512\ns_cbranch_scc1 LN_end")
    a("s_load_dwordx2 s[4:5], s[0:1], 0\ns_load_dwordx2 s[6:7], s[0:1], 72\ns_waitcnt lgkmcnt(0)")
    srd(a, 8, 4, 2048*1280); srd(a, 12, 6, 0x10000000)
    a("v_lshrrev_b32 v1, 6, v0\nv_and_b32 v2, 63, v0")
    a("s_lshl_b32 s3, s2, 2\nv_add_u32 v1, s3, v1")
    a("s_movk_i32 s16, 1280\nv_mul_lo_u32 v3, v1, s16\nv_lshlrev_b32 v4, 2, v2\nv_add_u32 v3, v3, v4")
    for j in range(5):
        a(f"buffer_load_dword v{10+j}, v3, s[8:11], 0 offen offset:{256*j}")
    a("s_waitcnt vmcnt(0)")
    for j in range(5):
        a(f"v_lshlrev_b32 v{20+2*j}, 16, v{10+j}\nv_and_b32 v{21+2*j}, 0xffff0000, v{10+j}")
    a("v_mov_b32 v5, 0")
    for j in range(10):
        a(f"v_add_f32 v5, v5, v{20+j}")
    a("v_lshlrev_b32 v6, 2, v2")
    def red(r):
        for m in [1,2,4,8,16,32]:
            a(f"v_xor_b32 v7, {m*4}, v6\nds_bpermute_b32 v8, v7, v{r}\ns_waitcnt lgkmcnt(0)\nv_add_f32 v{r}, v{r}, v8")
    red(5)
    a("v_mul_f32 v5, 0x3acccccd, v5")
    a("v_mov_b32 v9, 0")
    for j in range(10):
        a(f"v_sub_f32 v30, v{20+j}, v5\nv_fmac_f32 v9, v30, v30")
    red(9)
    a("v_mul_f32 v9, 0x3acccccd, v9")
    rnd(a, 5); rnd(a, 9)
    a("v_add_f32 v9, 0x3727c5ac, v9")
    rnd(a, 9)
    a("v_sqrt_f32 v9, v9\ns_nop 1")
    rnd(a, 9)
    a("v_rcp_f32 v31, v9\ns_nop 1")
    for j in range(10):
        a(f"v_sub_f32 v{20+j}, v{20+j}, v5")
        rnd(a, 20+j)
        a(f"v_mul_f32 v32, v{20+j}, v31\nv_fma_f32 v33, -v32, v9, v{20+j}\nv_fma_f32 v{20+j}, v33, v31, v32")
    for j in range(5):
        a(f"v_cvt_pk_bf16_f32 v{10+j}, v{20+2*j}, v{21+2*j}")
        a(f"buffer_store_dword v{10+j}, v3, s[12:15], 0 offen offset:{256*j}")
    a("LN_end:\ns_endpgm")
    return a.text(), kernel_desc(n, 40, 40), (n, (512,1,1), (256,1,1), 0)

def gemm_loop(a, L, K, astride, abase, wsrds, N, accs):
    a(f"s_mov_b32 s20, 0\ns_mov_b32 s21, {K//8}")
    for ac in accs:
        for i in range(16):
            a(f"v_mov_b32 v{ac+i}, 0")
    a(f"{L}:")
    for t in range(8):
        a(f"s_load_dwordx4 s[{40+4*t}:{43+4*t}], s[{abase}:{abase+1}], {t*astride}")
    for wi, w in enumerate(wsrds):
        for kk in range(8):
            a(f"s_add_u32 s22, s20, {kk*N*2}")
            a(f"buffer_load_dword v{10+8*wi+kk}, v3, s[{w}:{w+3}], s22 offen")
    a("s_waitcnt vmcnt(0) lgkmcnt(0)")
    for kk in range(8):
        for wi, w in enumerate(wsrds):
            a(f"v_lshlrev_b32 v{30+2*wi}, 16, v{10+8*wi+kk}\nv_and_b32 v{31+2*wi}, 0xffff0000, v{10+8*wi+kk}")
        for t in range(8):
            sr = 40+4*t+kk//2
            if kk % 2 == 0: a(f"s_lshl_b32 s23, s{sr}, 16")
            else: a(f"s_and_b32 s23, s{sr}, 0xffff0000")
            for wi, w in enumerate(wsrds):
                a(f"v_fmac_f32 v{accs[wi]+2*t}, s23, v{30+2*wi}\nv_fmac_f32 v{accs[wi]+2*t+1}, s23, v{31+2*wi}")
    a(f"s_add_u32 s{abase}, s{abase}, 16\ns_addc_u32 s{abase+1}, s{abase+1}, 0")
    a(f"s_add_u32 s20, s20, {8*N*2}\ns_sub_u32 s21, s21, 1\ns_cmp_lg_u32 s21, 0\ns_cbranch_scc1 {L}")

def gemm_prologue(a, n, NT, pre):
    a(f"s_cmp_ge_u32 s2, {64*NT}\ns_cbranch_scc1 {pre}_end")
    a("s_lshr_b32 s3, s2, 6\ns_and_b32 s24, s2, 63")
    a("v_lshrrev_b32 v1, 6, v0\ns_nop 1\nv_readfirstlane_b32 s25, v1\ns_nop 3")
    a("s_lshl_b32 s30, s24, 5\ns_lshl_b32 s25, s25, 3\ns_add_u32 s30, s30, s25")
    a("v_and_b32 v2, 63, v0\nv_lshlrev_b32 v3, 2, v2\ns_lshl_b32 s26, s3, 8\nv_add_u32 v3, s26, v3\nv_lshrrev_b32 v4, 1, v3")

def k_qkv():
    a = Asm(); n = "qkv_kernel"
    a(kernel_begin(n))
    gemm_prologue(a, n, 15, "QKV")
    a("s_load_dwordx2 s[4:5], s[0:1], 8\ns_load_dwordx2 s[6:7], s[0:1], 72\ns_waitcnt lgkmcnt(0)")
    srd(a, 8, 4, 640*1920*2); srd(a, 12, 6, 0x10000000)
    a(f"s_mul_i32 s27, s30, 1280\ns_add_u32 s16, s6, s27\ns_addc_u32 s17, s7, 0")
    gemm_loop(a, "QKV_loop", 640, 1280, 16, [8], 1920, [60])
    for t in range(8):
        a(f"v_cvt_pk_bf16_f32 v10, v{60+2*t}, v{61+2*t}")
        a(f"s_add_u32 s27, s30, {t}\ns_mul_i32 s27, s27, 3840\ns_add_u32 s27, s27, {QKV}")
        a(f"buffer_store_dword v10, v3, s[12:15], s27 offen\ns_nop 2")
    a("QKV_end:\ns_endpgm")
    return a.text(), kernel_desc(n, 96, 90), (n, (64*15,1,1), (256,1,1), 0)

def k_gu():
    a = Asm(); n = "gu_kernel"
    a(kernel_begin(n))
    gemm_prologue(a, n, 14, "GU")
    a("s_load_dwordx2 s[4:5], s[0:1], 32\ns_load_dwordx2 s[18:19], s[0:1], 40\ns_load_dwordx2 s[6:7], s[0:1], 72\ns_waitcnt lgkmcnt(0)")
    srd(a, 8, 4, 640*1728*2); srd(a, 12, 6, 0x10000000); srd(a, 32, 18, 640*1728*2)
    a(f"s_mul_i32 s27, s30, 1280\ns_add_u32 s16, s6, s27\ns_addc_u32 s17, s7, 0")
    gemm_loop(a, "GU_loop", 640, 1280, 16, [8, 32], 1728, [60, 76])
    a("s_movk_i32 s28, 1728\nv_cmp_gt_u32 vcc, s28, v4\ns_and_saveexec_b64 s[36:37], vcc\ns_cbranch_execz GU_end")
    for t in range(8):
        for f in range(2):
            rnd(a, 60+2*t+f); rnd(a, 76+2*t+f)
            a(f"v_max_f32 v{60+2*t+f}, 0, v{60+2*t+f}\nv_mul_f32 v{60+2*t+f}, v{60+2*t+f}, v{76+2*t+f}")
        a(f"v_cvt_pk_bf16_f32 v10, v{60+2*t}, v{61+2*t}")
        a(f"s_add_u32 s27, s30, {t}\ns_mul_i32 s27, s27, 3456\ns_add_u32 s27, s27, {HH}")
        a(f"buffer_store_dword v10, v3, s[12:15], s27 offen\ns_nop 2")
    a("GU_end:\ns_endpgm")
    return a.text(), kernel_desc(n, 96, 90), (n, (64*14,1,1), (256,1,1), 0)

def k_out():
    a = Asm(); n = "out_kernel"
    a(kernel_begin(n))
    gemm_prologue(a, n, 5, "OUT")
    a("s_load_dwordx2 s[4:5], s[0:1], 16\ns_load_dwordx2 s[18:19], s[0:1], 48\ns_load_dwordx2 s[6:7], s[0:1], 72")
    a("s_load_dwordx2 s[72:73], s[0:1], 0\ns_load_dwordx2 s[74:75], s[0:1], 56\ns_waitcnt lgkmcnt(0)")
    srd(a, 8, 4, 640*640*2); srd(a, 32, 18, 1728*640*2); srd(a, 76, 72, 2048*1280); srd(a, 80, 74, 2048*1280)
    a(f"s_mul_i32 s27, s30, 1280\ns_add_u32 s27, s27, {OO}\ns_add_u32 s16, s6, s27\ns_addc_u32 s17, s7, 0")
    gemm_loop(a, "OUT_loop1", 640, 1280, 16, [8], 640, [60])
    a(f"s_mul_i32 s27, s30, 3456\ns_add_u32 s27, s27, {HH}\ns_add_u32 s16, s6, s27\ns_addc_u32 s17, s7, 0")
    gemm_loop(a, "OUT_loop2", 1728, 3456, 16, [32], 640, [76])
    for t in range(8):
        a(f"s_add_u32 s27, s30, {t}\ns_mul_i32 s27, s27, 1280")
        a(f"buffer_load_dword v10, v3, s[76:79], s27 offen\ns_waitcnt vmcnt(0)")
        a("v_lshlrev_b32 v11, 16, v10\nv_and_b32 v12, 0xffff0000, v10")
        for f in range(2):
            rnd(a, 60+2*t+f); rnd(a, 76+2*t+f)
            a(f"v_add_f32 v{11+f}, v{11+f}, v{60+2*t+f}")
            rnd(a, 11+f)
            a(f"v_add_f32 v{11+f}, v{11+f}, v{76+2*t+f}")
        a(f"v_cvt_pk_bf16_f32 v10, v11, v12")
        a(f"buffer_store_dword v10, v3, s[80:83], s27 offen\ns_nop 2")
    a("OUT_end:\ns_endpgm")
    return a.text(), kernel_desc(n, 96, 90), (n, (64*5,1,1), (256,1,1), 0)

def k_attn():
    a = Asm(); n = "attn_kernel"
    a(kernel_begin(n))
    a("s_cmp_ge_u32 s2, 256\ns_cbranch_scc1 AT_end")
    a("s_load_dwordx2 s[6:7], s[0:1], 72\ns_waitcnt lgkmcnt(0)")
    srd(a, 12, 6, 0x10000000)
    a("v_lshrrev_b32 v1, 6, v0\ns_nop 1\nv_readfirstlane_b32 s25, v1\ns_nop 3")
    a("s_and_b32 s24, s2, 7\ns_lshl_b32 s24, s24, 2\ns_add_u32 s24, s24, s25")
    a("s_lshr_b32 s26, s2, 3\ns_lshl_b32 s26, s26, 6")
    a("v_and_b32 v2, 63, v0\nv_add_u32 v2, s26, v2")
    a("s_movk_i32 s27, 3840\nv_mul_lo_u32 v3, v2, s27\ns_mul_i32 s28, s24, 40\nv_add_u32 v3, s28, v3")
    for j in range(5):
        a(f"buffer_load_dwordx2 v[{10+2*j}:{11+2*j}], v3, s[12:15], 0 offen offset:{8*j}".replace("s[12:15], 0", f"s[12:15], s29"))
    txt = a.lines
    idx = [i for i,l in enumerate(a.lines) if l.startswith("buffer_load_dwordx2")][0]
    a.lines.insert(idx, f"s_mov_b32 s29, {QKV}")
    a("s_waitcnt vmcnt(0)")
    for j in range(10):
        a(f"v_lshlrev_b32 v{20+2*j}, 16, v{10+j}\nv_and_b32 v{21+2*j}, 0xffff0000, v{10+j}")
    for j in range(20): a(f"v_mov_b32 v{40+j}, 0")
    a("v_mov_b32 v60, 0xf149f2ca\nv_mov_b32 v61, 0")
    a("s_sub_i32 s30, s26, 255\ns_max_i32 s30, s30, 0\ns_add_u32 s31, s26, 64")
    a("AT_loop:")
    a(f"s_mul_i32 s32, s30, 3840\ns_add_u32 s32, s32, s28\ns_add_u32 s32, s32, {QKV+1280}\ns_add_u32 s34, s6, s32\ns_addc_u32 s35, s7, 0")
    for j in range(5):
        a(f"s_load_dwordx2 s[{40+2*j}:{41+2*j}], s[34:35], {8*j}")
        a(f"s_load_dwordx2 s[{50+2*j}:{51+2*j}], s[34:35], {1280+8*j}")
    a("s_waitcnt lgkmcnt(0)")
    a("v_mov_b32 v62, 0")
    for j in range(10):
        a(f"s_lshl_b32 s23, s{40+j}, 16\nv_fmac_f32 v62, s23, v{20+2*j}\ns_and_b32 s23, s{40+j}, 0xffff0000\nv_fmac_f32 v62, s23, v{21+2*j}")
    rnd(a, 62)
    a("v_mul_f32 v62, 0x3e650000, v62")
    rnd(a, 62)
    a("v_subrev_u32 v63, s30, v2\nv_cmp_gt_u32 vcc, 0x100, v63")
    a("s_and_saveexec_b64 s[36:37], vcc")
    a("v_max_f32 v64, v60, v62")
    a("v_sub_f32 v65, v60, v64\nv_mul_f32 v65, 0x3fb8aa3b, v65\nv_exp_f32 v65, v65")
    a("v_sub_f32 v66, v62, v64\nv_mul_f32 v66, 0x3fb8aa3b, v66\nv_exp_f32 v66, v66\ns_nop 1")
    a("v_mov_b32 v60, v64\nv_fma_f32 v61, v61, v65, v66")
    for j in range(10):
        a(f"s_lshl_b32 s23, s{50+j}, 16\nv_mul_f32 v{40+2*j}, v{40+2*j}, v65\nv_fmac_f32 v{40+2*j}, s23, v66")
        a(f"s_and_b32 s23, s{50+j}, 0xffff0000\nv_mul_f32 v{41+2*j}, v{41+2*j}, v65\nv_fmac_f32 v{41+2*j}, s23, v66")
    a("s_mov_b64 exec, s[36:37]")
    a("s_add_u32 s30, s30, 1\ns_cmp_lt_u32 s30, s31\ns_cbranch_scc1 AT_loop")
    a("v_rcp_f32 v61, v61\ns_nop 1")
    a("s_movk_i32 s27, 1280\nv_mul_lo_u32 v3, v2, s27\nv_add_u32 v3, s28, v3")
    a(f"s_mov_b32 s29, {OO}")
    for j in range(10):
        a(f"v_mul_f32 v{40+2*j}, v{40+2*j}, v61\nv_mul_f32 v{41+2*j}, v{41+2*j}, v61\nv_cvt_pk_bf16_f32 v{10+j}, v{40+2*j}, v{41+2*j}")
    for j in range(5):
        a(f"buffer_store_dwordx2 v[{10+2*j}:{11+2*j}], v3, s[12:15], s29 offen offset:{8*j}")
    a("AT_end:\ns_endpgm")
    return a.text(), kernel_desc(n, 96, 90), (n, (256,1,1), (256,1,1), 0)

def k_empty(i):
    n = f"empty{i}_kernel"
    return kernel_begin(n) + "s_endpgm\n", kernel_desc(n, 8, 16), (n, (256,1,1), (256,1,1), 0)

if __name__ == "__main__":
    for ne in [0, 1, 4, 8]:
        ks = [k_ln(), k_qkv(), k_gu(), k_attn(), k_out()] + [k_empty(i) for i in range(ne)]
        txt = file_header([k[2] for k in ks]) + "".join(k[0] for k in ks) + rodata([k[1] for k in ks])
        open(f"naive/naive_e{ne}.s", "w").write(txt)
```

```python
import re

class Asm:
    def __init__(self):
        self.lines = []
        self.lbl = 0
    def __call__(self, s=""):
        for l in s.split("\n"):
            l = l.strip()
            if l: self.lines.append(l)
    def label(self, base="L"):
        self.lbl += 1
        return f"{base}_{self.lbl}"
    def text(self):
        return "\n".join(self.lines) + "\n"
    def extend(self, lst):
        for l in lst: self(l)

LAYOUT_HDR = """; Kernarg layout for this problem (80 bytes, ptrs only, base s[0:1]):
"""

def file_header(launches, mainname):
    s = LAYOUT_HDR
    if len(launches) == 1 and launches[0][0] == mainname:
        (k, g, b, lds) = launches[0]
        s += f"; @launch grid=({g[0]},{g[1]},{g[2]}) block=({b[0]},{b[1]},{b[2]}) lds={lds}\n"
    else:
        for (k, g, b, lds) in launches:
            s += f"; @launch kernel={k} grid=({g[0]},{g[1]},{g[2]}) block=({b[0]},{b[1]},{b[2]}) lds={lds}\n"
    s += '.amdgcn_target "amdgcn-amd-amdhsa--gfx950"\n.text\n'
    return s

def kernel_begin(name):
    return f".globl {name}\n.p2align 8\n.type {name},@function\n{name}:\n"

def kernel_desc(name, vgpr, sgpr=102, accum=None):
    if accum is None:
        accum = (vgpr + 3) // 4 * 4
    s = f".amdhsa_kernel {name}\n"
    s += f"  .amdhsa_next_free_vgpr {vgpr}\n  .amdhsa_next_free_sgpr {sgpr}\n  .amdhsa_accum_offset {accum}\n"
    s += "  .amdhsa_group_segment_fixed_size 0\n  .amdhsa_kernarg_size 80\n  .amdhsa_user_sgpr_count 2\n"
    s += "  .amdhsa_user_sgpr_kernarg_segment_ptr 1\n  .amdhsa_system_sgpr_workgroup_id_x 1\n"
    s += "  .amdhsa_float_denorm_mode_32 3\n"
    s += ".end_amdhsa_kernel\n"
    return s

def rodata(descs):
    return '.section .rodata,"a"\n.p2align 6\n' + "\n".join(".p2align 6\n" + d for d in descs)

_reg_re = re.compile(r"^(-|\|)?([vsa])(\d+)\|?$")
_rng_re = re.compile(r"^(-|\|)?([vsa])\[(\d+):(\d+)\]\|?$")
def regs_of(tok):
    tok = tok.strip()
    m = _reg_re.match(tok)
    if m: return {(m.group(2), int(m.group(3)))}
    m = _rng_re.match(tok)
    if m: return {(m.group(2), i) for i in range(int(m.group(3)), int(m.group(4)) + 1)}
    if tok == "vcc": return {("s", 106), ("s", 107)}
    if tok in ("vcc_lo",): return {("s", 106)}
    if tok == "exec": return {("s", 126), ("s", 127)}
    if tok == "m0": return {("s", 124)}
    return set()

TRANS = ("v_exp_f32", "v_log_f32", "v_rcp_f32", "v_rsq_f32", "v_sqrt_f32", "v_sin_f32", "v_cos_f32")
class I:
    pass
def parse(line):
    l = line.split(";")[0].split("//")[0].strip()
    if not l or l.endswith(":") or l.startswith("."): return None
    p = l.split(None, 1)
    x = I(); x.op = p[0]; x.text = l
    rest = p[1] if len(p) > 1 else ""
    rest = re.split(r"\s(?=op_sel|neg_lo|neg_hi)", rest)[0]
    ops = [t.strip() for t in rest.split(",")] if rest else []
    mods = ""
    if ops:
        q = ops[-1].split(None, 1)
        ops[-1] = q[0]
        if len(q) > 1: mods = q[1]
    x.ops = ops; x.mods = mods
    op = x.op
    x.kind = "other"; x.w = set(); x.r = set()
    R = [regs_of(o) for o in ops]
    if op.startswith("v_mfma"):
        x.kind = "mfma"; x.w = R[0]; x.a = R[1] | R[2]; x.c = R[3]; x.r = x.a | x.c
        x.passes = 8 if ("32x32x16" in op or "32x32x8" in op) else (4 if "16x16x32" in op or "16x16x16" in op else 16)
    elif op.startswith("v_cmp"):
        x.kind = "valu"; x.w = R[0]; x.r = set().union(*R[1:]) if len(R) > 1 else set()
    elif op.startswith("v_readlane") or op.startswith("v_readfirstlane"):
        x.kind = "valu"; x.w = R[0]; x.r = set().union(*R[1:]); x.rdlane = True
    elif op.startswith("v_permlane"):
        x.kind = "valu"; x.w = R[0] | R[1]; x.r = R[0] | R[1]; x.perm = True
    elif op.startswith("v_"):
        x.kind = "valu"; x.w = R[0]; x.r = set().union(*R[1:]) if len(R) > 1 else set()
        if op.startswith(("v_fmac", "v_mac", "v_dot2c", "v_pk_fmac")): x.r |= R[0]
        if op.startswith("v_cndmask") and len(ops) == 3: x.r |= regs_of("vcc")
        if op.startswith(("v_add_co", "v_sub_co", "v_addc_co", "v_subb_co")): x.w |= R[1]
    elif op.startswith(("buffer_load", "global_load")):
        x.kind = "vmem"
        if " lds" in (" " + mods) or "_lds_" in op:
            x.lds = True; x.r = set().union(*R) | regs_of("m0")
        else:
            x.w = R[0]; x.r = set().union(*R[1:])
    elif op.startswith(("buffer_store", "global_store", "buffer_atomic", "global_atomic")):
        x.kind = "vmem"; x.r = set().union(*R)
        if op.startswith("buffer_store"): x.sdata = R[0]
        else: x.sdata = R[1] if len(R) > 1 else set()
        x.wide = ("x3" in op or "x4" in op)
    elif op.startswith("ds_read") or op.startswith("ds_bpermute") or op.startswith("ds_swizzle"):
        x.kind = "ds"; x.w = R[0]; x.r = set().union(*R[1:]) if len(R) > 1 else set()
    elif op.startswith("ds_"):
        x.kind = "ds"; x.r = set().union(*R)
    elif op == "s_nop":
        x.kind = "nop"; x.n = int(ops[0]) + 1
    elif op.startswith("s_"):
        x.kind = "salu"
        if op.startswith(("s_cmp", "s_waitcnt", "s_barrier", "s_branch", "s_cbranch", "s_endpgm", "s_sleep", "s_setprio", "s_bitcmp")):
            x.r = set().union(*R) if R else set()
        else:
            x.w = R[0] if R else set(); x.r = set().union(*R[1:]) if len(R) > 1 else set()
            if "saveexec" in op: x.w = x.w | regs_of("exec")
    x.dpp = ("row_" in mods or "quad_perm" in mods or "wave_" in mods)
    return x

def vonly(s): return {r for r in s if r[0] in "va"}
def sonly(s): return {r for r in s if r[0] == "s"}

def check_hazards(lines, name=""):
    ins = []
    for ln, l in enumerate(lines):
        x = parse(l)
        if x is not None:
            x.ln = ln; ins.append(x)
    errs = []
    n = len(ins)
    for i, c in enumerate(ins):
        if c.kind == "nop": continue
        dist = 0
        j = i - 1
        while j >= 0 and dist < 24:
            p = ins[j]
            need = 0; why = ""
            def req(k, w):
                nonlocal need, why
                if k > need: need = k; why = w
            if p.kind == "valu":
                pw = vonly(p.w); ps = sonly(p.w)
                if c.kind == "mfma" and pw & c.r: req(2, "valu->mfma")
                if c.kind == "valu" and c.dpp and pw & c.r: req(2, "valu->dpp")
                if c.kind == "valu" and getattr(c, "rdlane", False) and pw & c.r: req(1, "valu->readlane")
                if c.kind == "valu" and getattr(c, "perm", False) and pw & c.r: req(2, "valu->permlane")
                if c.kind == "vmem" and ps & c.r: req(5, "valu sgpr->vmem")
                if c.kind == "valu" and ps & c.r:
                    req(4 if getattr(c, "rdlane", False) else 2, "valu sgpr->valu")
                if p.op in TRANS and c.kind in ("valu",) and c.op not in TRANS and pw & c.r: req(1, "trans->valu")
                if p.op in TRANS and c.kind in ("vmem", "ds") and pw & c.r: req(1, "trans->mem")
            if p.kind == "mfma":
                P = p.passes
                big = {2: 5, 4: 8, 8: 12, 16: 20}[P]
                if c.kind == "valu" and p.w & (c.r | c.w): req(big, "mfma D->valu")
                if c.kind in ("vmem", "ds") and p.w & (c.r | c.w): req(big, "mfma D->mem")
                if c.kind == "mfma":
                    if p.w & c.a: req(big, "mfma D->mfma AB")
                    if p.w & c.c:
                        if not (p.w == c.c and P == c.passes): req({2: 4, 4: 6, 8: 10, 16: 18}[P], "mfma D->srcC overlap")
                    if p.w & c.w and not (p.w == c.w): req({2: 4, 4: 6, 8: 10, 16: 18}[P], "mfma D->D partial")
                if c.kind == "valu" and p.c & c.w: req({2: 1, 4: 3, 8: 7, 16: 15}[P], "mfma srcC WAR valu")
            if p.kind == "salu" and ("s", 124) in p.w and c.kind == "vmem" and getattr(c, "lds", False): req(1, "m0->lds dma")
            if p.kind == "salu" and ("s", 124) in p.w and c.kind == "ds" and "addtid" in c.op: req(1, "m0->addtid")
            if p.kind == "vmem" and getattr(p, "wide", False) and hasattr(p, "sdata"):
                if c.kind == "valu" and p.sdata & c.w: req(2, "store data WAR valu")
                elif p.sdata & c.w: req(1, "store data WAR")
            if need > dist:
                errs.append(f"{name}: line {c.ln} '{c.text}' needs {need} ws after line {p.ln} '{p.text}' ({why}), has {dist}")
            dist += p.n if p.kind == "nop" else 1
            j -= 1
    return errs
```

```python
MAIN = "parallel_sum__sliding_block__glu_gated_reglu__prompt_kernel"
S, D, F = 2048, 640, 1728
FLAGS = 0x0
XN = 0x400000;  XN_T = 40960
QS = 0x800000;  QS_T = 40960
KS = 0xC00000
VT = 0x1000000; VT_HF = 648 * 16; VT_S = 2 * VT_HF; VT_T = 2 * VT_S
HS = 0x1400000; HS_T = 108 * 1024
OS = 0x1C00000; OS_T = 40 * 1024
WT = 0x2000000; WT_K = 5 * 1024; WT_F = 74 * WT_K
STAMPS = 0x8000000
WS_BYTES = 0x10000000
```

```python
from core import *
from layout import *

S_WG, S_WAVE = 2, 3
P_X, P_WQKV, P_WO, P_G, P_U, P_D, P_OUT, P_DBG, P_WS = 4, 6, 8, 12, 14, 16, 18, 20, 22
SRD_WS, SRD_A, SRD_B, SRD_C = 24, 28, 32, 36
LN_LDS = 131072

def srd(a, d, ptr, nbytes):
    a(f"s_mov_b32 s{d}, s{ptr}\ns_and_b32 s{d+1}, s{ptr+1}, 0xffff\ns_mov_b32 s{d+2}, {nbytes}\ns_mov_b32 s{d+3}, 0x20000")

def prologue(a, name, endlabel):
    a(kernel_begin(name))
    a(f"s_cmp_ge_u32 s2, 256\ns_cbranch_scc1 {endlabel}")
    a("s_load_dwordx16 s[4:19], s[0:1], 0\ns_load_dwordx4 s[20:23], s[0:1], 64")
    a("v_lshrrev_b32 v1, 6, v0\nv_and_b32 v2, 63, v0\nv_readfirstlane_b32 s3, v1")
    a("s_waitcnt lgkmcnt(0)")
    srd(a, SRD_WS, P_WS, WS_BYTES)

def rnd(a, r):
    a(f"v_cvt_pk_bf16_f32 v{r}, v{r}, v{r}\nv_lshlrev_b32 v{r}, 16, v{r}")

def wave_sum(a, r, t, sdst):
    for ctl in ["quad_perm:[1,0,3,2]", "quad_perm:[2,3,0,1]", "row_half_mirror", "row_mirror"]:
        a(f"s_nop 1\nv_add_f32_dpp v{r}, v{r}, v{r} {ctl} row_mask:0xf bank_mask:0xf")
    a(f"s_nop 1\nv_add_f32_dpp v{r}, v{r}, v{r} row_bcast:15 row_mask:0xa bank_mask:0xf")
    a(f"s_nop 1\nv_add_f32_dpp v{r}, v{r}, v{r} row_bcast:31 row_mask:0xc bank_mask:0xf")
    a(f"s_nop 0\nv_readlane_b32 s{sdst}, v{r}, 63\ns_nop 1")

def p0_x_loads(a):
    srd(a, SRD_A, P_X, S * D * 2)
    a("s_lshl_b32 s40, s2, 3\ns_add_u32 s40, s40, s3\ns_mul_i32 s40, s40, 1280")
    a("v_lshlrev_b32 v3, 2, v2")
    for j in range(5):
        a(f"buffer_load_dword v{10+j}, v3, s[{SRD_A}:{SRD_A+3}], s40 offen offset:{256*j}")

def p0_wt_loads(a):
    srd(a, SRD_B, P_D, F * D * 2)
    srd(a, SRD_C, P_WO, D * D * 2)
    a("v_lshrrev_b32 v4, 4, v2\nv_and_b32 v5, 15, v2")
    a("v_lshrrev_b32 v6, 1, v4\nv_and_b32 v7, 1, v4")
    a("v_lshrrev_b32 v24, 2, v5\nv_lshlrev_b32 v24, 3, v24\nv_and_b32 v25, 3, v5\nv_add_u32 v24, v24, v25")
    a("s_and_b32 s41, s2, 7\ns_lshr_b32 s42, s2, 3")
    a("s_mul_i32 s43, s41, 80")
    for n in range(4):
        lab = f"WT_{n}"
        a(f"s_add_u32 s50, s3, {4*n}\ns_mul_i32 s51, s50, 52\ns_lshr_b32 s51, s51, 8")
        a("s_mul_i32 s52, s51, 5\ns_sub_u32 s52, s50, s52")
        a("s_lshl_b32 s53, s51, 5\ns_add_u32 s53, s53, s42")
        a(f"s_mov_b32 s{44+n}, -1")
        a(f"s_cmp_ge_u32 s50, 15\ns_cbranch_scc1 {lab}_skip\ns_cmp_ge_u32 s53, 74\ns_cbranch_scc1 {lab}_skip")
        a(f"s_mul_i32 s54, s41, {WT_F}\ns_mul_i32 s55, s53, {WT_K}\ns_add_u32 s54, s54, s55\ns_lshl_b32 s55, s52, 10\ns_add_u32 s54, s54, s55\ns_add_u32 s{44+n}, s54, {WT}")
        a("s_lshr_b32 s55, s52, 1\ns_lshl_b32 s55, s55, 5\ns_and_b32 s56, s52, 1\ns_lshl_b32 s56, s56, 2\ns_add_u32 s55, s55, s56\ns_add_u32 s55, s55, s43")
        a("s_cmp_eq_u32 s52, 4\ns_cselect_b64 s[58:59], -1, 0\nv_cndmask_b32 v8, v24, v5, s[58:59]\nv_add_u32 v8, s55, v8\nv_lshlrev_b32 v8, 1, v8")
        a(f"s_cmp_ge_u32 s53, 54\ns_cbranch_scc1 {lab}_o")
        a("s_lshl_b32 s55, s53, 5\nv_lshlrev_b32 v9, 4, v6\nv_lshl_add_u32 v9, v7, 2, v9\nv_add_u32 v9, s55, v9")
        a("s_movk_i32 s56, 1280\nv_mul_lo_u32 v9, v9, s56\nv_add_u32 v9, v9, v8\nv_add_u32 v8, 10240, v9")
        for j in range(8):
            a(f"buffer_load_ushort v{64+8*n+j}, v{9 if j < 4 else 8}, s[{SRD_B}:{SRD_B+3}], 0 offen offset:{(j%4)*1280}")
        a(f"s_branch {lab}_skip")
        a(f"{lab}_o:")
        a("s_sub_u32 s55, s53, 54\ns_lshl_b32 s55, s55, 1\nv_add_u32 v16, s55, v6")
        a("v_mul_u32_u24 v17, 52, v16\nv_lshrrev_b32 v17, 8, v17")
        a("v_mul_u32_u24 v18, 5, v17\nv_sub_u32 v18, v16, v18")
        a("v_lshlrev_b32 v17, 2, v17")
        a("v_add_u32 v19, v17, v18\nv_mul_u32_u24 v19, 20, v19\nv_lshl_add_u32 v19, v7, 2, v19")
        a("v_add_u32 v20, v17, v7\nv_mul_u32_u24 v20, 20, v20\nv_add_u32 v20, 16, v20")
        a("v_cmp_eq_u32 vcc, 4, v18\nv_mov_b32 v21, 8\nv_mov_b32 v22, 40\nv_cndmask_b32 v19, v19, v20, vcc\nv_cndmask_b32 v21, v21, v22, vcc")
        a("s_movk_i32 s56, 1280\nv_mul_lo_u32 v9, v19, s56\nv_mul_lo_u32 v21, v21, s56\nv_add_u32 v9, v9, v8\nv_add_u32 v8, v9, v21")
        for j in range(8):
            a(f"buffer_load_ushort v{64+8*n+j}, v{9 if j < 4 else 8}, s[{SRD_C}:{SRD_C+3}], 0 offen offset:{(j%4)*1280}")
        a(f"{lab}_skip:")

def p0_wt_stores(a, sc):
    a("v_lshlrev_b32 v23, 4, v2")
    for n in range(4):
        lab = f"WTS_{n}"
        a(f"s_cmp_eq_u32 s{44+n}, -1\ns_cbranch_scc1 {lab}")
        for q in range(4):
            a(f"v_lshl_or_b32 v{96+4*n+q}, v{64+8*n+2*q+1}, 16, v{64+8*n+2*q}")
        a(f"buffer_store_dwordx4 v[{96+4*n}:{99+4*n}], v23, s[{SRD_WS}:{SRD_WS+3}], s{44+n} offen {sc}")
        a(f"{lab}:")

def p0_ln(a):
    for j in range(5):
        a(f"v_lshlrev_b32 v{30+2*j}, 16, v{10+j}\nv_and_b32 v{31+2*j}, 0xffff0000, v{10+j}")
    a("v_add_f32 v40, v30, v31")
    for j in range(2, 10):
        a(f"v_add_f32 v40, v40, v{30+j}")
    wave_sum(a, 40, 41, 58)
    a("v_mov_b32 v40, 0x3acccccd\nv_mul_f32 v40, s58, v40")
    a("v_sub_f32 v41, v30, v40\nv_mul_f32 v42, v41, v41")
    for j in range(1, 10):
        a(f"v_sub_f32 v41, v{30+j}, v40\nv_fmac_f32 v42, v41, v41")
    wave_sum(a, 42, 41, 59)
    a("v_mov_b32 v42, 0x3acccccd\nv_mul_f32 v42, s59, v42")
    rnd(a, 40); rnd(a, 42)
    a("v_add_f32 v42, 0x3727c5ac, v42")
    rnd(a, 42)
    a("v_sqrt_f32 v42, v42\ns_nop 0")
    rnd(a, 42)
    a("v_rcp_f32 v43, v42\ns_nop 0")
    for j in range(10):
        r = 30 + j
        a(f"v_sub_f32 v{r}, v{r}, v40")
        rnd(a, r)
        a(f"v_mul_f32 v44, v{r}, v43\nv_fma_f32 v45, -v44, v42, v{r}\nv_fma_f32 v{r}, v45, v43, v44")
    for j in range(5):
        a(f"v_cvt_pk_bf16_f32 v{10+j}, v{30+2*j}, v{31+2*j}")
    a(f"s_mul_i32 s57, s3, 1296\ns_add_u32 s57, s57, {LN_LDS}\nv_add_u32 v46, s57, v3")
    for j in range(5):
        a(f"ds_write_b32 v46, v{10+j} offset:{256*j}")

def p0_xn_stores(a, sc):
    a("v_lshrrev_b32 v47, 3, v0\nv_and_b32 v48, 7, v0")
    a(f"v_mul_u32_u24 v49, 1296, v48\nv_lshl_add_u32 v49, v47, 4, v49\nv_add_u32 v49, {LN_LDS}, v49")
    a("v_lshlrev_b32 v50, 9, v47\nv_lshl_add_u32 v50, v48, 4, v50")
    a(f"s_lshr_b32 s57, s2, 2\ns_mul_i32 s57, s57, {XN_T}\ns_and_b32 s58, s2, 3\ns_lshl_b32 s58, s58, 7\ns_add_u32 s57, s57, s58\ns_add_u32 s57, s57, {XN}")
    a("ds_read_b128 v[52:55], v49\nds_read_b128 v[56:59], v49 offset:512")
    a("s_cmp_ge_u32 s3, 2\ns_cbranch_scc1 XN_no3\nds_read_b128 v[60:63], v49 offset:1024\nXN_no3:")
    a("s_add_u32 s58, s57, 16384\ns_add_u32 s59, s57, 32768")
    a("s_waitcnt lgkmcnt(0)")
    a(f"buffer_store_dwordx4 v[52:55], v50, s[{SRD_WS}:{SRD_WS+3}], s57 offen {sc}")
    a(f"buffer_store_dwordx4 v[56:59], v50, s[{SRD_WS}:{SRD_WS+3}], s58 offen {sc}")
    a(f"s_cmp_ge_u32 s3, 2\ns_cbranch_scc1 XN_no3b\nbuffer_store_dwordx4 v[60:63], v50, s[{SRD_WS}:{SRD_WS+3}], s59 offen {sc}\nXN_no3b:")

def p0_ones(a, sc):
    a(f"s_lshr_b32 s57, s2, 2\ns_mul_i32 s57, s57, {VT_T}\ns_and_b32 s58, s2, 3\ns_mul_i32 s58, s58, {VT_HF}\ns_add_u32 s57, s57, s58\ns_add_u32 s57, s57, {VT + 640*16}")
    a("v_mov_b32 v52, 0x3f803f80\nv_mov_b32 v53, 0x3f803f80\nv_mov_b32 v54, 0x3f803f80\nv_mov_b32 v55, 0x3f803f80")
    a("v_lshlrev_b32 v51, 4, v2\nv_cmp_gt_u32 vcc, 8, v2\ns_and_saveexec_b64 s[98:99], vcc")
    a(f"buffer_store_dwordx4 v[52:55], v51, s[{SRD_WS}:{SRD_WS+3}], s57 offen {sc}")
    a("s_mov_b64 exec, s[98:99]")

def kernel_p0(name="p0_kernel", sc=""):
    a = Asm()
    prologue(a, name, "P0_end")
    p0_x_loads(a)
    a("s_cmp_ge_u32 s3, 4\ns_cbranch_scc1 P0_l1")
    p0_wt_loads(a)
    a("P0_l1:")
    a("s_waitcnt vmcnt(0)")
    p0_ln(a)
    a("s_waitcnt lgkmcnt(0)\ns_barrier")
    a("s_cmp_ge_u32 s3, 4\ns_cbranch_scc1 P0_end")
    p0_xn_stores(a, sc)
    p0_wt_stores(a, sc)
    a("s_cmp_lg_u32 s3, 3\ns_cbranch_scc1 P0_end")
    p0_ones(a, sc)
    a("P0_end:\ns_endpgm")
    return a, kernel_desc(name, 128, 102), (name, (256,1,1), (512,1,1), 163840)
```

```python
from core import *
from layout import *
from p0 import *

NSLOT = 8
V_A = 4
V_QK, V_V, V_H = 10, 11, 12
FR = 16
ACC = [32, 48, 64, 80]
BF = 96
PF = 4

S_TB, S_FB, S_TYPE = 60, 61, 62
S_T32 = 63
S_QK0, S_QK1, S_V0, S_V0b, S_V1, S_V1b, S_H0, S_H1 = 64, 65, 66, 67, 68, 69, 70, 71
S_CQ0, S_CQ1, S_CQ2, S_CP0, S_CP1 = 72, 73, 74, 75, 76
S_J = 77
S_T = 78
S_QSC0, S_QSC1 = 56, 57
QSCALE = 0x3ea52b48
import struct, math
QSCALE = struct.unpack('<I', struct.pack('<f', 20 ** -0.5 * math.log2(math.e)))[0]

def tiles_of(ty):
    if ty == "A": return [("QK", 0), ("QKH", 1), ("P", 0), ("P", 1)]
    if ty == "B": return [("QK", 0), ("P", 0), ("P", 1)]
    if ty == "C": return [("QK", 0), ("V", 0), ("V", 1), ("P", 0)]

def build_seq(ty, nb=3):
    mf = []; stages = []; tiles = []
    if ty == "A": accs = [(0, 1), (2,), (0, 1, 2, 3), (0, 1, 2, 3)]
    if ty == "B": accs = [(0, 1), (2, 3, 0, 1), (2, 3, 0, 1)]
    if ty == "C": accs = [(0, 1), (2, 3), (0, 1), (2, 3, 0, 1)]
    for ti, (kind, idx) in enumerate(tiles_of(ty)):
        ac = accs[ti]; st0 = len(stages); m0 = len(mf)
        if kind in ("QK", "V", "QKH"):
            for s in range(5):
                stages.append((kind, idx, s))
                for k8 in range(8):
                    for ft in ((0, 1) if kind != "QKH" else (2,)):
                        acc = ac[ft] if kind != "QKH" else ac[0]
                        mf.append(dict(stage=st0+s, ksp=k8, adr=ft, bf=8*s+k8, acc=acc, first=(s == 0 and k8 == 0), swap=(kind == "V"), tile=ti))
        else:
            for s in range(10): stages.append((kind, idx, s))
            order = []
            order += [(s, 0) for s in range(nb)] + [(s, 1) for s in range(nb)]
            for s in range(nb, 10 - nb): order += [(s, 0), (s, 1)]
            order += [(s, 0) for s in range(10 - nb, 10)] + [(s, 1) for s in range(10 - nb, 10)]
            for (s, ft) in order:
                for k4 in range(4):
                    for m in range(2):
                        mf.append(dict(stage=st0+s, ksp=m*4+k4, adr=ft, bf=4*s+k4, acc=ac[2*ft+m], first=(s == 0 and k4 == 0), swap=False, tile=ti))
        tiles.append(dict(kind=kind, idx=idx, accs=ac, m0=m0, m1=len(mf)))
    return mf, stages, tiles

def epi_instrs(kind, idx, ft, accs, sc):
    L = []
    ws = f"s[{SRD_WS}:{SRD_WS+3}]"
    if kind in ("QK", "QKH"):
        r = accs[0]
        sreg = S_QK0 if kind == "QK" else S_QK1
        fo = ft * 2048 if kind == "QK" else 0
        ssc = S_QSC0 if kind == "QK" else S_QSC1
        for rg in range(4):
            for q in range(4): L.append(f"v_mul_f32 v{r+4*rg+q}, s{ssc}, v{r+4*rg+q}")
            L.append(f"v_cvt_pk_bf16_f32 v{r+4*rg}, v{r+4*rg}, v{r+4*rg+1}")
            L.append(f"v_cvt_pk_bf16_f32 v{r+4*rg+1}, v{r+4*rg+2}, v{r+4*rg+3}")
            L.append(f"buffer_store_dwordx2 v[{r+4*rg}:{r+4*rg+1}], v{V_QK}, {ws}, s{sreg} offen offset:{fo + rg*512} {sc}")
    elif kind == "V":
        r = accs[0]
        for s in range(2):
            sreg = (S_V0 if idx == 0 else S_V1) + s
            for q in range(4):
                L.append(f"v_cvt_pk_bf16_f32 v{r+8*s+q}, v{r+8*s+2*q}, v{r+8*s+2*q+1}")
            L.append(f"buffer_store_dwordx4 v[{r+8*s}:{r+8*s+3}], v{V_V}, {ws}, s{sreg} offen offset:{ft*512} {sc}")
    else:
        g, u = accs
        sreg = S_H0 + idx
        for s in range(2):
            for q in range(8):
                L.append(f"v_max_f32 v{g+8*s+q}, 0, v{g+8*s+q}")
                L.append(f"v_mul_f32 v{g+8*s+q}, v{g+8*s+q}, v{u+8*s+q}")
            for q in range(4):
                L.append(f"v_cvt_pk_bf16_f32 v{g+8*s+q}, v{g+8*s+2*q}, v{g+8*s+2*q+1}")
            L.append(f"buffer_store_dwordx4 v[{g+8*s}:{g+8*s+3}], v{V_H}, {ws}, s{sreg} offen offset:{(2*ft+s)*1024} {sc}")
    return L

def gen_compute(a, ty, sc, bar_every=16, nb=3, hooks=None, bwait=True, stamps=False, opt=None):
    opt = opt or {}
    mf, stages, tiles = build_seq(ty, nb)
    N = len(mf)
    jobs = []
    for ti, t in enumerate(tiles):
        if t["kind"] == "P": groups = [(0, t["accs"][0:2]), (1, t["accs"][2:4])]
        elif t["kind"] == "QKH": groups = [(0, t["accs"][0:1])]
        else: groups = [(0, t["accs"][0:1]), (1, t["accs"][1:2])]
        for ft, ac in groups:
            last = max(i for i in range(t["m0"], t["m1"]) if mf[i]["acc"] in ac)
            nxt = [i for i in range(t["m1"], N) if mf[i]["acc"] in ac]
            dl = min(nxt) if nxt else N + 1000
            jobs.append(dict(ready=last, dl=dl, ins=epi_instrs(t["kind"], t["idx"], ft, [ACC[x] for x in ac], sc), tile=ti, kind=t["kind"]))
    jobs.sort(key=lambda j: j["ready"])
    fill = {g: [] for g in range(N)}
    tail = []
    cur = 0
    for j in jobs:
        start = max(j["ready"] + 4, cur)
        end = min(j["dl"] - 1, N)
        avail = end - start
        n = len(j["ins"])
        if start >= N - 1 or avail <= 0:
            assert j["dl"] > N, (ty, j["ready"], j["dl"])
            tail += j["ins"]; continue
        if j["dl"] > N: end = N; avail = end - start
        per = -(-n // avail)
        per = max(per, min(3, n))
        g = start; k = 0
        while k < n and g < N:
            fill[g] += j["ins"][k:k+per]; k += per; g += 1
        if k < n:
            assert j["dl"] > N
            tail += j["ins"][k:]
        assert g <= end + 1 or j["dl"] > N, (ty, j, g, end)
        j["last_gap"] = g - 1
        cur = g
    maxfill = max(len(v) for v in fill.values())
    bars = [-1]
    m = 0
    while True:
        step = bar_every
        pos = (bars[-1] + PF + 1)
        kind = tiles[mf[min(pos, N-1)]["tile"]]["kind"]
        if kind == "QKH": step = 8
        nxt = bars[-1] + step if bars[-1] >= 0 else step - PF - 1
        if nxt >= N - PF - 1: break
        bars.append(nxt)
    barset = {b: i for i, b in enumerate(bars)}
    info = []
    for i, b in enumerate(bars):
        lo = b + PF + 1 if b >= 0 else 0
        hi = (bars[i+1] + PF) if i + 1 < len(bars) else N - 1
        need = max(mf[k]["stage"] for k in range(lo, hi + 1))
        done = -1
        for s in range(len(stages)):
            if all(k <= b for k in range(N) if mf[k]["stage"] == s): done = s
            else: break
        info.append((need, done))
    def rd(k):
        x = mf[k]; slot = x["stage"] % NSLOT
        adr = V_A + 2 * x["adr"] + slot // 4
        off = (slot % 4) * 16384 + x["ksp"] * 2048
        fr = FR + 4 * (k % PF)
        return [f"ds_read_b64_tr_b16 v[{fr}:{fr+1}], v{adr} offset:{off}", f"ds_read_b64_tr_b16 v[{fr+2}:{fr+3}], v{adr} offset:{off+512}"]
    hooks = hooks or {}
    a("s_barrier")
    if stamps: a(stamp(1))
    if opt.get("nords"): rd = lambda k: []
    tile_last = {t["m1"] - 1: i for i, t in enumerate(tiles)}
    for k in range(PF): a.extend(rd(k))
    seen_bf = -1
    for k in range(N):
        x = mf[k]
        outstanding = min(PF - 1, N - 1 - k) * 2
        w = f"s_waitcnt lgkmcnt({outstanding})"
        if bwait and x["tile"] == 0 and x["bf"] > seen_bf:
            seen_bf = x["bf"]
            w = f"s_waitcnt vmcnt({39 - x['bf']}) lgkmcnt({outstanding})"
        a(w)
        fr = FR + 4 * (k % PF); ac = ACC[x["acc"]]; bf = BF + 4 * x["bf"]
        c = "0" if x["first"] else f"v[{ac}:{ac+15}]"
        if x["swap"]: a(f"v_mfma_f32_32x32x16_bf16 v[{ac}:{ac+15}], v[{bf}:{bf+3}], v[{fr}:{fr+3}], {c}")
        else:         a(f"v_mfma_f32_32x32x16_bf16 v[{ac}:{ac+15}], v[{fr}:{fr+3}], v[{bf}:{bf+3}], {c}")
        if k in barset and k >= 0:
            bi = barset[k]
            if bi in hooks: a.extend(hooks[bi])
            a("s_barrier")
        if k + PF < N: a.extend(rd(k + PF))
        if not opt.get("noepi"): a.extend(fill[k])
        if stamps and k in tile_last: a(stamp(2 + tile_last[k]))
    if tail and not opt.get("noepi"):
        a("s_nop 7\ns_nop 3")
        a.extend(tail)
    return dict(info=info, stages=stages, tiles=tiles, jobs=jobs, bars=bars, maxfill=maxfill, N=N)

def gen_loader(a, meta, hooks=None, pre_issued=0, opt=None):
    opt = opt or {}
    info, stages = meta["info"], meta["stages"]
    ns = len(stages)
    hooks = hooks or {}
    issued = pre_issued
    def issue(s):
        kind, idx, st = stages[s]
        slot = s % NSLOT
        tile_no = None
        for i in range(4):
            if kind == "P":
                base = S_CP0 + idx; off = (64 * st + 8 * i) * 3456; vo, sr = 5, SRD_B
            else:
                base = {"QK": S_CQ0, "QKH": S_CQ1, "V": S_CQ1 + idx}[kind]; off = (128 * st + 8 * i) * 3840; vo, sr = 4, SRD_A
            a(f"s_add_u32 m0, s{S_J}, {slot*16384 + i*1024}")
            a(f"s_add_u32 s{S_T}, s{base}, {off}")
            if not opt.get("nodma"): a(f"buffer_load_dwordx4 v{vo}, s[{sr}:{sr+3}], s{S_T} offen lds")
    for bi, (need, done) in enumerate(info):
        allowed = min(ns, (info[bi-1][1] if bi > 0 else -1) + NSLOT + 1)
        while issued < allowed:
            issue(issued); issued += 1
        assert issued > need, (bi, need, issued)
        a(f"s_waitcnt vmcnt({min(63, 4 * (issued - 1 - need))})")
        a("s_barrier")
        if bi in hooks: a.extend(hooks[bi])

def setup_common(a):
    a("s_and_b32 s40, s2, 7\ns_lshr_b32 s41, s2, 3")
    a(f"s_lshr_b32 s42, s40, 2\ns_lshl_b32 s42, s42, 3\ns_and_b32 s43, s41, 7\ns_add_u32 s{S_TB}, s42, s43")
    a(f"s_and_b32 s42, s40, 3\ns_lshr_b32 s43, s41, 3\ns_lshl_b32 s43, s43, 2\ns_add_u32 s{S_FB}, s42, s43")

def type_params(a, ty):
    if ty == "A":
        a(f"s_mov_b32 s44, s{S_FB}\ns_and_b32 s45, s{S_FB}, 3\ns_add_u32 s45, s45, 8\ns_mov_b32 s46, 0\ns_lshl_b32 s47, s{S_FB}, 1\ns_add_u32 s48, s47, 1\ns_lshr_b32 s49, s{S_FB}, 2")
    if ty == "B":
        a(f"s_add_u32 s44, s{S_FB}, 4\ns_mov_b32 s45, 0\ns_mov_b32 s46, 0\ns_lshl_b32 s47, s{S_FB}, 1\ns_add_u32 s48, s47, 1\ns_mov_b32 s49, 0")
    if ty == "C":
        a(f"s_add_u32 s44, s{S_FB}, 4\ns_lshl_b32 s45, s{S_FB}, 1\ns_sub_u32 s45, s45, 2\ns_add_u32 s46, s45, 1\ns_add_u32 s47, s{S_FB}, 11\ns_mov_b32 s48, 0\ns_mov_b32 s49, 0")

def qk_store_base(a, dst, q):
    a(f"s_mov_b32 s52, {QS}\ns_cmp_ge_u32 s{q}, 10\ns_cselect_b32 s50, {KS - 10*4096}, s52\ns_lshl_b32 s51, s{q}, 12\ns_add_u32 s50, s50, s51\ns_mul_i32 s51, s{S_T32}, {QS_T}\ns_add_u32 s{dst}, s50, s51")

def setup_compute(a, ty):
    type_params(a, ty)
    a(f"s_mov_b32 s53, {QSCALE}")
    a(f"s_lshl_b32 s{S_T32}, s{S_TB}, 2\ns_add_u32 s{S_T32}, s{S_T32}, s3")
    a("v_lshrrev_b32 v13, 5, v2\nv_lshlrev_b32 v13, 3, v13\nv_bfe_u32 v14, v2, 2, 2\nv_add_u32 v13, v13, v14\nv_lshlrev_b32 v13, 7, v13")
    a("v_bfe_u32 v14, v2, 3, 1\nv_lshl_add_u32 v13, v14, 6, v13")
    a("v_bfe_u32 v14, v2, 4, 1\nv_lshl_add_u32 v13, v14, 5, v13\nv_and_b32 v14, 3, v2\nv_lshl_add_u32 v4, v14, 3, v13")
    a("v_add_u32 v5, 0x10000, v4\nv_xor_b32 v6, 64, v4\nv_xor_b32 v7, 64, v5")
    a("s_lshl_b32 s50, s49, 6\nv_xor_b32 v8, s50, v4\nv_xor_b32 v9, s50, v5")
    a(f"v_lshlrev_b32 v{V_QK}, 3, v2\nv_lshlrev_b32 v{V_H}, 4, v2")
    a(f"v_lshrrev_b32 v13, 5, v2\nv_mul_u32_u24 v13, {VT_HF}, v13\nv_and_b32 v14, 31, v2\nv_lshl_add_u32 v{V_V}, v14, 4, v13")
    qk_store_base(a, S_QK0, 44)
    a(f"s_cmp_ge_u32 s44, 10\ns_cselect_b32 s{S_QSC0}, 1.0, s53")
    if ty == "A":
        qk_store_base(a, S_QK1, 45)
        a(f"s_cmp_ge_u32 s45, 10\ns_cselect_b32 s{S_QSC1}, 1.0, s53")
        a(f"s_lshl_b32 s50, s49, 11\ns_add_u32 s{S_QK1}, s{S_QK1}, s50")
    if ty == "C":
        for n, (q, d) in enumerate([(45, S_V0), (46, S_V1)]):
            a(f"s_sub_u32 s50, s{q}, 20\ns_lshl_b32 s50, s50, 10\ns_mul_i32 s51, s{S_T32}, {VT_T}\ns_add_u32 s50, s50, s51\ns_add_u32 s{d}, s50, {VT}\ns_add_u32 s{d+1}, s{d}, {VT_S}")
    for n, q in enumerate([47, 48]):
        a(f"s_lshl_b32 s50, s{q}, 12\ns_mul_i32 s51, s{S_T32}, {HS_T}\ns_add_u32 s50, s50, s51\ns_add_u32 s{S_H0+n}, s50, {HS}")

def xn_loads(a, sc):
    a(f"s_mul_i32 s50, s{S_T32}, {XN_T}\ns_add_u32 s50, s50, {XN}")
    for ks in range(40):
        if ks % 4 == 0 and ks > 0: a("s_add_u32 s50, s50, 4096")
        a(f"buffer_load_dwordx4 v[{BF+4*ks}:{BF+4*ks+3}], v{V_H}, s[{SRD_WS}:{SRD_WS+3}], s50 offen offset:{(ks%4)*1024} {sc}")

def setup_loader(a, ty):
    type_params(a, ty)
    a(f"s_sub_u32 s40, s3, 4\ns_lshl_b32 s{S_J}, s40, 12")
    srd(a, SRD_A, P_WQKV, D * 1920 * 2)
    a(f"s_cmp_ge_u32 s40, 2\ns_cbranch_scc1 LD_up_{ty}")
    srd(a, SRD_B, P_G, D * F * 2)
    a(f"s_branch LD_sr_{ty}\nLD_up_{ty}:")
    srd(a, SRD_B, P_U, D * F * 2)
    a(f"LD_sr_{ty}:")
    a("v_lshrrev_b32 v13, 3, v2\nv_and_b32 v14, 7, v2\nv_bfe_u32 v15, v2, 4, 1\nv_lshlrev_b32 v15, 2, v15\nv_xor_b32 v14, v14, v15\nv_lshlrev_b32 v14, 4, v14")
    a("v_mul_u32_u24 v4, 3840, v13\nv_add_u32 v4, v4, v14\nv_mul_u32_u24 v5, 3456, v13\nv_add_u32 v5, v5, v14")
    a(f"s_mul_i32 s50, s40, {32*3840}")
    for n, q in enumerate([44, 45, 46]):
        a(f"s_lshl_b32 s51, s{q}, 7\ns_add_u32 s{S_CQ0+n}, s51, s50")
    a(f"s_and_b32 s50, s40, 1\ns_mul_i32 s50, s50, {32*3456}")
    for n, q in enumerate([47, 48]):
        a(f"s_lshl_b32 s51, s{q}, 7\ns_add_u32 s{S_CP0+n}, s51, s50")

ST0 = 80
def stamp(slot, st0=ST0):
    return f"s_memtime s[{st0+2*slot}:{st0+2*slot+1}]"
def stamp_flush(a, n, base_slot, wave, lab, st0=ST0):
    a(f"s_cmp_eq_u32 s3, {wave}\ns_cbranch_scc0 {lab}")
    a("s_waitcnt lgkmcnt(0)")
    a(f"s_lshl_b32 s40, s2, 8\ns_add_u32 s40, s40, {STAMPS + base_slot*8}\nv_mov_b32 v13, 0\ns_mov_b64 exec, 1")
    for i in range(n):
        a(f"v_mov_b32 v14, s{st0+2*i}\nv_mov_b32 v15, s{st0+2*i+1}\nbuffer_store_dwordx2 v[14:15], v13, s[{SRD_WS}:{SRD_WS+3}], s40 offen offset:{8*i}\ns_nop 1")
    a(f"{lab}:")

def kernel_p1(name="p1_kernel", sc="", stamps=False, nb=3, opt=None):
    opt = opt or {}
    a = Asm()
    prologue(a, name, "P1_end")
    setup_common(a)
    metas = {}
    a(f"s_cmp_ge_u32 s3, 4\ns_cbranch_scc1 P1_loader")
    a(f"s_cmp_ge_u32 s{S_FB}, 11\ns_cbranch_scc1 P1_cC\ns_cmp_ge_u32 s{S_FB}, 8\ns_cbranch_scc1 P1_cB")
    for ty in "ABC":
        a(f"P1_c{ty}:")
        setup_compute(a, ty)
        if stamps: a(stamp(0))
        xn_loads(a, sc)
        metas[ty] = gen_compute(a, ty, sc, nb=nb, stamps=stamps, opt=opt)
        if stamps:
            a(stamp(7)); a("s_waitcnt vmcnt(0)"); a(stamp(8))
            stamp_flush(a, 9, 0, 0, f"P1_sf{ty}")
        a("s_branch P1_end")
    a("P1_loader:")
    a(f"s_cmp_ge_u32 s{S_FB}, 11\ns_cbranch_scc1 P1_lC\ns_cmp_ge_u32 s{S_FB}, 8\ns_cbranch_scc1 P1_lB")
    for ty in "ABC":
        a(f"P1_l{ty}:")
        setup_loader(a, ty)
        gen_loader(a, metas[ty], opt=opt)
        a("s_branch P1_end")
    a("P1_end:\ns_endpgm")
    return a, kernel_desc(name, 256, 102), (name, (256,1,1), (512,1,1), 163840), metas
```

```python
from core import *
from layout import *
from p0 import *

L_Q = 0; L_K = 10240; L_V = 61440; L_ONES = 112640
A_TB2, A_HQ = 60, 61
A_QSEL, A_HH = 62, 63
A_T = 64
A_MASK = 40
MK = 70
A_EVEN = 68
A_KEEP = 66
VS = 64
VKA = 8
VKS = 44
VQ = 208; VQS = 212
VO = 216
VM = 232
V_AK, V_AS, V_AV, V_SV = 240, 241, 242, 243
V_NINF, V_M0, V_M1, V_T0, V_T1 = 244, 245, 246, 247, 248
V_OFF = 249
THR = 0x41f00000

def attn_params(a):
    a(f"s_and_b32 s{A_HQ}, s2, 7\ns_lshr_b32 s{A_TB2}, s2, 3")

def attn_dma_setup(a, vbase):
    for p in range(5):
        r = vbase + p
        a(f"v_add_u32 v{r}, {64*p}, v2")
        a(f"v_mul_u32_u24 v{vbase+5}, 205, v{r}\nv_lshrrev_b32 v{vbase+5}, 14, v{vbase+5}")
        a(f"v_mul_u32_u24 v{vbase+6}, 80, v{vbase+5}\nv_sub_u32 v{r}, v{r}, v{vbase+6}")
        a(f"v_lshlrev_b32 v{r}, 4, v{r}\nv_mul_u32_u24 v{vbase+5}, {VT_HF}, v{vbase+5}\nv_add_u32 v{r}, v{r}, v{vbase+5}")
        a(f"v_add_u32 v{r}, {4096 - 1024*p if p < 4 else 4096}, v{r}")
    a(f"v_lshlrev_b32 v{vbase+5}, 4, v2")

def tile_idx(a, n, st):
    a(f"s_lshl_b32 s{st}, s{A_TB2}, 1")
    if n < 8: a(f"s_sub_i32 s{st}, s{st}, {8-n}\ns_max_i32 s{st}, s{st}, 0")
    elif n > 8: a(f"s_add_u32 s{st}, s{st}, {n-8}")

def dma5(a, ldsbase, vregs, soff, sc, step4):
    a(f"s_mov_b32 m0, {ldsbase}\ns_nop 0")
    for p in range(4):
        a(f"buffer_load_dwordx4 v{vregs[p]}, s[{SRD_WS}:{SRD_WS+3}], s{soff} offen offset:{p*1024} {sc} lds")
    a(f"s_mov_b32 m0, {ldsbase + 4096}")
    a(f"s_add_u32 s{soff}, s{soff}, 4096" if step4 else "s_nop 0")
    a(f"buffer_load_dwordx4 v{vregs[4]}, s[{SRD_WS}:{SRD_WS+3}], s{soff} offen {sc} lds")

def dma_k(a, n, vbase, sc, st=A_T):
    tile_idx(a, n, st)
    a(f"s_mul_i32 s{st+1}, s{st}, {QS_T}\ns_mul_i32 s{st}, s{A_HQ}, 5120\ns_add_u32 s{st+1}, s{st+1}, s{st}\ns_add_u32 s{st+1}, s{st+1}, {KS}")
    dma5(a, L_K + n*5120, [vbase+5]*5, st+1, sc, True)
def dma_v(a, n, vbase, sc, st=A_T):
    tile_idx(a, n, st)
    a(f"s_mul_i32 s{st+1}, s{st}, {VT_T}\ns_mul_i32 s{st}, s{A_HQ}, 1280\ns_add_u32 s{st+1}, s{st+1}, s{st}\ns_add_u32 s{st+1}, s{st+1}, {VT - 4096}")
    dma5(a, L_V + n*5120, [vbase+p for p in range(5)], st+1, sc, False)
def dma_q(a, i, vbase, sc, st=A_T):
    a(f"s_lshl_b32 s{st}, s{A_TB2}, 1\ns_add_u32 s{st}, s{st}, {i}")
    a(f"s_mul_i32 s{st+1}, s{st}, {QS_T}\ns_mul_i32 s{st}, s{A_HQ}, 5120\ns_add_u32 s{st+1}, s{st+1}, s{st}\ns_add_u32 s{st+1}, s{st+1}, {QS}")
    dma5(a, L_Q + i*5120, [vbase+5]*5, st+1, sc, True)

def attn_setup(a):
    a(f"v_lshrrev_b32 v{V_T0}, 5, v2\nv_and_b32 v{V_T1}, 31, v2")
    a(f"s_and_b32 s{A_T}, s{A_HH}, 1\ns_lshr_b32 s{A_T+1}, s{A_HH}, 1")
    a(f"s_cmp_eq_u32 s{A_T}, 0\ns_cselect_b64 s[{A_EVEN}:{A_EVEN+1}], -1, 0")
    a(f"s_cselect_b32 s{A_KEEP}, -1, 0\ns_cselect_b32 s{A_KEEP+1}, 0, -1")
    a(f"s_mul_i32 s40, s{A_T+1}, 5\ns_mul_i32 s41, s{A_T}, 3\ns_add_u32 s41, s41, s40\ns_add_u32 s40, s40, 2")
    a(f"s_mul_i32 s42, s{A_QSEL}, 5120")
    a(f"s_lshl_b32 s41, s41, 9\ns_add_u32 s41, s41, s42\ns_lshl_b32 s40, s40, 9\ns_add_u32 s40, s40, s42")
    a(f"v_lshlrev_b32 v{V_AK}, 3, v2\nv_add_u32 v{V_AS}, s40, v{V_AK}\nv_add_u32 v{V_AK}, s41, v{V_AK}")
    a(f"v_subrev_u32 v{V_AV}, 4, v{V_T1}")
    a(f"v_cmp_gt_u32 vcc, 16, v{V_T1}\ns_nop 1\nv_cndmask_b32 v{V_AV}, v{V_AV}, v{V_T1}, vcc")
    a(f"v_cndmask_b32 v{V_AV}, v{V_AV}, v{V_T1}, s[{A_EVEN}:{A_EVEN+1}]")
    a(f"v_cmp_le_u32 s[42:43], 20, v{V_T1}")
    a(f"v_cmp_le_u32 s[44:45], 16, v{V_T1}\nv_cmp_le_u32 s[46:47], 24, v{V_T1}")
    a("s_andn2_b64 s[44:45], s[44:45], s[42:43]\ns_or_b64 s[44:45], s[44:45], s[46:47]")
    a(f"s_cmp_eq_u32 s{A_T}, 0\ns_cselect_b64 s[42:43], s[42:43], s[44:45]")
    a(f"s_mul_i32 s44, s{A_HH}, 20\nv_add_u32 v{V_AV}, s44, v{V_AV}\nv_lshlrev_b32 v{V_AV}, 4, v{V_AV}")
    a(f"v_mul_u32_u24 v{V_SV}, 1280, v{V_T0}\nv_add_u32 v{V_AV}, v{V_AV}, v{V_SV}")
    a(f"s_mul_i32 s44, s{A_QSEL}, 5120\ns_add_u32 s44, s44, {L_V}\nv_add_u32 v{V_AV}, s44, v{V_AV}")
    a(f"v_mov_b32 v{V_SV}, {L_ONES}\nv_cndmask_b32 v{V_AV}, v{V_AV}, v{V_SV}, s[42:43]")
    a(f"v_mov_b32 v{V_SV}, 2560\nv_cndmask_b32 v{V_SV}, v{V_SV}, 0, s[42:43]")
    a(f"v_lshlrev_b32 v{V_T0}, 2, v{V_T0}\nv_sub_u32 v{V_T0}, v{V_T1}, v{V_T0}")
    for r in range(16):
        a(f"v_cmp_gt_i32 s[{MK+2*r}:{MK+2*r+1}], {(r//4)*8 + r%4}, v{V_T0}")
    a(f"v_mov_b32 v{V_T1}, 0xffff0000\nv_mov_b32 v{V_NINF}, 0xff800000")
    for q in range(8):
        a(f"v_cndmask_b32 v{VM+q}, 0, v{V_T1}, s[{MK+4*q+2}:{MK+4*q+3}]")
    for q in range(8):
        a(f"v_cndmask_b32 v{VM+q}, v{VM+q}, -1, s[{MK+4*q}:{MK+4*q+1}]")
    a(f"v_lshlrev_b32 v{V_OFF}, 4, v2\ns_lshl_b32 s44, s{A_T+1}, 3\nv_add_u32 v{V_OFF+1}, s44, v{V_OFF}")

def S(i): return VS + 16 * i

def attn_task(a, lab, sc, stamps=None):
    a(f"ds_read2st64_b64 v[{VQ}:{VQ+3}], v{V_AK} offset0:{L_Q//512} offset1:{L_Q//512+1}")
    a(f"ds_read_b64 v[{VQS}:{VQS+1}], v{V_AS} offset:{L_Q}")
    k0 = L_K // 512
    nrd = 2
    rdlist = []
    for i in range(9):
        rdlist.append(("A", i, f"ds_read2st64_b64 v[{VKA+4*i}:{VKA+4*i+3}], v{V_AK} offset0:{k0+10*i} offset1:{k0+10*i+1}"))
        if i % 2 == 0:
            if i < 8: rdlist.append(("S", i, f"ds_read2st64_b64 v[{VKS+2*i}:{VKS+2*i+3}], v{V_AS} offset0:{k0+10*i} offset1:{k0+10*i+10}"))
            else: rdlist.append(("S", i, f"ds_read_b64 v[{VKS+2*i}:{VKS+2*i+1}], v{V_AS} offset:{L_K+5120*i}"))
    order = [("Q",0)]*2 + rdlist
    for x in rdlist[:11]: a(x[2])
    issued = 13
    a(f"s_waitcnt lgkmcnt({issued-2})")
    a(f"v_cndmask_b32 v{VQS}, 0, v{VQS}, s[{A_KEEP}:{A_KEEP+1}]\nv_cndmask_b32 v{VQS+1}, 0, v{VQS+1}, s[{A_KEEP}:{A_KEEP+1}]")
    for x in rdlist[11:]: a(x[2])
    issued = 16
    def pos(kind, i):
        ii = i if kind == "A" else (i // 2) * 2
        for n, x in enumerate(rdlist):
            if x[0] == kind and x[1] == ii: return n + 3
    def maxops(i, m):
        return [f"v_max3_f32 v{m}, v{m}, v{S(i)+2*q}, v{S(i)+2*q+1}" for q in range(8)]
    pend = []
    first_m = {V_M0: True, V_M1: True}
    seq = [0, 8, 1, 2, 3, 4, 5, 6, 7]
    done_at = {}
    fillq = []
    for n, i in enumerate(seq):
        need = max(pos("A", i), pos("S", i))
        a(f"s_waitcnt lgkmcnt({issued - need})")
        a(f"v_mfma_f32_32x32x16_bf16 v[{S(i)}:{S(i)+15}], v[{VKA+4*i}:{VKA+4*i+3}], v[{VQ}:{VQ+3}], 0")
        for _ in range(6):
            if fillq: a(fillq.pop(0))
        a(f"v_mfma_f32_32x32x8_bf16 v[{S(i)}:{S(i)+15}], v[{VKS+2*i}:{VKS+2*i+1}], v[{VQS}:{VQS+1}], v[{S(i)}:{S(i)+15}]")
        for _ in range(6):
            if fillq: a(fillq.pop(0))
        if n == 3:
            pass
    a("s_nop 7\ns_nop 3")
    a(f"s_lshl_b32 s40, s{A_TB2}, 1\ns_add_u32 s40, s40, s{A_QSEL}")
    a(f"s_cmp_ge_u32 s40, 8\ns_cbranch_scc1 {lab}_noneg")
    for i in range(8):
        a(f"s_add_u32 s41, s40, {i}\ns_cmp_ge_u32 s41, 8\ns_cbranch_scc1 {lab}_noneg")
        for r in range(16): a(f"v_mov_b32 v{S(i)+r}, v{V_NINF}")
    a(f"{lab}_noneg:")
    vbuf = lambda st: (8 + 4 * st) if st < 14 else (S(8) + 4 * (st - 14))
    for r in range(16):
        a(f"v_cndmask_b32 v{S(0)+r}, v{S(8)+r}, v{S(0)+r}, s[{MK+2*r}:{MK+2*r+1}]")
    vorder = [(i, s) for i in [1,2,3,4,5,6,7,0,8] for s in range(2)]
    def vread(n):
        i, s = vorder[n]
        L = []
        if n == 0: L.append(f"v_add_u32 v{V_T0}, v{V_AV}, v{V_SV}\nv_add_u32 v{V_T0}, v{V_T0}, v{V_SV}")
        elif (i, s) == (0, 0): L.append(f"v_mov_b32 v{V_T0}, v{V_AV}")
        elif (i, s) == (8, 0): L.append(f"v_lshl_add_u32 v{V_T0}, v{V_SV}, 4, v{V_AV}")
        else: L.append(f"v_add_u32 v{V_T0}, v{V_T0}, v{V_SV}")
        L.append(f"ds_read_b128 v[{vbuf(n)}:{vbuf(n)+3}], v{V_T0}")
        return L
    for n in range(12): a.extend(vread(n))
    a(f"v_max_f32 v{V_M0}, v{S(0)}, v{S(0)+1}\nv_max_f32 v{V_M1}, v{S(1)}, v{S(1)+1}")
    for q in range(1, 8):
        a(f"v_max3_f32 v{V_M0}, v{V_M0}, v{S(0)+2*q}, v{S(0)+2*q+1}\nv_max3_f32 v{V_M1}, v{V_M1}, v{S(1)+2*q}, v{S(1)+2*q+1}")
    for i in range(2, 8, 2):
        for q in range(8):
            a(f"v_max3_f32 v{V_M0}, v{V_M0}, v{S(i)+2*q}, v{S(i)+2*q+1}\nv_max3_f32 v{V_M1}, v{V_M1}, v{S(i+1)+2*q}, v{S(i+1)+2*q+1}")
    a(f"v_max_f32 v{V_M0}, v{V_M0}, v{V_M1}\ns_nop 0\nv_mov_b32 v{V_M1}, v{V_M0}\ns_nop 1\nv_permlane32_swap_b32 v{V_M0}, v{V_M1}\ns_nop 0")
    a(f"v_max_f32 v{V_M0}, v{V_M0}, v{V_M1}")
    a(f"v_mov_b32 v{V_M1}, {THR}\nv_cmp_nle_f32 vcc, |v{V_M0}|, v{V_M1}\ns_nop 4\ns_cbranch_vccz {lab}_nosub")
    for i in range(8):
        for r in range(16): a(f"v_sub_f32 v{S(i)+r}, v{S(i)+r}, v{V_M0}")
    a(f"{lab}_nosub:")
    nv_issued = 12
    first = True
    def pv(n, preg):
        nonlocal first
        c = "0" if first else f"v[{VO}:{VO+15}]"
        first = False
        return f"v_mfma_f32_32x32x16_bf16 v[{VO}:{VO+15}], v[{vbuf(n)}:{vbuf(n)+3}], v[{preg}:{preg+3}], {c}"
    pendpv = []
    n = 0
    for ti, i in enumerate([1,2,3,4,5,6,7,0]):
        b = S(i)
        for h in range(2):
            ex = [f"v_exp_f32 v{b+8*h+r}, v{b+8*h+r}" for r in range(8)]
            for k, e in enumerate(ex):
                a(e)
                if k == 2 and pendpv:
                    for z in pendpv: a(z)
                    pendpv = []
            a("s_nop 0")
            for q in range(4): a(f"v_cvt_pk_bf16_f32 v{b+4*h+q}, v{b+8*h+2*q}, v{b+8*h+2*q+1}")
            if i != 0:
                w = [f"s_waitcnt lgkmcnt({max(0, nv_issued - (n + 1))})", pv(n, b + 4*h)]
                n += 1
                if nv_issued < 18:
                    w += vread(nv_issued); nv_issued += 1
                pendpv = w
    for z in pendpv: a(z)
    pendpv = []
    b = S(0)
    for q in range(8): a(f"v_and_b32 v{b+8+q}, v{b+q}, v{VM+q}")
    for q in range(8): a(f"v_bfi_b32 v{b+q}, v{VM+q}, 0, v{b+q}")
    assert n == 14 and nv_issued == 18
    a("s_waitcnt lgkmcnt(0)")
    a(pv(14, b + 8)); a(pv(15, b + 12)); a(pv(16, b)); a(pv(17, b + 4))
    a(f"s_lshl_b32 s40, s{A_TB2}, 1\ns_add_u32 s40, s40, s{A_QSEL}\ns_mul_i32 s40, s40, {OS_T}\ns_mul_i32 s41, s{A_HQ}, 5120\ns_add_u32 s40, s40, s41\ns_add_u32 s40, s40, {OS}")
    a(f"s_lshl_b32 s41, s{A_HH}, 10\ns_add_u32 s41, s41, s40\ns_add_u32 s40, s40, 4096")
    a("s_nop 3\ns_nop 0")
    a(f"v_mov_b32 v{V_T0}, v{VO+8}\nv_mov_b32 v{V_T1}, v{VO+8}\ns_nop 1\nv_permlane32_swap_b32 v{V_T0}, v{V_T1}\ns_nop 0")
    a(f"v_cndmask_b32 v{V_T0}, v{V_T0}, v{V_T1}, s[{A_EVEN}:{A_EVEN+1}]\nv_rcp_f32 v{V_T0}, v{V_T0}\ns_nop 0")
    for r in range(12): a(f"v_mul_f32 v{VO+r}, v{VO+r}, v{V_T0}")
    for q in range(6): a(f"v_cvt_pk_bf16_f32 v{VO+q}, v{VO+2*q}, v{VO+2*q+1}")
    a(f"buffer_store_dwordx4 v[{VO}:{VO+3}], v{V_OFF}, s[{SRD_WS}:{SRD_WS+3}], s41 offen {sc}")
    a(f"s_mov_b64 s[42:43], exec\ns_mov_b64 exec, s[{A_KEEP}:{A_KEEP+1}]")
    a(f"buffer_store_dwordx2 v[{VO+4}:{VO+5}], v{V_OFF+1}, s[{SRD_WS}:{SRD_WS+3}], s40 offen {sc}")
    a("s_mov_b64 exec, s[42:43]")

def kernel_p2(name="p2_kernel", sc="", stamps=False):
    from p1 import stamp, stamp_flush
    a = Asm()
    prologue(a, name, "P2_end")
    attn_params(a)
    if stamps: a(stamp(0, 48))
    vb = 8
    attn_dma_setup(a, vb)
    for w in range(8):
        a(f"s_cmp_lg_u32 s3, {w}\ns_cbranch_scc1 P2_d{w}")
        if w in (2, 3): dma_q(a, w - 2, vb, sc)
        dma_k(a, w, vb, sc)
        if w < 2: dma_k(a, 8 + w, vb, sc)
        dma_v(a, w, vb, sc)
        if w < 2: dma_v(a, 8 + w, vb, sc)
        a(f"P2_d{w}:")
    a(f"v_mov_b32 v20, 0x3f803f80\nv_mov_b32 v21, 0x3f803f80\nv_mov_b32 v22, 0x3f803f80\nv_mov_b32 v23, 0x3f803f80\nv_mov_b32 v24, {L_ONES}")
    a("ds_write_b128 v24, v[20:23]")
    a(f"s_lshr_b32 s{A_QSEL}, s3, 2\ns_and_b32 s{A_HH}, s3, 3")
    attn_setup(a)
    if stamps: a(stamp(1, 48))
    a("s_waitcnt vmcnt(0) lgkmcnt(0)\ns_barrier")
    if stamps: a(stamp(2, 48))
    attn_task(a, "P2", sc)
    if stamps:
        a(stamp(3, 48)); a("s_waitcnt vmcnt(0)"); a(stamp(4, 48))
        stamp_flush(a, 5, 10, 0, "P2_sf", 48)
    a("P2_end:\ns_endpgm")
    return a, kernel_desc(name, 256, 102), (name, (256,1,1), (512,1,1), 163840)
```

```python
from core import *
from layout import *
from p0 import *

K_TB2, K_FB = 60, 61
K_WT, K_H0, K_O0 = 62, 63, 64
K_KAP = 65
K_A, K_B0, K_B1 = 66, 67, 68
K_XO = 69
ACC = 16
BUF = 96
NBUF = 4
V_LA, V_LA2, V_LB = 4, 5, 6
V_XO, V_XO2 = 7, 8
VX = 240
L_R1 = 0; L_R2 = 81920

def k3_params(a):
    a("s_and_b32 s40, s2, 7\ns_lshr_b32 s41, s2, 3")
    a(f"s_and_b32 s42, s40, 1\ns_lshl_b32 s42, s42, 2\ns_and_b32 s43, s41, 3\ns_add_u32 s{K_FB}, s42, s43")
    a(f"s_lshr_b32 s42, s40, 1\ns_lshl_b32 s42, s42, 3\ns_lshr_b32 s43, s41, 2\ns_add_u32 s{K_TB2}, s42, s43")

def k3_setup(a):
    a(f"s_mul_i32 s{K_WT}, s{K_FB}, {WT_F}\ns_add_u32 s{K_WT}, s{K_WT}, {WT}")
    a(f"s_lshl_b32 s40, s{K_TB2}, 1\ns_mul_i32 s{K_H0}, s40, {HS_T}\ns_add_u32 s{K_H0}, s{K_H0}, {HS}")
    a(f"s_mul_i32 s{K_O0}, s40, {OS_T}\ns_add_u32 s{K_O0}, s{K_O0}, {OS - 54*2048}")
    a(f"v_lshlrev_b32 v{V_LA}, 4, v2\nv_add_u32 v{V_LA2}, 4096, v{V_LA}")
    a(f"v_lshrrev_b32 v9, 4, v2\nv_and_b32 v10, 15, v2\nv_lshlrev_b32 v{V_LB}, 9, v9\nv_lshl_add_u32 v{V_LB}, v10, 4, v{V_LB}")
    a(f"v_mul_u32_u24 v{V_XO}, 1280, v10\nv_lshl_add_u32 v{V_XO2}, v9, 3, v{V_XO}\nv_add_u32 v{V_XO2}, 128, v{V_XO2}\nv_lshl_add_u32 v{V_XO}, v9, 4, v{V_XO}")
    a(f"s_lshl_b32 s40, s{K_TB2}, 2\ns_and_b32 s41, s3, 3\ns_add_u32 s40, s40, s41\ns_mul_i32 s40, s40, {16*1280}\ns_mul_i32 s41, s{K_FB}, 160\ns_add_u32 s{K_XO}, s40, s41")

def x_loads(a, srdx):
    a(f"buffer_load_dwordx4 v[{VX}:{VX+3}], v{V_XO}, s[{srdx}:{srdx+3}], s{K_XO} offen")
    a(f"buffer_load_dwordx4 v[{VX+4}:{VX+7}], v{V_XO}, s[{srdx}:{srdx+3}], s{K_XO} offen offset:64")
    a(f"buffer_load_dwordx2 v[{VX+8}:{VX+9}], v{V_XO2}, s[{srdx}:{srdx+3}], s{K_XO} offen")

def k_loads(b, sc_act, sc_wt):
    r = BUF + 36 * b
    ws = f"s[{SRD_WS}:{SRD_WS+3}]"
    L = [f"s_mul_i32 s{K_A}, s{K_KAP}, {WT_K}", f"s_lshl_b32 s{K_B0}, s{K_KAP}, 11", f"s_add_u32 s{K_A}, s{K_A}, s{K_WT}",
         f"s_cmp_ge_u32 s{K_KAP}, 54", f"s_cselect_b32 s{K_B1}, s{K_O0}, s{K_H0}", f"s_add_u32 s{K_B0}, s{K_B0}, s{K_B1}",
         f"s_cselect_b32 s{K_B1}, {OS_T}, s59" , f"s_add_u32 s{K_B1}, s{K_B1}, s{K_B0}"]
    L = [f"s_mul_i32 s{K_A}, s{K_KAP}, {WT_K}", f"s_lshl_b32 s{K_B0}, s{K_KAP}, 11", f"s_add_u32 s{K_A}, s{K_A}, s{K_WT}",
         f"s_cmp_ge_u32 s{K_KAP}, 54", f"s_cselect_b32 s58, s{K_O0}, s{K_H0}", f"s_cselect_b32 s{K_B1}, {OS_T}, s59",
         f"s_add_u32 s{K_B0}, s{K_B0}, s58", f"s_add_u32 s{K_B1}, s{K_B1}, s{K_B0}"]
    for tt in range(4):
        L.append(f"buffer_load_dwordx4 v[{r+20+4*tt}:{r+23+4*tt}], v{V_LB}, {ws}, s{K_B0 if tt < 2 else K_B1} offen offset:{(tt%2)*256} {sc_act}")
    for ft in range(5):
        L.append(f"buffer_load_dwordx4 v[{r+4*ft}:{r+3+4*ft}], v{V_LA if ft < 4 else V_LA2}, {ws}, s{K_A} offen offset:{(ft%4)*1024} {sc_wt}")
    return L

def k_mfmas(b, first):
    r = BUF + 36 * b
    L = []
    for ft in range(5):
        for tt in range(4):
            ac = ACC + (tt * 5 + ft) * 4
            c = "0" if first else f"v[{ac}:{ac+3}]"
            L.append(f"v_mfma_f32_16x16x32_bf16 v[{ac}:{ac+3}], v[{r+4*ft}:{r+3+4*ft}], v[{r+20+4*tt}:{r+23+4*tt}], {c}")
    return L

def k3_stream(a, nk, step, extra_out, sc_act, sc_wt, lab, last_cond=None, pf=3):
    issued = 0
    for n in range(min(pf, nk)):
        a.extend(k_loads(n % NBUF, sc_act, sc_wt)); a(f"s_add_u32 s{K_KAP}, s{K_KAP}, {step}"); issued += 1
    for n in range(nk):
        a(f"s_waitcnt vmcnt({9 * (issued - n - 1)})")
        if last_cond is not None and n == nk - 1:
            a(f"s_cmp_eq_u32 s{last_cond}, 0\ns_cbranch_scc1 {lab}_skiplast")
        m = k_mfmas(n % NBUF, n == 0)
        ld = []
        if issued < nk:
            ld = k_loads(issued % NBUF, sc_act, sc_wt) + [f"s_add_u32 s{K_KAP}, s{K_KAP}, {step}"]; issued += 1
        li = 0
        for k, x in enumerate(m):
            a(x)
            if li < len(ld):
                a(ld[li]); li += 1
        while li < len(ld):
            a(ld[li]); li += 1
    if last_cond is not None: a(f"{lab}_skiplast:")

def k3_reduce(a, lab):
    a(f"v_lshlrev_b32 v9, 4, v2")
    a("s_nop 7")
    a(f"s_cmp_lt_u32 s3, 4\ns_cbranch_scc1 {lab}_lo")
    a(f"s_sub_u32 s40, s3, 4\ns_mul_i32 s40, s40, 20480\nv_add_u32 v10, s40, v9")
    for t in range(20): a(f"ds_write_b128 v10, v[{ACC+4*t}:{ACC+4*t+3}] offset:{L_R1 + 1024*t}")
    a(f"s_waitcnt lgkmcnt(0)\ns_barrier\ns_barrier\ns_branch {lab}_end")
    a(f"{lab}_lo:")
    a(f"s_mul_i32 s40, s3, 20480\nv_add_u32 v10, s40, v9")
    a("s_barrier")
    for half in range(2):
        for t in range(10): a(f"ds_read_b128 v[{BUF+4*t}:{BUF+4*t+3}], v10 offset:{L_R1 + 1024*(10*half+t)}")
        for t in range(10):
            a(f"s_waitcnt lgkmcnt({9-t})")
            for r in range(4): a(f"v_add_f32 v{ACC+4*(10*half+t)+r}, v{ACC+4*(10*half+t)+r}, v{BUF+4*t+r}")
    a(f"v_add_u32 v11, {L_R2}, v10")
    for tt in range(4):
        a(f"s_cmp_eq_u32 s3, {tt}\ns_cbranch_scc1 {lab}_w{tt}")
        for ft in range(5): a(f"ds_write_b128 v11, v[{ACC+4*(tt*5+ft)}:{ACC+4*(tt*5+ft)+3}] offset:{1024*(tt*5+ft)}")
        a(f"{lab}_w{tt}:")
    OWN = BUF + 100
    for tt in range(4):
        a(f"s_cmp_lg_u32 s3, {tt}\ns_cbranch_scc1 {lab}_m{tt}")
        for q in range(20): a(f"v_mov_b32 v{OWN+q}, v{ACC+20*tt+q}")
        a(f"{lab}_m{tt}:")
    a("s_waitcnt lgkmcnt(0)\ns_barrier")
    a(f"s_mul_i32 s41, s3, 5120")
    for d in range(1, 4):
        a(f"s_add_u32 s40, s3, {d}\ns_and_b32 s40, s40, 3\ns_mul_i32 s40, s40, 20480\ns_add_u32 s40, s40, s41\ns_add_u32 s40, s40, {L_R2}\nv_add_u32 v{11+d}, s40, v9")
        for ft in range(5): a(f"ds_read_b128 v[{BUF+20*(d-1)+4*ft}:{BUF+20*(d-1)+4*ft+3}], v{11+d} offset:{1024*ft}")
    for d in range(1, 4):
        a(f"s_waitcnt lgkmcnt({5*(3-d)})")
        for q in range(20): a(f"v_add_f32 v{OWN+q}, v{OWN+q}, v{BUF+20*(d-1)+q}")
    a("s_waitcnt vmcnt(0)")
    for q in range(10):
        a(f"v_lshlrev_b32 v{BUF+2*q}, 16, v{VX+q}\nv_and_b32 v{BUF+2*q+1}, 0xffff0000, v{VX+q}")
    for q in range(20): a(f"v_add_f32 v{OWN+q}, v{OWN+q}, v{BUF+q}")
    for q in range(10): a(f"v_cvt_pk_bf16_f32 v{BUF+24+q}, v{OWN+2*q}, v{OWN+2*q+1}")
    o = BUF + 24
    a(f"buffer_store_dwordx4 v[{o}:{o+3}], v{V_XO}, s[{SRD_B}:{SRD_B+3}], s{K_XO} offen")
    a(f"buffer_store_dwordx4 v[{o+4}:{o+7}], v{V_XO}, s[{SRD_B}:{SRD_B+3}], s{K_XO} offen offset:64")
    a(f"buffer_store_dwordx2 v[{o+8}:{o+9}], v{V_XO2}, s[{SRD_B}:{SRD_B+3}], s{K_XO} offen")
    a(f"{lab}_end:")

def kernel_p3(name="p3_kernel", sc="", stamps=False):
    from p1 import stamp, stamp_flush
    a = Asm()
    prologue(a, name, "P3_fin")
    k3_params(a)
    k3_setup(a)
    if stamps: a(stamp(0))
    srd(a, SRD_A, P_X, S * D * 2)
    srd(a, SRD_B, P_OUT, S * D * 2)
    a(f"s_mov_b32 s59, {HS_T}")
    a("s_cmp_ge_u32 s3, 4\ns_cbranch_scc1 P3_nox")
    x_loads(a, SRD_A)
    a("P3_nox:")
    a(f"s_mov_b32 s{K_KAP}, s3\ns_cmp_lt_u32 s3, 2\ns_cselect_b32 s57, 1, 0")
    k3_stream_v1(a, "P3")
    if stamps: a(stamp(1))
    k3_reduce(a, "P3")
    if stamps:
        a(stamp(2)); a("s_waitcnt vmcnt(0)"); a(stamp(3))
        stamp_flush(a, 4, 16, 0, "P3_sf")
    a("P3_fin:\ns_endpgm")
    return a, kernel_desc(name, 256, 102), (name, (256,1,1), (512,1,1), 163840)

def k3_stream_v1(a, lab, pf=3):
    nk = 10; step = 8
    issued = 0
    def adv():
        return [f"s_add_u32 s{K_KAP}, s{K_KAP}, {step}", f"s_min_u32 s{K_KAP}, s{K_KAP}, 73"]
    for n in range(pf):
        a.extend(k_loads(n % NBUF, "", "") + adv()); issued += 1
    for n in range(nk):
        a(f"s_waitcnt vmcnt({9 * (issued - n - 1)})")
        if n == nk - 1: a(f"s_cmp_eq_u32 s57, 0\ns_cbranch_scc1 {lab}_skiplast")
        m = k_mfmas(n % NBUF, n == 0)
        ld = []
        if issued < nk:
            ld = k_loads(issued % NBUF, "", "") + adv(); issued += 1
        li = 0
        for x in m:
            a(x)
            if li < len(ld): a(ld[li]); li += 1
        while li < len(ld): a(ld[li]); li += 1
    a(f"{lab}_skiplast:")
```

```python
import sys, os
sys.path.insert(0, os.path.dirname(os.path.abspath(__file__)))
from core import *
from layout import *
import importlib

def assemble(kernels, path, extra_hdr=""):
    launches = [k[2] for k in kernels]
    s = file_header(launches, MAIN)
    s += extra_hdr
    nerr = 0
    for k in kernels:
        errs = check_hazards(k[0].lines, k[2][0])
        for e in errs[:20]: print(e)
        nerr += len(errs)
        s += k[0].text()
    s += rodata([k[1] for k in kernels])
    os.makedirs(os.path.dirname(path), exist_ok=True)
    open(path, "w").write(s)
    print("wrote", path, len(s), "bytes; hazard errors:", nerr)
    return nerr

if __name__ == "__main__":
    import p0, p1
    which = sys.argv[1]
    out = sys.argv[2]
    if which == "p01":
        k0 = p0.kernel_p0("p0_kernel")
        opt = {o: True for o in sys.argv[3:]}
        k1 = p1.kernel_p1("p1_kernel", stamps=True, opt=opt)
        for ty, m in k1[3].items():
            print(ty, "N", m["N"], "bars", len(m["bars"]), "maxfill", m["maxfill"])
        assemble([k0, k1[:3]], out)
    if which == "all4":
        import p2, p3
        opt = {o: True for o in sys.argv[3:]}
        st = not opt.get("nostamp")
        k0 = p0.kernel_p0("p0_kernel")
        k1 = p1.kernel_p1("p1_kernel", stamps=st, opt=opt)
        k2 = p2.kernel_p2("p2_kernel", stamps=st)
        k3 = p3.kernel_p3("p3_kernel", stamps=st)
        assemble([k0, k1[:3], k2, k3], out)
```

```python
import sys, os
sys.path.insert(0, os.path.dirname(os.path.abspath(__file__)))
from core import *
from layout import *
import importlib

def assemble(kernels, path, extra_hdr=""):
    launches = [k[2] for k in kernels]
    s = file_header(launches, MAIN)
    s += extra_hdr
    nerr = 0
    for k in kernels:
        errs = check_hazards(k[0].lines, k[2][0])
        for e in errs[:20]: print(e)
        nerr += len(errs)
        s += k[0].text()
    s += rodata([k[1] for k in kernels])
    os.makedirs(os.path.dirname(path), exist_ok=True)
    open(path, "w").write(s)
    print("wrote", path, len(s), "bytes; hazard errors:", nerr)
    return nerr

if __name__ == "__main__":
    import p0, p1
    which = sys.argv[1]
    out = sys.argv[2]
    if which == "p01":
        k0 = p0.kernel_p0("p0_kernel")
        opt = {o: True for o in sys.argv[3:]}
        k1 = p1.kernel_p1("p1_kernel", stamps=True, opt=opt)
        for ty, m in k1[3].items():
            print(ty, "N", m["N"], "bars", len(m["bars"]), "maxfill", m["maxfill"])
        assemble([k0, k1[:3]], out)
    if which == "all4":
        import p2, p3
        opt = {o: True for o in sys.argv[3:]}
        st = not opt.get("nostamp")
        k0 = p0.kernel_p0("p0_kernel")
        k1 = p1.kernel_p1("p1_kernel", stamps=st, opt=opt)
        k2 = p2.kernel_p2("p2_kernel", stamps=st)
        if opt.get("rot"): opt["rot"] = (9, 18)
        if opt.get("rot2"): opt["rot"] = (9, 0)
        if opt.get("rot3"): opt["rot"] = (0, 18)
        k3 = p3.kernel_p3("p3_kernel", stamps=st, opt=opt)
        assemble([k0, k1[:3], k2, k3], out)
```

```python
from core import *
import re
from layout import *
import p0, p1, p2, p3
from p0 import srd, SRD_WS, SRD_A, SRD_B, SRD_C, P_X, P_WQKV, P_WO, P_G, P_U, P_D, P_OUT, P_DBG, P_WS
from p1 import build_seq, epi_instrs, NSLOT, V_A, V_QK, V_V, V_H, FR, ACC, BF, PF
from p1 import S_TB, S_FB, S_T32, S_CQ0, S_CQ1, S_CP0, S_J, S_T

FX = 0x000000
FW = 0x010000
FO = 0x020000
FG = 0x080000
K_QK, K_V, K_H0, K_H1 = 0, 1, 2, 3
CT_NONCE, CT_PROG, CT_ATT = 0, 16, 32
RING = 32768
LN_LDS = 1024
L_Q = 512; L_K = L_Q + 10240; L_V = L_K + 51200; L_ONES = L_V + 51200
L_R1 = 512; L_R2 = L_R1 + 81920
p0.LN_LDS = LN_LDS
p2.L_Q, p2.L_K, p2.L_V, p2.L_ONES = L_Q, L_K, L_V, L_ONES
p3.L_R1, p3.L_R2 = L_R1, L_R2
S_NONCE, S_SPIN = 0, 1
S_ST = 10
S_FL = 58
V_NONCE, V_Z, V_STAMP = 0, 3, 1
SPIN = 20000
WS = f"s[{SRD_WS}:{SRD_WS+3}]"

class Stamper:
    def __init__(self, on): self.on = on; self.prev = None
    def mark(self, i):
        if not self.on: return []
        L = []
        if self.prev is not None: L.append(f"v_writelane_b32 v{V_STAMP}, s{S_ST}, {self.prev}")
        L.append(f"s_memrealtime s[{S_ST}:{S_ST+1}]")
        self.prev = i
        return L
    def sync(self):
        if not self.on or self.prev is None: return []
        L = ["s_waitcnt lgkmcnt(0)", f"v_writelane_b32 v{V_STAMP}, s{S_ST}, {self.prev}"]
        self.prev = None
        return L
    def now(self, i): return self.sync() + self.mark(i) + self.sync()
    def flush(self, a):
        if not self.on: return
        a.extend(self.sync())
        a(f"s_mov_b64 exec, -1\ns_lshl_b32 s40, s2, 3\ns_add_u32 s40, s40, s3\ns_lshl_b32 s40, s40, 7\ns_add_u32 s40, s40, {STAMPS}")
        a(f"v_mbcnt_lo_u32_b32 v4, -1, 0\nv_mbcnt_hi_u32_b32 v4, -1, v4\nv_lshlrev_b32 v4, 2, v4\ns_mov_b32 exec_hi, 0")
        a(f"buffer_store_dword v{V_STAMP}, v4, {WS}, s40 offen\ns_mov_b64 exec, -1")

def poll(a, vaddr, soff, mlo, mhi, lab, vt, off=0):
    a(f"s_mov_b32 s{S_SPIN}, {SPIN}\ns_mov_b32 exec_lo, {mlo}\ns_mov_b32 exec_hi, {mhi}")
    a(f"{lab}:")
    a(f"buffer_load_dword v{vt}, v{vaddr}, {WS}, s{soff} offen offset:{off} sc1")
    a(f"s_waitcnt vmcnt(0)\nv_cmp_eq_u32 vcc, s{S_NONCE}, v{vt}\ns_nop 0\ns_cmp_eq_u64 vcc, exec\ns_cbranch_scc1 {lab}_ok")
    a(f"s_sub_u32 s{S_SPIN}, s{S_SPIN}, 1\ns_cmp_lg_u32 s{S_SPIN}, 0\ns_cbranch_scc1 {lab}")
    a(f"{lab}_ok:\ns_mov_b64 exec, -1")

def lds_poll4(a, off, lab, vt):
    a(f"v_mov_b32 v{vt+4}, {off}\ns_mov_b32 s{S_SPIN}, {SPIN*8}")
    a(f"{lab}:\nds_read_b128 v[{vt}:{vt+3}], v{vt+4}\ns_waitcnt lgkmcnt(0)")
    a(f"v_min_u32 v{vt}, v{vt}, v{vt+1}\nv_min3_u32 v{vt}, v{vt}, v{vt+2}, v{vt+3}\ns_nop 0\nv_readfirstlane_b32 s40, v{vt}")
    a(f"s_cmp_lg_u32 s40, 0\ns_cbranch_scc1 {lab}_ok\ns_sub_u32 s{S_SPIN}, s{S_SPIN}, 1\ns_cmp_lg_u32 s{S_SPIN}, 0\ns_cbranch_scc1 {lab}\n{lab}_ok:")

def flag_store(soff, off=0):
    return f"buffer_store_dword v{V_NONCE}, v{V_Z}, {WS}, s{soff} offen offset:{off} sc1"

class Emit:
    def __init__(self, a): self.a = a; self.vm = []; self.ds = []
    def __call__(self, ins, tag=None):
        for l in ins.split("\n") if isinstance(ins, str) else ins:
            l = l.strip()
            if not l: continue
            if l.startswith("buffer_"): self.vm.append(tag)
            elif l.startswith("ds_"): self.ds.append(tag)
            self.a(l)
    def vm_after(self, pred):
        for i in range(len(self.vm) - 1, -1, -1):
            if pred(self.vm[i]): return len(self.vm) - 1 - i
        return None
    def ds_after(self, pred):
        for i in range(len(self.ds) - 1, -1, -1):
            if pred(self.ds[i]): return len(self.ds) - 1 - i
        return None

def ring_plan(ty, nb=3, bar_every=16):
    mf, stages, tiles = build_seq(ty, nb)
    N = len(mf); ns = len(stages)
    phase = (-ns) % NSLOT
    bars = [-1]
    while True:
        pos = bars[-1] + PF + 1
        kind = tiles[mf[min(pos, N-1)]["tile"]]["kind"]
        step = 8 if kind == "QKH" else bar_every
        nxt = bars[-1] + step if bars[-1] >= 0 else step - PF - 1
        if nxt >= N - PF - 1: break
        bars.append(nxt)
    def done_at(b):
        d = -1
        for s in range(ns):
            if all(k <= b for k in range(N) if mf[k]["stage"] == s): d = s
            else: break
        return d
    out = []
    for b in bars:
        out.append(b)
        if done_at(b) >= ns - 6: break
    bars = out
    info = []
    for i, b in enumerate(bars):
        lo = b + PF + 1 if b >= 0 else 0
        hi = (bars[i+1] + PF) if i + 1 < len(bars) else N - 1
        need = max(mf[k]["stage"] for k in range(lo, hi + 1))
        info.append((need, done_at(b)))
    prog = max(k for k in range(N) if mf[k]["stage"] <= ns - 4)
    return dict(mf=mf, stages=stages, tiles=tiles, N=N, ns=ns, phase=phase, bars=bars, info=info, prog=prog)

def gen_compute(a, ty, st, opt):
    P = ring_plan(ty)
    mf, stages, tiles, N, phase, bars = P["mf"], P["stages"], P["tiles"], P["N"], P["phase"], P["bars"]
    sc = "sc1"
    e = Emit(a)
    PRE = opt.get("pre", 16); XRATE = opt.get("xrate", 2); FDELAY = opt.get("fdelay", 48)
    jobs = []
    for ti, t in enumerate(tiles):
        if t["kind"] == "P": groups = [(0, t["accs"][0:2]), (1, t["accs"][2:4])]
        elif t["kind"] == "QKH": groups = [(0, t["accs"][0:1])]
        else: groups = [(0, t["accs"][0:1]), (1, t["accs"][1:2])]
        for ft, ac in groups:
            last = max(i for i in range(t["m0"], t["m1"]) if mf[i]["acc"] in ac)
            nxt = [i for i in range(t["m1"], N) if mf[i]["acc"] in ac]
            dl = min(nxt) if nxt else N + 1000
            jobs.append(dict(ready=last, dl=dl, ins=epi_instrs(t["kind"], t["idx"], ft, [ACC[x] for x in ac], sc), tile=ti, kind=t["kind"]))
    jobs.sort(key=lambda j: j["ready"])
    fill = {g: [] for g in range(N)}
    tail = []
    cur = 0
    for j in jobs:
        start = max(j["ready"] + 4, cur)
        n = len(j["ins"])
        tagged = [(x, ("st", j["tile"])) for x in j["ins"]]
        end = min(j["dl"] - 1, N)
        avail = end - start
        if start >= N - 1 or avail <= 0:
            assert j["dl"] > N
            tail += tagged; j["last_gap"] = N; continue
        if j["dl"] > N: end = N; avail = end - start
        per = max(-(-n // avail), min(3, n))
        g = start; k = 0
        while k < n and g < N:
            fill[g] += tagged[k:k+per]; k += per; g += 1
        if k < n:
            assert j["dl"] > N
            tail += tagged[k:]; g = N + 1
        assert g <= end + 1 or j["dl"] > N
        j["last_gap"] = g - 1
        cur = g
    if ty == "A": groups = [(K_QK, [0, 1]), (K_H0, [2])]
    if ty == "B": groups = [(K_QK, [0]), (K_H0, [1])]
    if ty == "C": groups = [(K_QK, [0]), (K_V, [1, 2])]
    flags = {}
    for kind, tl in groups:
        lg = max(j["last_gap"] for j in jobs if j["tile"] in tl)
        g = lg + FDELAY
        assert g < N - 1, (ty, kind, g)
        flags.setdefault(g, []).append((kind, tl))
    barset = set(b for b in bars if b >= 0)
    def rd(k):
        x = mf[k]; slot = (x["stage"] + phase) % NSLOT
        adr = V_A + 2 * x["adr"] + slot // 4
        off = (slot % 4) * 16384 + x["ksp"] * 2048
        fr = FR + 4 * (k % PF)
        return [f"ds_read_b64_tr_b16 v[{fr}:{fr+1}], v{adr} offset:{off}", f"ds_read_b64_tr_b16 v[{fr+2}:{fr+3}], v{adr} offset:{off+512}"]
    def xn_load(ks):
        L = []
        if ks % 4 == 0 and ks > 0: L.append("s_add_u32 s50, s50, 4096")
        L.append(f"buffer_load_dwordx4 v[{BF+4*ks}:{BF+4*ks+3}], v{V_H}, {WS}, s50 offen offset:{(ks%4)*1024} sc1")
        return L
    a(f"s_mul_i32 s50, s{S_T32}, {XN_T}\ns_add_u32 s50, s50, {XN}")
    nx = 0
    while nx < PRE: e(xn_load(nx), ("xn", nx)); nx += 1
    a("s_barrier")
    a.extend(st.mark(4))
    for k in range(PF): e(rd(k), ("rd", k))
    seen_bf = -1
    tile_last = {t["m1"] - 1: i for i, t in enumerate(tiles)}
    for k in range(N):
        x = mf[k]
        w = f"lgkmcnt({e.ds_after(lambda t: t == ('rd', k))})"
        if x["tile"] == 0 and x["bf"] > seen_bf:
            seen_bf = x["bf"]
            assert ("xn", x["bf"]) in e.vm
            w = f"vmcnt({min(63, e.vm_after(lambda t: t == ('xn', x['bf'])))}) " + w
        a("s_waitcnt " + w)
        fr = FR + 4 * (k % PF); ac = ACC[x["acc"]]; bf = BF + 4 * x["bf"]
        c = "0" if x["first"] else f"v[{ac}:{ac+15}]"
        if x["swap"]: a(f"v_mfma_f32_32x32x16_bf16 v[{ac}:{ac+15}], v[{bf}:{bf+3}], v[{fr}:{fr+3}], {c}")
        else:         a(f"v_mfma_f32_32x32x16_bf16 v[{ac}:{ac+15}], v[{fr}:{fr+3}], v[{bf}:{bf+3}], {c}")
        if k in barset: a("s_barrier")
        if k + PF < N: e(rd(k + PF), ("rd", k + PF))
        if nx < 40 and k % XRATE == XRATE - 1:
            e(xn_load(nx), ("xn", nx)); nx += 1
        for ins, tag in fill[k]: e(ins, tag)
        for kind, tl in flags.get(k, []):
            n = e.vm_after(lambda t: t is not None and t[0] == "st" and t[1] in tl)
            a(f"s_waitcnt vmcnt({min(63, n)})")
            e(flag_store(S_FL, kind * 128), ("flag", kind))
        if k == P["prog"]:
            e("ds_write_b32 v13, v14", ("prog",))
        if k in tile_last: a.extend(st.mark(5 + tile_last[k]))
    if tail:
        a("s_nop 7\ns_nop 3")
        for ins, tag in tail: e(ins, tag)
    a.extend(st.sync())
    return P

def setup_compute(a, ty):
    p1.setup_compute(a, ty)
    for r in range(4, 10): a(f"v_add_u32 v{r}, {RING}, v{r}")
    a(f"s_lshl_b32 s{S_FL}, s{S_T32}, 4\ns_add_u32 s{S_FL}, s{S_FL}, s{S_FB}\ns_lshl_b32 s{S_FL}, s{S_FL}, 9\ns_add_u32 s{S_FL}, s{S_FL}, {FG}")
    a(f"s_lshl_b32 s40, s3, 2\ns_add_u32 s40, s40, {CT_PROG}\nv_mov_b32 v13, s40\nv_mov_b32 v14, 1")

WT_VB = 32
WT_SRD_D, WT_SRD_O = 80, 84
def wt_loads(a, n, sw):
    vb = WT_VB
    g_, l16, gh, gl, col, row, pa = vb, vb+1, vb+2, vb+3, vb+4, vb+5, vb+6
    t = vb + 8
    if n == 0:
        a(f"v_lshrrev_b32 v{g_}, 4, v2\nv_and_b32 v{l16}, 15, v2\nv_lshrrev_b32 v{gh}, 1, v{g_}\nv_and_b32 v{gl}, 1, v{g_}")
        a(f"v_lshrrev_b32 v{pa}, 2, v{l16}\nv_lshlrev_b32 v{pa}, 3, v{pa}\nv_and_b32 v{pa+1}, 3, v{l16}\nv_add_u32 v{pa}, v{pa}, v{pa+1}")
        a("s_and_b32 s41, s2, 7\ns_lshr_b32 s42, s2, 3\ns_mul_i32 s43, s41, 80")
    lab = f"WT_{n}_{a.label('x')}"
    G = 96 + 8 * n
    a(f"s_add_u32 s50, s{sw}, {4*n}\ns_mul_i32 s51, s50, 52\ns_lshr_b32 s51, s51, 8")
    a("s_mul_i32 s52, s51, 5\ns_sub_u32 s52, s50, s52")
    a("s_lshl_b32 s53, s51, 5\ns_add_u32 s53, s53, s42")
    a(f"s_mov_b32 s{44+n}, -1")
    a(f"s_cmp_ge_u32 s50, 15\ns_cbranch_scc1 {lab}_skip\ns_cmp_ge_u32 s53, 74\ns_cbranch_scc1 {lab}_skip")
    a(f"s_mul_i32 s54, s41, {WT_F}\ns_mul_i32 s55, s53, {WT_K}\ns_add_u32 s54, s54, s55\ns_lshl_b32 s55, s52, 10\ns_add_u32 s54, s54, s55\ns_add_u32 s{44+n}, s54, {WT}")
    a("s_lshr_b32 s55, s52, 1\ns_lshl_b32 s55, s55, 5\ns_and_b32 s56, s52, 1\ns_lshl_b32 s56, s56, 2\ns_add_u32 s55, s55, s56\ns_add_u32 s55, s55, s43")
    a(f"s_cmp_eq_u32 s52, 4\ns_cselect_b64 s[56:57], -1, 0\nv_cndmask_b32 v{col}, v{pa}, v{l16}, s[56:57]\nv_add_u32 v{col}, s55, v{col}\nv_lshlrev_b32 v{col}, 1, v{col}")
    a(f"s_cmp_ge_u32 s53, 54\ns_cbranch_scc1 {lab}_o")
    a(f"s_lshl_b32 s55, s53, 5\nv_lshlrev_b32 v{row}, 4, v{gh}\nv_lshl_add_u32 v{row}, v{gl}, 2, v{row}\nv_add_u32 v{row}, s55, v{row}")
    a(f"s_movk_i32 s56, 1280\nv_mul_lo_u32 v{row}, v{row}, s56\nv_add_u32 v{row}, v{row}, v{col}\nv_add_u32 v{col}, 10240, v{row}")
    for j in range(8):
        a(f"buffer_load_ushort v{G+j}, v{row if j < 4 else col}, s[{WT_SRD_D}:{WT_SRD_D+3}], 0 offen offset:{(j%4)*1280}")
    a(f"s_branch {lab}_skip\n{lab}_o:")
    a(f"s_sub_u32 s55, s53, 54\ns_lshl_b32 s55, s55, 1\nv_add_u32 v{t}, s55, v{gh}")
    a(f"v_mul_u32_u24 v{t+1}, 52, v{t}\nv_lshrrev_b32 v{t+1}, 8, v{t+1}")
    a(f"v_mul_u32_u24 v{t+2}, 5, v{t+1}\nv_sub_u32 v{t+2}, v{t}, v{t+2}")
    a(f"v_lshlrev_b32 v{t+1}, 2, v{t+1}")
    a(f"v_add_u32 v{t+3}, v{t+1}, v{t+2}\nv_mul_u32_u24 v{t+3}, 20, v{t+3}\nv_lshl_add_u32 v{t+3}, v{gl}, 2, v{t+3}")
    a(f"v_add_u32 v{t+4}, v{t+1}, v{gl}\nv_mul_u32_u24 v{t+4}, 20, v{t+4}\nv_add_u32 v{t+4}, 16, v{t+4}")
    a(f"v_cmp_eq_u32 vcc, 4, v{t+2}\nv_mov_b32 v{t+5}, 8\nv_mov_b32 v{t+6}, 40\nv_cndmask_b32 v{t+3}, v{t+3}, v{t+4}, vcc\nv_cndmask_b32 v{t+5}, v{t+5}, v{t+6}, vcc")
    a(f"s_movk_i32 s56, 1280\nv_mul_lo_u32 v{row}, v{t+3}, s56\nv_mul_lo_u32 v{t+5}, v{t+5}, s56\nv_add_u32 v{row}, v{row}, v{col}\nv_add_u32 v{col}, v{row}, v{t+5}")
    for j in range(8):
        a(f"buffer_load_ushort v{G+j}, v{row if j < 4 else col}, s[{WT_SRD_O}:{WT_SRD_O+3}], 0 offen offset:{(j%4)*1280}")
    a(f"{lab}_skip:")

def wt_stores(a):
    a(f"v_lshlrev_b32 v{WT_VB+15}, 4, v2")
    for n in range(4):
        lab = a.label("WTS")
        G = 96 + 8 * n
        a(f"s_cmp_eq_u32 s{44+n}, -1\ns_cbranch_scc1 {lab}")
        for q in range(4): a(f"v_lshl_or_b32 v{128+4*n+q}, v{G+2*q+1}, 16, v{G+2*q}")
        a(f"buffer_store_dwordx4 v[{128+4*n}:{131+4*n}], v{WT_VB+15}, {WS}, s{44+n} offen sc1")
        a(f"{lab}:")

def loader_issue(a, P, s):
    kind, idx, stg = P["stages"][s]
    slot = (s + P["phase"]) % NSLOT
    for i in range(4):
        if kind == "P":
            base = S_CP0 + idx; off = (64 * stg + 8 * i) * 3456; vo, sr = 5, SRD_B
        else:
            base = {"QK": S_CQ0, "QKH": S_CQ1, "V": S_CQ1 + idx}[kind]; off = (128 * stg + 8 * i) * 3840; vo, sr = 4, SRD_A
        a(f"s_add_u32 m0, s{S_J}, {RING + slot*16384 + i*1024}")
        a(f"s_add_u32 s{S_T}, s{base}, {off}")
        a(f"buffer_load_dwordx4 v{vo}, s[{sr}:{sr+3}], s{S_T} offen lds")

def gen_loader(a, P, st, opt):
    info, ns = P["info"], P["ns"]
    issued = NSLOT
    q = [("stage", s) for s in range(NSLOT) for _ in range(4)]
    WT_LD = opt.get("wt_ld", 2); WT_ST = WT_LD + opt.get("wt_gap", 9); WT_FL = WT_ST + 9
    nb = len(info)
    assert WT_FL < nb - 1
    for bi, (need, done) in enumerate(info):
        allowed = min(ns, (info[bi-1][1] if bi > 0 else -1) + NSLOT + 1)
        while issued < allowed:
            loader_issue(a, P, issued); q += [("stage", issued)] * 4; issued += 1
        if bi == nb - 1:
            assert issued == ns
            need = ns - 1
        assert issued > need
        last = max(i for i, t in enumerate(q) if t == ("stage", need))
        a(f"s_waitcnt vmcnt({min(63, len(q) - 1 - last)})")
        a("s_barrier")
        if bi == WT_LD:
            a(f"s_sub_u32 s59, s3, 4")
            for n in range(4): wt_loads(a, n, 59)
            wt_mark = issued
        if bi == WT_ST:
            last = max(i for i, t in enumerate(q) if t == ("stage", wt_mark))
            a(f"s_waitcnt vmcnt({min(63, len(q) - 1 - last)})")
            wt_stores(a)
            wt_mark2 = issued
        if bi == WT_FL:
            assert need >= wt_mark2, (need, wt_mark2)
            lab = a.label("FW")
            a(f"s_cmp_lg_u32 s3, 4\ns_cbranch_scc1 {lab}\ns_lshl_b32 s40, s2, 7\ns_add_u32 s40, s40, {FW}")
            a(flag_store(40))
            a(f"{lab}:")

def attn_dma_dyn(a, kind, m, vb, sj, sj5):
    t = 64
    if kind == "Q":
        a(f"s_lshl_b32 s{t}, s{p2.A_TB2}, 1\ns_add_u32 s{t}, s{t}, {m}")
        a(f"s_mul_i32 s{t+1}, s{t}, {QS_T}\ns_mul_i32 s{t}, s{p2.A_HQ}, 5120\ns_add_u32 s{t+1}, s{t+1}, s{t}\ns_add_u32 s{t+1}, s{t+1}, {QS}")
        p2.dma5(a, L_Q + m * 5120, [vb+5]*5, t+1, "sc1", True)
    elif kind == "K": p2.dma_k(a, m, vb, "sc1", t)
    else: p2.dma_v(a, m, vb, "sc1", t)

def qk_producers(hq):
    def fbs(q):
        if q < 8: return [q]
        if q < 12: return [q - 8, q - 4]
        return [q - 4]
    t1, t2 = (80 * hq) >> 6, (80 * hq + 79) >> 6
    L = []
    for q in (t1, t2, 10 + t1, 10 + t2):
        for f in fbs(q):
            if f not in L: L.append(f)
    while len(L) < 6: L.append(L[0])
    assert len(L) == 6
    return L

def poll_qk(a, lab):
    tab = [sum(f << (4 * i) for i, f in enumerate(qk_producers(h))) for h in range(8)]
    a(f"s_mov_b32 s41, {tab[0]}")
    for h in range(1, 8):
        a(f"s_mov_b32 s42, {tab[h]}\ns_cmp_eq_u32 s{p2.A_HQ}, {h}\ns_cselect_b32 s41, s42, s41")
    a("v_mul_u32_u24 v16, 43, v2\nv_lshrrev_b32 v16, 8, v16")
    a("v_mul_u32_u24 v17, 6, v16\nv_sub_u32 v17, v2, v17\nv_lshlrev_b32 v17, 2, v17")
    a("v_lshrrev_b32 v17, v17, s41\nv_and_b32 v17, 15, v17")
    a(f"s_lshl_b32 s42, s{p2.A_TB2}, 1\ns_sub_i32 s42, s42, 8\nv_add_u32 v16, s42, v16\nv_max_i32 v16, 0, v16")
    a("v_lshl_add_u32 v16, v16, 4, v17\nv_lshlrev_b32 v16, 9, v16")
    a(f"s_mov_b32 s43, {FG}")
    poll(a, 16, 43, -1, 0x0fffffff, lab, 18, off=K_QK * 128)

def poll_v(a, lab):
    a(f"s_mul_i32 s41, s{p2.A_HQ}, 80\ns_add_u32 s42, s41, 79\ns_lshr_b32 s41, s41, 7\ns_lshr_b32 s42, s42, 7")
    a("s_add_u32 s41, s41, 11\ns_add_u32 s42, s42, 11")
    a("v_and_b32 v17, 1, v2\nv_cmp_eq_u32 vcc, 1, v17\nv_mov_b32 v17, s41\nv_mov_b32 v18, s42\nv_cndmask_b32 v17, v17, v18, vcc")
    a(f"v_lshrrev_b32 v16, 1, v2\ns_lshl_b32 s42, s{p2.A_TB2}, 1\ns_sub_i32 s42, s42, 8\nv_add_u32 v16, s42, v16\nv_max_i32 v16, 0, v16")
    a("v_lshl_add_u32 v16, v16, 4, v17\nv_lshlrev_b32 v16, 9, v16")
    a(f"s_mov_b32 s43, {FG}")
    poll(a, 16, 43, 0xfffff, 0, lab, 18, off=K_V * 128)

from p3 import K_TB2, K_FB, K_WT, K_H0, K_O0, K_KAP, K_A, K_B0, K_B1, BUF, NBUF, V_LA, V_LA2, V_LB, k_mfmas
def k_addr(kap_expr_lines, o_part):
    b = K_O0 if o_part else K_H0
    stride = OS_T if o_part else HS_T
    return [f"s_mul_i32 s{K_A}, s{K_KAP}, {WT_K}", f"s_lshl_b32 s{K_B0}, s{K_KAP}, 11", f"s_add_u32 s{K_A}, s{K_A}, s{K_WT}",
            f"s_add_u32 s{K_B0}, s{K_B0}, s{b}", f"s_add_u32 s{K_B1}, s{K_B0}, {stride}"]
def k_wt(b):
    r = BUF + 36 * b
    return [f"buffer_load_dwordx4 v[{r+4*ft}:{r+3+4*ft}], v{V_LA if ft < 4 else V_LA2}, {WS}, s{K_A} offen offset:{(ft%4)*1024} sc1" for ft in range(5)]
def k_act(b):
    r = BUF + 36 * b
    return [f"buffer_load_dwordx4 v[{r+20+4*tt}:{r+23+4*tt}], v{V_LB}, {WS}, s{K_B0 if tt < 2 else K_B1} offen offset:{(tt%2)*256} sc1" for tt in range(4)]

def poll_fw(a, lab):
    a(f"v_lshlrev_b32 v16, 10, v2\ns_lshl_b32 s43, s{K_FB}, 7\ns_add_u32 s43, s43, {FW}")
    poll(a, 16, 43, -1, 0, lab, 18)
def poll_fh(a, lab, kind):
    a(f"s_lshl_b32 s43, s{K_TB2}, 14\ns_add_u32 s43, s43, {FG}\nv_lshlrev_b32 v250, 9, v2")
    m = 0x07ff07ff if kind == K_H0 else -1
    poll(a, 250, 43, m, 0, lab, 251, off=kind * 128)
def poll_fo(a, lab):
    a(f"s_lshl_b32 s43, s{K_TB2}, 12\ns_add_u32 s43, s43, {FO}\nv_lshlrev_b32 v16, 7, v2")
    poll(a, 16, 43, -1, 0, lab, 18)

def h_stream(a, st, role):
    J = 57
    e = Emit(a)
    def set_kap(n):
        if n <= 4:   return [f"s_add_u32 s{K_KAP}, s56, {8*n}"]
        if n == 5:   return [f"s_mov_b32 s{K_KAP}, s55"]
        if n <= 10:  return [f"s_add_u32 s{K_KAP}, s54, {8*(n-6)}"]
        return [f"s_add_u32 s{K_KAP}, s{J}, {44 + 4*(n-11)}"] + ([f"s_min_u32 s{K_KAP}, s{K_KAP}, 53"] if n == 13 else [])
    a(f"s_lshr_b32 s40, s{J}, 1\ns_lshl_b32 s40, s40, 2\ns_and_b32 s41, s{J}, 1\ns_add_u32 s56, s40, s41")
    a(f"s_add_u32 s42, s{J}, 40\ns_cmp_lt_u32 s{J}, 2\ns_cselect_b32 s55, s42, s{J}")
    a(f"s_add_u32 s40, s{J}, 2\ns_lshr_b32 s40, s40, 1\ns_lshl_b32 s40, s40, 2\ns_add_u32 s54, s40, s41\ns_add_u32 s54, s54, 2")
    NI = 14; pf = 3; LATE = 5
    if role == "pre":
        for n in range(pf):
            e(set_kap(n) + k_addr(None, False)); e(k_wt(n % NBUF), ("wt", n)); e(k_act(n % NBUF), ("act", n))
        return e
    return None

def h_stream_main(a, e, st, bv_at):
    J = 57; NI = 14; pf = 3; LATE = 5
    def set_kap(n):
        if n <= 4:   return [f"s_add_u32 s{K_KAP}, s56, {8*n}"]
        if n == 5:   return [f"s_mov_b32 s{K_KAP}, s55"]
        if n <= 10:  return [f"s_add_u32 s{K_KAP}, s54, {8*(n-6)}"]
        return [f"s_add_u32 s{K_KAP}, s{J}, {44 + 4*(n-11)}"] + ([f"s_min_u32 s{K_KAP}, s{K_KAP}, 53"] if n == 13 else [])
    lab = a.label("HS")
    for n in range(NI):
        if n == bv_at: a("s_barrier")
        if n == LATE - 1:
            a.extend(st.now(12))
            poll_fh(a, lab + "_fh1", K_H1)
            e.vm = []
            a.extend(st.now(13))
            for m in range(LATE, n + pf):
                e(set_kap(m) + k_addr(None, False)); e(k_act(m % NBUF), ("act", m))
        w1 = e.vm_after(lambda t: t == ("wt", n)); w2 = e.vm_after(lambda t: t == ("act", n))
        ws_ = [x for x in (w1, w2) if x is not None]
        if ws_: a(f"s_waitcnt vmcnt({min(63, min(ws_))})")
        if n == NI - 1: a(f"s_cmp_ge_u32 s{J}, 2\ns_cbranch_scc1 {lab}_skip")
        m = k_mfmas(n % NBUF, n == 0)
        ld = []
        nn = n + pf
        if nn < NI:
            ld = [(x, None) for x in set_kap(nn) + k_addr(None, False)] + [(x, ("wt", nn)) for x in k_wt(nn % NBUF)]
            if not (LATE <= nn < LATE - 1 + pf): ld += [(x, ("act", nn)) for x in k_act(nn % NBUF)]
        li = 0
        for x in m:
            a(x)
            if li < len(ld): e(ld[li][0], ld[li][1]); li += 1
        while li < len(ld): e(ld[li][0], ld[li][1]); li += 1
    a(f"{lab}_skip:")

def o_stream(a, st):
    e = Emit(a)
    NI = 5; pf = 3
    def set_kap(n): return [f"s_add_u32 s{K_KAP}, s3, {54 + 4*n}"]
    for n in range(pf):
        e(set_kap(n) + k_addr(None, True)); e(k_wt(n), ("wt", n))
    a.extend(st.now(12))
    poll_fo(a, "FOp")
    e.vm = []
    a.extend(st.now(13))
    for n in range(pf):
        e(set_kap(n) + k_addr(None, True)); e(k_act(n), ("act", n))
    for n in range(NI):
        w1 = e.vm_after(lambda t: t == ("wt", n)); w2 = e.vm_after(lambda t: t == ("act", n))
        ws_ = [x for x in (w1, w2) if x is not None]
        a(f"s_waitcnt vmcnt({min(63, min(ws_))})")
        m = k_mfmas(n % NBUF, n == 0)
        ld = []
        nn = n + pf
        if nn < NI:
            ld = [(x, None) for x in set_kap(nn) + k_addr(None, True)] + [(x, ("wt", nn)) for x in k_wt(nn % NBUF)] + [(x, ("act", nn)) for x in k_act(nn % NBUF)]
        li = 0
        for x in m:
            a(x)
            if li < len(ld): e(ld[li][0], ld[li][1]); li += 1
        while li < len(ld): e(ld[li][0], ld[li][1]); li += 1

def k3_setup(a):
    p3.k3_params(a)
    p3.k3_setup(a)

def reduce_phase(a, lab, st):
    from p3 import ACC as KACC, V_XO, V_XO2, K_XO, VX
    a(f"v_lshlrev_b32 v9, 4, v2")
    a("s_nop 7")
    a(f"s_cmp_lt_u32 s3, 4\ns_cbranch_scc1 {lab}_lo")
    lds_poll4(a, CT_ATT, lab + "_wa", 96)
    a(f"s_sub_u32 s40, s3, 4\ns_mul_i32 s40, s40, 20480\nv_add_u32 v10, s40, v9")
    for t in range(20): a(f"ds_write_b128 v10, v[{KACC+4*t}:{KACC+4*t+3}] offset:{L_R1 + 1024*t}")
    a.extend(st.now(15))
    a(f"s_waitcnt lgkmcnt(0)\ns_barrier\ns_barrier\ns_branch {lab}_end")
    a(f"{lab}_lo:")
    a(f"s_mul_i32 s40, s3, 20480\nv_add_u32 v10, s40, v9")
    a.extend(st.now(14))
    a("s_barrier")
    a.extend(st.now(15))
    for half in range(2):
        for t in range(10): a(f"ds_read_b128 v[{BUF+4*t}:{BUF+4*t+3}], v10 offset:{L_R1 + 1024*(10*half+t)}")
        for t in range(10):
            a(f"s_waitcnt lgkmcnt({9-t})")
            for r in range(4): a(f"v_add_f32 v{KACC+4*(10*half+t)+r}, v{KACC+4*(10*half+t)+r}, v{BUF+4*t+r}")
    a(f"v_add_u32 v11, {L_R2}, v10")
    for tt in range(4):
        a(f"s_cmp_eq_u32 s3, {tt}\ns_cbranch_scc1 {lab}_w{tt}")
        for ft in range(5): a(f"ds_write_b128 v11, v[{KACC+4*(tt*5+ft)}:{KACC+4*(tt*5+ft)+3}] offset:{1024*(tt*5+ft)}")
        a(f"{lab}_w{tt}:")
    OWN = BUF + 100
    for tt in range(4):
        a(f"s_cmp_lg_u32 s3, {tt}\ns_cbranch_scc1 {lab}_m{tt}")
        for q in range(20): a(f"v_mov_b32 v{OWN+q}, v{KACC+20*tt+q}")
        a(f"{lab}_m{tt}:")
    a("s_waitcnt lgkmcnt(0)\ns_barrier")
    a(f"s_mul_i32 s41, s3, 5120")
    for d in range(1, 4):
        a(f"s_add_u32 s40, s3, {d}\ns_and_b32 s40, s40, 3\ns_mul_i32 s40, s40, 20480\ns_add_u32 s40, s40, s41\ns_add_u32 s40, s40, {L_R2}\nv_add_u32 v{11+d}, s40, v9")
        for ft in range(5): a(f"ds_read_b128 v[{BUF+20*(d-1)+4*ft}:{BUF+20*(d-1)+4*ft+3}], v{11+d} offset:{1024*ft}")
    for d in range(1, 4):
        a(f"s_waitcnt lgkmcnt({5*(3-d)})")
        for q in range(20): a(f"v_add_f32 v{OWN+q}, v{OWN+q}, v{BUF+20*(d-1)+q}")
    a("s_waitcnt vmcnt(0)")
    for q in range(10):
        a(f"v_lshlrev_b32 v{BUF+2*q}, 16, v{VX+q}\nv_and_b32 v{BUF+2*q+1}, 0xffff0000, v{VX+q}")
    for q in range(20): a(f"v_add_f32 v{OWN+q}, v{OWN+q}, v{BUF+q}")
    for q in range(10): a(f"v_cvt_pk_bf16_f32 v{BUF+24+q}, v{OWN+2*q}, v{OWN+2*q+1}")
    o = BUF + 24
    a(f"buffer_store_dwordx4 v[{o}:{o+3}], v{V_XO}, s[{SRD_B}:{SRD_B+3}], s{K_XO} offen")
    a(f"buffer_store_dwordx4 v[{o+4}:{o+7}], v{V_XO}, s[{SRD_B}:{SRD_B+3}], s{K_XO} offen offset:64")
    a(f"buffer_store_dwordx2 v[{o+8}:{o+9}], v{V_XO2}, s[{SRD_B}:{SRD_B+3}], s{K_XO} offen")
    a(f"{lab}_end:")

def kernel(name, stamps=False, opt=None):
    opt = opt or {}
    a = Asm()
    st = Stamper(stamps)
    a(kernel_begin(name))
    a("s_cmp_ge_u32 s2, 256\ns_cbranch_scc1 F_exit")
    a("s_load_dwordx16 s[4:19], s[0:1], 0\ns_load_dwordx4 s[20:23], s[0:1], 64\ns_memrealtime s[46:47]")
    a("v_lshrrev_b32 v1, 6, v0\nv_and_b32 v2, 63, v0\nv_readfirstlane_b32 s3, v1")
    a("s_waitcnt lgkmcnt(0)")
    p0.p0_x_loads(a)
    srd(a, SRD_WS, P_WS, WS_BYTES)
    if stamps:
        a(f"v_mov_b32 v{V_STAMP}, 0\nv_writelane_b32 v{V_STAMP}, s46, 0")
    srd(a, SRD_C, P_DBG, 256)
    a("s_cmp_lg_u32 s3, 3\ns_cbranch_scc1 F_n0")
    a("s_cmp_lg_u32 s2, 0\ns_cbranch_scc1 F_n0")
    a(f"s_or_b32 s46, s46, 1\nv_mov_b32 v4, s46\nv_mov_b32 v5, 0\ns_mov_b64 exec, 1\nbuffer_store_dword v4, v5, s[{SRD_C}:{SRD_C+3}], 0 offen sc1\ns_mov_b64 exec, -1")
    a("F_n0:")
    p1.setup_common(a)
    a("s_cmp_ge_u32 s3, 4\ns_cbranch_scc1 F_ldr0")
    a("s_cmp_lg_u32 s3, 0\ns_cbranch_scc1 F_c0")
    a("v_mov_b32 v4, 0\nv_lshlrev_b32 v5, 2, v2\nds_write_b32 v5, v4")
    a("F_c0:")
    a("s_waitcnt vmcnt(0)")
    a.extend(st.now(1))
    p0.p0_ln(a)
    a("s_waitcnt lgkmcnt(0)\ns_barrier")
    p0.p0_xn_stores(a, "sc1")
    a("s_cmp_lg_u32 s3, 3\ns_cbranch_scc1 F_c1")
    a(f"s_mov_b32 s{S_SPIN}, {SPIN}\nv_mov_b32 v5, 0")
    a(f"F_np:\nbuffer_load_dword v4, v5, s[{SRD_C}:{SRD_C+3}], 0 offen sc1\ns_waitcnt vmcnt(0)\nv_readfirstlane_b32 s40, v4\ns_cmp_lg_u32 s40, 0\ns_cbranch_scc1 F_np1")
    a(f"s_sub_u32 s{S_SPIN}, s{S_SPIN}, 1\ns_cmp_lg_u32 s{S_SPIN}, 0\ns_cbranch_scc1 F_np")
    a(f"F_np1:\nv_mov_b32 v5, {CT_NONCE}\nds_write_b32 v5, v4")
    a("F_c1:")
    a("s_waitcnt vmcnt(0) lgkmcnt(0)")
    a.extend(st.now(2))
    a("s_barrier")
    def get_nonce():
        a(f"v_cmp_eq_u32 vcc, 0, v2\nv_mov_b32 v15, {CT_NONCE}\nv_mov_b32 v{V_Z}, 0x80000000\nds_read_b32 v{V_NONCE}, v15\nv_cndmask_b32 v{V_Z}, v{V_Z}, 0, vcc")
        a(f"s_waitcnt lgkmcnt(0)\nv_readfirstlane_b32 s{S_NONCE}, v{V_NONCE}")
    get_nonce()
    a("s_cmp_lg_u32 s3, 0\ns_cbranch_scc1 F_c2")
    a(f"s_lshl_b32 s40, s2, 7\ns_add_u32 s40, s40, {FX}")
    a(flag_store(40))
    a("F_c2:")
    metas = {}
    a(f"s_cmp_ge_u32 s{S_FB}, 11\ns_cbranch_scc1 F_cC\ns_cmp_ge_u32 s{S_FB}, 8\ns_cbranch_scc1 F_cB")
    for ty in "ABC":
        a(f"F_c{ty}:")
        setup_compute(a, ty)
        a(f"s_lshl_b32 s43, s{S_T32}, 9\ns_add_u32 s43, s43, {FX}\nv_lshlrev_b32 v16, 7, v2")
        poll(a, 16, 43, 0xf, 0, f"FXp{ty}", 17)
        a.extend(st.now(3))
        metas[ty] = gen_compute(a, ty, st, opt)
        a("s_branch F_att")
    a("F_att:")
    a.extend(st.now(9))
    p2.attn_params(a)
    a(f"s_mov_b32 s{p2.A_QSEL}, 0\ns_mov_b32 s{p2.A_HH}, s3")
    p2.attn_setup(a)
    a("s_barrier")
    a.extend(st.now(10))
    a("s_mov_b32 s59, 0")
    a("F_task:")
    attn_task(a, "AT", st)
    a(f"s_cmp_lg_u32 s59, 0\ns_cbranch_scc1 F_att_done")
    a(f"s_mov_b32 s59, 1\ns_mov_b32 s{p2.A_QSEL}, 1")
    a(f"v_add_u32 v{p2.V_AK}, 5120, v{p2.V_AK}\nv_add_u32 v{p2.V_AS}, 5120, v{p2.V_AS}\nv_lshl_add_u32 v{p2.V_AV}, v{p2.V_SV}, 1, v{p2.V_AV}")
    a("s_branch F_task")
    a("F_att_done:")
    a(f"s_lshl_b32 s40, s3, 2\ns_add_u32 s40, s40, {CT_ATT}\nv_mov_b32 v4, s40\nv_mov_b32 v5, 1\nds_write_b32 v4, v5")
    a(f"s_lshl_b32 s40, s{p2.A_TB2}, 3\ns_add_u32 s40, s40, s{p2.A_HQ}\ns_lshl_b32 s40, s40, 2\ns_add_u32 s40, s40, s3\ns_lshl_b32 s40, s40, 7\ns_add_u32 s58, s40, {FO}")
    k3_setup(a)
    srd(a, SRD_A, P_X, S * D * 2)
    srd(a, SRD_B, P_OUT, S * D * 2)
    a("s_waitcnt vmcnt(0)")
    a(flag_store(58))
    a.extend(st.now(11))
    p3.x_loads(a, SRD_A)
    o_stream(a, st)
    a("s_branch F_red")
    a("F_ldr0:")
    a(f"s_cmp_ge_u32 s{S_FB}, 11\ns_cbranch_scc1 F_lC\ns_cmp_ge_u32 s{S_FB}, 8\ns_cbranch_scc1 F_lB")
    for ty in "ABC":
        P = metas[ty]
        a(f"F_l{ty}:")
        tmp = Asm(); p1.setup_loader(tmp, ty)
        for l in tmp.lines:
            a(re.sub(r"\bv1([345])\b", lambda m: "v" + str(20 + int(m.group(1)) - 3), l))
        for s in range(NSLOT): loader_issue(a, P, s)
        srd(a, WT_SRD_D, P_D, F * D * 2)
        srd(a, WT_SRD_O, P_WO, D * D * 2)
        a("s_waitcnt vmcnt(32)")
        a.extend(st.now(1))
        p0.p0_ln(a)
        a("s_waitcnt lgkmcnt(0)\ns_barrier")
        a("s_barrier")
        get_nonce()
        a.extend(st.now(2))
        gen_loader(a, P, st, opt)
        a("s_branch F_ltail")
    a("F_ltail:")
    a.extend(st.now(8))
    p2.attn_params(a)
    vb = 8
    a("s_cmp_ge_u32 s3, 6\ns_cbranch_scc1 F_lt67")
    p2.attn_dma_setup(a, vb)
    a("s_cmp_eq_u32 s3, 5\ns_cbranch_scc1 F_lt5")
    poll_qk(a, "PQK")
    a.extend(st.now(9))
    for m in range(2): attn_dma_dyn(a, "Q", m, vb, None, None)
    for m in range(10): attn_dma_dyn(a, "K", m, vb, None, None)
    k3_setup(a)
    a("s_sub_u32 s57, s3, 4")
    a("s_waitcnt vmcnt(0)")
    a.extend(st.now(10))
    a("s_barrier")
    a("s_branch F_lt45")
    a("F_lt5:")
    lds_poll4(a, CT_PROG, "PPR", 20)
    poll_v(a, "PV")
    a.extend(st.now(9))
    a(f"v_mov_b32 v20, 0x3f803f80\nv_mov_b32 v21, 0x3f803f80\nv_mov_b32 v22, 0x3f803f80\nv_mov_b32 v23, 0x3f803f80\nv_mov_b32 v24, {L_ONES}")
    a("ds_write_b128 v24, v[20:23]")
    for m in range(10): attn_dma_dyn(a, "V", m, vb, None, None)
    k3_setup(a)
    a("s_sub_u32 s57, s3, 4")
    a("s_waitcnt lgkmcnt(0)")
    a("s_barrier")
    a("F_lt45:")
    poll_fw(a, "PW45")
    poll_fh(a, "PH45", K_H0)
    a.extend(st.now(11))
    a("s_barrier")
    e = h_stream(a, st, "pre")
    h_stream_main(a, e, st, None)
    a("s_branch F_red")
    a("F_lt67:")
    k3_setup(a)
    a("s_sub_u32 s57, s3, 4")
    poll_fw(a, "PW67")
    poll_fh(a, "PH67", K_H0)
    a.extend(st.now(11))
    e = h_stream(a, st, "pre")
    a("s_barrier")
    h_stream_main(a, e, st, opt.get("bv_at", 2))
    a("F_red:")
    reduce_phase(a, "RD", st)
    if stamps:
        a("s_waitcnt vmcnt(0)")
        a.extend(st.now(16))
        st.flush(a)
    a("F_exit:\ns_endpgm")
    return a, kernel_desc(name, 256, 102), (name, (256,1,1), (512,1,1), 163840), metas

def attn_task(a, lab, st):
    tmp = Asm()
    p2.attn_task(tmp, lab, "sc1")
    lines = tmp.lines
    idx = next(i for i, l in enumerate(lines) if l.startswith(f"{lab}_noneg:"))
    a.extend(lines[:idx + 1])
    a(f"s_cmp_lg_u32 s59, 0\ns_cbranch_scc1 {lab}_nb")
    a("s_waitcnt vmcnt(0)")
    a(flag_store(S_FL, K_H1 * 128))
    a("s_barrier")
    a(f"{lab}_nb:")
    a.extend(lines[idx + 1:])
```

```python
from core import *
from layout import *
from p0 import *

NSLOT = 8
V_A = 4
V_QK, V_V, V_H = 10, 11, 12
FR = 16
ACC = [32, 48, 64, 80]
BF = 96
PF = 4

S_TB, S_FB, S_TYPE = 60, 61, 62
S_T32 = 63
S_QK0, S_QK1, S_V0, S_V0b, S_V1, S_V1b, S_H0, S_H1 = 64, 65, 66, 67, 68, 69, 70, 71
S_CQ0, S_CQ1, S_CQ2, S_CP0, S_CP1 = 72, 73, 74, 75, 76
S_J = 77
S_T = 78
S_QSC0, S_QSC1 = 56, 57
QSCALE = 0x3ea52b48
import struct, math
QSCALE = struct.unpack('<I', struct.pack('<f', 20 ** -0.5 * math.log2(math.e)))[0]

def tiles_of(ty):
    if ty == "A": return [("QK", 0), ("QKH", 1), ("P", 0), ("P", 1)]
    if ty == "B": return [("QK", 0), ("P", 0), ("P", 1)]
    if ty == "C": return [("QK", 0), ("V", 0), ("V", 1), ("P", 0)]

def build_seq(ty, nb=3):
    mf = []; stages = []; tiles = []
    if ty == "A": accs = [(0, 1), (2,), (0, 1, 2, 3), (0, 1, 2, 3)]
    if ty == "B": accs = [(0, 1), (2, 3, 0, 1), (2, 3, 0, 1)]
    if ty == "C": accs = [(0, 1), (2, 3), (0, 1), (2, 3, 0, 1)]
    for ti, (kind, idx) in enumerate(tiles_of(ty)):
        ac = accs[ti]; st0 = len(stages); m0 = len(mf)
        if kind in ("QK", "V", "QKH"):
            for s in range(5):
                stages.append((kind, idx, s))
                for k8 in range(8):
                    for ft in ((0, 1) if kind != "QKH" else (2,)):
                        acc = ac[ft] if kind != "QKH" else ac[0]
                        mf.append(dict(stage=st0+s, ksp=k8, adr=ft, bf=8*s+k8, acc=acc, first=(s == 0 and k8 == 0), swap=(kind == "V"), tile=ti))
        else:
            for s in range(10): stages.append((kind, idx, s))
            order = []
            order += [(s, 0) for s in range(nb)] + [(s, 1) for s in range(nb)]
            for s in range(nb, 10 - nb): order += [(s, 0), (s, 1)]
            order += [(s, 0) for s in range(10 - nb, 10)] + [(s, 1) for s in range(10 - nb, 10)]
            for (s, ft) in order:
                for k4 in range(4):
                    for m in range(2):
                        mf.append(dict(stage=st0+s, ksp=m*4+k4, adr=ft, bf=4*s+k4, acc=ac[2*ft+m], first=(s == 0 and k4 == 0), swap=False, tile=ti))
        tiles.append(dict(kind=kind, idx=idx, accs=ac, m0=m0, m1=len(mf)))
    return mf, stages, tiles

def epi_instrs(kind, idx, ft, accs, sc):
    L = []
    ws = f"s[{SRD_WS}:{SRD_WS+3}]"
    if kind in ("QK", "QKH"):
        r = accs[0]
        sreg = S_QK0 if kind == "QK" else S_QK1
        fo = ft * 2048 if kind == "QK" else 0
        ssc = S_QSC0 if kind == "QK" else S_QSC1
        for rg in range(4):
            for q in range(4): L.append(f"v_mul_f32 v{r+4*rg+q}, s{ssc}, v{r+4*rg+q}")
            L.append(f"v_cvt_pk_bf16_f32 v{r+4*rg}, v{r+4*rg}, v{r+4*rg+1}")
            L.append(f"v_cvt_pk_bf16_f32 v{r+4*rg+1}, v{r+4*rg+2}, v{r+4*rg+3}")
            L.append(f"buffer_store_dwordx2 v[{r+4*rg}:{r+4*rg+1}], v{V_QK}, {ws}, s{sreg} offen offset:{fo + rg*512} {sc}")
    elif kind == "V":
        r = accs[0]
        for s in range(2):
            sreg = (S_V0 if idx == 0 else S_V1) + s
            for q in range(4):
                L.append(f"v_cvt_pk_bf16_f32 v{r+8*s+q}, v{r+8*s+2*q}, v{r+8*s+2*q+1}")
            L.append(f"buffer_store_dwordx4 v[{r+8*s}:{r+8*s+3}], v{V_V}, {ws}, s{sreg} offen offset:{ft*512} {sc}")
    else:
        g, u = accs
        sreg = S_H0 + idx
        for s in range(2):
            for q in range(8):
                L.append(f"v_max_f32 v{g+8*s+q}, 0, v{g+8*s+q}")
                L.append(f"v_mul_f32 v{g+8*s+q}, v{g+8*s+q}, v{u+8*s+q}")
            for q in range(4):
                L.append(f"v_cvt_pk_bf16_f32 v{g+8*s+q}, v{g+8*s+2*q}, v{g+8*s+2*q+1}")
            L.append(f"buffer_store_dwordx4 v[{g+8*s}:{g+8*s+3}], v{V_H}, {ws}, s{sreg} offen offset:{(2*ft+s)*1024} {sc}")
    return L

def gen_compute(a, ty, sc, bar_every=16, nb=3, hooks=None, bwait=True, stamps=False, opt=None):
    opt = opt or {}
    mf, stages, tiles = build_seq(ty, nb)
    N = len(mf)
    jobs = []
    for ti, t in enumerate(tiles):
        if t["kind"] == "P": groups = [(0, t["accs"][0:2]), (1, t["accs"][2:4])]
        elif t["kind"] == "QKH": groups = [(0, t["accs"][0:1])]
        else: groups = [(0, t["accs"][0:1]), (1, t["accs"][1:2])]
        for ft, ac in groups:
            last = max(i for i in range(t["m0"], t["m1"]) if mf[i]["acc"] in ac)
            nxt = [i for i in range(t["m1"], N) if mf[i]["acc"] in ac]
            dl = min(nxt) if nxt else N + 1000
            jobs.append(dict(ready=last, dl=dl, ins=epi_instrs(t["kind"], t["idx"], ft, [ACC[x] for x in ac], sc), tile=ti, kind=t["kind"]))
    jobs.sort(key=lambda j: j["ready"])
    fill = {g: [] for g in range(N)}
    tail = []
    cur = 0
    for j in jobs:
        start = max(j["ready"] + 4, cur)
        end = min(j["dl"] - 1, N)
        avail = end - start
        n = len(j["ins"])
        if start >= N - 1 or avail <= 0:
            assert j["dl"] > N, (ty, j["ready"], j["dl"])
            tail += j["ins"]; continue
        if j["dl"] > N: end = N; avail = end - start
        per = -(-n // avail)
        per = max(per, min(3, n))
        g = start; k = 0
        while k < n and g < N:
            fill[g] += j["ins"][k:k+per]; k += per; g += 1
        if k < n:
            assert j["dl"] > N
            tail += j["ins"][k:]
        assert g <= end + 1 or j["dl"] > N, (ty, j, g, end)
        j["last_gap"] = g - 1
        cur = g
    maxfill = max(len(v) for v in fill.values())
    bars = [-1]
    m = 0
    while True:
        step = bar_every
        pos = (bars[-1] + PF + 1)
        kind = tiles[mf[min(pos, N-1)]["tile"]]["kind"]
        if kind == "QKH": step = 8
        nxt = bars[-1] + step if bars[-1] >= 0 else step - PF - 1
        if nxt >= N - PF - 1: break
        bars.append(nxt)
    barset = {b: i for i, b in enumerate(bars)}
    info = []
    for i, b in enumerate(bars):
        lo = b + PF + 1 if b >= 0 else 0
        hi = (bars[i+1] + PF) if i + 1 < len(bars) else N - 1
        need = max(mf[k]["stage"] for k in range(lo, hi + 1))
        done = -1
        for s in range(len(stages)):
            if all(k <= b for k in range(N) if mf[k]["stage"] == s): done = s
            else: break
        info.append((need, done))
    def rd(k):
        x = mf[k]; slot = x["stage"] % NSLOT
        adr = V_A + 2 * x["adr"] + slot // 4
        off = (slot % 4) * 16384 + x["ksp"] * 2048
        fr = FR + 4 * (k % PF)
        return [f"ds_read_b64_tr_b16 v[{fr}:{fr+1}], v{adr} offset:{off}", f"ds_read_b64_tr_b16 v[{fr+2}:{fr+3}], v{adr} offset:{off+512}"]
    hooks = hooks or {}
    a("s_barrier")
    if stamps: a(stamp(1))
    if opt.get("nords"): rd = lambda k: []
    tile_last = {t["m1"] - 1: i for i, t in enumerate(tiles)}
    for k in range(PF): a.extend(rd(k))
    seen_bf = -1
    for k in range(N):
        x = mf[k]
        outstanding = min(PF - 1, N - 1 - k) * 2
        w = f"s_waitcnt lgkmcnt({outstanding})"
        if bwait and x["tile"] == 0 and x["bf"] > seen_bf:
            seen_bf = x["bf"]
            w = f"s_waitcnt vmcnt({39 - x['bf']}) lgkmcnt({outstanding})"
        a(w)
        fr = FR + 4 * (k % PF); ac = ACC[x["acc"]]; bf = BF + 4 * x["bf"]
        c = "0" if x["first"] else f"v[{ac}:{ac+15}]"
        if x["swap"]: a(f"v_mfma_f32_32x32x16_bf16 v[{ac}:{ac+15}], v[{bf}:{bf+3}], v[{fr}:{fr+3}], {c}")
        else:         a(f"v_mfma_f32_32x32x16_bf16 v[{ac}:{ac+15}], v[{fr}:{fr+3}], v[{bf}:{bf+3}], {c}")
        if k in barset and k >= 0:
            bi = barset[k]
            if bi in hooks: a.extend(hooks[bi])
            a("s_barrier")
        if k + PF < N: a.extend(rd(k + PF))
        if not opt.get("noepi"): a.extend(fill[k])
        if stamps and k in tile_last: a(stamp(2 + tile_last[k]))
    if tail and not opt.get("noepi"):
        a("s_nop 7\ns_nop 3")
        a.extend(tail)
    return dict(info=info, stages=stages, tiles=tiles, jobs=jobs, bars=bars, maxfill=maxfill, N=N)

def gen_loader(a, meta, hooks=None, pre_issued=0, opt=None):
    opt = opt or {}
    info, stages = meta["info"], meta["stages"]
    ns = len(stages)
    hooks = hooks or {}
    issued = pre_issued
    def issue(s):
        kind, idx, st = stages[s]
        slot = s % NSLOT
        tile_no = None
        for i in range(4):
            if kind == "P":
                base = S_CP0 + idx; off = (64 * st + 8 * i) * 3456; vo, sr = 5, SRD_B
            else:
                base = {"QK": S_CQ0, "QKH": S_CQ1, "V": S_CQ1 + idx}[kind]; off = (128 * st + 8 * i) * 3840; vo, sr = 4, SRD_A
            a(f"s_add_u32 m0, s{S_J}, {slot*16384 + i*1024}")
            a(f"s_add_u32 s{S_T}, s{base}, {off}")
            if not opt.get("nodma"): a(f"buffer_load_dwordx4 v{vo}, s[{sr}:{sr+3}], s{S_T} offen lds")
    for bi, (need, done) in enumerate(info):
        allowed = min(ns, (info[bi-1][1] if bi > 0 else -1) + NSLOT + 1)
        while issued < allowed:
            issue(issued); issued += 1
        assert issued > need, (bi, need, issued)
        a(f"s_waitcnt vmcnt({min(63, 4 * (issued - 1 - need))})")
        a("s_barrier")
        if bi in hooks: a.extend(hooks[bi])

def setup_common(a):
    a("s_and_b32 s40, s2, 7\ns_lshr_b32 s41, s2, 3")
    a(f"s_lshr_b32 s42, s40, 2\ns_lshl_b32 s42, s42, 3\ns_and_b32 s43, s41, 7\ns_add_u32 s{S_TB}, s42, s43")
    a(f"s_and_b32 s42, s40, 3\ns_lshr_b32 s43, s41, 3\ns_lshl_b32 s43, s43, 2\ns_add_u32 s{S_FB}, s42, s43")

def type_params(a, ty):
    if ty == "A":
        a(f"s_mov_b32 s44, s{S_FB}\ns_and_b32 s45, s{S_FB}, 3\ns_add_u32 s45, s45, 8\ns_mov_b32 s46, 0\ns_lshl_b32 s47, s{S_FB}, 1\ns_add_u32 s48, s47, 1\ns_lshr_b32 s49, s{S_FB}, 2")
    if ty == "B":
        a(f"s_add_u32 s44, s{S_FB}, 4\ns_mov_b32 s45, 0\ns_mov_b32 s46, 0\ns_lshl_b32 s47, s{S_FB}, 1\ns_add_u32 s48, s47, 1\ns_mov_b32 s49, 0")
    if ty == "C":
        a(f"s_add_u32 s44, s{S_FB}, 4\ns_lshl_b32 s45, s{S_FB}, 1\ns_sub_u32 s45, s45, 2\ns_add_u32 s46, s45, 1\ns_add_u32 s47, s{S_FB}, 11\ns_mov_b32 s48, 0\ns_mov_b32 s49, 0")

def qk_store_base(a, dst, q):
    a(f"s_mov_b32 s52, {QS}\ns_cmp_ge_u32 s{q}, 10\ns_cselect_b32 s50, {KS - 10*4096}, s52\ns_lshl_b32 s51, s{q}, 12\ns_add_u32 s50, s50, s51\ns_mul_i32 s51, s{S_T32}, {QS_T}\ns_add_u32 s{dst}, s50, s51")

def setup_compute(a, ty):
    type_params(a, ty)
    a(f"s_mov_b32 s53, {QSCALE}")
    a(f"s_lshl_b32 s{S_T32}, s{S_TB}, 2\ns_add_u32 s{S_T32}, s{S_T32}, s3")
    a("v_lshrrev_b32 v13, 5, v2\nv_lshlrev_b32 v13, 3, v13\nv_bfe_u32 v14, v2, 2, 2\nv_add_u32 v13, v13, v14\nv_lshlrev_b32 v13, 7, v13")
    a("v_bfe_u32 v14, v2, 3, 1\nv_lshl_add_u32 v13, v14, 6, v13")
    a("v_bfe_u32 v14, v2, 4, 1\nv_lshl_add_u32 v13, v14, 5, v13\nv_and_b32 v14, 3, v2\nv_lshl_add_u32 v4, v14, 3, v13")
    a("v_add_u32 v5, 0x10000, v4\nv_xor_b32 v6, 64, v4\nv_xor_b32 v7, 64, v5")
    a("s_lshl_b32 s50, s49, 6\nv_xor_b32 v8, s50, v4\nv_xor_b32 v9, s50, v5")
    a(f"v_lshlrev_b32 v{V_QK}, 3, v2\nv_lshlrev_b32 v{V_H}, 4, v2")
    a(f"v_lshrrev_b32 v13, 5, v2\nv_mul_u32_u24 v13, {VT_HF}, v13\nv_and_b32 v14, 31, v2\nv_lshl_add_u32 v{V_V}, v14, 4, v13")
    qk_store_base(a, S_QK0, 44)
    a(f"s_cmp_ge_u32 s44, 10\ns_cselect_b32 s{S_QSC0}, 1.0, s53")
    if ty == "A":
        qk_store_base(a, S_QK1, 45)
        a(f"s_cmp_ge_u32 s45, 10\ns_cselect_b32 s{S_QSC1}, 1.0, s53")
        a(f"s_lshl_b32 s50, s49, 11\ns_add_u32 s{S_QK1}, s{S_QK1}, s50")
    if ty == "C":
        for n, (q, d) in enumerate([(45, S_V0), (46, S_V1)]):
            a(f"s_sub_u32 s50, s{q}, 20\ns_lshl_b32 s50, s50, 10\ns_mul_i32 s51, s{S_T32}, {VT_T}\ns_add_u32 s50, s50, s51\ns_add_u32 s{d}, s50, {VT}\ns_add_u32 s{d+1}, s{d}, {VT_S}")
    for n, q in enumerate([47, 48]):
        a(f"s_lshl_b32 s50, s{q}, 12\ns_mul_i32 s51, s{S_T32}, {HS_T}\ns_add_u32 s50, s50, s51\ns_add_u32 s{S_H0+n}, s50, {HS}")

def x_scatter_loads(a):
    srd(a, SRD_C, P_X, S * D * 2)
    a(f"s_mul_i32 s50, s{S_T32}, {32*1280}")
    a("v_and_b32 v13, 31, v2\nv_mul_u32_u24 v13, 1280, v13\nv_lshrrev_b32 v14, 5, v2\nv_lshl_add_u32 v13, v14, 4, v13")
    for ks in range(40):
        a(f"buffer_load_dwordx4 v[{BF+4*ks}:{BF+4*ks+3}], v13, s[{SRD_C}:{SRD_C+3}], s50 offen offset:{ks*32}")

def xn_loads(a, sc):
    a(f"s_mul_i32 s50, s{S_T32}, {XN_T}\ns_add_u32 s50, s50, {XN}")
    for ks in range(40):
        if ks % 4 == 0 and ks > 0: a("s_add_u32 s50, s50, 4096")
        a(f"buffer_load_dwordx4 v[{BF+4*ks}:{BF+4*ks+3}], v{V_H}, s[{SRD_WS}:{SRD_WS+3}], s50 offen offset:{(ks%4)*1024} {sc}")

def setup_loader(a, ty):
    type_params(a, ty)
    a(f"s_sub_u32 s40, s3, 4\ns_lshl_b32 s{S_J}, s40, 12")
    srd(a, SRD_A, P_WQKV, D * 1920 * 2)
    a(f"s_cmp_ge_u32 s40, 2\ns_cbranch_scc1 LD_up_{ty}")
    srd(a, SRD_B, P_G, D * F * 2)
    a(f"s_branch LD_sr_{ty}\nLD_up_{ty}:")
    srd(a, SRD_B, P_U, D * F * 2)
    a(f"LD_sr_{ty}:")
    a("v_lshrrev_b32 v13, 3, v2\nv_and_b32 v14, 7, v2\nv_bfe_u32 v15, v2, 4, 1\nv_lshlrev_b32 v15, 2, v15\nv_xor_b32 v14, v14, v15\nv_lshlrev_b32 v14, 4, v14")
    a("v_mul_u32_u24 v4, 3840, v13\nv_add_u32 v4, v4, v14\nv_mul_u32_u24 v5, 3456, v13\nv_add_u32 v5, v5, v14")
    a(f"s_mul_i32 s50, s40, {32*3840}")
    for n, q in enumerate([44, 45, 46]):
        a(f"s_lshl_b32 s51, s{q}, 7\ns_add_u32 s{S_CQ0+n}, s51, s50")
    a(f"s_and_b32 s50, s40, 1\ns_mul_i32 s50, s50, {32*3456}")
    for n, q in enumerate([47, 48]):
        a(f"s_lshl_b32 s51, s{q}, 7\ns_add_u32 s{S_CP0+n}, s51, s50")

ST0 = 80
def stamp(slot, st0=ST0):
    return f"s_memtime s[{st0+2*slot}:{st0+2*slot+1}]"
def stamp_flush(a, n, base_slot, wave, lab, st0=ST0):
    a(f"s_cmp_eq_u32 s3, {wave}\ns_cbranch_scc0 {lab}")
    a("s_waitcnt lgkmcnt(0)")
    a(f"s_lshl_b32 s40, s2, 8\ns_add_u32 s40, s40, {STAMPS + base_slot*8}\nv_mov_b32 v13, 0\ns_mov_b64 exec, 1")
    for i in range(n):
        a(f"v_mov_b32 v14, s{st0+2*i}\nv_mov_b32 v15, s{st0+2*i+1}\nbuffer_store_dwordx2 v[14:15], v13, s[{SRD_WS}:{SRD_WS+3}], s40 offen offset:{8*i}\ns_nop 1")
    a(f"{lab}:")

def stamp_flush_all(a, n, base_off, lab, st0=ST0):
    a("s_waitcnt lgkmcnt(0)")
    a(f"s_lshl_b32 s40, s2, 3\ns_add_u32 s40, s40, s3\ns_lshl_b32 s40, s40, 6\ns_add_u32 s40, s40, {STAMPS + base_off}\nv_mov_b32 v13, 0\ns_mov_b64 exec, 1")
    for i in range(n):
        a(f"v_mov_b32 v14, s{st0+2*i}\nv_mov_b32 v15, s{st0+2*i+1}\nbuffer_store_dwordx2 v[14:15], v13, s[{SRD_WS}:{SRD_WS+3}], s40 offen offset:{8*i}\ns_nop 1")

def kernel_p1(name="p1_kernel", sc="", stamps=False, nb=3, opt=None):
    opt = opt or {}
    a = Asm()
    prologue(a, name, "P1_end")
    setup_common(a)
    metas = {}
    a(f"s_cmp_ge_u32 s3, 4\ns_cbranch_scc1 P1_loader")
    a(f"s_cmp_ge_u32 s{S_FB}, 11\ns_cbranch_scc1 P1_cC\ns_cmp_ge_u32 s{S_FB}, 8\ns_cbranch_scc1 P1_cB")
    for ty in "ABC":
        a(f"P1_c{ty}:")
        setup_compute(a, ty)
        if stamps: a(stamp(0))
        if opt.get("xscat"): x_scatter_loads(a)
        else: xn_loads(a, sc)
        metas[ty] = gen_compute(a, ty, sc, nb=nb, stamps=stamps, opt=opt)
        if stamps:
            a(stamp(7)); a("s_waitcnt vmcnt(0)"); a(stamp(8))
            stamp_flush(a, 9, 0, 0, f"P1_sf{ty}")
        a("s_branch P1_end")
    a("P1_loader:")
    a(f"s_cmp_ge_u32 s{S_FB}, 11\ns_cbranch_scc1 P1_lC\ns_cmp_ge_u32 s{S_FB}, 8\ns_cbranch_scc1 P1_lB")
    for ty in "ABC":
        a(f"P1_l{ty}:")
        setup_loader(a, ty)
        gen_loader(a, metas[ty], opt=opt)
        a("s_branch P1_end")
    a("P1_end:\ns_endpgm")
    return a, kernel_desc(name, 256, 102), (name, (256,1,1), (512,1,1), 163840), metas
```

```python
from core import *
from layout import *
from p0 import *

K_TB2, K_FB = 60, 61
K_WT, K_H0, K_O0 = 62, 63, 64
K_KAP = 65
K_A, K_B0, K_B1 = 66, 67, 68
K_XO = 69
ACC = 16
BUF = 96
NBUF = 4
V_LA, V_LA2, V_LB = 4, 5, 6
V_XO, V_XO2 = 7, 8
VX = 240
L_R1 = 0; L_R2 = 81920

def k3_params(a):
    a("s_and_b32 s40, s2, 7\ns_lshr_b32 s41, s2, 3")
    a(f"s_and_b32 s42, s40, 1\ns_lshl_b32 s42, s42, 2\ns_and_b32 s43, s41, 3\ns_add_u32 s{K_FB}, s42, s43")
    a(f"s_lshr_b32 s42, s40, 1\ns_lshl_b32 s42, s42, 3\ns_lshr_b32 s43, s41, 2\ns_add_u32 s{K_TB2}, s42, s43")

def k3_setup(a):
    a(f"s_mul_i32 s{K_WT}, s{K_FB}, {WT_F}\ns_add_u32 s{K_WT}, s{K_WT}, {WT}")
    a(f"s_lshl_b32 s40, s{K_TB2}, 1\ns_mul_i32 s{K_H0}, s40, {HS_T}\ns_add_u32 s{K_H0}, s{K_H0}, {HS}")
    a(f"s_mul_i32 s{K_O0}, s40, {OS_T}\ns_add_u32 s{K_O0}, s{K_O0}, {OS - 54*2048}")
    a(f"v_lshlrev_b32 v{V_LA}, 4, v2\nv_add_u32 v{V_LA2}, 4096, v{V_LA}")
    a(f"v_lshrrev_b32 v9, 4, v2\nv_and_b32 v10, 15, v2\nv_lshlrev_b32 v{V_LB}, 9, v9\nv_lshl_add_u32 v{V_LB}, v10, 4, v{V_LB}")
    a(f"v_mul_u32_u24 v{V_XO}, 1280, v10\nv_lshl_add_u32 v{V_XO2}, v9, 3, v{V_XO}\nv_add_u32 v{V_XO2}, 128, v{V_XO2}\nv_lshl_add_u32 v{V_XO}, v9, 4, v{V_XO}")
    a(f"s_lshl_b32 s40, s{K_TB2}, 2\ns_and_b32 s41, s3, 3\ns_add_u32 s40, s40, s41\ns_mul_i32 s40, s40, {16*1280}\ns_mul_i32 s41, s{K_FB}, 160\ns_add_u32 s{K_XO}, s40, s41")

def x_loads(a, srdx):
    a(f"buffer_load_dwordx4 v[{VX}:{VX+3}], v{V_XO}, s[{srdx}:{srdx+3}], s{K_XO} offen")
    a(f"buffer_load_dwordx4 v[{VX+4}:{VX+7}], v{V_XO}, s[{srdx}:{srdx+3}], s{K_XO} offen offset:64")
    a(f"buffer_load_dwordx2 v[{VX+8}:{VX+9}], v{V_XO2}, s[{srdx}:{srdx+3}], s{K_XO} offen")

def k_loads(b, sc_act, sc_wt):
    r = BUF + 36 * b
    ws = f"s[{SRD_WS}:{SRD_WS+3}]"
    L = [f"s_mul_i32 s{K_A}, s{K_KAP}, {WT_K}", f"s_lshl_b32 s{K_B0}, s{K_KAP}, 11", f"s_add_u32 s{K_A}, s{K_A}, s{K_WT}",
         f"s_cmp_ge_u32 s{K_KAP}, 54", f"s_cselect_b32 s{K_B1}, s{K_O0}, s{K_H0}", f"s_add_u32 s{K_B0}, s{K_B0}, s{K_B1}",
         f"s_cselect_b32 s{K_B1}, {OS_T}, s59" , f"s_add_u32 s{K_B1}, s{K_B1}, s{K_B0}"]
    L = [f"s_mul_i32 s{K_A}, s{K_KAP}, {WT_K}", f"s_lshl_b32 s{K_B0}, s{K_KAP}, 11", f"s_add_u32 s{K_A}, s{K_A}, s{K_WT}",
         f"s_cmp_ge_u32 s{K_KAP}, 54", f"s_cselect_b32 s58, s{K_O0}, s{K_H0}", f"s_cselect_b32 s{K_B1}, {OS_T}, s59",
         f"s_add_u32 s{K_B0}, s{K_B0}, s58", f"s_add_u32 s{K_B1}, s{K_B1}, s{K_B0}"]
    for tt in range(4):
        L.append(f"buffer_load_dwordx4 v[{r+20+4*tt}:{r+23+4*tt}], v{V_LB}, {ws}, s{K_B0 if tt < 2 else K_B1} offen offset:{(tt%2)*256} {sc_act}")
    for ft in range(5):
        L.append(f"buffer_load_dwordx4 v[{r+4*ft}:{r+3+4*ft}], v{V_LA if ft < 4 else V_LA2}, {ws}, s{K_A} offen offset:{(ft%4)*1024} {sc_wt}")
    return L

def k_mfmas(b, first):
    r = BUF + 36 * b
    L = []
    for ft in range(5):
        for tt in range(4):
            ac = ACC + (tt * 5 + ft) * 4
            c = "0" if first else f"v[{ac}:{ac+3}]"
            L.append(f"v_mfma_f32_16x16x32_bf16 v[{ac}:{ac+3}], v[{r+4*ft}:{r+3+4*ft}], v[{r+20+4*tt}:{r+23+4*tt}], {c}")
    return L

def k3_stream(a, nk, step, extra_out, sc_act, sc_wt, lab, last_cond=None, pf=3):
    issued = 0
    for n in range(min(pf, nk)):
        a.extend(k_loads(n % NBUF, sc_act, sc_wt)); a(f"s_add_u32 s{K_KAP}, s{K_KAP}, {step}"); issued += 1
    for n in range(nk):
        a(f"s_waitcnt vmcnt({9 * (issued - n - 1)})")
        if last_cond is not None and n == nk - 1:
            a(f"s_cmp_eq_u32 s{last_cond}, 0\ns_cbranch_scc1 {lab}_skiplast")
        m = k_mfmas(n % NBUF, n == 0)
        ld = []
        if issued < nk:
            ld = k_loads(issued % NBUF, sc_act, sc_wt) + [f"s_add_u32 s{K_KAP}, s{K_KAP}, {step}"]; issued += 1
        li = 0
        for k, x in enumerate(m):
            a(x)
            if li < len(ld):
                a(ld[li]); li += 1
        while li < len(ld):
            a(ld[li]); li += 1
    if last_cond is not None: a(f"{lab}_skiplast:")

def k3_reduce(a, lab):
    a(f"v_lshlrev_b32 v9, 4, v2")
    a("s_nop 7")
    a(f"s_cmp_lt_u32 s3, 4\ns_cbranch_scc1 {lab}_lo")
    a(f"s_sub_u32 s40, s3, 4\ns_mul_i32 s40, s40, 20480\nv_add_u32 v10, s40, v9")
    for t in range(20): a(f"ds_write_b128 v10, v[{ACC+4*t}:{ACC+4*t+3}] offset:{L_R1 + 1024*t}")
    a(f"s_waitcnt lgkmcnt(0)\ns_barrier\ns_barrier\ns_branch {lab}_end")
    a(f"{lab}_lo:")
    a(f"s_mul_i32 s40, s3, 20480\nv_add_u32 v10, s40, v9")
    a("s_barrier")
    for half in range(2):
        for t in range(10): a(f"ds_read_b128 v[{BUF+4*t}:{BUF+4*t+3}], v10 offset:{L_R1 + 1024*(10*half+t)}")
        for t in range(10):
            a(f"s_waitcnt lgkmcnt({9-t})")
            for r in range(4): a(f"v_add_f32 v{ACC+4*(10*half+t)+r}, v{ACC+4*(10*half+t)+r}, v{BUF+4*t+r}")
    a(f"v_add_u32 v11, {L_R2}, v10")
    for tt in range(4):
        a(f"s_cmp_eq_u32 s3, {tt}\ns_cbranch_scc1 {lab}_w{tt}")
        for ft in range(5): a(f"ds_write_b128 v11, v[{ACC+4*(tt*5+ft)}:{ACC+4*(tt*5+ft)+3}] offset:{1024*(tt*5+ft)}")
        a(f"{lab}_w{tt}:")
    OWN = BUF + 100
    for tt in range(4):
        a(f"s_cmp_lg_u32 s3, {tt}\ns_cbranch_scc1 {lab}_m{tt}")
        for q in range(20): a(f"v_mov_b32 v{OWN+q}, v{ACC+20*tt+q}")
        a(f"{lab}_m{tt}:")
    a("s_waitcnt lgkmcnt(0)\ns_barrier")
    a(f"s_mul_i32 s41, s3, 5120")
    for d in range(1, 4):
        a(f"s_add_u32 s40, s3, {d}\ns_and_b32 s40, s40, 3\ns_mul_i32 s40, s40, 20480\ns_add_u32 s40, s40, s41\ns_add_u32 s40, s40, {L_R2}\nv_add_u32 v{11+d}, s40, v9")
        for ft in range(5): a(f"ds_read_b128 v[{BUF+20*(d-1)+4*ft}:{BUF+20*(d-1)+4*ft+3}], v{11+d} offset:{1024*ft}")
    for d in range(1, 4):
        a(f"s_waitcnt lgkmcnt({5*(3-d)})")
        for q in range(20): a(f"v_add_f32 v{OWN+q}, v{OWN+q}, v{BUF+20*(d-1)+q}")
    a("s_waitcnt vmcnt(0)")
    for q in range(10):
        a(f"v_lshlrev_b32 v{BUF+2*q}, 16, v{VX+q}\nv_and_b32 v{BUF+2*q+1}, 0xffff0000, v{VX+q}")
    for q in range(20): a(f"v_add_f32 v{OWN+q}, v{OWN+q}, v{BUF+q}")
    for q in range(10): a(f"v_cvt_pk_bf16_f32 v{BUF+24+q}, v{OWN+2*q}, v{OWN+2*q+1}")
    o = BUF + 24
    a(f"buffer_store_dwordx4 v[{o}:{o+3}], v{V_XO}, s[{SRD_B}:{SRD_B+3}], s{K_XO} offen")
    a(f"buffer_store_dwordx4 v[{o+4}:{o+7}], v{V_XO}, s[{SRD_B}:{SRD_B+3}], s{K_XO} offen offset:64")
    a(f"buffer_store_dwordx2 v[{o+8}:{o+9}], v{V_XO2}, s[{SRD_B}:{SRD_B+3}], s{K_XO} offen")
    a(f"{lab}_end:")

def kernel_p3(name="p3_kernel", sc="", stamps=False, opt=None):
    from p1 import stamp, stamp_flush, stamp_flush_all
    a = Asm()
    prologue(a, name, "P3_fin")
    k3_params(a)
    k3_setup(a)
    if stamps: a(stamp(0))
    srd(a, SRD_A, P_X, S * D * 2)
    srd(a, SRD_B, P_OUT, S * D * 2)
    a(f"s_mov_b32 s59, {HS_T}")
    a("s_cmp_ge_u32 s3, 4\ns_cbranch_scc1 P3_nox")
    x_loads(a, SRD_A)
    a("P3_nox:")
    a(f"s_mov_b32 s{K_KAP}, s3\ns_cmp_lt_u32 s3, 2\ns_cselect_b32 s57, 1, 0")
    rot = (opt or {}).get("rot")
    if rot:
        ri, rj = rot
        a(f"s_lshr_b32 s41, s2, 3\ns_lshr_b32 s40, s41, 2\ns_and_b32 s41, s41, 3\ns_mul_i32 s40, s40, {ri}\ns_mul_i32 s41, s41, {rj}\ns_add_u32 s40, s40, s41\ns_add_u32 s{K_KAP}, s{K_KAP}, s40")
        a(f"s_cmp_ge_u32 s{K_KAP}, 74\ns_cselect_b32 s40, 74, 0\ns_sub_u32 s{K_KAP}, s{K_KAP}, s40")
        a(f"s_cmp_ge_u32 s{K_KAP}, 74\ns_cselect_b32 s40, 74, 0\ns_sub_u32 s{K_KAP}, s{K_KAP}, s40")
    k3_stream_v1(a, "P3", rot=bool(rot))
    if stamps: a(stamp(1))
    k3_reduce(a, "P3")
    if stamps:
        a(stamp(2)); a("s_waitcnt vmcnt(0)"); a(stamp(3))
        stamp_flush(a, 4, 16, 0, "P3_sf")
        a("s_mov_b64 exec, -1")
        stamp_flush_all(a, 4, 0x100000, "P3_sfa")
    a("P3_fin:\ns_endpgm")
    return a, kernel_desc(name, 256, 102), (name, (256,1,1), (512,1,1), 163840)

def k3_stream_v1(a, lab, pf=3, rot=False):
    nk = 10; step = 8
    issued = 0
    def adv():
        if rot:
            return [f"s_add_u32 s{K_KAP}, s{K_KAP}, {step}", f"s_cmp_ge_u32 s{K_KAP}, 74", f"s_cselect_b32 s56, 74, 0", f"s_sub_u32 s{K_KAP}, s{K_KAP}, s56"]
        return [f"s_add_u32 s{K_KAP}, s{K_KAP}, {step}", f"s_min_u32 s{K_KAP}, s{K_KAP}, 73"]
    for n in range(pf):
        a.extend(k_loads(n % NBUF, "", "") + adv()); issued += 1
    for n in range(nk):
        a(f"s_waitcnt vmcnt({9 * (issued - n - 1)})")
        if n == nk - 1: a(f"s_cmp_eq_u32 s57, 0\ns_cbranch_scc1 {lab}_skiplast")
        m = k_mfmas(n % NBUF, n == 0)
        ld = []
        if issued < nk:
            ld = k_loads(issued % NBUF, "", "") + adv(); issued += 1
        li = 0
        for x in m:
            a(x)
            if li < len(ld): a(ld[li]); li += 1
        while li < len(ld): a(ld[li]); li += 1
    a(f"{lab}_skiplast:")
```

```python
import sys, os
sys.path.insert(0, os.path.dirname(os.path.abspath(__file__)))
from core import *
from layout import *
from build import assemble
import fused
out = sys.argv[1]
opt = {}
for o in sys.argv[2:]:
    if "=" in o: k, v = o.split("="); opt[k] = int(v)
    else: opt[o] = True
k = fused.kernel(MAIN, stamps=bool(opt.get("stamps")), opt=opt)
for ty, m in k[3].items():
    print(ty, "N", m["N"], "ns", m["ns"], "phase", m["phase"], "bars", len(m["bars"]), "prog", m["prog"], "info", m["info"][-3:])
assemble([k[:3]], out)
```

```python
from core import *
import re
from layout import *
import p0, p1, p2, p3
from p0 import srd, SRD_WS, SRD_A, SRD_B, SRD_C, P_X, P_WQKV, P_WO, P_G, P_U, P_D, P_OUT, P_DBG, P_WS
from p1 import build_seq, epi_instrs, NSLOT, V_A, V_QK, V_V, V_H, FR, ACC, BF, PF
from p1 import S_TB, S_FB, S_T32, S_CQ0, S_CQ1, S_CP0, S_J, S_T

FX = 0x000000
FW = 0x010000
FO = 0x020000
FG = 0x080000
K_QK, K_V, K_H0, K_H1 = 0, 1, 2, 3
CT_NONCE, CT_PROG, CT_ATT = 0, 16, 32
RING = 32768
LN_LDS = 1024
L_Q = 512; L_K = L_Q + 10240; L_V = L_K + 51200; L_ONES = L_V + 51200
L_R1 = 512; L_R2 = L_R1 + 81920
p0.LN_LDS = LN_LDS
p2.L_Q, p2.L_K, p2.L_V, p2.L_ONES = L_Q, L_K, L_V, L_ONES
p3.L_R1, p3.L_R2 = L_R1, L_R2
S_NONCE, S_SPIN = 0, 1
S_ST = 10
S_FL = 58
V_NONCE, V_Z, V_STAMP = 0, 3, 1
SPIN = 20000
WS = f"s[{SRD_WS}:{SRD_WS+3}]"

class Stamper:
    def __init__(self, on, cyc=False): self.on = on; self.prev = None; self.ins = "s_memtime" if cyc else "s_memrealtime"
    def mark(self, i):
        if not self.on: return []
        L = []
        if self.prev is not None: L.append(f"v_writelane_b32 v{V_STAMP}, s{S_ST}, {self.prev}")
        L.append(f"{self.ins} s[{S_ST}:{S_ST+1}]")
        self.prev = i
        return L
    def sync(self):
        if not self.on or self.prev is None: return []
        L = ["s_waitcnt lgkmcnt(0)", f"v_writelane_b32 v{V_STAMP}, s{S_ST}, {self.prev}"]
        self.prev = None
        return L
    def now(self, i): return self.sync() + self.mark(i) + self.sync()
    def flush(self, a):
        if not self.on: return
        a.extend(self.sync())
        a(f"s_mov_b64 exec, -1\ns_lshl_b32 s40, s2, 3\ns_add_u32 s40, s40, s3\ns_lshl_b32 s40, s40, 7\ns_add_u32 s40, s40, {STAMPS}")
        a(f"v_mbcnt_lo_u32_b32 v4, -1, 0\nv_mbcnt_hi_u32_b32 v4, -1, v4\nv_lshlrev_b32 v4, 2, v4\ns_mov_b32 exec_hi, 0")
        a(f"buffer_store_dword v{V_STAMP}, v4, {WS}, s40 offen\ns_mov_b64 exec, -1")

def poll(a, vaddr, soff, mlo, mhi, lab, vt, off=0):
    a(f"s_mov_b32 s{S_SPIN}, {SPIN}\ns_mov_b32 exec_lo, {mlo}\ns_mov_b32 exec_hi, {mhi}")
    a(f"{lab}:")
    a(f"buffer_load_dword v{vt}, v{vaddr}, {WS}, s{soff} offen offset:{off} sc1")
    a(f"s_waitcnt vmcnt(0)\nv_cmp_eq_u32 vcc, s{S_NONCE}, v{vt}\ns_nop 0\ns_cmp_eq_u64 vcc, exec\ns_cbranch_scc1 {lab}_ok")
    a(f"s_sub_u32 s{S_SPIN}, s{S_SPIN}, 1\ns_cmp_lg_u32 s{S_SPIN}, 0\ns_cbranch_scc1 {lab}")
    a(f"{lab}_ok:\ns_mov_b64 exec, -1")

def lds_poll4(a, off, lab, vt):
    a(f"v_mov_b32 v{vt+4}, {off}\ns_mov_b32 s{S_SPIN}, {SPIN*8}")
    a(f"{lab}:\nds_read_b128 v[{vt}:{vt+3}], v{vt+4}\ns_waitcnt lgkmcnt(0)")
    a(f"v_min_u32 v{vt}, v{vt}, v{vt+1}\nv_min3_u32 v{vt}, v{vt}, v{vt+2}, v{vt+3}\ns_nop 0\nv_readfirstlane_b32 s40, v{vt}")
    a(f"s_cmp_lg_u32 s40, 0\ns_cbranch_scc1 {lab}_ok\ns_sub_u32 s{S_SPIN}, s{S_SPIN}, 1\ns_cmp_lg_u32 s{S_SPIN}, 0\ns_cbranch_scc1 {lab}\n{lab}_ok:")

def flag_store(soff, off=0):
    return f"buffer_store_dword v{V_NONCE}, v{V_Z}, {WS}, s{soff} offen offset:{off} sc1"

class Emit:
    def __init__(self, a): self.a = a; self.vm = []; self.ds = []
    def __call__(self, ins, tag=None):
        for l in ins.split("\n") if isinstance(ins, str) else ins:
            l = l.strip()
            if not l: continue
            if l.startswith("buffer_"): self.vm.append(tag)
            elif l.startswith("ds_"): self.ds.append(tag)
            self.a(l)
    def vm_after(self, pred):
        for i in range(len(self.vm) - 1, -1, -1):
            if pred(self.vm[i]): return len(self.vm) - 1 - i
        return None
    def ds_after(self, pred):
        for i in range(len(self.ds) - 1, -1, -1):
            if pred(self.ds[i]): return len(self.ds) - 1 - i
        return None

def ring_plan(ty, nb=3, bar_every=16):
    mf, stages, tiles = build_seq(ty, nb)
    N = len(mf); ns = len(stages)
    phase = (-ns) % NSLOT
    bars = [-1]
    while True:
        pos = bars[-1] + PF + 1
        kind = tiles[mf[min(pos, N-1)]["tile"]]["kind"]
        step = 8 if kind == "QKH" else bar_every
        nxt = bars[-1] + step if bars[-1] >= 0 else step - PF - 1
        if nxt >= N - PF - 1: break
        bars.append(nxt)
    def done_at(b):
        d = -1
        for s in range(ns):
            if all(k <= b for k in range(N) if mf[k]["stage"] == s): d = s
            else: break
        return d
    out = []
    for b in bars:
        out.append(b)
        if done_at(b) >= ns - 6: break
    bars = out
    info = []
    for i, b in enumerate(bars):
        lo = b + PF + 1 if b >= 0 else 0
        hi = (bars[i+1] + PF) if i + 1 < len(bars) else N - 1
        need = max(mf[k]["stage"] for k in range(lo, hi + 1))
        info.append((need, done_at(b)))
    prog = max(k for k in range(N) if mf[k]["stage"] <= ns - 4)
    return dict(mf=mf, stages=stages, tiles=tiles, N=N, ns=ns, phase=phase, bars=bars, info=info, prog=prog)

def gen_compute(a, ty, st, opt):
    P = ring_plan(ty)
    mf, stages, tiles, N, phase, bars = P["mf"], P["stages"], P["tiles"], P["N"], P["phase"], P["bars"]
    sc = "" if opt.get("nosc") else "sc1"
    e = Emit(a)
    PRE = opt.get("pre", 16); XRATE = opt.get("xrate", 2); FDELAY = opt.get("fdelay", 48)
    jobs = []
    for ti, t in enumerate(tiles):
        if t["kind"] == "P": groups = [(0, t["accs"][0:2]), (1, t["accs"][2:4])]
        elif t["kind"] == "QKH": groups = [(0, t["accs"][0:1])]
        else: groups = [(0, t["accs"][0:1]), (1, t["accs"][1:2])]
        for ft, ac in groups:
            last = max(i for i in range(t["m0"], t["m1"]) if mf[i]["acc"] in ac)
            nxt = [i for i in range(t["m1"], N) if mf[i]["acc"] in ac]
            dl = min(nxt) if nxt else N + 1000
            jobs.append(dict(ready=last, dl=dl, ins=epi_instrs(t["kind"], t["idx"], ft, [ACC[x] for x in ac], sc), tile=ti, kind=t["kind"]))
    jobs.sort(key=lambda j: j["ready"])
    fill = {g: [] for g in range(N)}
    tail = []
    cur = 0
    for j in jobs:
        start = max(j["ready"] + 4, cur)
        n = len(j["ins"])
        tagged = [(x, ("st", j["tile"])) for x in j["ins"]]
        end = min(j["dl"] - 1, N)
        avail = end - start
        if start >= N - 1 or avail <= 0:
            assert j["dl"] > N
            tail += tagged; j["last_gap"] = N; continue
        if j["dl"] > N: end = N; avail = end - start
        per = max(-(-n // avail), min(3, n))
        g = start; k = 0
        while k < n and g < N:
            fill[g] += tagged[k:k+per]; k += per; g += 1
        if k < n:
            assert j["dl"] > N
            tail += tagged[k:]; g = N + 1
        assert g <= end + 1 or j["dl"] > N
        j["last_gap"] = g - 1
        cur = g
    if ty == "A": groups = [(K_QK, [0, 1]), (K_H0, [2])]
    if ty == "B": groups = [(K_QK, [0]), (K_H0, [1])]
    if ty == "C": groups = [(K_QK, [0]), (K_V, [1, 2])]
    flags = {}
    for kind, tl in groups:
        lg = max(j["last_gap"] for j in jobs if j["tile"] in tl)
        g = lg + FDELAY
        assert g < N - 1, (ty, kind, g)
        flags.setdefault(g, []).append((kind, tl))
    barset = set(b for b in bars if b >= 0)
    def rd(k):
        x = mf[k]; slot = (x["stage"] + phase) % NSLOT
        adr = V_A + 2 * x["adr"] + slot // 4
        off = (slot % 4) * 16384 + x["ksp"] * 2048
        fr = FR + 4 * (k % PF)
        return [f"ds_read_b64_tr_b16 v[{fr}:{fr+1}], v{adr} offset:{off}", f"ds_read_b64_tr_b16 v[{fr+2}:{fr+3}], v{adr} offset:{off+512}"]
    def xn_load(ks):
        L = []
        if ks % 4 == 0 and ks > 0: L.append("s_add_u32 s50, s50, 4096")
        L.append(f"buffer_load_dwordx4 v[{BF+4*ks}:{BF+4*ks+3}], v{V_H}, {WS}, s50 offen offset:{(ks%4)*1024} sc1")
        return L
    a(f"s_mul_i32 s50, s{S_T32}, {XN_T}\ns_add_u32 s50, s50, {XN}")
    nx = 0
    while nx < PRE: e(xn_load(nx), ("xn", nx)); nx += 1
    a("s_barrier")
    a.extend(st.mark(4))
    for k in range(PF): e(rd(k), ("rd", k))
    seen_bf = -1
    tile_last = {t["m1"] - 1: i for i, t in enumerate(tiles)}
    for k in range(N):
        x = mf[k]
        w = f"lgkmcnt({e.ds_after(lambda t: t == ('rd', k))})"
        if x["tile"] == 0 and x["bf"] > seen_bf:
            seen_bf = x["bf"]
            assert ("xn", x["bf"]) in e.vm
            w = f"vmcnt({min(63, e.vm_after(lambda t: t == ('xn', x['bf'])))}) " + w
        a("s_waitcnt " + w)
        fr = FR + 4 * (k % PF); ac = ACC[x["acc"]]; bf = BF + 4 * x["bf"]
        c = "0" if x["first"] else f"v[{ac}:{ac+15}]"
        if x["swap"]: a(f"v_mfma_f32_32x32x16_bf16 v[{ac}:{ac+15}], v[{bf}:{bf+3}], v[{fr}:{fr+3}], {c}")
        else:         a(f"v_mfma_f32_32x32x16_bf16 v[{ac}:{ac+15}], v[{fr}:{fr+3}], v[{bf}:{bf+3}], {c}")
        if k in barset: a("s_barrier")
        if k + PF < N: e(rd(k + PF), ("rd", k + PF))
        if nx < 40 and k % XRATE == XRATE - 1:
            e(xn_load(nx), ("xn", nx)); nx += 1
        for ins, tag in fill[k]: e(ins, tag)
        for kind, tl in flags.get(k, []):
            n = e.vm_after(lambda t: t is not None and t[0] == "st" and t[1] in tl)
            if not opt.get("nofw"): a(f"s_waitcnt vmcnt({min(63, n)})")
            e(flag_store(S_FL, kind * 128), ("flag", kind))
        if k == P["prog"]:
            e("ds_write_b32 v13, v14", ("prog",))
        if k in tile_last: a.extend(st.mark(5 + tile_last[k]))
    if tail:
        a("s_nop 7\ns_nop 3")
        for ins, tag in tail: e(ins, tag)
    a.extend(st.sync())
    return P

def setup_compute(a, ty):
    p1.setup_compute(a, ty)
    for r in range(4, 10): a(f"v_add_u32 v{r}, {RING}, v{r}")
    a(f"s_lshl_b32 s{S_FL}, s{S_T32}, 4\ns_add_u32 s{S_FL}, s{S_FL}, s{S_FB}\ns_lshl_b32 s{S_FL}, s{S_FL}, 9\ns_add_u32 s{S_FL}, s{S_FL}, {FG}")
    a(f"s_lshl_b32 s40, s3, 2\ns_add_u32 s40, s40, {CT_PROG}\nv_mov_b32 v13, s40\nv_mov_b32 v14, 1")

WT_VB = 32
WT_SRD_D, WT_SRD_O = 80, 84
def wt_loads(a, n, sw):
    vb = WT_VB
    g_, l16, gh, gl, col, row, pa = vb, vb+1, vb+2, vb+3, vb+4, vb+5, vb+6
    t = vb + 8
    if n == 0:
        a(f"v_lshrrev_b32 v{g_}, 4, v2\nv_and_b32 v{l16}, 15, v2\nv_lshrrev_b32 v{gh}, 1, v{g_}\nv_and_b32 v{gl}, 1, v{g_}")
        a(f"v_lshrrev_b32 v{pa}, 2, v{l16}\nv_lshlrev_b32 v{pa}, 3, v{pa}\nv_and_b32 v{pa+1}, 3, v{l16}\nv_add_u32 v{pa}, v{pa}, v{pa+1}")
        a("s_and_b32 s41, s2, 7\ns_lshr_b32 s42, s2, 3\ns_mul_i32 s43, s41, 80")
    lab = f"WT_{n}_{a.label('x')}"
    G = 96 + 8 * n
    a(f"s_add_u32 s50, s{sw}, {4*n}\ns_mul_i32 s51, s50, 52\ns_lshr_b32 s51, s51, 8")
    a("s_mul_i32 s52, s51, 5\ns_sub_u32 s52, s50, s52")
    a("s_lshl_b32 s53, s51, 5\ns_add_u32 s53, s53, s42")
    a(f"s_mov_b32 s{44+n}, -1")
    a(f"s_cmp_ge_u32 s50, 15\ns_cbranch_scc1 {lab}_skip\ns_cmp_ge_u32 s53, 74\ns_cbranch_scc1 {lab}_skip")
    a(f"s_mul_i32 s54, s41, {WT_F}\ns_mul_i32 s55, s53, {WT_K}\ns_add_u32 s54, s54, s55\ns_lshl_b32 s55, s52, 10\ns_add_u32 s54, s54, s55\ns_add_u32 s{44+n}, s54, {WT}")
    a("s_lshr_b32 s55, s52, 1\ns_lshl_b32 s55, s55, 5\ns_and_b32 s56, s52, 1\ns_lshl_b32 s56, s56, 2\ns_add_u32 s55, s55, s56\ns_add_u32 s55, s55, s43")
    a(f"s_cmp_eq_u32 s52, 4\ns_cselect_b64 s[56:57], -1, 0\nv_cndmask_b32 v{col}, v{pa}, v{l16}, s[56:57]\nv_add_u32 v{col}, s55, v{col}\nv_lshlrev_b32 v{col}, 1, v{col}")
    a(f"s_cmp_ge_u32 s53, 54\ns_cbranch_scc1 {lab}_o")
    a(f"s_lshl_b32 s55, s53, 5\nv_lshlrev_b32 v{row}, 4, v{gh}\nv_lshl_add_u32 v{row}, v{gl}, 2, v{row}\nv_add_u32 v{row}, s55, v{row}")
    a(f"s_movk_i32 s56, 1280\nv_mul_lo_u32 v{row}, v{row}, s56\nv_add_u32 v{row}, v{row}, v{col}\nv_add_u32 v{col}, 10240, v{row}")
    for j in range(8):
        a(f"buffer_load_ushort v{G+j}, v{row if j < 4 else col}, s[{WT_SRD_D}:{WT_SRD_D+3}], 0 offen offset:{(j%4)*1280}")
    a(f"s_branch {lab}_skip\n{lab}_o:")
    a(f"s_sub_u32 s55, s53, 54\ns_lshl_b32 s55, s55, 1\nv_add_u32 v{t}, s55, v{gh}")
    a(f"v_mul_u32_u24 v{t+1}, 52, v{t}\nv_lshrrev_b32 v{t+1}, 8, v{t+1}")
    a(f"v_mul_u32_u24 v{t+2}, 5, v{t+1}\nv_sub_u32 v{t+2}, v{t}, v{t+2}")
    a(f"v_lshlrev_b32 v{t+1}, 2, v{t+1}")
    a(f"v_add_u32 v{t+3}, v{t+1}, v{t+2}\nv_mul_u32_u24 v{t+3}, 20, v{t+3}\nv_lshl_add_u32 v{t+3}, v{gl}, 2, v{t+3}")
    a(f"v_add_u32 v{t+4}, v{t+1}, v{gl}\nv_mul_u32_u24 v{t+4}, 20, v{t+4}\nv_add_u32 v{t+4}, 16, v{t+4}")
    a(f"v_cmp_eq_u32 vcc, 4, v{t+2}\nv_mov_b32 v{t+5}, 8\nv_mov_b32 v{t+6}, 40\nv_cndmask_b32 v{t+3}, v{t+3}, v{t+4}, vcc\nv_cndmask_b32 v{t+5}, v{t+5}, v{t+6}, vcc")
    a(f"s_movk_i32 s56, 1280\nv_mul_lo_u32 v{row}, v{t+3}, s56\nv_mul_lo_u32 v{t+5}, v{t+5}, s56\nv_add_u32 v{row}, v{row}, v{col}\nv_add_u32 v{col}, v{row}, v{t+5}")
    for j in range(8):
        a(f"buffer_load_ushort v{G+j}, v{row if j < 4 else col}, s[{WT_SRD_O}:{WT_SRD_O+3}], 0 offen offset:{(j%4)*1280}")
    a(f"{lab}_skip:")

def wt_stores(a):
    a(f"v_lshlrev_b32 v{WT_VB+15}, 4, v2")
    for n in range(4):
        lab = a.label("WTS")
        G = 96 + 8 * n
        a(f"s_cmp_eq_u32 s{44+n}, -1\ns_cbranch_scc1 {lab}")
        for q in range(4): a(f"v_lshl_or_b32 v{128+4*n+q}, v{G+2*q+1}, 16, v{G+2*q}")
        a(f"buffer_store_dwordx4 v[{128+4*n}:{131+4*n}], v{WT_VB+15}, {WS}, s{44+n} offen sc1")
        a(f"{lab}:")

def loader_issue(a, P, s):
    kind, idx, stg = P["stages"][s]
    slot = (s + P["phase"]) % NSLOT
    for i in range(4):
        if kind == "P":
            base = S_CP0 + idx; off = (64 * stg + 8 * i) * 3456; vo, sr = 5, SRD_B
        else:
            base = {"QK": S_CQ0, "QKH": S_CQ1, "V": S_CQ1 + idx}[kind]; off = (128 * stg + 8 * i) * 3840; vo, sr = 4, SRD_A
        a(f"s_add_u32 m0, s{S_J}, {RING + slot*16384 + i*1024}")
        a(f"s_add_u32 s{S_T}, s{base}, {off}")
        a(f"buffer_load_dwordx4 v{vo}, s[{sr}:{sr+3}], s{S_T} offen lds")

def weight_prefetch(a, ty):
    n = 0
    a("s_lshr_b32 s40, s2, 3\ns_and_b32 s40, s40, 7\ns_mul_i32 s40, s40, 80\ns_sub_u32 s41, s3, 4")
    a("s_mul_i32 s42, s41, 20\ns_add_u32 s42, s42, s40\nv_add_u32 v23, s42, v2\nv_mul_u32_u24 v23, 3840, v23")
    a("v_mov_b32 v25, 0x80000000\nv_cmp_gt_u32 vcc, 20, v2\ns_nop 1\nv_cndmask_b32 v23, v25, v23, vcc")
    a("s_and_b32 s42, s41, 1\ns_mul_i32 s42, s42, 40\ns_add_u32 s42, s42, s40\nv_add_u32 v24, s42, v2\nv_mul_u32_u24 v24, 3456, v24")
    a("v_cmp_gt_u32 vcc, 40, v2\ns_nop 1\nv_cndmask_b32 v24, v25, v24, vcc")
    qs = {"A": [45], "B": [], "C": [45, 46]}[ty]
    ps = {"A": [47, 48], "B": [47, 48], "C": [47]}[ty]
    for q in qs:
        a(f"s_lshl_b32 s42, s{q}, 7\nbuffer_load_dword v26, v23, s[{SRD_A}:{SRD_A+3}], s42 offen"); n += 1
    for q in ps:
        a(f"s_lshl_b32 s42, s{q}, 7\nbuffer_load_dword v27, v24, s[{SRD_B}:{SRD_B+3}], s42 offen"); n += 1
    return n

def gen_loader(a, P, st, opt, npf=0):
    info, ns = P["info"], P["ns"]
    issued = NSLOT
    q = [("stage", s) for s in range(NSLOT) for _ in range(4)] + [("pf",)] * npf
    WT_LD = opt.get("wt_ld", 2); WT_ST = WT_LD + opt.get("wt_gap", 9); WT_FL = WT_ST + 9
    nb = len(info)
    assert WT_FL < nb - 1
    for bi, (need, done) in enumerate(info):
        allowed = min(ns, (info[bi-1][1] if bi > 0 else -1) + NSLOT + 1)
        while issued < allowed:
            loader_issue(a, P, issued); q += [("stage", issued)] * 4; issued += 1
        if bi == nb - 1:
            assert issued == ns
            need = ns - 1
        assert issued > need
        last = max(i for i, t in enumerate(q) if t == ("stage", need))
        a(f"s_waitcnt vmcnt({min(63, len(q) - 1 - last)})")
        a("s_barrier")
        if bi == WT_LD:
            a(f"s_sub_u32 s59, s3, 4")
            if not opt.get("nowt"):
                for n in range(4): wt_loads(a, n, 59)
            wt_mark = issued
        if bi == WT_ST:
            last = max(i for i, t in enumerate(q) if t == ("stage", wt_mark))
            a(f"s_waitcnt vmcnt({min(63, len(q) - 1 - last)})")
            if not opt.get("nowt"): wt_stores(a)
            wt_mark2 = issued
        if bi == WT_FL:
            assert need >= wt_mark2, (need, wt_mark2)
            lab = a.label("FW")
            a(f"s_cmp_lg_u32 s3, 4\ns_cbranch_scc1 {lab}\ns_lshl_b32 s40, s2, 7\ns_add_u32 s40, s40, {FW}")
            a(flag_store(40))
            a(f"{lab}:")

def attn_dma_dyn(a, kind, m, vb, sj, sj5):
    t = 64
    if kind == "Q":
        a(f"s_lshl_b32 s{t}, s{p2.A_TB2}, 1\ns_add_u32 s{t}, s{t}, {m}")
        a(f"s_mul_i32 s{t+1}, s{t}, {QS_T}\ns_mul_i32 s{t}, s{p2.A_HQ}, 5120\ns_add_u32 s{t+1}, s{t+1}, s{t}\ns_add_u32 s{t+1}, s{t+1}, {QS}")
        p2.dma5(a, L_Q + m * 5120, [vb+5]*5, t+1, "sc1", True)
    elif kind == "K": p2.dma_k(a, m, vb, "sc1", t)
    else: p2.dma_v(a, m, vb, "sc1", t)

def qk_producers(hq):
    def fbs(q):
        if q < 8: return [q]
        if q < 12: return [q - 8, q - 4]
        return [q - 4]
    t1, t2 = (80 * hq) >> 6, (80 * hq + 79) >> 6
    L = []
    for q in (t1, t2, 10 + t1, 10 + t2):
        for f in fbs(q):
            if f not in L: L.append(f)
    while len(L) < 6: L.append(L[0])
    assert len(L) == 6
    return L

def poll_qk(a, lab):
    tab = [sum(f << (4 * i) for i, f in enumerate(qk_producers(h))) for h in range(8)]
    a(f"s_mov_b32 s41, {tab[0]}")
    for h in range(1, 8):
        a(f"s_mov_b32 s42, {tab[h]}\ns_cmp_eq_u32 s{p2.A_HQ}, {h}\ns_cselect_b32 s41, s42, s41")
    a("v_mul_u32_u24 v16, 43, v2\nv_lshrrev_b32 v16, 8, v16")
    a("v_mul_u32_u24 v17, 6, v16\nv_sub_u32 v17, v2, v17\nv_lshlrev_b32 v17, 2, v17")
    a("v_lshrrev_b32 v17, v17, s41\nv_and_b32 v17, 15, v17")
    a(f"s_lshl_b32 s42, s{p2.A_TB2}, 1\ns_sub_i32 s42, s42, 8\nv_add_u32 v16, s42, v16\nv_max_i32 v16, 0, v16")
    a("v_lshl_add_u32 v16, v16, 4, v17\nv_lshlrev_b32 v16, 9, v16")
    a(f"s_mov_b32 s43, {FG}")
    poll(a, 16, 43, -1, 0x0fffffff, lab, 18, off=K_QK * 128)

def poll_v(a, lab):
    a(f"s_mul_i32 s41, s{p2.A_HQ}, 80\ns_add_u32 s42, s41, 79\ns_lshr_b32 s41, s41, 7\ns_lshr_b32 s42, s42, 7")
    a("s_add_u32 s41, s41, 11\ns_add_u32 s42, s42, 11")
    a("v_and_b32 v17, 1, v2\nv_cmp_eq_u32 vcc, 1, v17\nv_mov_b32 v17, s41\nv_mov_b32 v18, s42\nv_cndmask_b32 v17, v17, v18, vcc")
    a(f"v_lshrrev_b32 v16, 1, v2\ns_lshl_b32 s42, s{p2.A_TB2}, 1\ns_sub_i32 s42, s42, 8\nv_add_u32 v16, s42, v16\nv_max_i32 v16, 0, v16")
    a("v_lshl_add_u32 v16, v16, 4, v17\nv_lshlrev_b32 v16, 9, v16")
    a(f"s_mov_b32 s43, {FG}")
    poll(a, 16, 43, 0xfffff, 0, lab, 18, off=K_V * 128)

from p3 import K_TB2, K_FB, K_WT, K_H0, K_O0, K_KAP, K_A, K_B0, K_B1, BUF, NBUF, V_LA, V_LA2, V_LB, k_mfmas
def k_addr(kap_expr_lines, o_part):
    b = K_O0 if o_part else K_H0
    stride = OS_T if o_part else HS_T
    return [f"s_mul_i32 s{K_A}, s{K_KAP}, {WT_K}", f"s_lshl_b32 s{K_B0}, s{K_KAP}, 11", f"s_add_u32 s{K_A}, s{K_A}, s{K_WT}",
            f"s_add_u32 s{K_B0}, s{K_B0}, s{b}", f"s_add_u32 s{K_B1}, s{K_B0}, {stride}"]
def k_wt(b):
    r = BUF + 36 * b
    return [f"buffer_load_dwordx4 v[{r+4*ft}:{r+3+4*ft}], v{V_LA if ft < 4 else V_LA2}, {WS}, s{K_A} offen offset:{(ft%4)*1024} sc1" for ft in range(5)]
def k_act(b):
    r = BUF + 36 * b
    return [f"buffer_load_dwordx4 v[{r+20+4*tt}:{r+23+4*tt}], v{V_LB}, {WS}, s{K_B0 if tt < 2 else K_B1} offen offset:{(tt%2)*256} sc1" for tt in range(4)]

def poll_fw(a, lab):
    a(f"v_lshlrev_b32 v16, 10, v2\ns_lshl_b32 s43, s{K_FB}, 7\ns_add_u32 s43, s43, {FW}")
    poll(a, 16, 43, -1, 0, lab, 18)
def poll_fh(a, lab, kind):
    a(f"s_lshl_b32 s43, s{K_TB2}, 14\ns_add_u32 s43, s43, {FG}\nv_lshlrev_b32 v250, 9, v2")
    m = 0x07ff07ff if kind == K_H0 else -1
    poll(a, 250, 43, m, 0, lab, 251, off=kind * 128)
def poll_fo(a, lab):
    a(f"s_lshl_b32 s43, s{K_TB2}, 12\ns_add_u32 s43, s43, {FO}\nv_lshlrev_b32 v16, 7, v2")
    poll(a, 16, 43, -1, 0, lab, 18)

def h_stream(a, st, role):
    J = 57
    e = Emit(a)
    def set_kap(n):
        if n <= 4:   return [f"s_add_u32 s{K_KAP}, s56, {8*n}"]
        if n == 5:   return [f"s_mov_b32 s{K_KAP}, s55"]
        if n <= 10:  return [f"s_add_u32 s{K_KAP}, s54, {8*(n-6)}"]
        return [f"s_add_u32 s{K_KAP}, s{J}, {44 + 4*(n-11)}"] + ([f"s_min_u32 s{K_KAP}, s{K_KAP}, 53"] if n == 13 else [])
    a(f"s_lshr_b32 s40, s{J}, 1\ns_lshl_b32 s40, s40, 2\ns_and_b32 s41, s{J}, 1\ns_add_u32 s56, s40, s41")
    a(f"s_add_u32 s42, s{J}, 40\ns_cmp_lt_u32 s{J}, 2\ns_cselect_b32 s55, s42, s{J}")
    a(f"s_add_u32 s40, s{J}, 2\ns_lshr_b32 s40, s40, 1\ns_lshl_b32 s40, s40, 2\ns_add_u32 s54, s40, s41\ns_add_u32 s54, s54, 2")
    NI = 14; pf = 3; LATE = 5
    if role == "pre":
        for n in range(pf):
            e(set_kap(n) + k_addr(None, False)); e(k_wt(n % NBUF), ("wt", n)); e(k_act(n % NBUF), ("act", n))
        return e
    return None

def h_stream_main(a, e, st, bv_at):
    J = 57; NI = 14; pf = 3; LATE = 5
    def set_kap(n):
        if n <= 4:   return [f"s_add_u32 s{K_KAP}, s56, {8*n}"]
        if n == 5:   return [f"s_mov_b32 s{K_KAP}, s55"]
        if n <= 10:  return [f"s_add_u32 s{K_KAP}, s54, {8*(n-6)}"]
        return [f"s_add_u32 s{K_KAP}, s{J}, {44 + 4*(n-11)}"] + ([f"s_min_u32 s{K_KAP}, s{K_KAP}, 53"] if n == 13 else [])
    lab = a.label("HS")
    for n in range(NI):
        if n == bv_at: a("s_barrier")
        if n == LATE - 1:
            a.extend(st.now(12))
            poll_fh(a, lab + "_fh1", K_H1)
            e.vm = []
            a.extend(st.now(13))
            for m in range(LATE, n + pf):
                e(set_kap(m) + k_addr(None, False)); e(k_act(m % NBUF), ("act", m))
        w1 = e.vm_after(lambda t: t == ("wt", n)); w2 = e.vm_after(lambda t: t == ("act", n))
        ws_ = [x for x in (w1, w2) if x is not None]
        if ws_: a(f"s_waitcnt vmcnt({min(63, min(ws_))})")
        if n == NI - 1: a(f"s_cmp_ge_u32 s{J}, 2\ns_cbranch_scc1 {lab}_skip")
        m = k_mfmas(n % NBUF, n == 0)
        ld = []
        nn = n + pf
        if nn < NI:
            ld = [(x, None) for x in set_kap(nn) + k_addr(None, False)] + [(x, ("wt", nn)) for x in k_wt(nn % NBUF)]
            if not (LATE <= nn < LATE - 1 + pf): ld += [(x, ("act", nn)) for x in k_act(nn % NBUF)]
        li = 0
        for x in m:
            a(x)
            if li < len(ld): e(ld[li][0], ld[li][1]); li += 1
        while li < len(ld): e(ld[li][0], ld[li][1]); li += 1
    a(f"{lab}_skip:")

def o_stream(a, st):
    e = Emit(a)
    NI = 5; pf = 3
    def set_kap(n): return [f"s_add_u32 s{K_KAP}, s3, {54 + 4*n}"]
    for n in range(pf):
        e(set_kap(n) + k_addr(None, True)); e(k_wt(n), ("wt", n))
    a.extend(st.now(12))
    poll_fo(a, "FOp")
    e.vm = []
    a.extend(st.now(13))
    for n in range(pf):
        e(set_kap(n) + k_addr(None, True)); e(k_act(n), ("act", n))
    for n in range(NI):
        w1 = e.vm_after(lambda t: t == ("wt", n)); w2 = e.vm_after(lambda t: t == ("act", n))
        ws_ = [x for x in (w1, w2) if x is not None]
        a(f"s_waitcnt vmcnt({min(63, min(ws_))})")
        m = k_mfmas(n % NBUF, n == 0)
        ld = []
        nn = n + pf
        if nn < NI:
            ld = [(x, None) for x in set_kap(nn) + k_addr(None, True)] + [(x, ("wt", nn)) for x in k_wt(nn % NBUF)] + [(x, ("act", nn)) for x in k_act(nn % NBUF)]
        li = 0
        for x in m:
            a(x)
            if li < len(ld): e(ld[li][0], ld[li][1]); li += 1
        while li < len(ld): e(ld[li][0], ld[li][1]); li += 1

def k3_setup(a):
    p3.k3_params(a)
    p3.k3_setup(a)

def reduce_phase(a, lab, st):
    from p3 import ACC as KACC, V_XO, V_XO2, K_XO, VX
    a(f"v_lshlrev_b32 v9, 4, v2")
    a("s_nop 7")
    a(f"s_cmp_lt_u32 s3, 4\ns_cbranch_scc1 {lab}_lo")
    lds_poll4(a, CT_ATT, lab + "_wa", 96)
    a(f"s_sub_u32 s40, s3, 4\ns_mul_i32 s40, s40, 20480\nv_add_u32 v10, s40, v9")
    for t in range(20): a(f"ds_write_b128 v10, v[{KACC+4*t}:{KACC+4*t+3}] offset:{L_R1 + 1024*t}")
    a.extend(st.now(15))
    a(f"s_waitcnt lgkmcnt(0)\ns_barrier\ns_barrier\ns_branch {lab}_end")
    a(f"{lab}_lo:")
    a(f"s_mul_i32 s40, s3, 20480\nv_add_u32 v10, s40, v9")
    a.extend(st.now(14))
    a("s_barrier")
    a.extend(st.now(15))
    for half in range(2):
        for t in range(10): a(f"ds_read_b128 v[{BUF+4*t}:{BUF+4*t+3}], v10 offset:{L_R1 + 1024*(10*half+t)}")
        for t in range(10):
            a(f"s_waitcnt lgkmcnt({9-t})")
            for r in range(4): a(f"v_add_f32 v{KACC+4*(10*half+t)+r}, v{KACC+4*(10*half+t)+r}, v{BUF+4*t+r}")
    a(f"v_add_u32 v11, {L_R2}, v10")
    for tt in range(4):
        a(f"s_cmp_eq_u32 s3, {tt}\ns_cbranch_scc1 {lab}_w{tt}")
        for ft in range(5): a(f"ds_write_b128 v11, v[{KACC+4*(tt*5+ft)}:{KACC+4*(tt*5+ft)+3}] offset:{1024*(tt*5+ft)}")
        a(f"{lab}_w{tt}:")
    OWN = BUF + 100
    for tt in range(4):
        a(f"s_cmp_lg_u32 s3, {tt}\ns_cbranch_scc1 {lab}_m{tt}")
        for q in range(20): a(f"v_mov_b32 v{OWN+q}, v{KACC+20*tt+q}")
        a(f"{lab}_m{tt}:")
    a("s_waitcnt lgkmcnt(0)\ns_barrier")
    a(f"s_mul_i32 s41, s3, 5120")
    for d in range(1, 4):
        a(f"s_add_u32 s40, s3, {d}\ns_and_b32 s40, s40, 3\ns_mul_i32 s40, s40, 20480\ns_add_u32 s40, s40, s41\ns_add_u32 s40, s40, {L_R2}\nv_add_u32 v{11+d}, s40, v9")
        for ft in range(5): a(f"ds_read_b128 v[{BUF+20*(d-1)+4*ft}:{BUF+20*(d-1)+4*ft+3}], v{11+d} offset:{1024*ft}")
    for d in range(1, 4):
        a(f"s_waitcnt lgkmcnt({5*(3-d)})")
        for q in range(20): a(f"v_add_f32 v{OWN+q}, v{OWN+q}, v{BUF+20*(d-1)+q}")
    a("s_waitcnt vmcnt(0)")
    for q in range(10):
        a(f"v_lshlrev_b32 v{BUF+2*q}, 16, v{VX+q}\nv_and_b32 v{BUF+2*q+1}, 0xffff0000, v{VX+q}")
    for q in range(20): a(f"v_add_f32 v{OWN+q}, v{OWN+q}, v{BUF+q}")
    for q in range(10): a(f"v_cvt_pk_bf16_f32 v{BUF+24+q}, v{OWN+2*q}, v{OWN+2*q+1}")
    o = BUF + 24
    a(f"buffer_store_dwordx4 v[{o}:{o+3}], v{V_XO}, s[{SRD_B}:{SRD_B+3}], s{K_XO} offen")
    a(f"buffer_store_dwordx4 v[{o+4}:{o+7}], v{V_XO}, s[{SRD_B}:{SRD_B+3}], s{K_XO} offen offset:64")
    a(f"buffer_store_dwordx2 v[{o+8}:{o+9}], v{V_XO2}, s[{SRD_B}:{SRD_B+3}], s{K_XO} offen")
    a(f"{lab}_end:")

def kernel(name, stamps=False, opt=None):
    opt = opt or {}
    a = Asm()
    st = Stamper(stamps, bool(opt.get("cyc")))
    a(kernel_begin(name))
    a("s_cmp_ge_u32 s2, 256\ns_cbranch_scc1 F_exit")
    a("s_load_dwordx16 s[4:19], s[0:1], 0\ns_load_dwordx4 s[20:23], s[0:1], 64\ns_memrealtime s[46:47]")
    a("v_lshrrev_b32 v1, 6, v0\nv_and_b32 v2, 63, v0\nv_readfirstlane_b32 s3, v1")
    a("s_waitcnt lgkmcnt(0)")
    p0.p0_x_loads(a)
    srd(a, SRD_WS, P_WS, WS_BYTES)
    if stamps:
        a(f"v_mov_b32 v{V_STAMP}, 0\nv_writelane_b32 v{V_STAMP}, s46, 0")
        if opt.get("cyc"): a.extend(st.now(17))
    srd(a, SRD_C, P_DBG, 256)
    a("s_cmp_lg_u32 s3, 3\ns_cbranch_scc1 F_n0")
    a("s_cmp_lg_u32 s2, 0\ns_cbranch_scc1 F_n0")
    a(f"s_or_b32 s46, s46, 1\nv_mov_b32 v4, s46\nv_mov_b32 v5, 0\ns_mov_b64 exec, 1\nbuffer_store_dword v4, v5, s[{SRD_C}:{SRD_C+3}], 0 offen sc1\ns_mov_b64 exec, -1")
    a("F_n0:")
    p1.setup_common(a)
    a("s_cmp_ge_u32 s3, 4\ns_cbranch_scc1 F_ldr0")
    a("s_cmp_lg_u32 s3, 0\ns_cbranch_scc1 F_c0")
    a("v_mov_b32 v4, 0\nv_lshlrev_b32 v5, 2, v2\nds_write_b32 v5, v4")
    a("F_c0:")
    a("s_waitcnt vmcnt(0)")
    a.extend(st.now(1))
    p0.p0_ln(a)
    a("s_waitcnt lgkmcnt(0)\ns_barrier")
    p0.p0_xn_stores(a, "sc1")
    a("s_cmp_lg_u32 s3, 3\ns_cbranch_scc1 F_c1")
    a(f"s_mov_b32 s{S_SPIN}, {SPIN}\nv_mov_b32 v5, 0")
    a(f"F_np:\nbuffer_load_dword v4, v5, s[{SRD_C}:{SRD_C+3}], 0 offen sc1\ns_waitcnt vmcnt(0)\nv_readfirstlane_b32 s40, v4\ns_cmp_lg_u32 s40, 0\ns_cbranch_scc1 F_np1")
    a(f"s_sub_u32 s{S_SPIN}, s{S_SPIN}, 1\ns_cmp_lg_u32 s{S_SPIN}, 0\ns_cbranch_scc1 F_np")
    a(f"F_np1:\nv_mov_b32 v5, {CT_NONCE}\nds_write_b32 v5, v4")
    a("F_c1:")
    a("s_waitcnt vmcnt(0) lgkmcnt(0)")
    a.extend(st.now(2))
    a("s_barrier")
    def get_nonce():
        a(f"v_cmp_eq_u32 vcc, 0, v2\nv_mov_b32 v15, {CT_NONCE}\nv_mov_b32 v{V_Z}, 0x80000000\nds_read_b32 v{V_NONCE}, v15\nv_cndmask_b32 v{V_Z}, v{V_Z}, 0, vcc")
        a(f"s_waitcnt lgkmcnt(0)\nv_readfirstlane_b32 s{S_NONCE}, v{V_NONCE}")
    get_nonce()
    a("s_cmp_lg_u32 s3, 0\ns_cbranch_scc1 F_c2")
    a(f"s_lshl_b32 s40, s2, 7\ns_add_u32 s40, s40, {FX}")
    a(flag_store(40))
    a("F_c2:")
    metas = {}
    a(f"s_cmp_ge_u32 s{S_FB}, 11\ns_cbranch_scc1 F_cC\ns_cmp_ge_u32 s{S_FB}, 8\ns_cbranch_scc1 F_cB")
    for ty in "ABC":
        a(f"F_c{ty}:")
        setup_compute(a, ty)
        a(f"s_lshl_b32 s43, s{S_T32}, 9\ns_add_u32 s43, s43, {FX}\nv_lshlrev_b32 v16, 7, v2")
        poll(a, 16, 43, 0xf, 0, f"FXp{ty}", 17)
        a.extend(st.now(3))
        metas[ty] = gen_compute(a, ty, st, opt)
        a("s_branch F_att")
    a("F_att:")
    a.extend(st.now(9))
    p2.attn_params(a)
    a(f"s_mov_b32 s{p2.A_QSEL}, 0\ns_mov_b32 s{p2.A_HH}, s3")
    p2.attn_setup(a)
    a("s_barrier")
    a.extend(st.now(10))
    a("s_mov_b32 s59, 0")
    a("F_task:")
    attn_task(a, "AT", st)
    a(f"s_cmp_lg_u32 s59, 0\ns_cbranch_scc1 F_att_done")
    a(f"s_mov_b32 s59, 1\ns_mov_b32 s{p2.A_QSEL}, 1")
    a(f"v_add_u32 v{p2.V_AK}, 5120, v{p2.V_AK}\nv_add_u32 v{p2.V_AS}, 5120, v{p2.V_AS}\nv_lshl_add_u32 v{p2.V_AV}, v{p2.V_SV}, 1, v{p2.V_AV}")
    a("s_branch F_task")
    a("F_att_done:")
    a(f"s_lshl_b32 s40, s3, 2\ns_add_u32 s40, s40, {CT_ATT}\nv_mov_b32 v4, s40\nv_mov_b32 v5, 1\nds_write_b32 v4, v5")
    a(f"s_lshl_b32 s40, s{p2.A_TB2}, 3\ns_add_u32 s40, s40, s{p2.A_HQ}\ns_lshl_b32 s40, s40, 2\ns_add_u32 s40, s40, s3\ns_lshl_b32 s40, s40, 7\ns_add_u32 s58, s40, {FO}")
    k3_setup(a)
    srd(a, SRD_A, P_X, S * D * 2)
    srd(a, SRD_B, P_OUT, S * D * 2)
    a("s_waitcnt vmcnt(0)")
    a(flag_store(58))
    a.extend(st.now(11))
    p3.x_loads(a, SRD_A)
    o_stream(a, st)
    a("s_branch F_red")
    a("F_ldr0:")
    a(f"s_cmp_ge_u32 s{S_FB}, 11\ns_cbranch_scc1 F_lC\ns_cmp_ge_u32 s{S_FB}, 8\ns_cbranch_scc1 F_lB")
    for ty in "ABC":
        P = metas[ty]
        a(f"F_l{ty}:")
        tmp = Asm(); p1.setup_loader(tmp, ty)
        for l in tmp.lines:
            a(re.sub(r"\bv1([345])\b", lambda m: "v" + str(20 + int(m.group(1)) - 3), l))
        for s in range(NSLOT): loader_issue(a, P, s)
        npf = weight_prefetch(a, ty) if opt.get("wpf", 1) else 0
        srd(a, WT_SRD_D, P_D, F * D * 2)
        srd(a, WT_SRD_O, P_WO, D * D * 2)
        a(f"s_waitcnt vmcnt({32 + npf})")
        a.extend(st.now(1))
        p0.p0_ln(a)
        a("s_waitcnt lgkmcnt(0)\ns_barrier")
        a("s_barrier")
        get_nonce()
        a.extend(st.now(2))
        gen_loader(a, P, st, opt, npf)
        a("s_branch F_ltail")
    a("F_ltail:")
    a.extend(st.now(8))
    p2.attn_params(a)
    vb = 8
    a("s_cmp_ge_u32 s3, 6\ns_cbranch_scc1 F_lt67")
    p2.attn_dma_setup(a, vb)
    a("s_cmp_eq_u32 s3, 5\ns_cbranch_scc1 F_lt5")
    poll_qk(a, "PQK")
    a.extend(st.now(9))
    for m in range(2): attn_dma_dyn(a, "Q", m, vb, None, None)
    for m in range(10): attn_dma_dyn(a, "K", m, vb, None, None)
    k3_setup(a)
    a("s_sub_u32 s57, s3, 4")
    a("s_waitcnt vmcnt(0)")
    a.extend(st.now(10))
    a("s_barrier")
    a("s_branch F_lt45")
    a("F_lt5:")
    lds_poll4(a, CT_PROG, "PPR", 20)
    poll_v(a, "PV")
    a.extend(st.now(9))
    a(f"v_mov_b32 v20, 0x3f803f80\nv_mov_b32 v21, 0x3f803f80\nv_mov_b32 v22, 0x3f803f80\nv_mov_b32 v23, 0x3f803f80\nv_mov_b32 v24, {L_ONES}")
    a("ds_write_b128 v24, v[20:23]")
    for m in range(10): attn_dma_dyn(a, "V", m, vb, None, None)
    k3_setup(a)
    a("s_sub_u32 s57, s3, 4")
    a("s_waitcnt lgkmcnt(0)")
    a("s_barrier")
    a("F_lt45:")
    poll_fw(a, "PW45")
    poll_fh(a, "PH45", K_H0)
    a.extend(st.now(11))
    a("s_barrier")
    e = h_stream(a, st, "pre")
    h_stream_main(a, e, st, None)
    a("s_branch F_red")
    a("F_lt67:")
    k3_setup(a)
    a("s_sub_u32 s57, s3, 4")
    poll_fw(a, "PW67")
    poll_fh(a, "PH67", K_H0)
    a.extend(st.now(11))
    e = h_stream(a, st, "pre")
    a("s_barrier")
    h_stream_main(a, e, st, opt.get("bv_at", 2))
    a("F_red:")
    reduce_phase(a, "RD", st)
    if stamps:
        a("s_waitcnt vmcnt(0)")
        a.extend(st.now(16))
        st.flush(a)
    a("F_exit:\ns_endpgm")
    return a, kernel_desc(name, 256, 102), (name, (256,1,1), (512,1,1), 163840), metas

def attn_task(a, lab, st):
    tmp = Asm()
    p2.attn_task(tmp, lab, "sc1")
    lines = tmp.lines
    idx = next(i for i, l in enumerate(lines) if l.startswith(f"{lab}_noneg:"))
    a.extend(lines[:idx + 1])
    a(f"s_cmp_lg_u32 s59, 0\ns_cbranch_scc1 {lab}_nb")
    a("s_waitcnt vmcnt(0)")
    a(flag_store(S_FL, K_H1 * 128))
    a("s_barrier")
    a(f"{lab}_nb:")
    a.extend(lines[idx + 1:])
```

```python
from core import *
import re
from layout import *
import p0, p1, p2, p3
from p0 import srd, SRD_WS, SRD_A, SRD_B, SRD_C, P_X, P_WQKV, P_WO, P_G, P_U, P_D, P_OUT, P_DBG, P_WS
from p1 import build_seq, epi_instrs, NSLOT, V_A, V_QK, V_V, V_H, FR, ACC, BF, PF
from p1 import S_TB, S_FB, S_T32, S_CQ0, S_CQ1, S_CP0, S_J, S_T

FX = 0x000000
FW = 0x010000
FO = 0x020000
FG = 0x080000
K_QK, K_V, K_H0, K_H1 = 0, 1, 2, 3
CT_NONCE, CT_PROG, CT_ATT = 0, 16, 32
RING = 32768
LN_LDS = 1024
L_Q = 512; L_K = L_Q + 10240; L_V = L_K + 51200; L_ONES = L_V + 51200
L_R1 = 512; L_R2 = L_R1 + 81920
p0.LN_LDS = LN_LDS
p2.L_Q, p2.L_K, p2.L_V, p2.L_ONES = L_Q, L_K, L_V, L_ONES
p3.L_R1, p3.L_R2 = L_R1, L_R2
S_NONCE, S_SPIN = 0, 1
S_ST = 10
S_FL = 58
V_NONCE, V_Z, V_STAMP = 0, 3, 1
SPIN = 20000
WS = f"s[{SRD_WS}:{SRD_WS+3}]"

class Stamper:
    def __init__(self, on, cyc=False): self.on = on; self.prev = None; self.ins = "s_memtime" if cyc else "s_memrealtime"
    def mark(self, i):
        if not self.on: return []
        L = []
        if self.prev is not None: L.append(f"v_writelane_b32 v{V_STAMP}, s{S_ST}, {self.prev}")
        L.append(f"{self.ins} s[{S_ST}:{S_ST+1}]")
        self.prev = i
        return L
    def sync(self):
        if not self.on or self.prev is None: return []
        L = ["s_waitcnt lgkmcnt(0)", f"v_writelane_b32 v{V_STAMP}, s{S_ST}, {self.prev}"]
        self.prev = None
        return L
    def now(self, i): return self.sync() + self.mark(i) + self.sync()
    def flush(self, a):
        if not self.on: return
        a.extend(self.sync())
        a(f"s_mov_b64 exec, -1\ns_lshl_b32 s40, s2, 3\ns_add_u32 s40, s40, s3\ns_lshl_b32 s40, s40, 7\ns_add_u32 s40, s40, {STAMPS}")
        a(f"v_mbcnt_lo_u32_b32 v4, -1, 0\nv_mbcnt_hi_u32_b32 v4, -1, v4\nv_lshlrev_b32 v4, 2, v4\ns_mov_b32 exec_hi, 0")
        a(f"buffer_store_dword v{V_STAMP}, v4, {WS}, s40 offen\ns_mov_b64 exec, -1")

def poll(a, vaddr, soff, mlo, mhi, lab, vt, off=0):
    a(f"s_mov_b32 s{S_SPIN}, {SPIN}\ns_mov_b32 exec_lo, {mlo}\ns_mov_b32 exec_hi, {mhi}")
    a(f"{lab}:")
    a(f"buffer_load_dword v{vt}, v{vaddr}, {WS}, s{soff} offen offset:{off} sc1")
    a(f"s_waitcnt vmcnt(0)\nv_cmp_eq_u32 vcc, s{S_NONCE}, v{vt}\ns_nop 0\ns_cmp_eq_u64 vcc, exec\ns_cbranch_scc1 {lab}_ok")
    a(f"s_sub_u32 s{S_SPIN}, s{S_SPIN}, 1\ns_cmp_lg_u32 s{S_SPIN}, 0\ns_cbranch_scc1 {lab}")
    a(f"{lab}_ok:\ns_mov_b64 exec, -1")

def lds_poll4(a, off, lab, vt):
    a(f"v_mov_b32 v{vt+4}, {off}\ns_mov_b32 s{S_SPIN}, {SPIN*8}")
    a(f"{lab}:\nds_read_b128 v[{vt}:{vt+3}], v{vt+4}\ns_waitcnt lgkmcnt(0)")
    a(f"v_min_u32 v{vt}, v{vt}, v{vt+1}\nv_min3_u32 v{vt}, v{vt}, v{vt+2}, v{vt+3}\ns_nop 0\nv_readfirstlane_b32 s40, v{vt}")
    a(f"s_cmp_lg_u32 s40, 0\ns_cbranch_scc1 {lab}_ok\ns_sub_u32 s{S_SPIN}, s{S_SPIN}, 1\ns_cmp_lg_u32 s{S_SPIN}, 0\ns_cbranch_scc1 {lab}\n{lab}_ok:")

def flag_store(soff, off=0):
    return f"buffer_store_dword v{V_NONCE}, v{V_Z}, {WS}, s{soff} offen offset:{off} sc1"

class Emit:
    def __init__(self, a): self.a = a; self.vm = []; self.ds = []
    def __call__(self, ins, tag=None):
        for l in ins.split("\n") if isinstance(ins, str) else ins:
            l = l.strip()
            if not l: continue
            if l.startswith("buffer_"): self.vm.append(tag)
            elif l.startswith("ds_"): self.ds.append(tag)
            self.a(l)
    def vm_after(self, pred):
        for i in range(len(self.vm) - 1, -1, -1):
            if pred(self.vm[i]): return len(self.vm) - 1 - i
        return None
    def ds_after(self, pred):
        for i in range(len(self.ds) - 1, -1, -1):
            if pred(self.ds[i]): return len(self.ds) - 1 - i
        return None

def ring_plan(ty, nb=3, bar_every=16):
    mf, stages, tiles = build_seq(ty, nb)
    N = len(mf); ns = len(stages)
    phase = (-ns) % NSLOT
    bars = [-1]
    while True:
        pos = bars[-1] + PF + 1
        kind = tiles[mf[min(pos, N-1)]["tile"]]["kind"]
        step = 8 if kind == "QKH" else bar_every
        nxt = bars[-1] + step if bars[-1] >= 0 else step - PF - 1
        if nxt >= N - PF - 1: break
        bars.append(nxt)
    def done_at(b):
        d = -1
        for s in range(ns):
            if all(k <= b for k in range(N) if mf[k]["stage"] == s): d = s
            else: break
        return d
    out = []
    for b in bars:
        out.append(b)
        if done_at(b) >= ns - 6: break
    bars = out
    info = []
    for i, b in enumerate(bars):
        lo = b + PF + 1 if b >= 0 else 0
        hi = (bars[i+1] + PF) if i + 1 < len(bars) else N - 1
        need = max(mf[k]["stage"] for k in range(lo, hi + 1))
        info.append((need, done_at(b)))
    prog = max(k for k in range(N) if mf[k]["stage"] <= ns - 4)
    return dict(mf=mf, stages=stages, tiles=tiles, N=N, ns=ns, phase=phase, bars=bars, info=info, prog=prog)

def gen_compute(a, ty, st, opt):
    P = ring_plan(ty)
    mf, stages, tiles, N, phase, bars = P["mf"], P["stages"], P["tiles"], P["N"], P["phase"], P["bars"]
    sc = "" if opt.get("nosc") else "sc1"
    e = Emit(a)
    PRE = opt.get("pre", 16); XRATE = opt.get("xrate", 2); FDELAY = opt.get("fdelay", 48)
    jobs = []
    for ti, t in enumerate(tiles):
        if t["kind"] == "P": groups = [(0, t["accs"][0:2]), (1, t["accs"][2:4])]
        elif t["kind"] == "QKH": groups = [(0, t["accs"][0:1])]
        else: groups = [(0, t["accs"][0:1]), (1, t["accs"][1:2])]
        for ft, ac in groups:
            last = max(i for i in range(t["m0"], t["m1"]) if mf[i]["acc"] in ac)
            nxt = [i for i in range(t["m1"], N) if mf[i]["acc"] in ac]
            dl = min(nxt) if nxt else N + 1000
            jobs.append(dict(ready=last, dl=dl, ins=epi_instrs(t["kind"], t["idx"], ft, [ACC[x] for x in ac], sc), tile=ti, kind=t["kind"]))
    jobs.sort(key=lambda j: j["ready"])
    fill = {g: [] for g in range(N)}
    tail = []
    cur = 0
    for j in jobs:
        start = max(j["ready"] + 4, cur)
        n = len(j["ins"])
        tagged = [(x, ("st", j["tile"])) for x in j["ins"]]
        end = min(j["dl"] - 1, N)
        avail = end - start
        if start >= N - 1 or avail <= 0:
            assert j["dl"] > N
            tail += tagged; j["last_gap"] = N; continue
        if j["dl"] > N: end = N; avail = end - start
        per = max(-(-n // avail), min(3, n))
        g = start; k = 0
        while k < n and g < N:
            fill[g] += tagged[k:k+per]; k += per; g += 1
        if k < n:
            assert j["dl"] > N
            tail += tagged[k:]; g = N + 1
        assert g <= end + 1 or j["dl"] > N
        j["last_gap"] = g - 1
        cur = g
    if p1.ORD == 0:
        if ty == "A": groups = [(K_QK, [0, 1]), (K_H0, [2])]
        if ty == "B": groups = [(K_QK, [0]), (K_H0, [1])]
        if ty == "C": groups = [(K_QK, [0]), (K_V, [1, 2])]
    else:
        if ty == "A": groups = [(K_H0, [0]), (K_QK, [1, 2])]
        if ty == "B": groups = [(K_H0, [0]), (K_QK, [1])]
        if ty == "C": groups = [(K_V, [0, 1]), (K_QK, [2])]
    flags = {}
    for kind, tl in groups:
        lg = max(j["last_gap"] for j in jobs if j["tile"] in tl)
        g = lg + FDELAY
        assert g < N - 1, (ty, kind, g)
        flags.setdefault(g, []).append((kind, tl))
    barset = set(b for b in bars if b >= 0)
    def rd(k):
        x = mf[k]; slot = (x["stage"] + phase) % NSLOT
        adr = V_A + 2 * x["adr"] + slot // 4
        off = (slot % 4) * 16384 + x["ksp"] * 2048
        fr = FR + 4 * (k % PF)
        return [f"ds_read_b64_tr_b16 v[{fr}:{fr+1}], v{adr} offset:{off}", f"ds_read_b64_tr_b16 v[{fr+2}:{fr+3}], v{adr} offset:{off+512}"]
    def xn_load(ks):
        L = []
        if ks % 4 == 0 and ks > 0: L.append("s_add_u32 s50, s50, 4096")
        L.append(f"buffer_load_dwordx4 v[{BF+4*ks}:{BF+4*ks+3}], v{V_H}, {WS}, s50 offen offset:{(ks%4)*1024} sc1")
        return L
    a(f"s_mul_i32 s50, s{S_T32}, {XN_T}\ns_add_u32 s50, s50, {XN}")
    nx = 0
    while nx < PRE: e(xn_load(nx), ("xn", nx)); nx += 1
    a("s_barrier")
    a.extend(st.mark(4))
    for k in range(PF): e(rd(k), ("rd", k))
    seen_bf = -1
    tile_last = {t["m1"] - 1: i for i, t in enumerate(tiles)}
    for k in range(N):
        x = mf[k]
        w = f"lgkmcnt({e.ds_after(lambda t: t == ('rd', k))})"
        if x["bf"] > seen_bf:
            seen_bf = x["bf"]
            assert ("xn", x["bf"]) in e.vm
            w = f"vmcnt({min(63, e.vm_after(lambda t: t == ('xn', x['bf'])))}) " + w
        a("s_waitcnt " + w)
        fr = FR + 4 * (k % PF); ac = ACC[x["acc"]]; bf = BF + 4 * x["bf"]
        c = "0" if x["first"] else f"v[{ac}:{ac+15}]"
        if x["swap"]: a(f"v_mfma_f32_32x32x16_bf16 v[{ac}:{ac+15}], v[{bf}:{bf+3}], v[{fr}:{fr+3}], {c}")
        else:         a(f"v_mfma_f32_32x32x16_bf16 v[{ac}:{ac+15}], v[{fr}:{fr+3}], v[{bf}:{bf+3}], {c}")
        if k in barset: a("s_barrier")
        if k + PF < N: e(rd(k + PF), ("rd", k + PF))
        if nx < 40 and k % XRATE == XRATE - 1:
            e(xn_load(nx), ("xn", nx)); nx += 1
        for ins, tag in fill[k]: e(ins, tag)
        for kind, tl in flags.get(k, []):
            n = e.vm_after(lambda t: t is not None and t[0] == "st" and t[1] in tl)
            if not opt.get("nofw"): a(f"s_waitcnt vmcnt({min(63, n)})")
            e(flag_store(S_FL, kind * 128), ("flag", kind))
        if k == P["prog"]:
            e("ds_write_b32 v13, v14", ("prog",))
        if k in tile_last: a.extend(st.mark(5 + tile_last[k]))
    if tail:
        a("s_nop 7\ns_nop 3")
        for ins, tag in tail: e(ins, tag)
    a.extend(st.sync())
    return P

def setup_compute(a, ty):
    p1.setup_compute(a, ty)
    for r in range(4, 10): a(f"v_add_u32 v{r}, {RING}, v{r}")
    a(f"s_lshl_b32 s{S_FL}, s{S_T32}, 4\ns_add_u32 s{S_FL}, s{S_FL}, s{S_FB}\ns_lshl_b32 s{S_FL}, s{S_FL}, 9\ns_add_u32 s{S_FL}, s{S_FL}, {FG}")
    a(f"s_lshl_b32 s40, s3, 2\ns_add_u32 s40, s40, {CT_PROG}\nv_mov_b32 v13, s40\nv_mov_b32 v14, 1")

WT_VB = 32
WT_SRD_D, WT_SRD_O = 80, 84
def wt_loads(a, n, sw):
    vb = WT_VB
    g_, l16, gh, gl, col, row, pa = vb, vb+1, vb+2, vb+3, vb+4, vb+5, vb+6
    t = vb + 8
    if n == 0:
        a(f"v_lshrrev_b32 v{g_}, 4, v2\nv_and_b32 v{l16}, 15, v2\nv_lshrrev_b32 v{gh}, 1, v{g_}\nv_and_b32 v{gl}, 1, v{g_}")
        a(f"v_lshrrev_b32 v{pa}, 2, v{l16}\nv_lshlrev_b32 v{pa}, 3, v{pa}\nv_and_b32 v{pa+1}, 3, v{l16}\nv_add_u32 v{pa}, v{pa}, v{pa+1}")
        a("s_and_b32 s41, s2, 7\ns_lshr_b32 s42, s2, 3\ns_mul_i32 s43, s41, 80")
    lab = f"WT_{n}_{a.label('x')}"
    G = 96 + 8 * n
    a(f"s_add_u32 s50, s{sw}, {4*n}\ns_mul_i32 s51, s50, 52\ns_lshr_b32 s51, s51, 8")
    a("s_mul_i32 s52, s51, 5\ns_sub_u32 s52, s50, s52")
    a("s_lshl_b32 s53, s51, 5\ns_add_u32 s53, s53, s42")
    a(f"s_mov_b32 s{44+n}, -1")
    a(f"s_cmp_ge_u32 s50, 15\ns_cbranch_scc1 {lab}_skip\ns_cmp_ge_u32 s53, 74\ns_cbranch_scc1 {lab}_skip")
    a(f"s_mul_i32 s54, s41, {WT_F}\ns_mul_i32 s55, s53, {WT_K}\ns_add_u32 s54, s54, s55\ns_lshl_b32 s55, s52, 10\ns_add_u32 s54, s54, s55\ns_add_u32 s{44+n}, s54, {WT}")
    a("s_lshr_b32 s55, s52, 1\ns_lshl_b32 s55, s55, 5\ns_and_b32 s56, s52, 1\ns_lshl_b32 s56, s56, 2\ns_add_u32 s55, s55, s56\ns_add_u32 s55, s55, s43")
    a(f"s_cmp_eq_u32 s52, 4\ns_cselect_b64 s[56:57], -1, 0\nv_cndmask_b32 v{col}, v{pa}, v{l16}, s[56:57]\nv_add_u32 v{col}, s55, v{col}\nv_lshlrev_b32 v{col}, 1, v{col}")
    a(f"s_cmp_ge_u32 s53, 54\ns_cbranch_scc1 {lab}_o")
    a(f"s_lshl_b32 s55, s53, 5\nv_lshlrev_b32 v{row}, 4, v{gh}\nv_lshl_add_u32 v{row}, v{gl}, 2, v{row}\nv_add_u32 v{row}, s55, v{row}")
    a(f"s_movk_i32 s56, 1280\nv_mul_lo_u32 v{row}, v{row}, s56\nv_add_u32 v{row}, v{row}, v{col}\nv_add_u32 v{col}, 10240, v{row}")
    for j in range(8):
        a(f"buffer_load_ushort v{G+j}, v{row if j < 4 else col}, s[{WT_SRD_D}:{WT_SRD_D+3}], 0 offen offset:{(j%4)*1280}")
    a(f"s_branch {lab}_skip\n{lab}_o:")
    a(f"s_sub_u32 s55, s53, 54\ns_lshl_b32 s55, s55, 1\nv_add_u32 v{t}, s55, v{gh}")
    a(f"v_mul_u32_u24 v{t+1}, 52, v{t}\nv_lshrrev_b32 v{t+1}, 8, v{t+1}")
    a(f"v_mul_u32_u24 v{t+2}, 5, v{t+1}\nv_sub_u32 v{t+2}, v{t}, v{t+2}")
    a(f"v_lshlrev_b32 v{t+1}, 2, v{t+1}")
    a(f"v_add_u32 v{t+3}, v{t+1}, v{t+2}\nv_mul_u32_u24 v{t+3}, 20, v{t+3}\nv_lshl_add_u32 v{t+3}, v{gl}, 2, v{t+3}")
    a(f"v_add_u32 v{t+4}, v{t+1}, v{gl}\nv_mul_u32_u24 v{t+4}, 20, v{t+4}\nv_add_u32 v{t+4}, 16, v{t+4}")
    a(f"v_cmp_eq_u32 vcc, 4, v{t+2}\nv_mov_b32 v{t+5}, 8\nv_mov_b32 v{t+6}, 40\nv_cndmask_b32 v{t+3}, v{t+3}, v{t+4}, vcc\nv_cndmask_b32 v{t+5}, v{t+5}, v{t+6}, vcc")
    a(f"s_movk_i32 s56, 1280\nv_mul_lo_u32 v{row}, v{t+3}, s56\nv_mul_lo_u32 v{t+5}, v{t+5}, s56\nv_add_u32 v{row}, v{row}, v{col}\nv_add_u32 v{col}, v{row}, v{t+5}")
    for j in range(8):
        a(f"buffer_load_ushort v{G+j}, v{row if j < 4 else col}, s[{WT_SRD_O}:{WT_SRD_O+3}], 0 offen offset:{(j%4)*1280}")
    a(f"{lab}_skip:")

def wt_stores(a):
    a(f"v_lshlrev_b32 v{WT_VB+15}, 4, v2")
    for n in range(4):
        lab = a.label("WTS")
        G = 96 + 8 * n
        a(f"s_cmp_eq_u32 s{44+n}, -1\ns_cbranch_scc1 {lab}")
        for q in range(4): a(f"v_lshl_or_b32 v{128+4*n+q}, v{G+2*q+1}, 16, v{G+2*q}")
        a(f"buffer_store_dwordx4 v[{128+4*n}:{131+4*n}], v{WT_VB+15}, {WS}, s{44+n} offen sc1")
        a(f"{lab}:")

WT_LDS = 12288
def wt2_issue(a):
    lab = a.label("W2")
    a("s_mov_b32 s88, -1\ns_sub_u32 s50, s3, 4\ns_lshr_b32 s42, s2, 3\ns_lshl_b32 s53, s50, 5\ns_add_u32 s53, s53, s42")
    a(f"s_cmp_ge_u32 s53, 74\ns_cbranch_scc1 {lab}_skip")
    a(f"s_and_b32 s41, s2, 7\ns_mul_i32 s54, s41, {WT_F}\ns_mul_i32 s55, s53, {WT_K}\ns_add_u32 s54, s54, s55\ns_add_u32 s88, s54, {WT}")
    a(f"s_mul_i32 s43, s41, 160\ns_mul_i32 s51, s50, 5120\ns_add_u32 s51, s51, {WT_LDS}")
    for p in range(5):
        a(f"v_add_u32 v{40+p}, {64*p}, v2\nv_mul_u32_u24 v{32+p}, 205, v{40+p}\nv_lshrrev_b32 v{32+p}, 11, v{32+p}")
        a(f"v_mul_u32_u24 v46, 10, v{32+p}\nv_sub_u32 v{40+p}, v{40+p}, v46\nv_lshlrev_b32 v{40+p}, 4, v{40+p}")
    a(f"s_cmp_ge_u32 s53, 54\ns_cbranch_scc1 {lab}_o")
    a("s_mul_i32 s55, s53, 40960\ns_add_u32 s55, s55, s43")
    for p in range(5):
        a(f"v_mul_u32_u24 v46, 1280, v{32+p}\nv_add_u32 v{40+p}, v{40+p}, v46")
        a(f"s_add_u32 m0, s51, {1024*p}\ns_nop 0")
        a(f"buffer_load_dwordx4 v{40+p}, s[{WT_SRD_D}:{WT_SRD_D+3}], s55 offen lds")
    a(f"s_branch {lab}_skip\n{lab}_o:")
    for gh in range(2):
        a(f"s_sub_u32 s55, s53, 54\ns_lshl_b32 s55, s55, 1\ns_add_u32 s55, s55, {gh}\ns_mul_i32 s56, s55, 52\ns_lshr_b32 s56, s56, 8")
        a(f"s_mul_i32 s57, s56, 5\ns_sub_u32 s57, s55, s57\ns_lshl_b32 s56, s56, 2")
        a(f"s_add_u32 s55, s56, s57\ns_mul_i32 s55, s55, 20\ns_mul_i32 s56, s56, 20\ns_add_u32 s56, s56, 16")
        a(f"s_cmp_eq_u32 s57, 4\ns_cselect_b32 s{58+2*gh}, s56, s55\ns_cselect_b32 s{59+2*gh}, 1, 0")
    a("v_mov_b32 v47, s58\nv_mov_b32 v48, s60\nv_mov_b32 v49, s59\nv_mov_b32 v50, s61")
    for p in range(5):
        a(f"v_and_b32 v51, 15, v{32+p}\nv_lshrrev_b32 v52, 2, v51\nv_mul_u32_u24 v52, 20, v52\nv_and_b32 v53, 3, v51\nv_add_u32 v52, v52, v53")
        a(f"v_cmp_le_u32 vcc, 16, v{32+p}\ns_nop 1\nv_cndmask_b32 v53, v47, v48, vcc\nv_cndmask_b32 v54, v49, v50, vcc")
        a(f"v_cmp_eq_u32 vcc, 1, v54\ns_nop 1\nv_cndmask_b32 v51, v51, v52, vcc\nv_add_u32 v51, v51, v53")
        a(f"v_mul_u32_u24 v51, 1280, v51\nv_add_u32 v{40+p}, v{40+p}, v51")
        a(f"s_add_u32 m0, s51, {1024*p}\ns_nop 0")
        a(f"buffer_load_dwordx4 v{40+p}, s[{WT_SRD_O}:{WT_SRD_O+3}], s43 offen lds")
    a(f"{lab}_skip:")

def wt2_finish(a, nyounger):
    lab = a.label("W2F")
    a(f"s_cmp_eq_u32 s88, -1\ns_cbranch_scc1 {lab}")
    a("v_lshrrev_b32 v32, 5, v2\nv_lshlrev_b32 v32, 4, v32\nv_bfe_u32 v33, v2, 4, 1\nv_lshl_add_u32 v32, v33, 2, v32\nv_bfe_u32 v33, v2, 2, 2\nv_add_u32 v32, v32, v33")
    a(f"s_sub_u32 s50, s3, 4\ns_mul_i32 s51, s50, 5120\ns_add_u32 s51, s51, {WT_LDS}")
    a("v_mul_u32_u24 v32, 160, v32\nv_add_u32 v32, s51, v32\nv_and_b32 v33, 3, v2\nv_lshl_add_u32 v34, v33, 4, v32\nv_lshl_add_u32 v35, v33, 3, v32\nv_lshlrev_b32 v36, 4, v2")
    a(f"s_waitcnt vmcnt({nyounger})")
    for ft in range(5):
        adr, off = (34, (ft >> 1) * 64 + (ft & 1) * 8) if ft < 4 else (35, 128)
        a(f"ds_read_b64_tr_b16 v[{64+4*ft}:{65+4*ft}], v{adr} offset:{off}\nds_read_b64_tr_b16 v[{66+4*ft}:{67+4*ft}], v{adr} offset:{off+1280}")
    a("s_add_u32 s52, s88, 4096")
    for ft in range(5):
        a(f"s_waitcnt lgkmcnt({2*(4-ft)})")
        a(f"buffer_store_dwordx4 v[{64+4*ft}:{67+4*ft}], v36, {WS}, s{88 if ft < 4 else 52} offen offset:{(ft%4)*1024} sc1")
    a(f"{lab}:")

def loader_issue(a, P, s):
    kind, idx, stg = P["stages"][s]
    slot = (s + P["phase"]) % NSLOT
    for i in range(4):
        if kind == "P":
            base = S_CP0 + idx; off = (64 * stg + 8 * i) * 3456; vo, sr = 5, SRD_B
        else:
            base = {"QK": S_CQ0, "QKH": S_CQ1, "V": S_CQ1 + idx}[kind]; off = (128 * stg + 8 * i) * 3840; vo, sr = 4, SRD_A
        a(f"s_add_u32 m0, s{S_J}, {RING + slot*16384 + i*1024}")
        a(f"s_add_u32 s{S_T}, s{base}, {off}")
        a(f"buffer_load_dwordx4 v{vo}, s[{sr}:{sr+3}], s{S_T} offen lds")

def weight_prefetch(a, ty, which="rest"):
    n = 0
    a("s_lshr_b32 s40, s2, 3\ns_and_b32 s40, s40, 7\ns_mul_i32 s40, s40, 80\ns_sub_u32 s41, s3, 4")
    a("s_mul_i32 s42, s41, 20\ns_add_u32 s42, s42, s40\nv_add_u32 v23, s42, v2\nv_mul_u32_u24 v23, 3840, v23")
    a("v_mov_b32 v25, 0x80000000\nv_cmp_gt_u32 vcc, 20, v2\ns_nop 1\nv_cndmask_b32 v23, v25, v23, vcc")
    a("s_and_b32 s42, s41, 1\ns_mul_i32 s42, s42, 40\ns_add_u32 s42, s42, s40\nv_add_u32 v24, s42, v2\nv_mul_u32_u24 v24, 3456, v24")
    a("v_cmp_gt_u32 vcc, 40, v2\ns_nop 1\nv_cndmask_b32 v24, v25, v24, vcc")
    qs = {"A": [45], "B": [], "C": [45, 46]}[ty]
    ps = {"A": [47, 48], "B": [47, 48], "C": [47]}[ty]
    if p1.ORD == 1:
        qs = {"A": [44, 45], "B": [44], "C": [44]}[ty]
        ps = {"A": [48], "B": [48], "C": [47]}[ty]
        if which == "first":
            qs = {"A": [], "B": [], "C": [45, 46]}[ty]
            ps = {"A": [47], "B": [47], "C": []}[ty]
    for q in qs:
        a(f"s_lshl_b32 s42, s{q}, 7\nbuffer_load_dword v26, v23, s[{SRD_A}:{SRD_A+3}], s42 offen"); n += 1
    for q in ps:
        a(f"s_lshl_b32 s42, s{q}, 7\nbuffer_load_dword v27, v24, s[{SRD_B}:{SRD_B+3}], s42 offen"); n += 1
    return n

def gen_loader(a, P, st, opt, npf=0):
    info, ns = P["info"], P["ns"]
    issued = NSLOT
    q = [("stage", s) for s in range(NSLOT) for _ in range(4)] + [("pf",)] * npf
    WT_LD = opt.get("wt_ld", 2); WT_ST = WT_LD + opt.get("wt_gap", 9); WT_FL = WT_ST + 9
    nb = len(info)
    new_wt = opt.get("front", 0) >= 1
    WT2_AT = opt.get("wt2_at", -1)
    fw_done = False
    if new_wt:
        WT_LD = WT_ST = -1; wt_mark2 = NSLOT
        WT_FL = min(bi for bi, (need, done) in enumerate(info) if need >= NSLOT)
        if WT2_AT >= 0: WT_FL = -2; wt_mark2 = 1000
    assert WT_FL < nb - 1
    for bi, (need, done) in enumerate(info):
        allowed = min(ns, (info[bi-1][1] if bi > 0 else -1) + NSLOT + 1)
        while issued < allowed:
            loader_issue(a, P, issued); q += [("stage", issued)] * 4; issued += 1
        if bi == nb - 1:
            assert issued == ns
            need = ns - 1
        assert issued > need
        last = max(i for i, t in enumerate(q) if t == ("stage", need))
        a(f"s_waitcnt vmcnt({min(63, len(q) - 1 - last)})")
        a("s_barrier")
        if bi == 0 and opt.get("front", 0) >= 2: opt["_get_nonce"]()
        if bi == WT_LD:
            a(f"s_sub_u32 s59, s3, 4")
            if not opt.get("nowt"):
                for n in range(4): wt_loads(a, n, 59)
            wt_mark = issued
        if bi == WT_ST:
            last = max(i for i, t in enumerate(q) if t == ("stage", wt_mark))
            a(f"s_waitcnt vmcnt({min(63, len(q) - 1 - last)})")
            if not opt.get("nowt"): wt_stores(a)
            wt_mark2 = issued
        if bi == opt.get("wpf_at", -1) and opt.get("wpf", 1) == 3:
            n = weight_prefetch(a, opt["_ty"]); q += [("pf",)] * n
        if new_wt and WT2_AT >= 0:
            if bi == WT2_AT:
                wt2_finish(a, 63)
                wt_mark2 = issued
            elif bi > WT2_AT and not fw_done and need >= wt_mark2:
                WT_FL = bi; fw_done = True
                assert bi < nb - 1
        if bi == WT_FL:
            assert need >= wt_mark2, (need, wt_mark2)
            lab = a.label("FW")
            a(f"s_cmp_lg_u32 s3, 4\ns_cbranch_scc1 {lab}\ns_lshl_b32 s40, s2, 7\ns_add_u32 s40, s40, {FW}")
            a(flag_store(40))
            a(f"{lab}:")

def attn_dma_dyn(a, kind, m, vb, sj, sj5):
    t = 64
    if kind == "Q":
        a(f"s_lshl_b32 s{t}, s{p2.A_TB2}, 1\ns_add_u32 s{t}, s{t}, {m}")
        a(f"s_mul_i32 s{t+1}, s{t}, {QS_T}\ns_mul_i32 s{t}, s{p2.A_HQ}, 5120\ns_add_u32 s{t+1}, s{t+1}, s{t}\ns_add_u32 s{t+1}, s{t+1}, {QS}")
        p2.dma5(a, L_Q + m * 5120, [vb+5]*5, t+1, "sc1", True)
    elif kind == "K": p2.dma_k(a, m, vb, "sc1", t)
    else: p2.dma_v(a, m, vb, "sc1", t)

def qk_producers(hq):
    def fbs(q):
        if q < 8: return [q]
        if q < 12: return [q - 8, q - 4]
        return [q - 4]
    t1, t2 = (80 * hq) >> 6, (80 * hq + 79) >> 6
    L = []
    for q in (t1, t2, 10 + t1, 10 + t2):
        for f in fbs(q):
            if f not in L: L.append(f)
    while len(L) < 6: L.append(L[0])
    assert len(L) == 6
    return L

def poll_qk(a, lab):
    tab = [sum(f << (4 * i) for i, f in enumerate(qk_producers(h))) for h in range(8)]
    a(f"s_mov_b32 s41, {tab[0]}")
    for h in range(1, 8):
        a(f"s_mov_b32 s42, {tab[h]}\ns_cmp_eq_u32 s{p2.A_HQ}, {h}\ns_cselect_b32 s41, s42, s41")
    a("v_mul_u32_u24 v16, 43, v2\nv_lshrrev_b32 v16, 8, v16")
    a("v_mul_u32_u24 v17, 6, v16\nv_sub_u32 v17, v2, v17\nv_lshlrev_b32 v17, 2, v17")
    a("v_lshrrev_b32 v17, v17, s41\nv_and_b32 v17, 15, v17")
    a(f"s_lshl_b32 s42, s{p2.A_TB2}, 1\ns_sub_i32 s42, s42, 8\nv_add_u32 v16, s42, v16\nv_max_i32 v16, 0, v16")
    a("v_lshl_add_u32 v16, v16, 4, v17\nv_lshlrev_b32 v16, 9, v16")
    a(f"s_mov_b32 s43, {FG}")
    poll(a, 16, 43, -1, 0x0fffffff, lab, 18, off=K_QK * 128)

def poll_v(a, lab):
    a(f"s_mul_i32 s41, s{p2.A_HQ}, 80\ns_add_u32 s42, s41, 79\ns_lshr_b32 s41, s41, 7\ns_lshr_b32 s42, s42, 7")
    a("s_add_u32 s41, s41, 11\ns_add_u32 s42, s42, 11")
    a("v_and_b32 v17, 1, v2\nv_cmp_eq_u32 vcc, 1, v17\nv_mov_b32 v17, s41\nv_mov_b32 v18, s42\nv_cndmask_b32 v17, v17, v18, vcc")
    a(f"v_lshrrev_b32 v16, 1, v2\ns_lshl_b32 s42, s{p2.A_TB2}, 1\ns_sub_i32 s42, s42, 8\nv_add_u32 v16, s42, v16\nv_max_i32 v16, 0, v16")
    a("v_lshl_add_u32 v16, v16, 4, v17\nv_lshlrev_b32 v16, 9, v16")
    a(f"s_mov_b32 s43, {FG}")
    poll(a, 16, 43, 0xfffff, 0, lab, 18, off=K_V * 128)

from p3 import K_TB2, K_FB, K_WT, K_H0, K_O0, K_KAP, K_A, K_B0, K_B1, BUF, NBUF, V_LA, V_LA2, V_LB, k_mfmas
def k_addr(kap_expr_lines, o_part):
    b = K_O0 if o_part else K_H0
    stride = OS_T if o_part else HS_T
    return [f"s_mul_i32 s{K_A}, s{K_KAP}, {WT_K}", f"s_lshl_b32 s{K_B0}, s{K_KAP}, 11", f"s_add_u32 s{K_A}, s{K_A}, s{K_WT}",
            f"s_add_u32 s{K_B0}, s{K_B0}, s{b}", f"s_add_u32 s{K_B1}, s{K_B0}, {stride}"]
def k_wt(b):
    r = BUF + 36 * b
    return [f"buffer_load_dwordx4 v[{r+4*ft}:{r+3+4*ft}], v{V_LA if ft < 4 else V_LA2}, {WS}, s{K_A} offen offset:{(ft%4)*1024} sc1" for ft in range(5)]
def k_act(b):
    r = BUF + 36 * b
    return [f"buffer_load_dwordx4 v[{r+20+4*tt}:{r+23+4*tt}], v{V_LB}, {WS}, s{K_B0 if tt < 2 else K_B1} offen offset:{(tt%2)*256} sc1" for tt in range(4)]

def poll_fw(a, lab):
    a(f"v_lshlrev_b32 v16, 10, v2\ns_lshl_b32 s43, s{K_FB}, 7\ns_add_u32 s43, s43, {FW}")
    poll(a, 16, 43, -1, 0, lab, 18)
def poll_fh(a, lab, kind):
    a(f"s_lshl_b32 s43, s{K_TB2}, 14\ns_add_u32 s43, s43, {FG}\nv_lshlrev_b32 v250, 9, v2")
    m = 0x07ff07ff if kind == K_H0 else -1
    poll(a, 250, 43, m, 0, lab, 251, off=kind * 128)
def poll_fo(a, lab):
    a(f"s_lshl_b32 s43, s{K_TB2}, 12\ns_add_u32 s43, s43, {FO}\nv_lshlrev_b32 v16, 7, v2")
    poll(a, 16, 43, -1, 0, lab, 18)

def h_stream(a, st, role):
    J = 57
    e = Emit(a)
    def set_kap(n):
        if n <= 4:   return [f"s_add_u32 s{K_KAP}, s56, {8*n}"]
        if n == 5:   return [f"s_mov_b32 s{K_KAP}, s55"]
        if n <= 10:  return [f"s_add_u32 s{K_KAP}, s54, {8*(n-6)}"]
        return [f"s_add_u32 s{K_KAP}, s{J}, {44 + 4*(n-11)}"] + ([f"s_min_u32 s{K_KAP}, s{K_KAP}, 53"] if n == 13 else [])
    a(f"s_lshr_b32 s40, s{J}, 1\ns_lshl_b32 s40, s40, 2\ns_and_b32 s41, s{J}, 1\ns_add_u32 s56, s40, s41")
    a(f"s_add_u32 s42, s{J}, 40\ns_cmp_lt_u32 s{J}, 2\ns_cselect_b32 s55, s42, s{J}")
    a(f"s_add_u32 s40, s{J}, 2\ns_lshr_b32 s40, s40, 1\ns_lshl_b32 s40, s40, 2\ns_add_u32 s54, s40, s41\ns_add_u32 s54, s54, 2")
    NI = 14; pf = 3; LATE = 5
    if role == "pre":
        for n in range(pf):
            e(set_kap(n) + k_addr(None, False)); e(k_wt(n % NBUF), ("wt", n)); e(k_act(n % NBUF), ("act", n))
        return e
    return None

def h_stream_main(a, e, st, bv_at):
    J = 57; NI = 14; pf = 3; LATE = 5
    def set_kap(n):
        if n <= 4:   return [f"s_add_u32 s{K_KAP}, s56, {8*n}"]
        if n == 5:   return [f"s_mov_b32 s{K_KAP}, s55"]
        if n <= 10:  return [f"s_add_u32 s{K_KAP}, s54, {8*(n-6)}"]
        return [f"s_add_u32 s{K_KAP}, s{J}, {44 + 4*(n-11)}"] + ([f"s_min_u32 s{K_KAP}, s{K_KAP}, 53"] if n == 13 else [])
    lab = a.label("HS")
    for n in range(NI):
        if n == bv_at: a("s_barrier")
        if n == LATE - 1:
            a.extend(st.now(12))
            poll_fh(a, lab + "_fh1", K_H1)
            e.vm = []
            a.extend(st.now(13))
            for m in range(LATE, n + pf):
                e(set_kap(m) + k_addr(None, False)); e(k_act(m % NBUF), ("act", m))
        w1 = e.vm_after(lambda t: t == ("wt", n)); w2 = e.vm_after(lambda t: t == ("act", n))
        ws_ = [x for x in (w1, w2) if x is not None]
        if ws_: a(f"s_waitcnt vmcnt({min(63, min(ws_))})")
        if n == NI - 1: a(f"s_cmp_ge_u32 s{J}, 2\ns_cbranch_scc1 {lab}_skip")
        m = k_mfmas(n % NBUF, n == 0)
        ld = []
        nn = n + pf
        if nn < NI:
            ld = [(x, None) for x in set_kap(nn) + k_addr(None, False)] + [(x, ("wt", nn)) for x in k_wt(nn % NBUF)]
            if not (LATE <= nn < LATE - 1 + pf): ld += [(x, ("act", nn)) for x in k_act(nn % NBUF)]
        li = 0
        for x in m:
            a(x)
            if li < len(ld): e(ld[li][0], ld[li][1]); li += 1
        while li < len(ld): e(ld[li][0], ld[li][1]); li += 1
    a(f"{lab}_skip:")

def o_stream(a, st):
    e = Emit(a)
    NI = 5; pf = 3
    def set_kap(n): return [f"s_add_u32 s{K_KAP}, s3, {54 + 4*n}"]
    for n in range(pf):
        e(set_kap(n) + k_addr(None, True)); e(k_wt(n), ("wt", n))
    a.extend(st.now(12))
    poll_fo(a, "FOp")
    e.vm = []
    a.extend(st.now(13))
    for n in range(pf):
        e(set_kap(n) + k_addr(None, True)); e(k_act(n), ("act", n))
    for n in range(NI):
        w1 = e.vm_after(lambda t: t == ("wt", n)); w2 = e.vm_after(lambda t: t == ("act", n))
        ws_ = [x for x in (w1, w2) if x is not None]
        a(f"s_waitcnt vmcnt({min(63, min(ws_))})")
        m = k_mfmas(n % NBUF, n == 0)
        ld = []
        nn = n + pf
        if nn < NI:
            ld = [(x, None) for x in set_kap(nn) + k_addr(None, True)] + [(x, ("wt", nn)) for x in k_wt(nn % NBUF)] + [(x, ("act", nn)) for x in k_act(nn % NBUF)]
        li = 0
        for x in m:
            a(x)
            if li < len(ld): e(ld[li][0], ld[li][1]); li += 1
        while li < len(ld): e(ld[li][0], ld[li][1]); li += 1

def k3_setup(a):
    p3.k3_params(a)
    p3.k3_setup(a)

def reduce_phase(a, lab, st):
    from p3 import ACC as KACC, V_XO, V_XO2, K_XO, VX
    a(f"v_lshlrev_b32 v9, 4, v2")
    a("s_nop 7")
    a(f"s_cmp_lt_u32 s3, 4\ns_cbranch_scc1 {lab}_lo")
    lds_poll4(a, CT_ATT, lab + "_wa", 96)
    a(f"s_sub_u32 s40, s3, 4\ns_mul_i32 s40, s40, 20480\nv_add_u32 v10, s40, v9")
    for t in range(20): a(f"ds_write_b128 v10, v[{KACC+4*t}:{KACC+4*t+3}] offset:{L_R1 + 1024*t}")
    a.extend(st.now(15))
    a(f"s_waitcnt lgkmcnt(0)\ns_barrier\ns_barrier\ns_branch {lab}_end")
    a(f"{lab}_lo:")
    a(f"s_mul_i32 s40, s3, 20480\nv_add_u32 v10, s40, v9")
    a.extend(st.now(14))
    a("s_barrier")
    a.extend(st.now(15))
    for half in range(2):
        for t in range(10): a(f"ds_read_b128 v[{BUF+4*t}:{BUF+4*t+3}], v10 offset:{L_R1 + 1024*(10*half+t)}")
        for t in range(10):
            a(f"s_waitcnt lgkmcnt({9-t})")
            for r in range(4): a(f"v_add_f32 v{KACC+4*(10*half+t)+r}, v{KACC+4*(10*half+t)+r}, v{BUF+4*t+r}")
    a(f"v_add_u32 v11, {L_R2}, v10")
    for tt in range(4):
        a(f"s_cmp_eq_u32 s3, {tt}\ns_cbranch_scc1 {lab}_w{tt}")
        for ft in range(5): a(f"ds_write_b128 v11, v[{KACC+4*(tt*5+ft)}:{KACC+4*(tt*5+ft)+3}] offset:{1024*(tt*5+ft)}")
        a(f"{lab}_w{tt}:")
    OWN = BUF + 100
    for tt in range(4):
        a(f"s_cmp_lg_u32 s3, {tt}\ns_cbranch_scc1 {lab}_m{tt}")
        for q in range(20): a(f"v_mov_b32 v{OWN+q}, v{KACC+20*tt+q}")
        a(f"{lab}_m{tt}:")
    a("s_waitcnt lgkmcnt(0)\ns_barrier")
    a(f"s_mul_i32 s41, s3, 5120")
    for d in range(1, 4):
        a(f"s_add_u32 s40, s3, {d}\ns_and_b32 s40, s40, 3\ns_mul_i32 s40, s40, 20480\ns_add_u32 s40, s40, s41\ns_add_u32 s40, s40, {L_R2}\nv_add_u32 v{11+d}, s40, v9")
        for ft in range(5): a(f"ds_read_b128 v[{BUF+20*(d-1)+4*ft}:{BUF+20*(d-1)+4*ft+3}], v{11+d} offset:{1024*ft}")
    for d in range(1, 4):
        a(f"s_waitcnt lgkmcnt({5*(3-d)})")
        for q in range(20): a(f"v_add_f32 v{OWN+q}, v{OWN+q}, v{BUF+20*(d-1)+q}")
    a("s_waitcnt vmcnt(0)")
    for q in range(10):
        a(f"v_lshlrev_b32 v{BUF+2*q}, 16, v{VX+q}\nv_and_b32 v{BUF+2*q+1}, 0xffff0000, v{VX+q}")
    for q in range(20): a(f"v_add_f32 v{OWN+q}, v{OWN+q}, v{BUF+q}")
    for q in range(10): a(f"v_cvt_pk_bf16_f32 v{BUF+24+q}, v{OWN+2*q}, v{OWN+2*q+1}")
    o = BUF + 24
    osc = OUT_SC
    a(f"buffer_store_dwordx4 v[{o}:{o+3}], v{V_XO}, s[{SRD_B}:{SRD_B+3}], s{K_XO} offen{osc}")
    a(f"buffer_store_dwordx4 v[{o+4}:{o+7}], v{V_XO}, s[{SRD_B}:{SRD_B+3}], s{K_XO} offen offset:64{osc}")
    a(f"buffer_store_dwordx2 v[{o+8}:{o+9}], v{V_XO2}, s[{SRD_B}:{SRD_B+3}], s{K_XO} offen{osc}")
    a(f"{lab}_end:")

def kernel(name, stamps=False, opt=None):
    opt = opt or {}
    p1.ORD = opt.get("ord", 0)
    global OUT_SC
    OUT_SC = {0: "", 1: " sc1", 2: " sc0 sc1", 3: " nt", 4: " sc1 nt", 5: " sc0 sc1 nt"}[opt.get("osc", 0)]
    a = Asm()
    st = Stamper(stamps, bool(opt.get("cyc")))
    a(kernel_begin(name))
    a("s_cmp_ge_u32 s2, 256\ns_cbranch_scc1 F_exit")
    a("s_load_dwordx16 s[4:19], s[0:1], 0\ns_load_dwordx4 s[20:23], s[0:1], 64\ns_memrealtime s[46:47]")
    a("v_lshrrev_b32 v1, 6, v0\nv_and_b32 v2, 63, v0\nv_readfirstlane_b32 s3, v1")
    a("s_waitcnt lgkmcnt(0)")
    FRONT = opt.get("front", 0)
    if FRONT == 0: p0.p0_x_loads(a)
    else:
        srd(a, p0.SRD_A, P_X, S * D * 2)
        a("s_cmp_ge_u32 s3, 4\ns_cbranch_scc1 F_nx")
        p0.ln2_loads(a)
        a("F_nx:")
    srd(a, SRD_WS, P_WS, WS_BYTES)
    if stamps:
        a(f"v_mov_b32 v{V_STAMP}, 0\nv_writelane_b32 v{V_STAMP}, s46, 0")
        if opt.get("cyc"): a.extend(st.now(17))
    srd(a, SRD_C, P_DBG, 256)
    a("s_cmp_lg_u32 s3, 3\ns_cbranch_scc1 F_n0")
    a("s_cmp_lg_u32 s2, 0\ns_cbranch_scc1 F_n0")
    a(f"s_or_b32 s46, s46, 1\nv_mov_b32 v4, s46\nv_mov_b32 v5, 0\ns_mov_b64 exec, 1\nbuffer_store_dword v4, v5, s[{SRD_C}:{SRD_C+3}], 0 offen sc1\ns_mov_b64 exec, -1")
    a("F_n0:")
    p1.setup_common(a)
    a("s_cmp_ge_u32 s3, 4\ns_cbranch_scc1 F_ldr0")
    def get_nonce():
        a(f"v_cmp_eq_u32 vcc, 0, v2\nv_mov_b32 v15, {CT_NONCE}\nv_mov_b32 v{V_Z}, 0x80000000\nds_read_b32 v{V_NONCE}, v15\nv_cndmask_b32 v{V_Z}, v{V_Z}, 0, vcc")
        a(f"s_waitcnt lgkmcnt(0)\nv_readfirstlane_b32 s{S_NONCE}, v{V_NONCE}")
    def nonce_spin():
        a(f"s_mov_b32 s{S_SPIN}, {SPIN}\nv_mov_b32 v5, 0")
        a(f"F_np:\nbuffer_load_dword v4, v5, s[{SRD_C}:{SRD_C+3}], 0 offen sc1\ns_waitcnt vmcnt(0)\nv_readfirstlane_b32 s40, v4\ns_cmp_lg_u32 s40, 0\ns_cbranch_scc1 F_np1")
        a(f"s_sub_u32 s{S_SPIN}, s{S_SPIN}, 1\ns_cmp_lg_u32 s{S_SPIN}, 0\ns_cbranch_scc1 F_np")
    if FRONT < 2:
        a("s_cmp_lg_u32 s3, 0\ns_cbranch_scc1 F_c0")
        a("v_mov_b32 v4, 0\nv_lshlrev_b32 v5, 2, v2\nds_write_b32 v5, v4")
        a("F_c0:")
        a("s_waitcnt vmcnt(0)")
        a.extend(st.now(1))
        if FRONT == 0: p0.p0_ln(a)
        else: p0.ln2(a)
        a("s_waitcnt lgkmcnt(0)\ns_barrier")
        p0.p0_xn_stores(a, "sc1")
        a("s_cmp_lg_u32 s3, 3\ns_cbranch_scc1 F_c1")
        nonce_spin()
        a(f"F_np1:\nv_mov_b32 v5, {CT_NONCE}\nds_write_b32 v5, v4")
        a("F_c1:")
        a("s_waitcnt vmcnt(0) lgkmcnt(0)")
        a.extend(st.now(2))
        a("s_barrier")
        get_nonce()
        a("s_cmp_lg_u32 s3, 0\ns_cbranch_scc1 F_c2")
        a(f"s_lshl_b32 s40, s2, 7\ns_add_u32 s40, s40, {FX}")
        a(flag_store(40))
        a("F_c2:")
    else:
        a("s_cmp_lg_u32 s3, 0\ns_cbranch_scc1 F_c0")
        a("v_mov_b32 v4, 0\nv_lshlrev_b32 v5, 2, v2\ns_mov_b64 exec, -2\nds_write_b32 v5, v4\ns_mov_b64 exec, -1")
        a("F_c0:")
        a("s_waitcnt vmcnt(0)")
        a.extend(st.now(1))
        p0.ln2(a)
        a.extend(st.now(18))
        a("s_waitcnt lgkmcnt(0)\ns_barrier")
        a.extend(st.now(19))
        a(f"v_mov_b32 v5, 0\nbuffer_load_dword v46, v5, s[{SRD_C}:{SRD_C+3}], 0 offen sc1")
        p0.p0_xn_stores(a, "sc1")
        a("s_barrier")
        a(f"v_cmp_eq_u32 vcc, 0, v2\nv_mov_b32 v{V_Z}, 0x80000000")
        a(f"s_lshl_b32 s41, s2, 5\ns_add_u32 s41, s41, s3\ns_lshl_b32 s41, s41, 2\ns_add_u32 s41, s41, {FX}")
        a(f"v_cndmask_b32 v{V_Z}, v{V_Z}, 0, vcc")
        a("s_waitcnt vmcnt(0)")
        a.extend(st.now(20))
        if stamps: a(f"s_mov_b32 s{S_SPIN}, {SPIN}")
        a("v_mov_b32 v4, v46\nv_readfirstlane_b32 s40, v46\ns_cmp_lg_u32 s40, 0\ns_cbranch_scc1 F_np1")
        nonce_spin()
        a(f"F_np1:\nv_mov_b32 v{V_NONCE}, v4\ns_mov_b32 s{S_NONCE}, s40")
        a(flag_store(41))
        if stamps: a(f"s_sub_u32 s42, {SPIN+1}, s{S_SPIN}\nv_writelane_b32 v{V_STAMP}, s42, 21")
        a("s_cmp_lg_u32 s3, 3\ns_cbranch_scc1 F_c1")
        a(f"v_mov_b32 v5, {CT_NONCE}\nds_write_b32 v5, v4\ns_waitcnt lgkmcnt(0)")
        a("F_c1:")
        a.extend(st.now(2))
    metas = {}
    a(f"s_cmp_ge_u32 s{S_FB}, 11\ns_cbranch_scc1 F_cC\ns_cmp_ge_u32 s{S_FB}, 8\ns_cbranch_scc1 F_cB")
    for ty in "ABC":
        a(f"F_c{ty}:")
        setup_compute(a, ty)
        if FRONT < 2:
            a(f"s_lshl_b32 s43, s{S_T32}, 9\ns_add_u32 s43, s43, {FX}\nv_lshlrev_b32 v16, 7, v2")
            poll(a, 16, 43, 0xf, 0, f"FXp{ty}", 17)
        else:
            a(f"s_lshl_b32 s43, s{S_T32}, 9\ns_add_u32 s43, s43, {FX}\nv_lshrrev_b32 v16, 2, v2\nv_lshlrev_b32 v16, 7, v16\nv_and_b32 v17, 3, v2\nv_lshl_add_u32 v16, v17, 2, v16")
            poll(a, 16, 43, 0xffff, 0, f"FXp{ty}", 17)
        a.extend(st.now(3))
        metas[ty] = gen_compute(a, ty, st, opt)
        a("s_branch F_att")
    a("F_att:")
    a.extend(st.now(9))
    p2.attn_params(a)
    a(f"s_mov_b32 s{p2.A_QSEL}, 0\ns_mov_b32 s{p2.A_HH}, s3")
    p2.attn_setup(a)
    a("s_barrier")
    a.extend(st.now(10))
    a("s_mov_b32 s59, 0")
    a("F_task:")
    attn_task(a, "AT", st)
    a(f"s_cmp_lg_u32 s59, 0\ns_cbranch_scc1 F_att_done")
    a(f"s_mov_b32 s59, 1\ns_mov_b32 s{p2.A_QSEL}, 1")
    a(f"v_add_u32 v{p2.V_AK}, 5120, v{p2.V_AK}\nv_add_u32 v{p2.V_AS}, 5120, v{p2.V_AS}\nv_lshl_add_u32 v{p2.V_AV}, v{p2.V_SV}, 1, v{p2.V_AV}")
    a("s_branch F_task")
    a("F_att_done:")
    a(f"s_lshl_b32 s40, s3, 2\ns_add_u32 s40, s40, {CT_ATT}\nv_mov_b32 v4, s40\nv_mov_b32 v5, 1\nds_write_b32 v4, v5")
    a(f"s_lshl_b32 s40, s{p2.A_TB2}, 3\ns_add_u32 s40, s40, s{p2.A_HQ}\ns_lshl_b32 s40, s40, 2\ns_add_u32 s40, s40, s3\ns_lshl_b32 s40, s40, 7\ns_add_u32 s58, s40, {FO}")
    k3_setup(a)
    srd(a, SRD_A, P_X, S * D * 2)
    srd(a, SRD_B, P_OUT, S * D * 2)
    a("s_waitcnt vmcnt(0)")
    a(flag_store(58))
    a.extend(st.now(11))
    p3.x_loads(a, SRD_A)
    o_stream(a, st)
    a("s_branch F_red")
    a("F_ldr0:")
    a(f"s_cmp_ge_u32 s{S_FB}, 11\ns_cbranch_scc1 F_lC\ns_cmp_ge_u32 s{S_FB}, 8\ns_cbranch_scc1 F_lB")
    for ty in "ABC":
        P = metas[ty]
        a(f"F_l{ty}:")
        tmp = Asm(); p1.setup_loader(tmp, ty)
        for l in tmp.lines:
            a(re.sub(r"\bv1([345])\b", lambda m: "v" + str(20 + int(m.group(1)) - 3), l))
        opt["_ty"] = ty
        if FRONT == 0:
            for s in range(NSLOT): loader_issue(a, P, s)
            npf = weight_prefetch(a, ty) if opt.get("wpf", 1) else 0
            srd(a, WT_SRD_D, P_D, F * D * 2)
            srd(a, WT_SRD_O, P_WO, D * D * 2)
            a(f"s_waitcnt vmcnt({32 + npf})")
            a.extend(st.now(1))
            p0.p0_ln(a)
            a("s_waitcnt lgkmcnt(0)\ns_barrier")
            a("s_barrier")
            get_nonce()
            a.extend(st.now(2))
        else:
            srd(a, WT_SRD_D, P_D, F * D * 2)
            srd(a, WT_SRD_O, P_WO, D * D * 2)
            npf0 = 0
            if opt.get("epf", 0) >= 1: weight_prefetch(a, ty, "first")
            if opt.get("epf", 0) >= 2: weight_prefetch(a, ty)
            wt2_issue(a)
            n1 = opt.get("pre_ln", 4); n2 = n1 + opt.get("mid_ln", NSLOT - n1)
            for s in range(n1): loader_issue(a, P, s)
            a.extend(st.now(1))
            a("s_barrier")
            for s in range(n1, n2): loader_issue(a, P, s)
            npf = weight_prefetch(a, ty) if opt.get("wpf", 1) == 1 else 0
            if FRONT >= 2: assert n2 == n1 and opt.get("wpf", 1) != 1
            a("s_barrier")
            for s in range(n2, NSLOT): loader_issue(a, P, s)
            assert npf == 0 or n2 == NSLOT
            if FRONT < 2: get_nonce()
            else: opt["_get_nonce"] = get_nonce; assert opt.get("wt2_at", -1) >= 0
            if opt.get("wt2_at", -1) < 0: wt2_finish(a, 32 + npf)
            if opt.get("wpf", 1) == 2: npf += weight_prefetch(a, ty)
            a.extend(st.now(2))
        gen_loader(a, P, st, opt, npf)
        a("s_branch F_ltail")
    a("F_ltail:")
    a.extend(st.now(8))
    p2.attn_params(a)
    vb = 8
    a("s_cmp_ge_u32 s3, 6\ns_cbranch_scc1 F_lt67")
    p2.attn_dma_setup(a, vb)
    a("s_cmp_eq_u32 s3, 5\ns_cbranch_scc1 F_lt5")
    poll_qk(a, "PQK")
    a.extend(st.now(9))
    for m in range(2): attn_dma_dyn(a, "Q", m, vb, None, None)
    for m in range(10): attn_dma_dyn(a, "K", m, vb, None, None)
    k3_setup(a)
    a("s_sub_u32 s57, s3, 4")
    a("s_waitcnt vmcnt(0)")
    a.extend(st.now(10))
    a("s_barrier")
    a("s_branch F_lt45")
    a("F_lt5:")
    lds_poll4(a, CT_PROG, "PPR", 20)
    poll_v(a, "PV")
    a.extend(st.now(9))
    a(f"v_mov_b32 v20, 0x3f803f80\nv_mov_b32 v21, 0x3f803f80\nv_mov_b32 v22, 0x3f803f80\nv_mov_b32 v23, 0x3f803f80\nv_mov_b32 v24, {L_ONES}")
    a("ds_write_b128 v24, v[20:23]")
    for m in range(10): attn_dma_dyn(a, "V", m, vb, None, None)
    k3_setup(a)
    a("s_sub_u32 s57, s3, 4")
    a("s_waitcnt lgkmcnt(0)")
    a("s_barrier")
    a("F_lt45:")
    poll_fw(a, "PW45")
    poll_fh(a, "PH45", K_H0)
    a.extend(st.now(11))
    a("s_barrier")
    e = h_stream(a, st, "pre")
    h_stream_main(a, e, st, None)
    a("s_branch F_red")
    a("F_lt67:")
    k3_setup(a)
    a("s_sub_u32 s57, s3, 4")
    poll_fw(a, "PW67")
    poll_fh(a, "PH67", K_H0)
    a.extend(st.now(11))
    e = h_stream(a, st, "pre")
    a("s_barrier")
    h_stream_main(a, e, st, opt.get("bv_at", 2))
    a("F_red:")
    reduce_phase(a, "RD", st)
    if stamps:
        a("s_waitcnt vmcnt(0)")
        a.extend(st.now(16))
        st.flush(a)
    a("F_exit:\ns_endpgm")
    return a, kernel_desc(name, 256, 102), (name, (256,1,1), (512,1,1), 163840), metas

def attn_task(a, lab, st):
    tmp = Asm()
    p2.attn_task(tmp, lab, "sc1")
    lines = tmp.lines
    idx = next(i for i, l in enumerate(lines) if l.startswith(f"{lab}_noneg:"))
    a.extend(lines[:idx + 1])
    a(f"s_cmp_lg_u32 s59, 0\ns_cbranch_scc1 {lab}_nb")
    a("s_waitcnt vmcnt(0)")
    a(flag_store(S_FL, K_H1 * 128))
    a("s_barrier")
    a(f"{lab}_nb:")
    a.extend(lines[idx + 1:])
```

```python
from core import *
from layout import *

S_WG, S_WAVE = 2, 3
P_X, P_WQKV, P_WO, P_G, P_U, P_D, P_OUT, P_DBG, P_WS = 4, 6, 8, 12, 14, 16, 18, 20, 22
SRD_WS, SRD_A, SRD_B, SRD_C = 24, 28, 32, 36
LN_LDS = 131072

def srd(a, d, ptr, nbytes):
    a(f"s_mov_b32 s{d}, s{ptr}\ns_and_b32 s{d+1}, s{ptr+1}, 0xffff\ns_mov_b32 s{d+2}, {nbytes}\ns_mov_b32 s{d+3}, 0x20000")

def prologue(a, name, endlabel):
    a(kernel_begin(name))
    a(f"s_cmp_ge_u32 s2, 256\ns_cbranch_scc1 {endlabel}")
    a("s_load_dwordx16 s[4:19], s[0:1], 0\ns_load_dwordx4 s[20:23], s[0:1], 64")
    a("v_lshrrev_b32 v1, 6, v0\nv_and_b32 v2, 63, v0\nv_readfirstlane_b32 s3, v1")
    a("s_waitcnt lgkmcnt(0)")
    srd(a, SRD_WS, P_WS, WS_BYTES)

def rnd(a, r):
    a(f"v_cvt_pk_bf16_f32 v{r}, v{r}, v{r}\nv_lshlrev_b32 v{r}, 16, v{r}")

def wave_sum(a, r, t, sdst):
    for ctl in ["quad_perm:[1,0,3,2]", "quad_perm:[2,3,0,1]", "row_half_mirror", "row_mirror"]:
        a(f"s_nop 1\nv_add_f32_dpp v{r}, v{r}, v{r} {ctl} row_mask:0xf bank_mask:0xf")
    a(f"s_nop 1\nv_add_f32_dpp v{r}, v{r}, v{r} row_bcast:15 row_mask:0xa bank_mask:0xf")
    a(f"s_nop 1\nv_add_f32_dpp v{r}, v{r}, v{r} row_bcast:31 row_mask:0xc bank_mask:0xf")
    a(f"s_nop 0\nv_readlane_b32 s{sdst}, v{r}, 63\ns_nop 1")

def p0_x_loads(a):
    srd(a, SRD_A, P_X, S * D * 2)
    a("s_lshl_b32 s40, s2, 3\ns_add_u32 s40, s40, s3\ns_mul_i32 s40, s40, 1280")
    a("v_lshlrev_b32 v3, 2, v2")
    for j in range(5):
        a(f"buffer_load_dword v{10+j}, v3, s[{SRD_A}:{SRD_A+3}], s40 offen offset:{256*j}")

def p0_wt_loads(a):
    srd(a, SRD_B, P_D, F * D * 2)
    srd(a, SRD_C, P_WO, D * D * 2)
    a("v_lshrrev_b32 v4, 4, v2\nv_and_b32 v5, 15, v2")
    a("v_lshrrev_b32 v6, 1, v4\nv_and_b32 v7, 1, v4")
    a("v_lshrrev_b32 v24, 2, v5\nv_lshlrev_b32 v24, 3, v24\nv_and_b32 v25, 3, v5\nv_add_u32 v24, v24, v25")
    a("s_and_b32 s41, s2, 7\ns_lshr_b32 s42, s2, 3")
    a("s_mul_i32 s43, s41, 80")
    for n in range(4):
        lab = f"WT_{n}"
        a(f"s_add_u32 s50, s3, {4*n}\ns_mul_i32 s51, s50, 52\ns_lshr_b32 s51, s51, 8")
        a("s_mul_i32 s52, s51, 5\ns_sub_u32 s52, s50, s52")
        a("s_lshl_b32 s53, s51, 5\ns_add_u32 s53, s53, s42")
        a(f"s_mov_b32 s{44+n}, -1")
        a(f"s_cmp_ge_u32 s50, 15\ns_cbranch_scc1 {lab}_skip\ns_cmp_ge_u32 s53, 74\ns_cbranch_scc1 {lab}_skip")
        a(f"s_mul_i32 s54, s41, {WT_F}\ns_mul_i32 s55, s53, {WT_K}\ns_add_u32 s54, s54, s55\ns_lshl_b32 s55, s52, 10\ns_add_u32 s54, s54, s55\ns_add_u32 s{44+n}, s54, {WT}")
        a("s_lshr_b32 s55, s52, 1\ns_lshl_b32 s55, s55, 5\ns_and_b32 s56, s52, 1\ns_lshl_b32 s56, s56, 2\ns_add_u32 s55, s55, s56\ns_add_u32 s55, s55, s43")
        a("s_cmp_eq_u32 s52, 4\ns_cselect_b64 s[58:59], -1, 0\nv_cndmask_b32 v8, v24, v5, s[58:59]\nv_add_u32 v8, s55, v8\nv_lshlrev_b32 v8, 1, v8")
        a(f"s_cmp_ge_u32 s53, 54\ns_cbranch_scc1 {lab}_o")
        a("s_lshl_b32 s55, s53, 5\nv_lshlrev_b32 v9, 4, v6\nv_lshl_add_u32 v9, v7, 2, v9\nv_add_u32 v9, s55, v9")
        a("s_movk_i32 s56, 1280\nv_mul_lo_u32 v9, v9, s56\nv_add_u32 v9, v9, v8\nv_add_u32 v8, 10240, v9")
        for j in range(8):
            a(f"buffer_load_ushort v{64+8*n+j}, v{9 if j < 4 else 8}, s[{SRD_B}:{SRD_B+3}], 0 offen offset:{(j%4)*1280}")
        a(f"s_branch {lab}_skip")
        a(f"{lab}_o:")
        a("s_sub_u32 s55, s53, 54\ns_lshl_b32 s55, s55, 1\nv_add_u32 v16, s55, v6")
        a("v_mul_u32_u24 v17, 52, v16\nv_lshrrev_b32 v17, 8, v17")
        a("v_mul_u32_u24 v18, 5, v17\nv_sub_u32 v18, v16, v18")
        a("v_lshlrev_b32 v17, 2, v17")
        a("v_add_u32 v19, v17, v18\nv_mul_u32_u24 v19, 20, v19\nv_lshl_add_u32 v19, v7, 2, v19")
        a("v_add_u32 v20, v17, v7\nv_mul_u32_u24 v20, 20, v20\nv_add_u32 v20, 16, v20")
        a("v_cmp_eq_u32 vcc, 4, v18\nv_mov_b32 v21, 8\nv_mov_b32 v22, 40\nv_cndmask_b32 v19, v19, v20, vcc\nv_cndmask_b32 v21, v21, v22, vcc")
        a("s_movk_i32 s56, 1280\nv_mul_lo_u32 v9, v19, s56\nv_mul_lo_u32 v21, v21, s56\nv_add_u32 v9, v9, v8\nv_add_u32 v8, v9, v21")
        for j in range(8):
            a(f"buffer_load_ushort v{64+8*n+j}, v{9 if j < 4 else 8}, s[{SRD_C}:{SRD_C+3}], 0 offen offset:{(j%4)*1280}")
        a(f"{lab}_skip:")

def p0_wt_stores(a, sc):
    a("v_lshlrev_b32 v23, 4, v2")
    for n in range(4):
        lab = f"WTS_{n}"
        a(f"s_cmp_eq_u32 s{44+n}, -1\ns_cbranch_scc1 {lab}")
        for q in range(4):
            a(f"v_lshl_or_b32 v{96+4*n+q}, v{64+8*n+2*q+1}, 16, v{64+8*n+2*q}")
        a(f"buffer_store_dwordx4 v[{96+4*n}:{99+4*n}], v23, s[{SRD_WS}:{SRD_WS+3}], s{44+n} offen {sc}")
        a(f"{lab}:")

def p0_ln(a):
    for j in range(5):
        a(f"v_lshlrev_b32 v{30+2*j}, 16, v{10+j}\nv_and_b32 v{31+2*j}, 0xffff0000, v{10+j}")
    a("v_add_f32 v40, v30, v31")
    for j in range(2, 10):
        a(f"v_add_f32 v40, v40, v{30+j}")
    wave_sum(a, 40, 41, 58)
    a("v_mov_b32 v40, 0x3acccccd\nv_mul_f32 v40, s58, v40")
    a("v_sub_f32 v41, v30, v40\nv_mul_f32 v42, v41, v41")
    for j in range(1, 10):
        a(f"v_sub_f32 v41, v{30+j}, v40\nv_fmac_f32 v42, v41, v41")
    wave_sum(a, 42, 41, 59)
    a("v_mov_b32 v42, 0x3acccccd\nv_mul_f32 v42, s59, v42")
    rnd(a, 40); rnd(a, 42)
    a("v_add_f32 v42, 0x3727c5ac, v42")
    rnd(a, 42)
    a("v_sqrt_f32 v42, v42\ns_nop 0")
    rnd(a, 42)
    a("v_rcp_f32 v43, v42\ns_nop 0")
    for j in range(10):
        r = 30 + j
        a(f"v_sub_f32 v{r}, v{r}, v40")
        rnd(a, r)
        a(f"v_mul_f32 v44, v{r}, v43\nv_fma_f32 v45, -v44, v42, v{r}\nv_fma_f32 v{r}, v45, v43, v44")
    for j in range(5):
        a(f"v_cvt_pk_bf16_f32 v{10+j}, v{30+2*j}, v{31+2*j}")
    a(f"s_mul_i32 s57, s3, 1296\ns_add_u32 s57, s57, {LN_LDS}\nv_add_u32 v46, s57, v3")
    for j in range(5):
        a(f"ds_write_b32 v46, v{10+j} offset:{256*j}")

def ln2_loads(a):
    a("s_lshl_b32 s40, s2, 2\ns_add_u32 s40, s40, s3\ns_mul_i32 s40, s40, 2560")
    a("v_lshrrev_b32 v9, 5, v2\nv_and_b32 v3, 31, v2\nv_lshlrev_b32 v3, 3, v3\nv_mul_u32_u24 v8, 1280, v9\nv_add_u32 v8, v8, v3")
    for j in range(5):
        a(f"buffer_load_dwordx2 v[{10+2*j}:{11+2*j}], v8, s[{SRD_A}:{SRD_A+3}], s40 offen offset:{256*j}")

def half_sum(a, r, t):
    for ctl in ["quad_perm:[1,0,3,2]", "quad_perm:[2,3,0,1]", "row_half_mirror", "row_mirror"]:
        a(f"s_nop 1\nv_add_f32_dpp v{r}, v{r}, v{r} {ctl} row_mask:0xf bank_mask:0xf")
    a(f"s_nop 0\nv_mov_b32 v{t}, v{r}\ns_nop 1\nv_permlane16_swap_b32 v{r}, v{t}\ns_nop 0\nv_add_f32 v{r}, v{r}, v{t}")

def ln2(a):
    X = 30
    for q in range(10):
        a(f"v_lshlrev_b32 v{X+2*q}, 16, v{10+q}\nv_and_b32 v{X+2*q+1}, 0xffff0000, v{10+q}")
    P = lambda r: f"v[{r}:{r+1}]"
    a(f"v_pk_add_f32 v[50:51], {P(X)}, {P(X+2)}\nv_pk_add_f32 v[52:53], {P(X+4)}, {P(X+6)}")
    for q in range(4, 10, 2):
        a(f"v_pk_add_f32 v[50:51], v[50:51], {P(X+2*q)}\nv_pk_add_f32 v[52:53], v[52:53], {P(X+2*q+2)}")
    a("v_pk_add_f32 v[50:51], v[50:51], v[52:53]\ns_nop 0\nv_add_f32 v54, v50, v51")
    half_sum(a, 54, 55)
    a("v_mul_f32 v54, 0x3acccccd, v54")
    NEG = "op_sel_hi:[1,0] neg_lo:[0,1] neg_hi:[0,1]"
    for q in range(10):
        d = 60 + 2 * (q % 4); ac = 50 + 2 * (q % 2)
        a(f"v_pk_add_f32 {P(d)}, {P(X+2*q)}, v[54:55] {NEG}")
        if q < 2: a(f"v_pk_mul_f32 {P(ac)}, {P(d)}, {P(d)}")
        else: a(f"v_pk_fma_f32 {P(ac)}, {P(d)}, {P(d)}, {P(ac)}")
    a("v_pk_add_f32 v[50:51], v[50:51], v[52:53]\ns_nop 0\nv_add_f32 v56, v50, v51")
    half_sum(a, 56, 57)
    a("v_mul_f32 v56, 0x3acccccd, v56")
    rnd(a, 54); rnd(a, 56)
    a("v_add_f32 v56, 0x3727c5ac, v56")
    rnd(a, 56)
    a("v_sqrt_f32 v56, v56\ns_nop 0")
    rnd(a, 56)
    a("v_rcp_f32 v58, v56\ns_nop 0")
    for q in range(10):
        a(f"v_pk_add_f32 {P(X+2*q)}, {P(X+2*q)}, v[54:55] {NEG}")
    for q in range(10):
        a(f"v_cvt_pk_bf16_f32 v{10+q}, v{X+2*q}, v{X+2*q+1}")
    for q in range(10):
        a(f"v_lshlrev_b32 v{X+2*q}, 16, v{10+q}\nv_and_b32 v{X+2*q+1}, 0xffff0000, v{10+q}")
    for q0 in range(0, 10, 4):
        qs = list(range(q0, min(q0 + 4, 10)))
        for q in qs: a(f"v_pk_mul_f32 {P(60+2*(q%4))}, {P(X+2*q)}, v[58:59] op_sel_hi:[1,0]")
        for q in qs: a(f"v_pk_fma_f32 {P(X+2*q)}, {P(60+2*(q%4))}, v[56:57], {P(X+2*q)} op_sel_hi:[1,0,1] neg_lo:[1,0,0] neg_hi:[1,0,0]")
        for q in qs: a(f"v_pk_fma_f32 {P(X+2*q)}, {P(X+2*q)}, v[58:59], {P(60+2*(q%4))} op_sel_hi:[1,0,1]")
    for q in range(10):
        a(f"v_cvt_pk_bf16_f32 v{10+q}, v{X+2*q}, v{X+2*q+1}")
    a(f"s_mul_i32 s57, s3, {2*1296}\ns_add_u32 s57, s57, {LN_LDS}\nv_mul_u32_u24 v9, 1296, v9\nv_add3_u32 v9, v9, v3, s57")
    for j in range(5):
        a(f"ds_write_b64 v9, v[{10+2*j}:{11+2*j}] offset:{256*j}")

def p0_xn_stores(a, sc):
    a("v_lshrrev_b32 v47, 3, v0\nv_and_b32 v48, 7, v0")
    a(f"v_mul_u32_u24 v49, 1296, v48\nv_lshl_add_u32 v49, v47, 4, v49\nv_add_u32 v49, {LN_LDS}, v49")
    a("v_lshlrev_b32 v50, 9, v47\nv_lshl_add_u32 v50, v48, 4, v50")
    a(f"s_lshr_b32 s57, s2, 2\ns_mul_i32 s57, s57, {XN_T}\ns_and_b32 s58, s2, 3\ns_lshl_b32 s58, s58, 7\ns_add_u32 s57, s57, s58\ns_add_u32 s57, s57, {XN}")
    a("ds_read_b128 v[52:55], v49\nds_read_b128 v[56:59], v49 offset:512")
    a("s_cmp_ge_u32 s3, 2\ns_cbranch_scc1 XN_no3\nds_read_b128 v[60:63], v49 offset:1024\nXN_no3:")
    a("s_add_u32 s58, s57, 16384\ns_add_u32 s59, s57, 32768")
    a("s_waitcnt lgkmcnt(0)")
    a(f"buffer_store_dwordx4 v[52:55], v50, s[{SRD_WS}:{SRD_WS+3}], s57 offen {sc}")
    a(f"buffer_store_dwordx4 v[56:59], v50, s[{SRD_WS}:{SRD_WS+3}], s58 offen {sc}")
    a(f"s_cmp_ge_u32 s3, 2\ns_cbranch_scc1 XN_no3b\nbuffer_store_dwordx4 v[60:63], v50, s[{SRD_WS}:{SRD_WS+3}], s59 offen {sc}\nXN_no3b:")

def p0_ones(a, sc):
    a(f"s_lshr_b32 s57, s2, 2\ns_mul_i32 s57, s57, {VT_T}\ns_and_b32 s58, s2, 3\ns_mul_i32 s58, s58, {VT_HF}\ns_add_u32 s57, s57, s58\ns_add_u32 s57, s57, {VT + 640*16}")
    a("v_mov_b32 v52, 0x3f803f80\nv_mov_b32 v53, 0x3f803f80\nv_mov_b32 v54, 0x3f803f80\nv_mov_b32 v55, 0x3f803f80")
    a("v_lshlrev_b32 v51, 4, v2\nv_cmp_gt_u32 vcc, 8, v2\ns_and_saveexec_b64 s[98:99], vcc")
    a(f"buffer_store_dwordx4 v[52:55], v51, s[{SRD_WS}:{SRD_WS+3}], s57 offen {sc}")
    a("s_mov_b64 exec, s[98:99]")

def kernel_p0(name="p0_kernel", sc=""):
    a = Asm()
    prologue(a, name, "P0_end")
    p0_x_loads(a)
    a("s_cmp_ge_u32 s3, 4\ns_cbranch_scc1 P0_l1")
    p0_wt_loads(a)
    a("P0_l1:")
    a("s_waitcnt vmcnt(0)")
    p0_ln(a)
    a("s_waitcnt lgkmcnt(0)\ns_barrier")
    a("s_cmp_ge_u32 s3, 4\ns_cbranch_scc1 P0_end")
    p0_xn_stores(a, sc)
    p0_wt_stores(a, sc)
    a("s_cmp_lg_u32 s3, 3\ns_cbranch_scc1 P0_end")
    p0_ones(a, sc)
    a("P0_end:\ns_endpgm")
    return a, kernel_desc(name, 128, 102), (name, (256,1,1), (512,1,1), 163840)
```

```python
from core import *
from layout import *
from p0 import *

NSLOT = 8
V_A = 4
V_QK, V_V, V_H = 10, 11, 12
FR = 16
ACC = [32, 48, 64, 80]
BF = 96
PF = 4

S_TB, S_FB, S_TYPE = 60, 61, 62
S_T32 = 63
S_QK0, S_QK1, S_V0, S_V0b, S_V1, S_V1b, S_H0, S_H1 = 64, 65, 66, 67, 68, 69, 70, 71
S_CQ0, S_CQ1, S_CQ2, S_CP0, S_CP1 = 72, 73, 74, 75, 76
S_J = 77
S_T = 78
S_QSC0, S_QSC1 = 56, 57
QSCALE = 0x3ea52b48
import struct, math
QSCALE = struct.unpack('<I', struct.pack('<f', 20 ** -0.5 * math.log2(math.e)))[0]

ORD = 0
def tiles_of(ty):
    if ORD == 0:
        if ty == "A": return [("QK", 0), ("QKH", 1), ("P", 0), ("P", 1)]
        if ty == "B": return [("QK", 0), ("P", 0), ("P", 1)]
        if ty == "C": return [("QK", 0), ("V", 0), ("V", 1), ("P", 0)]
    if ty == "A": return [("P", 0), ("QK", 0), ("QKH", 1), ("P", 1)]
    if ty == "B": return [("P", 0), ("QK", 0), ("P", 1)]
    if ty == "C": return [("VV", 0), ("QK", 0), ("P", 0)]

def build_seq(ty, nb=3):
    mf = []; stages = []; tiles = []
    if ORD == 0:
        if ty == "A": accs = [(0, 1), (2,), (0, 1, 2, 3), (0, 1, 2, 3)]
        if ty == "B": accs = [(0, 1), (2, 3, 0, 1), (2, 3, 0, 1)]
        if ty == "C": accs = [(0, 1), (2, 3), (0, 1), (2, 3, 0, 1)]
    else:
        if ty == "A": accs = [(0, 1, 2, 3), (0, 1), (2,), (0, 1, 2, 3)]
        if ty == "B": accs = [(0, 1, 2, 3), (0, 1), (2, 3, 0, 1)]
        if ty == "C": accs = [(0, 1, 2, 3), (0, 1), (2, 3, 0, 1)]
    for ti, (kind, idx) in enumerate(tiles_of(ty)):
        ac = accs[ti]; st0 = len(stages); m0 = len(mf)
        if kind == "VV":
            tno = len(tiles)
            def one(s, k8, v, ft):
                mf.append(dict(stage=st0+2*s+v, ksp=k8, adr=ft, bf=8*s+k8, acc=ac[2*v+ft], first=(s == 0 and k8 == 0), swap=True, tile=tno+v))
            for s in range(5):
                stages.append(("V", 0, s)); stages.append(("V", 1, s))
                if s < 4:
                    for k8 in range(8):
                        for v in range(2):
                            for ft in range(2): one(s, k8, v, ft)
                else:
                    for v in range(2):
                        for k8 in range(8):
                            for ft in range(2): one(s, k8, v, ft)
                        tiles.append(dict(kind="V", idx=v, accs=ac[2*v:2*v+2], m0=m0, m1=len(mf)))
            continue
        if kind in ("QK", "V", "QKH"):
            for s in range(5):
                stages.append((kind, idx, s))
                for k8 in range(8):
                    for ft in ((0, 1) if kind != "QKH" else (2,)):
                        acc = ac[ft] if kind != "QKH" else ac[0]
                        mf.append(dict(stage=st0+s, ksp=k8, adr=ft, bf=8*s+k8, acc=acc, first=(s == 0 and k8 == 0), swap=(kind == "V"), tile=len(tiles)))
        else:
            for s in range(10): stages.append((kind, idx, s))
            order = []
            nb0 = 0 if ti == 0 else nb
            order += [(s, 0) for s in range(nb0)] + [(s, 1) for s in range(nb0)]
            for s in range(nb0, 10 - nb): order += [(s, 0), (s, 1)]
            order += [(s, 0) for s in range(10 - nb, 10)] + [(s, 1) for s in range(10 - nb, 10)]
            for (s, ft) in order:
                for k4 in range(4):
                    for m in range(2):
                        mf.append(dict(stage=st0+s, ksp=m*4+k4, adr=ft, bf=4*s+k4, acc=ac[2*ft+m], first=(s == 0 and k4 == 0), swap=False, tile=len(tiles)))
        tiles.append(dict(kind=kind, idx=idx, accs=ac, m0=m0, m1=len(mf)))
    return mf, stages, tiles

def epi_instrs(kind, idx, ft, accs, sc):
    L = []
    ws = f"s[{SRD_WS}:{SRD_WS+3}]"
    if kind in ("QK", "QKH"):
        r = accs[0]
        sreg = S_QK0 if kind == "QK" else S_QK1
        fo = ft * 2048 if kind == "QK" else 0
        ssc = S_QSC0 if kind == "QK" else S_QSC1
        for rg in range(4):
            for q in range(4): L.append(f"v_mul_f32 v{r+4*rg+q}, s{ssc}, v{r+4*rg+q}")
            L.append(f"v_cvt_pk_bf16_f32 v{r+4*rg}, v{r+4*rg}, v{r+4*rg+1}")
            L.append(f"v_cvt_pk_bf16_f32 v{r+4*rg+1}, v{r+4*rg+2}, v{r+4*rg+3}")
            L.append(f"buffer_store_dwordx2 v[{r+4*rg}:{r+4*rg+1}], v{V_QK}, {ws}, s{sreg} offen offset:{fo + rg*512} {sc}")
    elif kind == "V":
        r = accs[0]
        for s in range(2):
            sreg = (S_V0 if idx == 0 else S_V1) + s
            for q in range(4):
                L.append(f"v_cvt_pk_bf16_f32 v{r+8*s+q}, v{r+8*s+2*q}, v{r+8*s+2*q+1}")
            L.append(f"buffer_store_dwordx4 v[{r+8*s}:{r+8*s+3}], v{V_V}, {ws}, s{sreg} offen offset:{ft*512} {sc}")
    else:
        g, u = accs
        sreg = S_H0 + idx
        for s in range(2):
            for q in range(8):
                L.append(f"v_max_f32 v{g+8*s+q}, 0, v{g+8*s+q}")
                L.append(f"v_mul_f32 v{g+8*s+q}, v{g+8*s+q}, v{u+8*s+q}")
            for q in range(4):
                L.append(f"v_cvt_pk_bf16_f32 v{g+8*s+q}, v{g+8*s+2*q}, v{g+8*s+2*q+1}")
            L.append(f"buffer_store_dwordx4 v[{g+8*s}:{g+8*s+3}], v{V_H}, {ws}, s{sreg} offen offset:{(2*ft+s)*1024} {sc}")
    return L

def gen_compute(a, ty, sc, bar_every=16, nb=3, hooks=None, bwait=True, stamps=False, opt=None):
    opt = opt or {}
    mf, stages, tiles = build_seq(ty, nb)
    N = len(mf)
    jobs = []
    for ti, t in enumerate(tiles):
        if t["kind"] == "P": groups = [(0, t["accs"][0:2]), (1, t["accs"][2:4])]
        elif t["kind"] == "QKH": groups = [(0, t["accs"][0:1])]
        else: groups = [(0, t["accs"][0:1]), (1, t["accs"][1:2])]
        for ft, ac in groups:
            last = max(i for i in range(t["m0"], t["m1"]) if mf[i]["acc"] in ac)
            nxt = [i for i in range(t["m1"], N) if mf[i]["acc"] in ac]
            dl = min(nxt) if nxt else N + 1000
            jobs.append(dict(ready=last, dl=dl, ins=epi_instrs(t["kind"], t["idx"], ft, [ACC[x] for x in ac], sc), tile=ti, kind=t["kind"]))
    jobs.sort(key=lambda j: j["ready"])
    fill = {g: [] for g in range(N)}
    tail = []
    cur = 0
    for j in jobs:
        start = max(j["ready"] + 4, cur)
        end = min(j["dl"] - 1, N)
        avail = end - start
        n = len(j["ins"])
        if start >= N - 1 or avail <= 0:
            assert j["dl"] > N, (ty, j["ready"], j["dl"])
            tail += j["ins"]; continue
        if j["dl"] > N: end = N; avail = end - start
        per = -(-n // avail)
        per = max(per, min(3, n))
        g = start; k = 0
        while k < n and g < N:
            fill[g] += j["ins"][k:k+per]; k += per; g += 1
        if k < n:
            assert j["dl"] > N
            tail += j["ins"][k:]
        assert g <= end + 1 or j["dl"] > N, (ty, j, g, end)
        j["last_gap"] = g - 1
        cur = g
    maxfill = max(len(v) for v in fill.values())
    bars = [-1]
    m = 0
    while True:
        step = bar_every
        pos = (bars[-1] + PF + 1)
        kind = tiles[mf[min(pos, N-1)]["tile"]]["kind"]
        if kind == "QKH": step = 8
        nxt = bars[-1] + step if bars[-1] >= 0 else step - PF - 1
        if nxt >= N - PF - 1: break
        bars.append(nxt)
    barset = {b: i for i, b in enumerate(bars)}
    info = []
    for i, b in enumerate(bars):
        lo = b + PF + 1 if b >= 0 else 0
        hi = (bars[i+1] + PF) if i + 1 < len(bars) else N - 1
        need = max(mf[k]["stage"] for k in range(lo, hi + 1))
        done = -1
        for s in range(len(stages)):
            if all(k <= b for k in range(N) if mf[k]["stage"] == s): done = s
            else: break
        info.append((need, done))
    def rd(k):
        x = mf[k]; slot = x["stage"] % NSLOT
        adr = V_A + 2 * x["adr"] + slot // 4
        off = (slot % 4) * 16384 + x["ksp"] * 2048
        fr = FR + 4 * (k % PF)
        return [f"ds_read_b64_tr_b16 v[{fr}:{fr+1}], v{adr} offset:{off}", f"ds_read_b64_tr_b16 v[{fr+2}:{fr+3}], v{adr} offset:{off+512}"]
    hooks = hooks or {}
    a("s_barrier")
    if stamps: a(stamp(1))
    if opt.get("nords"): rd = lambda k: []
    tile_last = {t["m1"] - 1: i for i, t in enumerate(tiles)}
    for k in range(PF): a.extend(rd(k))
    seen_bf = -1
    for k in range(N):
        x = mf[k]
        outstanding = min(PF - 1, N - 1 - k) * 2
        w = f"s_waitcnt lgkmcnt({outstanding})"
        if bwait and x["tile"] == 0 and x["bf"] > seen_bf:
            seen_bf = x["bf"]
            w = f"s_waitcnt vmcnt({39 - x['bf']}) lgkmcnt({outstanding})"
        a(w)
        fr = FR + 4 * (k % PF); ac = ACC[x["acc"]]; bf = BF + 4 * x["bf"]
        c = "0" if x["first"] else f"v[{ac}:{ac+15}]"
        if x["swap"]: a(f"v_mfma_f32_32x32x16_bf16 v[{ac}:{ac+15}], v[{bf}:{bf+3}], v[{fr}:{fr+3}], {c}")
        else:         a(f"v_mfma_f32_32x32x16_bf16 v[{ac}:{ac+15}], v[{fr}:{fr+3}], v[{bf}:{bf+3}], {c}")
        if k in barset and k >= 0:
            bi = barset[k]
            if bi in hooks: a.extend(hooks[bi])
            a("s_barrier")
        if k + PF < N: a.extend(rd(k + PF))
        if not opt.get("noepi"): a.extend(fill[k])
        if stamps and k in tile_last: a(stamp(2 + tile_last[k]))
    if tail and not opt.get("noepi"):
        a("s_nop 7\ns_nop 3")
        a.extend(tail)
    return dict(info=info, stages=stages, tiles=tiles, jobs=jobs, bars=bars, maxfill=maxfill, N=N)

def gen_loader(a, meta, hooks=None, pre_issued=0, opt=None):
    opt = opt or {}
    info, stages = meta["info"], meta["stages"]
    ns = len(stages)
    hooks = hooks or {}
    issued = pre_issued
    def issue(s):
        kind, idx, st = stages[s]
        slot = s % NSLOT
        tile_no = None
        for i in range(4):
            if kind == "P":
                base = S_CP0 + idx; off = (64 * st + 8 * i) * 3456; vo, sr = 5, SRD_B
            else:
                base = {"QK": S_CQ0, "QKH": S_CQ1, "V": S_CQ1 + idx}[kind]; off = (128 * st + 8 * i) * 3840; vo, sr = 4, SRD_A
            a(f"s_add_u32 m0, s{S_J}, {slot*16384 + i*1024}")
            a(f"s_add_u32 s{S_T}, s{base}, {off}")
            if not opt.get("nodma"): a(f"buffer_load_dwordx4 v{vo}, s[{sr}:{sr+3}], s{S_T} offen lds")
    for bi, (need, done) in enumerate(info):
        allowed = min(ns, (info[bi-1][1] if bi > 0 else -1) + NSLOT + 1)
        while issued < allowed:
            issue(issued); issued += 1
        assert issued > need, (bi, need, issued)
        a(f"s_waitcnt vmcnt({min(63, 4 * (issued - 1 - need))})")
        a("s_barrier")
        if bi in hooks: a.extend(hooks[bi])

def setup_common(a):
    a("s_and_b32 s40, s2, 7\ns_lshr_b32 s41, s2, 3")
    a(f"s_lshr_b32 s42, s40, 2\ns_lshl_b32 s42, s42, 3\ns_and_b32 s43, s41, 7\ns_add_u32 s{S_TB}, s42, s43")
    a(f"s_and_b32 s42, s40, 3\ns_lshr_b32 s43, s41, 3\ns_lshl_b32 s43, s43, 2\ns_add_u32 s{S_FB}, s42, s43")

def type_params(a, ty):
    if ty == "A":
        a(f"s_mov_b32 s44, s{S_FB}\ns_and_b32 s45, s{S_FB}, 3\ns_add_u32 s45, s45, 8\ns_mov_b32 s46, 0\ns_lshl_b32 s47, s{S_FB}, 1\ns_add_u32 s48, s47, 1\ns_lshr_b32 s49, s{S_FB}, 2")
    if ty == "B":
        a(f"s_add_u32 s44, s{S_FB}, 4\ns_mov_b32 s45, 0\ns_mov_b32 s46, 0\ns_lshl_b32 s47, s{S_FB}, 1\ns_add_u32 s48, s47, 1\ns_mov_b32 s49, 0")
    if ty == "C":
        a(f"s_add_u32 s44, s{S_FB}, 4\ns_lshl_b32 s45, s{S_FB}, 1\ns_sub_u32 s45, s45, 2\ns_add_u32 s46, s45, 1\ns_add_u32 s47, s{S_FB}, 11\ns_mov_b32 s48, 0\ns_mov_b32 s49, 0")

def qk_store_base(a, dst, q):
    a(f"s_mov_b32 s52, {QS}\ns_cmp_ge_u32 s{q}, 10\ns_cselect_b32 s50, {KS - 10*4096}, s52\ns_lshl_b32 s51, s{q}, 12\ns_add_u32 s50, s50, s51\ns_mul_i32 s51, s{S_T32}, {QS_T}\ns_add_u32 s{dst}, s50, s51")

def setup_compute(a, ty):
    type_params(a, ty)
    a(f"s_mov_b32 s53, {QSCALE}")
    a(f"s_lshl_b32 s{S_T32}, s{S_TB}, 2\ns_add_u32 s{S_T32}, s{S_T32}, s3")
    a("v_lshrrev_b32 v13, 5, v2\nv_lshlrev_b32 v13, 3, v13\nv_bfe_u32 v14, v2, 2, 2\nv_add_u32 v13, v13, v14\nv_lshlrev_b32 v13, 7, v13")
    a("v_bfe_u32 v14, v2, 3, 1\nv_lshl_add_u32 v13, v14, 6, v13")
    a("v_bfe_u32 v14, v2, 4, 1\nv_lshl_add_u32 v13, v14, 5, v13\nv_and_b32 v14, 3, v2\nv_lshl_add_u32 v4, v14, 3, v13")
    a("v_add_u32 v5, 0x10000, v4\nv_xor_b32 v6, 64, v4\nv_xor_b32 v7, 64, v5")
    a("s_lshl_b32 s50, s49, 6\nv_xor_b32 v8, s50, v4\nv_xor_b32 v9, s50, v5")
    a(f"v_lshlrev_b32 v{V_QK}, 3, v2\nv_lshlrev_b32 v{V_H}, 4, v2")
    a(f"v_lshrrev_b32 v13, 5, v2\nv_mul_u32_u24 v13, {VT_HF}, v13\nv_and_b32 v14, 31, v2\nv_lshl_add_u32 v{V_V}, v14, 4, v13")
    qk_store_base(a, S_QK0, 44)
    a(f"s_cmp_ge_u32 s44, 10\ns_cselect_b32 s{S_QSC0}, 1.0, s53")
    if ty == "A":
        qk_store_base(a, S_QK1, 45)
        a(f"s_cmp_ge_u32 s45, 10\ns_cselect_b32 s{S_QSC1}, 1.0, s53")
        a(f"s_lshl_b32 s50, s49, 11\ns_add_u32 s{S_QK1}, s{S_QK1}, s50")
    if ty == "C":
        for n, (q, d) in enumerate([(45, S_V0), (46, S_V1)]):
            a(f"s_sub_u32 s50, s{q}, 20\ns_lshl_b32 s50, s50, 10\ns_mul_i32 s51, s{S_T32}, {VT_T}\ns_add_u32 s50, s50, s51\ns_add_u32 s{d}, s50, {VT}\ns_add_u32 s{d+1}, s{d}, {VT_S}")
    for n, q in enumerate([47, 48]):
        a(f"s_lshl_b32 s50, s{q}, 12\ns_mul_i32 s51, s{S_T32}, {HS_T}\ns_add_u32 s50, s50, s51\ns_add_u32 s{S_H0+n}, s50, {HS}")

def x_scatter_loads(a):
    srd(a, SRD_C, P_X, S * D * 2)
    a(f"s_mul_i32 s50, s{S_T32}, {32*1280}")
    a("v_and_b32 v13, 31, v2\nv_mul_u32_u24 v13, 1280, v13\nv_lshrrev_b32 v14, 5, v2\nv_lshl_add_u32 v13, v14, 4, v13")
    for ks in range(40):
        a(f"buffer_load_dwordx4 v[{BF+4*ks}:{BF+4*ks+3}], v13, s[{SRD_C}:{SRD_C+3}], s50 offen offset:{ks*32}")

def xn_loads(a, sc):
    a(f"s_mul_i32 s50, s{S_T32}, {XN_T}\ns_add_u32 s50, s50, {XN}")
    for ks in range(40):
        if ks % 4 == 0 and ks > 0: a("s_add_u32 s50, s50, 4096")
        a(f"buffer_load_dwordx4 v[{BF+4*ks}:{BF+4*ks+3}], v{V_H}, s[{SRD_WS}:{SRD_WS+3}], s50 offen offset:{(ks%4)*1024} {sc}")

def setup_loader(a, ty):
    type_params(a, ty)
    a(f"s_sub_u32 s40, s3, 4\ns_lshl_b32 s{S_J}, s40, 12")
    srd(a, SRD_A, P_WQKV, D * 1920 * 2)
    a(f"s_cmp_ge_u32 s40, 2\ns_cbranch_scc1 LD_up_{ty}")
    srd(a, SRD_B, P_G, D * F * 2)
    a(f"s_branch LD_sr_{ty}\nLD_up_{ty}:")
    srd(a, SRD_B, P_U, D * F * 2)
    a(f"LD_sr_{ty}:")
    a("v_lshrrev_b32 v13, 3, v2\nv_and_b32 v14, 7, v2\nv_bfe_u32 v15, v2, 4, 1\nv_lshlrev_b32 v15, 2, v15\nv_xor_b32 v14, v14, v15\nv_lshlrev_b32 v14, 4, v14")
    a("v_mul_u32_u24 v4, 3840, v13\nv_add_u32 v4, v4, v14\nv_mul_u32_u24 v5, 3456, v13\nv_add_u32 v5, v5, v14")
    a(f"s_mul_i32 s50, s40, {32*3840}")
    for n, q in enumerate([44, 45, 46]):
        a(f"s_lshl_b32 s51, s{q}, 7\ns_add_u32 s{S_CQ0+n}, s51, s50")
    a(f"s_and_b32 s50, s40, 1\ns_mul_i32 s50, s50, {32*3456}")
    for n, q in enumerate([47, 48]):
        a(f"s_lshl_b32 s51, s{q}, 7\ns_add_u32 s{S_CP0+n}, s51, s50")

ST0 = 80
def stamp(slot, st0=ST0):
    return f"s_memtime s[{st0+2*slot}:{st0+2*slot+1}]"
def stamp_flush(a, n, base_slot, wave, lab, st0=ST0):
    a(f"s_cmp_eq_u32 s3, {wave}\ns_cbranch_scc0 {lab}")
    a("s_waitcnt lgkmcnt(0)")
    a(f"s_lshl_b32 s40, s2, 8\ns_add_u32 s40, s40, {STAMPS + base_slot*8}\nv_mov_b32 v13, 0\ns_mov_b64 exec, 1")
    for i in range(n):
        a(f"v_mov_b32 v14, s{st0+2*i}\nv_mov_b32 v15, s{st0+2*i+1}\nbuffer_store_dwordx2 v[14:15], v13, s[{SRD_WS}:{SRD_WS+3}], s40 offen offset:{8*i}\ns_nop 1")
    a(f"{lab}:")

def stamp_flush_all(a, n, base_off, lab, st0=ST0):
    a("s_waitcnt lgkmcnt(0)")
    a(f"s_lshl_b32 s40, s2, 3\ns_add_u32 s40, s40, s3\ns_lshl_b32 s40, s40, 6\ns_add_u32 s40, s40, {STAMPS + base_off}\nv_mov_b32 v13, 0\ns_mov_b64 exec, 1")
    for i in range(n):
        a(f"v_mov_b32 v14, s{st0+2*i}\nv_mov_b32 v15, s{st0+2*i+1}\nbuffer_store_dwordx2 v[14:15], v13, s[{SRD_WS}:{SRD_WS+3}], s40 offen offset:{8*i}\ns_nop 1")

def kernel_p1(name="p1_kernel", sc="", stamps=False, nb=3, opt=None):
    opt = opt or {}
    a = Asm()
    prologue(a, name, "P1_end")
    setup_common(a)
    metas = {}
    a(f"s_cmp_ge_u32 s3, 4\ns_cbranch_scc1 P1_loader")
    a(f"s_cmp_ge_u32 s{S_FB}, 11\ns_cbranch_scc1 P1_cC\ns_cmp_ge_u32 s{S_FB}, 8\ns_cbranch_scc1 P1_cB")
    for ty in "ABC":
        a(f"P1_c{ty}:")
        setup_compute(a, ty)
        if stamps: a(stamp(0))
        if opt.get("xscat"): x_scatter_loads(a)
        else: xn_loads(a, sc)
        metas[ty] = gen_compute(a, ty, sc, nb=nb, stamps=stamps, opt=opt)
        if stamps:
            a(stamp(7)); a("s_waitcnt vmcnt(0)"); a(stamp(8))
            stamp_flush(a, 9, 0, 0, f"P1_sf{ty}")
        a("s_branch P1_end")
    a("P1_loader:")
    a(f"s_cmp_ge_u32 s{S_FB}, 11\ns_cbranch_scc1 P1_lC\ns_cmp_ge_u32 s{S_FB}, 8\ns_cbranch_scc1 P1_lB")
    for ty in "ABC":
        a(f"P1_l{ty}:")
        setup_loader(a, ty)
        gen_loader(a, metas[ty], opt=opt)
        a("s_branch P1_end")
    a("P1_end:\ns_endpgm")
    return a, kernel_desc(name, 256, 102), (name, (256,1,1), (512,1,1), 163840), metas
```

```python
from core import *
import re
from layout import *
import p0, p1, p2, p3
from p0 import srd, SRD_WS, SRD_A, SRD_B, SRD_C, P_X, P_WQKV, P_WO, P_G, P_U, P_D, P_OUT, P_DBG, P_WS
from p1 import build_seq, epi_instrs, NSLOT, V_A, V_QK, V_V, V_H, FR, ACC, BF, PF
from p1 import S_TB, S_FB, S_T32, S_CQ0, S_CQ1, S_CP0, S_J, S_T

FX = 0x000000
FW = 0x010000
FO = 0x020000
FG = 0x080000
K_QK, K_V, K_H0, K_H1 = 0, 1, 2, 3
CT_NONCE, CT_PROG, CT_ATT = 0, 16, 32
RING = 32768
LN_LDS = 1024
L_Q = 512; L_K = L_Q + 10240; L_V = L_K + 51200; L_ONES = L_V + 51200
L_R1 = 512; L_R2 = L_R1 + 81920
p0.LN_LDS = LN_LDS
p2.L_Q, p2.L_K, p2.L_V, p2.L_ONES = L_Q, L_K, L_V, L_ONES
p3.L_R1, p3.L_R2 = L_R1, L_R2
S_NONCE, S_SPIN = 0, 1
S_ST = 10
S_FL = 58
V_NONCE, V_Z, V_STAMP = 0, 3, 1
SPIN = 20000
WS = f"s[{SRD_WS}:{SRD_WS+3}]"

class Stamper:
    def __init__(self, on, cyc=False): self.on = on; self.prev = None; self.ins = "s_memtime" if cyc else "s_memrealtime"
    def mark(self, i):
        if not self.on: return []
        L = []
        if self.prev is not None: L.append(f"v_writelane_b32 v{V_STAMP}, s{S_ST}, {self.prev}")
        L.append(f"{self.ins} s[{S_ST}:{S_ST+1}]")
        self.prev = i
        return L
    def sync(self):
        if not self.on or self.prev is None: return []
        L = ["s_waitcnt lgkmcnt(0)", f"v_writelane_b32 v{V_STAMP}, s{S_ST}, {self.prev}"]
        self.prev = None
        return L
    def now(self, i): return self.sync() + self.mark(i) + self.sync()
    def flush(self, a):
        if not self.on: return
        a.extend(self.sync())
        a(f"s_mov_b64 exec, -1\ns_lshl_b32 s40, s2, 3\ns_add_u32 s40, s40, s3\ns_lshl_b32 s40, s40, 7\ns_add_u32 s40, s40, {STAMPS}")
        a(f"v_mbcnt_lo_u32_b32 v4, -1, 0\nv_mbcnt_hi_u32_b32 v4, -1, v4\nv_lshlrev_b32 v4, 2, v4\ns_mov_b32 exec_hi, 0")
        a(f"buffer_store_dword v{V_STAMP}, v4, {WS}, s40 offen\ns_mov_b64 exec, -1")

def poll(a, vaddr, soff, mlo, mhi, lab, vt, off=0):
    a(f"s_mov_b32 s{S_SPIN}, {SPIN}\ns_mov_b32 exec_lo, {mlo}\ns_mov_b32 exec_hi, {mhi}")
    a(f"{lab}:")
    a(f"buffer_load_dword v{vt}, v{vaddr}, {WS}, s{soff} offen offset:{off} sc1")
    a(f"s_waitcnt vmcnt(0)\nv_cmp_eq_u32 vcc, s{S_NONCE}, v{vt}\ns_nop 0\ns_cmp_eq_u64 vcc, exec\ns_cbranch_scc1 {lab}_ok")
    a(f"s_sub_u32 s{S_SPIN}, s{S_SPIN}, 1\ns_cmp_lg_u32 s{S_SPIN}, 0\ns_cbranch_scc1 {lab}")
    a(f"{lab}_ok:\ns_mov_b64 exec, -1")

def lds_poll4(a, off, lab, vt):
    a(f"v_mov_b32 v{vt+4}, {off}\ns_mov_b32 s{S_SPIN}, {SPIN*8}")
    a(f"{lab}:\nds_read_b128 v[{vt}:{vt+3}], v{vt+4}\ns_waitcnt lgkmcnt(0)")
    a(f"v_min_u32 v{vt}, v{vt}, v{vt+1}\nv_min3_u32 v{vt}, v{vt}, v{vt+2}, v{vt+3}\ns_nop 0\nv_readfirstlane_b32 s40, v{vt}")
    a(f"s_cmp_lg_u32 s40, 0\ns_cbranch_scc1 {lab}_ok\ns_sub_u32 s{S_SPIN}, s{S_SPIN}, 1\ns_cmp_lg_u32 s{S_SPIN}, 0\ns_cbranch_scc1 {lab}\n{lab}_ok:")

def flag_store(soff, off=0):
    return f"buffer_store_dword v{V_NONCE}, v{V_Z}, {WS}, s{soff} offen offset:{off} sc1"

class Emit:
    def __init__(self, a): self.a = a; self.vm = []; self.ds = []
    def __call__(self, ins, tag=None):
        for l in ins.split("\n") if isinstance(ins, str) else ins:
            l = l.strip()
            if not l: continue
            if l.startswith("buffer_"): self.vm.append(tag)
            elif l.startswith("ds_"): self.ds.append(tag)
            self.a(l)
    def vm_after(self, pred):
        for i in range(len(self.vm) - 1, -1, -1):
            if pred(self.vm[i]): return len(self.vm) - 1 - i
        return None
    def ds_after(self, pred):
        for i in range(len(self.ds) - 1, -1, -1):
            if pred(self.ds[i]): return len(self.ds) - 1 - i
        return None

def ring_plan(ty, nb=3, bar_every=16):
    mf, stages, tiles = build_seq(ty, nb)
    N = len(mf); ns = len(stages)
    phase = (-ns) % NSLOT
    bars = [-1]
    while True:
        pos = bars[-1] + PF + 1
        kind = tiles[mf[min(pos, N-1)]["tile"]]["kind"]
        step = 8 if kind == "QKH" else bar_every
        nxt = bars[-1] + step if bars[-1] >= 0 else step - PF - 1
        if nxt >= N - PF - 1: break
        bars.append(nxt)
    def done_at(b):
        d = -1
        for s in range(ns):
            if all(k <= b for k in range(N) if mf[k]["stage"] == s): d = s
            else: break
        return d
    out = []
    for b in bars:
        out.append(b)
        if done_at(b) >= ns - 6: break
    bars = out
    info = []
    for i, b in enumerate(bars):
        lo = b + PF + 1 if b >= 0 else 0
        hi = (bars[i+1] + PF) if i + 1 < len(bars) else N - 1
        need = max(mf[k]["stage"] for k in range(lo, hi + 1))
        info.append((need, done_at(b)))
    prog = max(k for k in range(N) if mf[k]["stage"] <= ns - 4)
    return dict(mf=mf, stages=stages, tiles=tiles, N=N, ns=ns, phase=phase, bars=bars, info=info, prog=prog)

def gen_compute(a, ty, st, opt):
    P = ring_plan(ty)
    mf, stages, tiles, N, phase, bars = P["mf"], P["stages"], P["tiles"], P["N"], P["phase"], P["bars"]
    sc = "" if opt.get("nosc") else "sc1"
    e = Emit(a)
    PRE = opt.get("pre", 16); XRATE = opt.get("xrate", 2); FDELAY = opt.get("fdelay", 48)
    jobs = []
    for ti, t in enumerate(tiles):
        if t["kind"] == "P": groups = [(0, t["accs"][0:2]), (1, t["accs"][2:4])]
        elif t["kind"] == "QKH": groups = [(0, t["accs"][0:1])]
        else: groups = [(0, t["accs"][0:1]), (1, t["accs"][1:2])]
        for ft, ac in groups:
            last = max(i for i in range(t["m0"], t["m1"]) if mf[i]["acc"] in ac)
            nxt = [i for i in range(t["m1"], N) if mf[i]["acc"] in ac]
            dl = min(nxt) if nxt else N + 1000
            jobs.append(dict(ready=last, dl=dl, ins=epi_instrs(t["kind"], t["idx"], ft, [ACC[x] for x in ac], sc), tile=ti, kind=t["kind"]))
    jobs.sort(key=lambda j: j["ready"])
    fill = {g: [] for g in range(N)}
    tail = []
    cur = 0
    for j in jobs:
        start = max(j["ready"] + 4, cur)
        n = len(j["ins"])
        tagged = [(x, ("st", j["tile"])) for x in j["ins"]]
        end = min(j["dl"] - 1, N)
        avail = end - start
        if start >= N - 1 or avail <= 0:
            assert j["dl"] > N
            tail += tagged; j["last_gap"] = N; continue
        if j["dl"] > N: end = N; avail = end - start
        per = max(-(-n // avail), min(3, n))
        g = start; k = 0
        while k < n and g < N:
            fill[g] += tagged[k:k+per]; k += per; g += 1
        if k < n:
            assert j["dl"] > N
            tail += tagged[k:]; g = N + 1
        assert g <= end + 1 or j["dl"] > N
        j["last_gap"] = g - 1
        cur = g
    if p1.ORD == 0:
        if ty == "A": groups = [(K_QK, [0, 1]), (K_H0, [2])]
        if ty == "B": groups = [(K_QK, [0]), (K_H0, [1])]
        if ty == "C": groups = [(K_QK, [0]), (K_V, [1, 2])]
    else:
        if ty == "A": groups = [(K_H0, [0]), (K_QK, [1, 2])]
        if ty == "B": groups = [(K_H0, [0]), (K_QK, [1])]
        if ty == "C": groups = [(K_V, [0, 1]), (K_QK, [2])]
    flags = {}
    for kind, tl in groups:
        lg = max(j["last_gap"] for j in jobs if j["tile"] in tl)
        g = lg + (opt.get("fdelay_qk", FDELAY) if kind == K_QK else FDELAY)
        assert g < N - 1, (ty, kind, g)
        flags.setdefault(g, []).append((kind, tl))
    barset = set(b for b in bars if b >= 0)
    def rd(k):
        x = mf[k]; slot = (x["stage"] + phase) % NSLOT
        adr = V_A + 2 * x["adr"] + slot // 4
        off = (slot % 4) * 16384 + x["ksp"] * 2048
        fr = FR + 4 * (k % PF)
        return [f"ds_read_b64_tr_b16 v[{fr}:{fr+1}], v{adr} offset:{off}", f"ds_read_b64_tr_b16 v[{fr+2}:{fr+3}], v{adr} offset:{off+512}"]
    def xn_load(ks):
        L = []
        if ks % 4 == 0 and ks > 0: L.append("s_add_u32 s50, s50, 4096")
        L.append(f"buffer_load_dwordx4 v[{BF+4*ks}:{BF+4*ks+3}], v{V_H}, {WS}, s50 offen offset:{(ks%4)*1024} sc1")
        return L
    a(f"s_mul_i32 s50, s{S_T32}, {XN_T}\ns_add_u32 s50, s50, {XN}")
    nx = 0
    while nx < PRE: e(xn_load(nx), ("xn", nx)); nx += 1
    a("s_barrier")
    a.extend(st.mark(4))
    for k in range(PF): e(rd(k), ("rd", k))
    seen_bf = -1
    tile_last = {t["m1"] - 1: i for i, t in enumerate(tiles)}
    for k in range(N):
        x = mf[k]
        w = f"lgkmcnt({e.ds_after(lambda t: t == ('rd', k))})"
        if x["bf"] > seen_bf:
            seen_bf = x["bf"]
            assert ("xn", x["bf"]) in e.vm
            w = f"vmcnt({min(63, e.vm_after(lambda t: t == ('xn', x['bf'])))}) " + w
        a("s_waitcnt " + w)
        fr = FR + 4 * (k % PF); ac = ACC[x["acc"]]; bf = BF + 4 * x["bf"]
        c = "0" if x["first"] else f"v[{ac}:{ac+15}]"
        if x["swap"]: a(f"v_mfma_f32_32x32x16_bf16 v[{ac}:{ac+15}], v[{bf}:{bf+3}], v[{fr}:{fr+3}], {c}")
        else:         a(f"v_mfma_f32_32x32x16_bf16 v[{ac}:{ac+15}], v[{fr}:{fr+3}], v[{bf}:{bf+3}], {c}")
        if k in barset: a("s_barrier")
        if k + PF < N: e(rd(k + PF), ("rd", k + PF))
        if nx < 40 and k % XRATE == XRATE - 1:
            e(xn_load(nx), ("xn", nx)); nx += 1
        for ins, tag in fill[k]: e(ins, tag)
        for kind, tl in flags.get(k, []):
            n = e.vm_after(lambda t: t is not None and t[0] == "st" and t[1] in tl)
            if not opt.get("nofw"): a(f"s_waitcnt vmcnt({min(63, n)})")
            e(flag_store(S_FL, kind * 128), ("flag", kind))
        if k == P["prog"]:
            e("ds_write_b32 v13, v14", ("prog",))
        if k in tile_last: a.extend(st.mark(5 + tile_last[k]))
    if tail:
        a("s_nop 7\ns_nop 3")
        for ins, tag in tail: e(ins, tag)
    a.extend(st.sync())
    return P

def setup_compute(a, ty):
    p1.setup_compute(a, ty)
    for r in range(4, 10): a(f"v_add_u32 v{r}, {RING}, v{r}")
    a(f"s_lshl_b32 s{S_FL}, s{S_T32}, 4\ns_add_u32 s{S_FL}, s{S_FL}, s{S_FB}\ns_lshl_b32 s{S_FL}, s{S_FL}, 9\ns_add_u32 s{S_FL}, s{S_FL}, {FG}")
    a(f"s_lshl_b32 s40, s3, 2\ns_add_u32 s40, s40, {CT_PROG}\nv_mov_b32 v13, s40\nv_mov_b32 v14, 1")

WT_VB = 32
WT_SRD_D, WT_SRD_O = 80, 84
def wt_loads(a, n, sw):
    vb = WT_VB
    g_, l16, gh, gl, col, row, pa = vb, vb+1, vb+2, vb+3, vb+4, vb+5, vb+6
    t = vb + 8
    if n == 0:
        a(f"v_lshrrev_b32 v{g_}, 4, v2\nv_and_b32 v{l16}, 15, v2\nv_lshrrev_b32 v{gh}, 1, v{g_}\nv_and_b32 v{gl}, 1, v{g_}")
        a(f"v_lshrrev_b32 v{pa}, 2, v{l16}\nv_lshlrev_b32 v{pa}, 3, v{pa}\nv_and_b32 v{pa+1}, 3, v{l16}\nv_add_u32 v{pa}, v{pa}, v{pa+1}")
        a("s_and_b32 s41, s2, 7\ns_lshr_b32 s42, s2, 3\ns_mul_i32 s43, s41, 80")
    lab = f"WT_{n}_{a.label('x')}"
    G = 96 + 8 * n
    a(f"s_add_u32 s50, s{sw}, {4*n}\ns_mul_i32 s51, s50, 52\ns_lshr_b32 s51, s51, 8")
    a("s_mul_i32 s52, s51, 5\ns_sub_u32 s52, s50, s52")
    a("s_lshl_b32 s53, s51, 5\ns_add_u32 s53, s53, s42")
    a(f"s_mov_b32 s{44+n}, -1")
    a(f"s_cmp_ge_u32 s50, 15\ns_cbranch_scc1 {lab}_skip\ns_cmp_ge_u32 s53, 74\ns_cbranch_scc1 {lab}_skip")
    a(f"s_mul_i32 s54, s41, {WT_F}\ns_mul_i32 s55, s53, {WT_K}\ns_add_u32 s54, s54, s55\ns_lshl_b32 s55, s52, 10\ns_add_u32 s54, s54, s55\ns_add_u32 s{44+n}, s54, {WT}")
    a("s_lshr_b32 s55, s52, 1\ns_lshl_b32 s55, s55, 5\ns_and_b32 s56, s52, 1\ns_lshl_b32 s56, s56, 2\ns_add_u32 s55, s55, s56\ns_add_u32 s55, s55, s43")
    a(f"s_cmp_eq_u32 s52, 4\ns_cselect_b64 s[56:57], -1, 0\nv_cndmask_b32 v{col}, v{pa}, v{l16}, s[56:57]\nv_add_u32 v{col}, s55, v{col}\nv_lshlrev_b32 v{col}, 1, v{col}")
    a(f"s_cmp_ge_u32 s53, 54\ns_cbranch_scc1 {lab}_o")
    a(f"s_lshl_b32 s55, s53, 5\nv_lshlrev_b32 v{row}, 4, v{gh}\nv_lshl_add_u32 v{row}, v{gl}, 2, v{row}\nv_add_u32 v{row}, s55, v{row}")
    a(f"s_movk_i32 s56, 1280\nv_mul_lo_u32 v{row}, v{row}, s56\nv_add_u32 v{row}, v{row}, v{col}\nv_add_u32 v{col}, 10240, v{row}")
    for j in range(8):
        a(f"buffer_load_ushort v{G+j}, v{row if j < 4 else col}, s[{WT_SRD_D}:{WT_SRD_D+3}], 0 offen offset:{(j%4)*1280}")
    a(f"s_branch {lab}_skip\n{lab}_o:")
    a(f"s_sub_u32 s55, s53, 54\ns_lshl_b32 s55, s55, 1\nv_add_u32 v{t}, s55, v{gh}")
    a(f"v_mul_u32_u24 v{t+1}, 52, v{t}\nv_lshrrev_b32 v{t+1}, 8, v{t+1}")
    a(f"v_mul_u32_u24 v{t+2}, 5, v{t+1}\nv_sub_u32 v{t+2}, v{t}, v{t+2}")
    a(f"v_lshlrev_b32 v{t+1}, 2, v{t+1}")
    a(f"v_add_u32 v{t+3}, v{t+1}, v{t+2}\nv_mul_u32_u24 v{t+3}, 20, v{t+3}\nv_lshl_add_u32 v{t+3}, v{gl}, 2, v{t+3}")
    a(f"v_add_u32 v{t+4}, v{t+1}, v{gl}\nv_mul_u32_u24 v{t+4}, 20, v{t+4}\nv_add_u32 v{t+4}, 16, v{t+4}")
    a(f"v_cmp_eq_u32 vcc, 4, v{t+2}\nv_mov_b32 v{t+5}, 8\nv_mov_b32 v{t+6}, 40\nv_cndmask_b32 v{t+3}, v{t+3}, v{t+4}, vcc\nv_cndmask_b32 v{t+5}, v{t+5}, v{t+6}, vcc")
    a(f"s_movk_i32 s56, 1280\nv_mul_lo_u32 v{row}, v{t+3}, s56\nv_mul_lo_u32 v{t+5}, v{t+5}, s56\nv_add_u32 v{row}, v{row}, v{col}\nv_add_u32 v{col}, v{row}, v{t+5}")
    for j in range(8):
        a(f"buffer_load_ushort v{G+j}, v{row if j < 4 else col}, s[{WT_SRD_O}:{WT_SRD_O+3}], 0 offen offset:{(j%4)*1280}")
    a(f"{lab}_skip:")

def wt_stores(a):
    a(f"v_lshlrev_b32 v{WT_VB+15}, 4, v2")
    for n in range(4):
        lab = a.label("WTS")
        G = 96 + 8 * n
        a(f"s_cmp_eq_u32 s{44+n}, -1\ns_cbranch_scc1 {lab}")
        for q in range(4): a(f"v_lshl_or_b32 v{128+4*n+q}, v{G+2*q+1}, 16, v{G+2*q}")
        a(f"buffer_store_dwordx4 v[{128+4*n}:{131+4*n}], v{WT_VB+15}, {WS}, s{44+n} offen sc1")
        a(f"{lab}:")

WT_LDS = 12288
def wt2_issue(a):
    lab = a.label("W2")
    a("s_mov_b32 s88, -1\ns_sub_u32 s50, s3, 4\ns_lshr_b32 s42, s2, 3\ns_lshl_b32 s53, s50, 5\ns_add_u32 s53, s53, s42")
    a(f"s_cmp_ge_u32 s53, 74\ns_cbranch_scc1 {lab}_skip")
    a(f"s_and_b32 s41, s2, 7\ns_mul_i32 s54, s41, {WT_F}\ns_mul_i32 s55, s53, {WT_K}\ns_add_u32 s54, s54, s55\ns_add_u32 s88, s54, {WT}")
    a(f"s_mul_i32 s43, s41, 160\ns_mul_i32 s51, s50, 5120\ns_add_u32 s51, s51, {WT_LDS}")
    for p in range(5):
        a(f"v_add_u32 v{40+p}, {64*p}, v2\nv_mul_u32_u24 v{32+p}, 205, v{40+p}\nv_lshrrev_b32 v{32+p}, 11, v{32+p}")
        a(f"v_mul_u32_u24 v46, 10, v{32+p}\nv_sub_u32 v{40+p}, v{40+p}, v46\nv_lshlrev_b32 v{40+p}, 4, v{40+p}")
    a(f"s_cmp_ge_u32 s53, 54\ns_cbranch_scc1 {lab}_o")
    a("s_mul_i32 s55, s53, 40960\ns_add_u32 s55, s55, s43")
    for p in range(5):
        a(f"v_mul_u32_u24 v46, 1280, v{32+p}\nv_add_u32 v{40+p}, v{40+p}, v46")
        a(f"s_add_u32 m0, s51, {1024*p}\ns_nop 0")
        a(f"buffer_load_dwordx4 v{40+p}, s[{WT_SRD_D}:{WT_SRD_D+3}], s55 offen lds")
    a(f"s_branch {lab}_skip\n{lab}_o:")
    for gh in range(2):
        a(f"s_sub_u32 s55, s53, 54\ns_lshl_b32 s55, s55, 1\ns_add_u32 s55, s55, {gh}\ns_mul_i32 s56, s55, 52\ns_lshr_b32 s56, s56, 8")
        a(f"s_mul_i32 s57, s56, 5\ns_sub_u32 s57, s55, s57\ns_lshl_b32 s56, s56, 2")
        a(f"s_add_u32 s55, s56, s57\ns_mul_i32 s55, s55, 20\ns_mul_i32 s56, s56, 20\ns_add_u32 s56, s56, 16")
        a(f"s_cmp_eq_u32 s57, 4\ns_cselect_b32 s{58+2*gh}, s56, s55\ns_cselect_b32 s{59+2*gh}, 1, 0")
    a("v_mov_b32 v47, s58\nv_mov_b32 v48, s60\nv_mov_b32 v49, s59\nv_mov_b32 v50, s61")
    for p in range(5):
        a(f"v_and_b32 v51, 15, v{32+p}\nv_lshrrev_b32 v52, 2, v51\nv_mul_u32_u24 v52, 20, v52\nv_and_b32 v53, 3, v51\nv_add_u32 v52, v52, v53")
        a(f"v_cmp_le_u32 vcc, 16, v{32+p}\ns_nop 1\nv_cndmask_b32 v53, v47, v48, vcc\nv_cndmask_b32 v54, v49, v50, vcc")
        a(f"v_cmp_eq_u32 vcc, 1, v54\ns_nop 1\nv_cndmask_b32 v51, v51, v52, vcc\nv_add_u32 v51, v51, v53")
        a(f"v_mul_u32_u24 v51, 1280, v51\nv_add_u32 v{40+p}, v{40+p}, v51")
        a(f"s_add_u32 m0, s51, {1024*p}\ns_nop 0")
        a(f"buffer_load_dwordx4 v{40+p}, s[{WT_SRD_O}:{WT_SRD_O+3}], s43 offen lds")
    a(f"{lab}_skip:")

def wt2_finish(a, nyounger):
    lab = a.label("W2F")
    a(f"s_cmp_eq_u32 s88, -1\ns_cbranch_scc1 {lab}")
    a("v_lshrrev_b32 v32, 5, v2\nv_lshlrev_b32 v32, 4, v32\nv_bfe_u32 v33, v2, 4, 1\nv_lshl_add_u32 v32, v33, 2, v32\nv_bfe_u32 v33, v2, 2, 2\nv_add_u32 v32, v32, v33")
    a(f"s_sub_u32 s50, s3, 4\ns_mul_i32 s51, s50, 5120\ns_add_u32 s51, s51, {WT_LDS}")
    a("v_mul_u32_u24 v32, 160, v32\nv_add_u32 v32, s51, v32\nv_and_b32 v33, 3, v2\nv_lshl_add_u32 v34, v33, 4, v32\nv_lshl_add_u32 v35, v33, 3, v32\nv_lshlrev_b32 v36, 4, v2")
    a(f"s_waitcnt vmcnt({nyounger})")
    for ft in range(5):
        adr, off = (34, (ft >> 1) * 64 + (ft & 1) * 8) if ft < 4 else (35, 128)
        a(f"ds_read_b64_tr_b16 v[{64+4*ft}:{65+4*ft}], v{adr} offset:{off}\nds_read_b64_tr_b16 v[{66+4*ft}:{67+4*ft}], v{adr} offset:{off+1280}")
    a("s_add_u32 s52, s88, 4096")
    for ft in range(5):
        a(f"s_waitcnt lgkmcnt({2*(4-ft)})")
        a(f"buffer_store_dwordx4 v[{64+4*ft}:{67+4*ft}], v36, {WS}, s{88 if ft < 4 else 52} offen offset:{(ft%4)*1024} sc1")
    a(f"{lab}:")

def loader_issue(a, P, s):
    kind, idx, stg = P["stages"][s]
    slot = (s + P["phase"]) % NSLOT
    for i in range(4):
        if kind == "P":
            base = S_CP0 + idx; off = (64 * stg + 8 * i) * 3456; vo, sr = 5, SRD_B
        else:
            base = {"QK": S_CQ0, "QKH": S_CQ1, "V": S_CQ1 + idx}[kind]; off = (128 * stg + 8 * i) * 3840; vo, sr = 4, SRD_A
        a(f"s_add_u32 m0, s{S_J}, {RING + slot*16384 + i*1024}")
        a(f"s_add_u32 s{S_T}, s{base}, {off}")
        a(f"buffer_load_dwordx4 v{vo}, s[{sr}:{sr+3}], s{S_T} offen lds")

def weight_prefetch(a, ty, which="rest"):
    n = 0
    a("s_lshr_b32 s40, s2, 3\ns_and_b32 s40, s40, 7\ns_mul_i32 s40, s40, 80\ns_sub_u32 s41, s3, 4")
    a("s_mul_i32 s42, s41, 20\ns_add_u32 s42, s42, s40\nv_add_u32 v23, s42, v2\nv_mul_u32_u24 v23, 3840, v23")
    a("v_mov_b32 v25, 0x80000000\nv_cmp_gt_u32 vcc, 20, v2\ns_nop 1\nv_cndmask_b32 v23, v25, v23, vcc")
    a("s_and_b32 s42, s41, 1\ns_mul_i32 s42, s42, 40\ns_add_u32 s42, s42, s40\nv_add_u32 v24, s42, v2\nv_mul_u32_u24 v24, 3456, v24")
    a("v_cmp_gt_u32 vcc, 40, v2\ns_nop 1\nv_cndmask_b32 v24, v25, v24, vcc")
    qs = {"A": [45], "B": [], "C": [45, 46]}[ty]
    ps = {"A": [47, 48], "B": [47, 48], "C": [47]}[ty]
    if p1.ORD == 1:
        qs = {"A": [44, 45], "B": [44], "C": [44]}[ty]
        ps = {"A": [48], "B": [48], "C": [47]}[ty]
        if which == "first":
            qs = {"A": [], "B": [], "C": [45, 46]}[ty]
            ps = {"A": [47], "B": [47], "C": []}[ty]
    for q in qs:
        a(f"s_lshl_b32 s42, s{q}, 7\nbuffer_load_dword v26, v23, s[{SRD_A}:{SRD_A+3}], s42 offen"); n += 1
    for q in ps:
        a(f"s_lshl_b32 s42, s{q}, 7\nbuffer_load_dword v27, v24, s[{SRD_B}:{SRD_B+3}], s42 offen"); n += 1
    return n

def gen_loader(a, P, st, opt, npf=0):
    info, ns = P["info"], P["ns"]
    issued = NSLOT
    q = [("stage", s) for s in range(NSLOT) for _ in range(4)] + [("pf",)] * npf
    WT_LD = opt.get("wt_ld", 2); WT_ST = WT_LD + opt.get("wt_gap", 9); WT_FL = WT_ST + 9
    nb = len(info)
    new_wt = opt.get("front", 0) >= 1
    WT2_AT = opt.get("wt2_at", -1)
    fw_done = False
    if new_wt:
        WT_LD = WT_ST = -1; wt_mark2 = NSLOT
        WT_FL = min(bi for bi, (need, done) in enumerate(info) if need >= NSLOT)
        if WT2_AT >= 0: WT_FL = -2; wt_mark2 = 1000
    assert WT_FL < nb - 1
    for bi, (need, done) in enumerate(info):
        allowed = min(ns, (info[bi-1][1] if bi > 0 else -1) + NSLOT + 1)
        while issued < allowed:
            loader_issue(a, P, issued); q += [("stage", issued)] * 4; issued += 1
        if bi == nb - 1:
            assert issued == ns
            need = ns - 1
        assert issued > need
        last = max(i for i, t in enumerate(q) if t == ("stage", need))
        a(f"s_waitcnt vmcnt({min(63, len(q) - 1 - last)})")
        a("s_barrier")
        if bi == 0 and opt.get("front", 0) >= 2: opt["_get_nonce"]()
        if bi == WT_LD:
            a(f"s_sub_u32 s59, s3, 4")
            if not opt.get("nowt"):
                for n in range(4): wt_loads(a, n, 59)
            wt_mark = issued
        if bi == WT_ST:
            last = max(i for i, t in enumerate(q) if t == ("stage", wt_mark))
            a(f"s_waitcnt vmcnt({min(63, len(q) - 1 - last)})")
            if not opt.get("nowt"): wt_stores(a)
            wt_mark2 = issued
        if opt.get("tail", 0) >= 1 and bi == nb - 1 - opt.get("pp_back", 3):
            n = prepoll_issue(a); q += [("pf",)] * n
        if bi == opt.get("wpf_at", -1) and opt.get("wpf", 1) == 3:
            n = weight_prefetch(a, opt["_ty"]); q += [("pf",)] * n
        if new_wt and WT2_AT >= 0:
            if bi == WT2_AT:
                wt2_finish(a, 63)
                wt_mark2 = issued
            elif bi > WT2_AT and not fw_done and need >= wt_mark2:
                WT_FL = bi; fw_done = True
                assert bi < nb - 1
        if bi == WT_FL:
            assert need >= wt_mark2, (need, wt_mark2)
            lab = a.label("FW")
            a(f"s_cmp_lg_u32 s3, 4\ns_cbranch_scc1 {lab}\ns_lshl_b32 s40, s2, 7\ns_add_u32 s40, s40, {FW}")
            a(flag_store(40))
            a(f"{lab}:")

def attn_dma_dyn(a, kind, m, vb, sj, sj5):
    t = 64
    if kind == "Q":
        a(f"s_lshl_b32 s{t}, s{p2.A_TB2}, 1\ns_add_u32 s{t}, s{t}, {m}")
        a(f"s_mul_i32 s{t+1}, s{t}, {QS_T}\ns_mul_i32 s{t}, s{p2.A_HQ}, 5120\ns_add_u32 s{t+1}, s{t+1}, s{t}\ns_add_u32 s{t+1}, s{t+1}, {QS}")
        p2.dma5(a, L_Q + m * 5120, [vb+5]*5, t+1, "sc1", True)
    elif kind == "K": p2.dma_k(a, m, vb, "sc1", t)
    else: p2.dma_v(a, m, vb, "sc1", t)

def qk_producers(hq):
    def fbs(q):
        if q < 8: return [q]
        if q < 12: return [q - 8, q - 4]
        return [q - 4]
    t1, t2 = (80 * hq) >> 6, (80 * hq + 79) >> 6
    L = []
    for q in (t1, t2, 10 + t1, 10 + t2):
        for f in fbs(q):
            if f not in L: L.append(f)
    while len(L) < 6: L.append(L[0])
    assert len(L) == 6
    return L

def poll_qk(a, lab):
    tab = [sum(f << (4 * i) for i, f in enumerate(qk_producers(h))) for h in range(8)]
    a(f"s_mov_b32 s41, {tab[0]}")
    for h in range(1, 8):
        a(f"s_mov_b32 s42, {tab[h]}\ns_cmp_eq_u32 s{p2.A_HQ}, {h}\ns_cselect_b32 s41, s42, s41")
    a("v_mul_u32_u24 v16, 43, v2\nv_lshrrev_b32 v16, 8, v16")
    a("v_mul_u32_u24 v17, 6, v16\nv_sub_u32 v17, v2, v17\nv_lshlrev_b32 v17, 2, v17")
    a("v_lshrrev_b32 v17, v17, s41\nv_and_b32 v17, 15, v17")
    a(f"s_lshl_b32 s42, s{p2.A_TB2}, 1\ns_sub_i32 s42, s42, 8\nv_add_u32 v16, s42, v16\nv_max_i32 v16, 0, v16")
    a("v_lshl_add_u32 v16, v16, 4, v17\nv_lshlrev_b32 v16, 9, v16")
    a(f"s_mov_b32 s43, {FG}")
    poll(a, 16, 43, -1, 0x0fffffff, lab, 18, off=K_QK * 128)

def poll_v(a, lab):
    a(f"s_mul_i32 s41, s{p2.A_HQ}, 80\ns_add_u32 s42, s41, 79\ns_lshr_b32 s41, s41, 7\ns_lshr_b32 s42, s42, 7")
    a("s_add_u32 s41, s41, 11\ns_add_u32 s42, s42, 11")
    a("v_and_b32 v17, 1, v2\nv_cmp_eq_u32 vcc, 1, v17\nv_mov_b32 v17, s41\nv_mov_b32 v18, s42\nv_cndmask_b32 v17, v17, v18, vcc")
    a(f"v_lshrrev_b32 v16, 1, v2\ns_lshl_b32 s42, s{p2.A_TB2}, 1\ns_sub_i32 s42, s42, 8\nv_add_u32 v16, s42, v16\nv_max_i32 v16, 0, v16")
    a("v_lshl_add_u32 v16, v16, 4, v17\nv_lshlrev_b32 v16, 9, v16")
    a(f"s_mov_b32 s43, {FG}")
    poll(a, 16, 43, 0xfffff, 0, lab, 18, off=K_V * 128)

PP_A, PP_R = 84, 88
def prepoll_issue(a):
    p2.attn_params(a)
    p2.attn_dma_setup(a, 8)
    tab = [sum(f << (4 * i) for i, f in enumerate(qk_producers(h))) for h in range(8)]
    a(f"s_mov_b32 s41, {tab[0]}")
    for h in range(1, 8):
        a(f"s_mov_b32 s42, {tab[h]}\ns_cmp_eq_u32 s{p2.A_HQ}, {h}\ns_cselect_b32 s41, s42, s41")
    A0, A1, A2, A3 = PP_A, PP_A + 1, PP_A + 2, PP_A + 3
    a(f"v_min_u32 v18, 59, v2\nv_mul_u32_u24 v16, 43, v18\nv_lshrrev_b32 v16, 8, v16")
    a("v_mul_u32_u24 v17, 6, v16\nv_sub_u32 v17, v18, v17\nv_lshlrev_b32 v17, 2, v17")
    a("v_lshrrev_b32 v17, v17, s41\nv_and_b32 v17, 15, v17")
    a(f"s_lshl_b32 s42, s{p2.A_TB2}, 1\ns_sub_i32 s42, s42, 8\nv_add_u32 v16, s42, v16\nv_max_i32 v16, 0, v16")
    a(f"v_lshl_add_u32 v16, v16, 4, v17\nv_lshlrev_b32 v16, 9, v16\nv_add_u32 v{A0}, {FG + K_QK*128}, v16")
    a(f"s_mul_i32 s41, s{p2.A_HQ}, 80\ns_add_u32 s43, s41, 79\ns_lshr_b32 s41, s41, 7\ns_lshr_b32 s43, s43, 7")
    a("s_add_u32 s41, s41, 11\ns_add_u32 s43, s43, 11")
    a("v_min_u32 v18, 19, v2\nv_and_b32 v17, 1, v18\nv_cmp_eq_u32 vcc, 1, v17\nv_mov_b32 v17, s41\nv_mov_b32 v19, s43\nv_cndmask_b32 v17, v17, v19, vcc")
    a("v_lshrrev_b32 v16, 1, v18\nv_add_u32 v16, s42, v16\nv_max_i32 v16, 0, v16")
    a(f"v_lshl_add_u32 v16, v16, 4, v17\nv_lshlrev_b32 v16, 9, v16\nv_add_u32 v{A1}, {FG + K_V*128}, v16")
    a("s_and_b32 s43, s2, 7\ns_lshr_b32 s41, s2, 3")
    a("s_and_b32 s42, s43, 1\ns_lshl_b32 s42, s42, 2\ns_and_b32 s40, s41, 3\ns_add_u32 s40, s42, s40")
    a("s_lshr_b32 s42, s43, 1\ns_lshl_b32 s42, s42, 3\ns_lshr_b32 s41, s41, 2\ns_add_u32 s41, s42, s41")
    a(f"s_lshl_b32 s40, s40, 7\ns_add_u32 s40, s40, {FW}\nv_and_b32 v16, 31, v2\nv_lshlrev_b32 v16, 10, v16\nv_add_u32 v{A2}, s40, v16")
    a(f"s_lshl_b32 s41, s41, 14\ns_add_u32 s41, s41, {FG + K_H0*128}")
    a("v_and_b32 v16, 15, v2\nv_min_u32 v16, 10, v16\nv_bfe_u32 v17, v2, 4, 1\nv_lshl_add_u32 v16, v17, 4, v16\nv_lshlrev_b32 v16, 9, v16")
    a(f"v_add_u32 v{A3}, s41, v16")
    for i in range(4): a(f"buffer_load_dword v{PP_R+i}, v{PP_A+i}, {WS}, 0 offen sc1")
    return 4
def prepoll_check(a, i, lab, fallback):
    a(f"v_cmp_eq_u32 vcc, s{S_NONCE}, v{PP_R+i}\ns_nop 0\ns_cmp_eq_u64 vcc, -1\ns_cbranch_scc1 {lab}_pk")
    fallback()
    a(f"{lab}_pk:")
def dma5_dyn(a, slds, vregs, soff, step4):
    a(f"s_mov_b32 m0, s{slds}\ns_nop 0")
    for p in range(4):
        a(f"buffer_load_dwordx4 v{vregs[p]}, {WS}, s{soff} offen offset:{p*1024} sc1 lds")
    a(f"s_add_u32 m0, s{slds}, 4096")
    a(f"s_add_u32 s{soff}, s{soff}, 4096" if step4 else "s_nop 0")
    a(f"buffer_load_dwordx4 v{vregs[4]}, {WS}, s{soff} offen sc1 lds")
def qk_job(a, i, vb):
    a(f"s_add_u32 s64, s57, {4*i}\ns_mul_i32 s67, s64, 5120\ns_add_u32 s67, s67, {L_Q}")
    a(f"s_lshl_b32 s65, s{p2.A_TB2}, 1\ns_add_u32 s65, s65, s64")
    a(f"s_sub_i32 s66, s65, 10\ns_max_i32 s66, s66, 0")
    if i == 0:
        a(f"s_cmp_lt_u32 s64, 2\ns_cselect_b32 s65, s65, s66\ns_mov_b32 s66, {KS}\ns_cselect_b32 s66, {QS}, s66")
        a(f"s_mul_i32 s65, s65, {QS_T}\ns_add_u32 s65, s65, s66")
    else:
        a(f"s_mul_i32 s65, s66, {QS_T}\ns_add_u32 s65, s65, {KS}")
    a(f"s_mul_i32 s66, s{p2.A_HQ}, 5120\ns_add_u32 s65, s65, s66")
    dma5_dyn(a, 67, [vb+5]*5, 65, True)
def v_job(a, i, vb):
    a(f"s_add_u32 s64, s57, {4*i}\ns_mul_i32 s67, s64, 5120\ns_add_u32 s67, s67, {L_V}")
    a(f"s_lshl_b32 s65, s{p2.A_TB2}, 1\ns_add_u32 s65, s65, s64\ns_sub_i32 s65, s65, 8\ns_max_i32 s65, s65, 0")
    a(f"s_mul_i32 s65, s65, {VT_T}\ns_mul_i32 s66, s{p2.A_HQ}, 1280\ns_add_u32 s65, s65, s66\ns_add_u32 s65, s65, {VT - 4096}")
    dma5_dyn(a, 67, [vb+p for p in range(5)], 65, False)

from p3 import K_TB2, K_FB, K_WT, K_H0, K_O0, K_KAP, K_A, K_B0, K_B1, BUF, NBUF, V_LA, V_LA2, V_LB, k_mfmas
def k_addr(kap_expr_lines, o_part):
    b = K_O0 if o_part else K_H0
    stride = OS_T if o_part else HS_T
    return [f"s_mul_i32 s{K_A}, s{K_KAP}, {WT_K}", f"s_lshl_b32 s{K_B0}, s{K_KAP}, 11", f"s_add_u32 s{K_A}, s{K_A}, s{K_WT}",
            f"s_add_u32 s{K_B0}, s{K_B0}, s{b}", f"s_add_u32 s{K_B1}, s{K_B0}, {stride}"]
def k_wt(b):
    r = BUF + 36 * b
    return [f"buffer_load_dwordx4 v[{r+4*ft}:{r+3+4*ft}], v{V_LA if ft < 4 else V_LA2}, {WS}, s{K_A} offen offset:{(ft%4)*1024} sc1" for ft in range(5)]
def k_act(b):
    r = BUF + 36 * b
    return [f"buffer_load_dwordx4 v[{r+20+4*tt}:{r+23+4*tt}], v{V_LB}, {WS}, s{K_B0 if tt < 2 else K_B1} offen offset:{(tt%2)*256} sc1" for tt in range(4)]

def poll_fw(a, lab):
    a(f"v_lshlrev_b32 v16, 10, v2\ns_lshl_b32 s43, s{K_FB}, 7\ns_add_u32 s43, s43, {FW}")
    poll(a, 16, 43, -1, 0, lab, 18)
def poll_fh(a, lab, kind):
    a(f"s_lshl_b32 s43, s{K_TB2}, 14\ns_add_u32 s43, s43, {FG}\nv_lshlrev_b32 v250, 9, v2")
    m = 0x07ff07ff if kind == K_H0 else -1
    poll(a, 250, 43, m, 0, lab, 251, off=kind * 128)
def poll_fo(a, lab):
    a(f"s_lshl_b32 s43, s{K_TB2}, 12\ns_add_u32 s43, s43, {FO}\nv_lshlrev_b32 v16, 7, v2")
    poll(a, 16, 43, -1, 0, lab, 18)

def h_stream(a, st, role, mid=None):
    J = 57
    e = Emit(a)
    def set_kap(n):
        if n <= 4:   return [f"s_add_u32 s{K_KAP}, s56, {8*n}"]
        if n == 5:   return [f"s_mov_b32 s{K_KAP}, s55"]
        if n <= 10:  return [f"s_add_u32 s{K_KAP}, s54, {8*(n-6)}"]
        return [f"s_add_u32 s{K_KAP}, s{J}, {44 + 4*(n-11)}"] + ([f"s_min_u32 s{K_KAP}, s{K_KAP}, 53"] if n == 13 else [])
    a(f"s_lshr_b32 s40, s{J}, 1\ns_lshl_b32 s40, s40, 2\ns_and_b32 s41, s{J}, 1\ns_add_u32 s56, s40, s41")
    a(f"s_add_u32 s42, s{J}, 40\ns_cmp_lt_u32 s{J}, 2\ns_cselect_b32 s55, s42, s{J}")
    a(f"s_add_u32 s40, s{J}, 2\ns_lshr_b32 s40, s40, 1\ns_lshl_b32 s40, s40, 2\ns_add_u32 s54, s40, s41\ns_add_u32 s54, s54, 2")
    NI = 14; pf = 3; LATE = 5
    if role == "pre":
        for n in range(pf):
            if mid is not None and n == mid[0]: mid[1](e)
            e(set_kap(n) + k_addr(None, False)); e(k_wt(n % NBUF), ("wt", n)); e(k_act(n % NBUF), ("act", n))
        if mid is not None and mid[0] >= pf: mid[1](e)
        return e
    return None

def h_stream_main(a, e, st, bv_at):
    J = 57; NI = 14; pf = 3; LATE = 5
    def set_kap(n):
        if n <= 4:   return [f"s_add_u32 s{K_KAP}, s56, {8*n}"]
        if n == 5:   return [f"s_mov_b32 s{K_KAP}, s55"]
        if n <= 10:  return [f"s_add_u32 s{K_KAP}, s54, {8*(n-6)}"]
        return [f"s_add_u32 s{K_KAP}, s{J}, {44 + 4*(n-11)}"] + ([f"s_min_u32 s{K_KAP}, s{K_KAP}, 53"] if n == 13 else [])
    lab = a.label("HS")
    for n in range(NI):
        if n == bv_at: a("s_barrier")
        if n == LATE - 1:
            a.extend(st.now(12))
            poll_fh(a, lab + "_fh1", K_H1)
            e.vm = []
            a.extend(st.now(13))
            for m in range(LATE, n + pf):
                e(set_kap(m) + k_addr(None, False)); e(k_act(m % NBUF), ("act", m))
        w1 = e.vm_after(lambda t: t == ("wt", n)); w2 = e.vm_after(lambda t: t == ("act", n))
        ws_ = [x for x in (w1, w2) if x is not None]
        if ws_: a(f"s_waitcnt vmcnt({min(63, min(ws_))})")
        if n == NI - 1: a(f"s_cmp_ge_u32 s{J}, 2\ns_cbranch_scc1 {lab}_skip")
        m = k_mfmas(n % NBUF, n == 0)
        ld = []
        nn = n + pf
        if nn < NI:
            ld = [(x, None) for x in set_kap(nn) + k_addr(None, False)] + [(x, ("wt", nn)) for x in k_wt(nn % NBUF)]
            if not (LATE <= nn < LATE - 1 + pf): ld += [(x, ("act", nn)) for x in k_act(nn % NBUF)]
        li = 0
        for x in m:
            a(x)
            if li < len(ld): e(ld[li][0], ld[li][1]); li += 1
        while li < len(ld): e(ld[li][0], ld[li][1]); li += 1
    a(f"{lab}_skip:")

def o_stream(a, st):
    e = Emit(a)
    NI = 5; pf = 3
    def set_kap(n): return [f"s_add_u32 s{K_KAP}, s3, {54 + 4*n}"]
    for n in range(pf):
        e(set_kap(n) + k_addr(None, True)); e(k_wt(n), ("wt", n))
    a.extend(st.now(12))
    poll_fo(a, "FOp")
    e.vm = []
    a.extend(st.now(13))
    for n in range(pf):
        e(set_kap(n) + k_addr(None, True)); e(k_act(n), ("act", n))
    for n in range(NI):
        w1 = e.vm_after(lambda t: t == ("wt", n)); w2 = e.vm_after(lambda t: t == ("act", n))
        ws_ = [x for x in (w1, w2) if x is not None]
        a(f"s_waitcnt vmcnt({min(63, min(ws_))})")
        m = k_mfmas(n % NBUF, n == 0)
        ld = []
        nn = n + pf
        if nn < NI:
            ld = [(x, None) for x in set_kap(nn) + k_addr(None, True)] + [(x, ("wt", nn)) for x in k_wt(nn % NBUF)] + [(x, ("act", nn)) for x in k_act(nn % NBUF)]
        li = 0
        for x in m:
            a(x)
            if li < len(ld): e(ld[li][0], ld[li][1]); li += 1
        while li < len(ld): e(ld[li][0], ld[li][1]); li += 1

def k3_setup(a):
    p3.k3_params(a)
    p3.k3_setup(a)

def reduce_phase(a, lab, st):
    from p3 import ACC as KACC, V_XO, V_XO2, K_XO, VX
    a(f"v_lshlrev_b32 v9, 4, v2")
    a("s_nop 7")
    a(f"s_cmp_lt_u32 s3, 4\ns_cbranch_scc1 {lab}_lo")
    lds_poll4(a, CT_ATT, lab + "_wa", 96)
    a(f"s_sub_u32 s40, s3, 4\ns_mul_i32 s40, s40, 20480\nv_add_u32 v10, s40, v9")
    for t in range(20): a(f"ds_write_b128 v10, v[{KACC+4*t}:{KACC+4*t+3}] offset:{L_R1 + 1024*t}")
    a.extend(st.now(15))
    a(f"s_waitcnt lgkmcnt(0)\ns_barrier\ns_barrier\ns_branch {lab}_end")
    a(f"{lab}_lo:")
    a(f"s_mul_i32 s40, s3, 20480\nv_add_u32 v10, s40, v9")
    a.extend(st.now(14))
    a("s_barrier")
    a.extend(st.now(15))
    for half in range(2):
        for t in range(10): a(f"ds_read_b128 v[{BUF+4*t}:{BUF+4*t+3}], v10 offset:{L_R1 + 1024*(10*half+t)}")
        for t in range(10):
            a(f"s_waitcnt lgkmcnt({9-t})")
            for r in range(4): a(f"v_add_f32 v{KACC+4*(10*half+t)+r}, v{KACC+4*(10*half+t)+r}, v{BUF+4*t+r}")
    a(f"v_add_u32 v11, {L_R2}, v10")
    for tt in range(4):
        a(f"s_cmp_eq_u32 s3, {tt}\ns_cbranch_scc1 {lab}_w{tt}")
        for ft in range(5): a(f"ds_write_b128 v11, v[{KACC+4*(tt*5+ft)}:{KACC+4*(tt*5+ft)+3}] offset:{1024*(tt*5+ft)}")
        a(f"{lab}_w{tt}:")
    OWN = BUF + 100
    for tt in range(4):
        a(f"s_cmp_lg_u32 s3, {tt}\ns_cbranch_scc1 {lab}_m{tt}")
        for q in range(20): a(f"v_mov_b32 v{OWN+q}, v{KACC+20*tt+q}")
        a(f"{lab}_m{tt}:")
    a("s_waitcnt lgkmcnt(0)\ns_barrier")
    a(f"s_mul_i32 s41, s3, 5120")
    for d in range(1, 4):
        a(f"s_add_u32 s40, s3, {d}\ns_and_b32 s40, s40, 3\ns_mul_i32 s40, s40, 20480\ns_add_u32 s40, s40, s41\ns_add_u32 s40, s40, {L_R2}\nv_add_u32 v{11+d}, s40, v9")
        for ft in range(5): a(f"ds_read_b128 v[{BUF+20*(d-1)+4*ft}:{BUF+20*(d-1)+4*ft+3}], v{11+d} offset:{1024*ft}")
    for d in range(1, 4):
        a(f"s_waitcnt lgkmcnt({5*(3-d)})")
        for q in range(20): a(f"v_add_f32 v{OWN+q}, v{OWN+q}, v{BUF+20*(d-1)+q}")
    a("s_waitcnt vmcnt(0)")
    for q in range(10):
        a(f"v_lshlrev_b32 v{BUF+2*q}, 16, v{VX+q}\nv_and_b32 v{BUF+2*q+1}, 0xffff0000, v{VX+q}")
    for q in range(20): a(f"v_add_f32 v{OWN+q}, v{OWN+q}, v{BUF+q}")
    for q in range(10): a(f"v_cvt_pk_bf16_f32 v{BUF+24+q}, v{OWN+2*q}, v{OWN+2*q+1}")
    o = BUF + 24
    osc = OUT_SC
    a(f"buffer_store_dwordx4 v[{o}:{o+3}], v{V_XO}, s[{SRD_B}:{SRD_B+3}], s{K_XO} offen{osc}")
    a(f"buffer_store_dwordx4 v[{o+4}:{o+7}], v{V_XO}, s[{SRD_B}:{SRD_B+3}], s{K_XO} offen offset:64{osc}")
    a(f"buffer_store_dwordx2 v[{o+8}:{o+9}], v{V_XO2}, s[{SRD_B}:{SRD_B+3}], s{K_XO} offen{osc}")
    a(f"{lab}_end:")

def kernel(name, stamps=False, opt=None):
    opt = opt or {}
    p1.ORD = opt.get("ord", 0)
    global OUT_SC, NO_BV
    NO_BV = opt.get("tail", 0) == 1
    OUT_SC = {0: "", 1: " sc1", 2: " sc0 sc1", 3: " nt", 4: " sc1 nt", 5: " sc0 sc1 nt"}[opt.get("osc", 0)]
    a = Asm()
    st = Stamper(stamps, bool(opt.get("cyc")))
    a(kernel_begin(name))
    a("s_cmp_ge_u32 s2, 256\ns_cbranch_scc1 F_exit")
    XIT = opt.get("xit", 0)
    if XIT == 1 and not stamps: a("s_branch F_exit")
    a("s_load_dwordx16 s[4:19], s[0:1], 0\ns_load_dwordx4 s[20:23], s[0:1], 64\ns_memrealtime s[46:47]")
    a("v_lshrrev_b32 v1, 6, v0\nv_and_b32 v2, 63, v0\nv_readfirstlane_b32 s3, v1")
    a("s_waitcnt lgkmcnt(0)")
    FRONT = opt.get("front", 0)
    if FRONT == 0: p0.p0_x_loads(a)
    else:
        srd(a, p0.SRD_A, P_X, S * D * 2)
        a("s_cmp_ge_u32 s3, 4\ns_cbranch_scc1 F_nx")
        p0.ln2_loads(a)
        a("F_nx:")
    srd(a, SRD_WS, P_WS, WS_BYTES)
    if stamps:
        a(f"v_mov_b32 v{V_STAMP}, 0\nv_writelane_b32 v{V_STAMP}, s46, 0")
        if opt.get("cyc"): a.extend(st.now(17))
    srd(a, SRD_C, P_DBG, 256)
    a("s_cmp_lg_u32 s3, 3\ns_cbranch_scc1 F_n0")
    a("s_cmp_lg_u32 s2, 0\ns_cbranch_scc1 F_n0")
    a(f"s_or_b32 s46, s46, 1\nv_mov_b32 v4, s46\nv_mov_b32 v5, 0\ns_mov_b64 exec, 1\nbuffer_store_dword v4, v5, s[{SRD_C}:{SRD_C+3}], 0 offen sc1\ns_mov_b64 exec, -1")
    a("F_n0:")
    p1.setup_common(a)
    a("s_cmp_ge_u32 s3, 4\ns_cbranch_scc1 F_ldr0")
    def get_nonce():
        a(f"v_cmp_eq_u32 vcc, 0, v2\nv_mov_b32 v15, {CT_NONCE}\nv_mov_b32 v{V_Z}, 0x80000000\nds_read_b32 v{V_NONCE}, v15\nv_cndmask_b32 v{V_Z}, v{V_Z}, 0, vcc")
        a(f"s_waitcnt lgkmcnt(0)\nv_readfirstlane_b32 s{S_NONCE}, v{V_NONCE}")
    def nonce_spin():
        a(f"s_mov_b32 s{S_SPIN}, {SPIN}\nv_mov_b32 v5, 0")
        a(f"F_np:\nbuffer_load_dword v4, v5, s[{SRD_C}:{SRD_C+3}], 0 offen sc1\ns_waitcnt vmcnt(0)\nv_readfirstlane_b32 s40, v4\ns_cmp_lg_u32 s40, 0\ns_cbranch_scc1 F_np1")
        a(f"s_sub_u32 s{S_SPIN}, s{S_SPIN}, 1\ns_cmp_lg_u32 s{S_SPIN}, 0\ns_cbranch_scc1 F_np")
    if FRONT < 2:
        a("s_cmp_lg_u32 s3, 0\ns_cbranch_scc1 F_c0")
        a("v_mov_b32 v4, 0\nv_lshlrev_b32 v5, 2, v2\nds_write_b32 v5, v4")
        a("F_c0:")
        a("s_waitcnt vmcnt(0)")
        a.extend(st.now(1))
        if FRONT == 0: p0.p0_ln(a)
        else: p0.ln2(a)
        a("s_waitcnt lgkmcnt(0)\ns_barrier")
        p0.p0_xn_stores(a, "sc1")
        a("s_cmp_lg_u32 s3, 3\ns_cbranch_scc1 F_c1")
        nonce_spin()
        a(f"F_np1:\nv_mov_b32 v5, {CT_NONCE}\nds_write_b32 v5, v4")
        a("F_c1:")
        a("s_waitcnt vmcnt(0) lgkmcnt(0)")
        a.extend(st.now(2))
        a("s_barrier")
        get_nonce()
        a("s_cmp_lg_u32 s3, 0\ns_cbranch_scc1 F_c2")
        a(f"s_lshl_b32 s40, s2, 7\ns_add_u32 s40, s40, {FX}")
        a(flag_store(40))
        a("F_c2:")
    else:
        a("s_cmp_lg_u32 s3, 0\ns_cbranch_scc1 F_c0")
        a("v_mov_b32 v4, 0\nv_lshlrev_b32 v5, 2, v2\ns_mov_b64 exec, -2\nds_write_b32 v5, v4\ns_mov_b64 exec, -1")
        a("F_c0:")
        a("s_waitcnt vmcnt(0)")
        a.extend(st.now(1))
        p0.ln2(a)
        a.extend(st.now(18))
        a("s_waitcnt lgkmcnt(0)\ns_barrier")
        a.extend(st.now(19))
        a(f"v_mov_b32 v5, 0\nbuffer_load_dword v46, v5, s[{SRD_C}:{SRD_C+3}], 0 offen sc1")
        p0.p0_xn_stores(a, "sc1")
        a("s_barrier")
        a(f"v_cmp_eq_u32 vcc, 0, v2\nv_mov_b32 v{V_Z}, 0x80000000")
        a(f"s_lshl_b32 s41, s2, 5\ns_add_u32 s41, s41, s3\ns_lshl_b32 s41, s41, 2\ns_add_u32 s41, s41, {FX}")
        a(f"v_cndmask_b32 v{V_Z}, v{V_Z}, 0, vcc")
        a("s_waitcnt vmcnt(0)")
        a.extend(st.now(20))
        if stamps: a(f"s_mov_b32 s{S_SPIN}, {SPIN}")
        a("v_mov_b32 v4, v46\nv_readfirstlane_b32 s40, v46\ns_cmp_lg_u32 s40, 0\ns_cbranch_scc1 F_np1")
        nonce_spin()
        a(f"F_np1:\nv_mov_b32 v{V_NONCE}, v4\ns_mov_b32 s{S_NONCE}, s40")
        a(flag_store(41))
        if stamps: a(f"s_sub_u32 s42, {SPIN+1}, s{S_SPIN}\nv_writelane_b32 v{V_STAMP}, s42, 21")
        a("s_cmp_lg_u32 s3, 3\ns_cbranch_scc1 F_c1")
        a(f"v_mov_b32 v5, {CT_NONCE}\nds_write_b32 v5, v4\ns_waitcnt lgkmcnt(0)")
        a("F_c1:")
        a.extend(st.now(2))
    if XIT == 2: a("s_waitcnt vmcnt(0)\ns_branch F_fin")
    metas = {}
    a(f"s_cmp_ge_u32 s{S_FB}, 11\ns_cbranch_scc1 F_cC\ns_cmp_ge_u32 s{S_FB}, 8\ns_cbranch_scc1 F_cB")
    for ty in "ABC":
        a(f"F_c{ty}:")
        setup_compute(a, ty)
        if FRONT < 2:
            a(f"s_lshl_b32 s43, s{S_T32}, 9\ns_add_u32 s43, s43, {FX}\nv_lshlrev_b32 v16, 7, v2")
            poll(a, 16, 43, 0xf, 0, f"FXp{ty}", 17)
        else:
            a(f"s_lshl_b32 s43, s{S_T32}, 9\ns_add_u32 s43, s43, {FX}\nv_lshrrev_b32 v16, 2, v2\nv_lshlrev_b32 v16, 7, v16\nv_and_b32 v17, 3, v2\nv_lshl_add_u32 v16, v17, 2, v16")
            poll(a, 16, 43, 0xffff, 0, f"FXp{ty}", 17)
        a.extend(st.now(3))
        metas[ty] = gen_compute(a, ty, st, opt)
        a("s_branch F_att")
    a("F_att:")
    a.extend(st.now(9))
    p2.attn_params(a)
    a(f"s_mov_b32 s{p2.A_QSEL}, 0\ns_mov_b32 s{p2.A_HH}, s3")
    p2.attn_setup(a)
    a("s_barrier")
    if XIT == 3: a("s_waitcnt vmcnt(0)\ns_branch F_fin")
    a.extend(st.now(10))
    a("s_mov_b32 s59, 0")
    a("F_task:")
    attn_task(a, "AT", st)
    a(f"s_cmp_lg_u32 s59, 0\ns_cbranch_scc1 F_att_done")
    a(f"s_mov_b32 s59, 1\ns_mov_b32 s{p2.A_QSEL}, 1")
    a(f"v_add_u32 v{p2.V_AK}, 5120, v{p2.V_AK}\nv_add_u32 v{p2.V_AS}, 5120, v{p2.V_AS}\nv_lshl_add_u32 v{p2.V_AV}, v{p2.V_SV}, 1, v{p2.V_AV}")
    a("s_branch F_task")
    a("F_att_done:")
    a(f"s_lshl_b32 s40, s3, 2\ns_add_u32 s40, s40, {CT_ATT}\nv_mov_b32 v4, s40\nv_mov_b32 v5, 1\nds_write_b32 v4, v5")
    a(f"s_lshl_b32 s40, s{p2.A_TB2}, 3\ns_add_u32 s40, s40, s{p2.A_HQ}\ns_lshl_b32 s40, s40, 2\ns_add_u32 s40, s40, s3\ns_lshl_b32 s40, s40, 7\ns_add_u32 s58, s40, {FO}")
    k3_setup(a)
    srd(a, SRD_A, P_X, S * D * 2)
    srd(a, SRD_B, P_OUT, S * D * 2)
    a("s_waitcnt vmcnt(0)")
    a(flag_store(58))
    a.extend(st.now(11))
    p3.x_loads(a, SRD_A)
    o_stream(a, st)
    a("s_branch F_red")
    a("F_ldr0:")
    a(f"s_cmp_ge_u32 s{S_FB}, 11\ns_cbranch_scc1 F_lC\ns_cmp_ge_u32 s{S_FB}, 8\ns_cbranch_scc1 F_lB")
    for ty in "ABC":
        P = metas[ty]
        a(f"F_l{ty}:")
        tmp = Asm(); p1.setup_loader(tmp, ty)
        for l in tmp.lines:
            a(re.sub(r"\bv1([345])\b", lambda m: "v" + str(20 + int(m.group(1)) - 3), l))
        opt["_ty"] = ty
        if FRONT == 0:
            for s in range(NSLOT): loader_issue(a, P, s)
            npf = weight_prefetch(a, ty) if opt.get("wpf", 1) else 0
            srd(a, WT_SRD_D, P_D, F * D * 2)
            srd(a, WT_SRD_O, P_WO, D * D * 2)
            a(f"s_waitcnt vmcnt({32 + npf})")
            a.extend(st.now(1))
            p0.p0_ln(a)
            a("s_waitcnt lgkmcnt(0)\ns_barrier")
            a("s_barrier")
            get_nonce()
            a.extend(st.now(2))
        else:
            srd(a, WT_SRD_D, P_D, F * D * 2)
            srd(a, WT_SRD_O, P_WO, D * D * 2)
            npf0 = 0
            if opt.get("epf", 0) >= 1: weight_prefetch(a, ty, "first")
            if opt.get("epf", 0) >= 2: weight_prefetch(a, ty)
            wt2_issue(a)
            n1 = opt.get("pre_ln", 4); n2 = n1 + opt.get("mid_ln", NSLOT - n1)
            for s in range(n1): loader_issue(a, P, s)
            a.extend(st.now(1))
            a("s_barrier")
            for s in range(n1, n2): loader_issue(a, P, s)
            npf = weight_prefetch(a, ty) if opt.get("wpf", 1) == 1 else 0
            if FRONT >= 2: assert n2 == n1 and opt.get("wpf", 1) != 1
            a("s_barrier")
            for s in range(n2, NSLOT): loader_issue(a, P, s)
            assert npf == 0 or n2 == NSLOT
            if FRONT < 2: get_nonce()
            else: opt["_get_nonce"] = get_nonce; assert opt.get("wt2_at", -1) >= 0
            if opt.get("wt2_at", -1) < 0: wt2_finish(a, 32 + npf)
            if opt.get("wpf", 1) == 2: npf += weight_prefetch(a, ty)
            a.extend(st.now(2))
        if XIT == 2: a("s_waitcnt vmcnt(0)\ns_branch F_fin")
        gen_loader(a, P, st, opt, npf)
        a("s_branch F_ltail")
    a("F_ltail:")
    a.extend(st.now(8))
    if opt.get("tail", 0) >= 1:
        vb = 8
        a("s_sub_u32 s57, s3, 4\ns_waitcnt vmcnt(0)")
        prepoll_check(a, 0, "PQK", lambda: poll_qk(a, "PQK"))
        for i in range(3): qk_job(a, i, vb)
        a.extend(st.now(9))
        lds_poll4(a, CT_PROG, "PPR", 20)
        prepoll_check(a, 1, "PV", lambda: poll_v(a, "PV"))
        a("s_cmp_lg_u32 s3, 7\ns_cbranch_scc1 F_l1")
        a(f"v_mov_b32 v20, 0x3f803f80\nv_mov_b32 v21, 0x3f803f80\nv_mov_b32 v22, 0x3f803f80\nv_mov_b32 v23, 0x3f803f80\nv_mov_b32 v24, {L_ONES}")
        a("ds_write_b128 v24, v[20:23]")
        a("F_l1:")
        for i in range(2): v_job(a, i, vb)
        a("s_cmp_ge_u32 s57, 2\ns_cbranch_scc1 F_l2")
        v_job(a, 2, vb)
        a("F_l2:")
        a.extend(st.now(10))
        k3_setup(a)
        prepoll_check(a, 2, "PW", lambda: poll_fw(a, "PW"))
        prepoll_check(a, 3, "PH", lambda: poll_fh(a, "PH", K_H0))
        def bend(e):
            a(f"s_waitcnt vmcnt({len(e.vm) + (10 if opt['tail'] == 2 else 0)}) lgkmcnt(0)")
            a.extend(st.now(11))
            a("s_barrier")
            if XIT == 3: a("s_waitcnt vmcnt(0)\ns_branch F_fin")
        e = h_stream(a, st, "pre", (opt.get("hpre", 3), bend))
        assert opt["tail"] == 1 or opt.get("bv_at", 2) >= 1
        h_stream_main(a, e, st, None if opt["tail"] == 1 else opt.get("bv_at", 2))
        a("s_branch F_red")
    if opt.get("tail", 0) == 0: old_tail(a, st, opt, XIT)
    a("F_red:")
    reduce_phase(a, "RD", st)
    a("F_fin:")
    if stamps:
        a("s_waitcnt vmcnt(0)")
        a.extend(st.now(16))
        st.flush(a)
    a("F_exit:\ns_endpgm")
    return a, kernel_desc(name, 256, 102), (name, (256,1,1), (512,1,1), 163840), metas

def old_tail(a, st, opt, XIT):
    p2.attn_params(a)
    vb = 8
    a("s_cmp_ge_u32 s3, 6\ns_cbranch_scc1 F_lt67")
    p2.attn_dma_setup(a, vb)
    a("s_cmp_eq_u32 s3, 5\ns_cbranch_scc1 F_lt5")
    poll_qk(a, "PQK")
    a.extend(st.now(9))
    for m in range(2): attn_dma_dyn(a, "Q", m, vb, None, None)
    for m in range(10): attn_dma_dyn(a, "K", m, vb, None, None)
    k3_setup(a)
    a("s_sub_u32 s57, s3, 4")
    a("s_waitcnt vmcnt(0)")
    a.extend(st.now(10))
    a("s_barrier")
    if XIT == 3: a("s_waitcnt vmcnt(0)\ns_branch F_fin")
    a("s_branch F_lt45")
    a("F_lt5:")
    lds_poll4(a, CT_PROG, "PPR", 20)
    poll_v(a, "PV")
    a.extend(st.now(9))
    a(f"v_mov_b32 v20, 0x3f803f80\nv_mov_b32 v21, 0x3f803f80\nv_mov_b32 v22, 0x3f803f80\nv_mov_b32 v23, 0x3f803f80\nv_mov_b32 v24, {L_ONES}")
    a("ds_write_b128 v24, v[20:23]")
    for m in range(10): attn_dma_dyn(a, "V", m, vb, None, None)
    k3_setup(a)
    a("s_sub_u32 s57, s3, 4")
    a("s_waitcnt lgkmcnt(0)")
    a("s_barrier")
    if XIT == 3: a("s_waitcnt vmcnt(0)\ns_branch F_fin")
    a("F_lt45:")
    poll_fw(a, "PW45")
    poll_fh(a, "PH45", K_H0)
    a.extend(st.now(11))
    a("s_barrier")
    e = h_stream(a, st, "pre")
    h_stream_main(a, e, st, None)
    a("s_branch F_red")
    a("F_lt67:")
    k3_setup(a)
    a("s_sub_u32 s57, s3, 4")
    poll_fw(a, "PW67")
    poll_fh(a, "PH67", K_H0)
    a.extend(st.now(11))
    e = h_stream(a, st, "pre")
    a("s_barrier")
    if XIT == 3: a("s_waitcnt vmcnt(0)\ns_branch F_fin")
    h_stream_main(a, e, st, opt.get("bv_at", 2))

def attn_task(a, lab, st):
    tmp = Asm()
    p2.attn_task(tmp, lab, "sc1")
    lines = tmp.lines
    idx = next(i for i, l in enumerate(lines) if l.startswith(f"{lab}_noneg:"))
    a.extend(lines[:idx + 1])
    a(f"s_cmp_lg_u32 s59, 0\ns_cbranch_scc1 {lab}_nb")
    a("s_waitcnt vmcnt(0)")
    a(flag_store(S_FL, K_H1 * 128))
    if not NO_BV: a("s_barrier")
    a(f"{lab}_nb:")
    a.extend(lines[idx + 1:])
```

```python
import re

class Asm:
    def __init__(self):
        self.lines = []
        self.lbl = 0
    def __call__(self, s=""):
        for l in s.split("\n"):
            l = l.strip()
            if l: self.lines.append(l)
    def label(self, base="L"):
        self.lbl += 1
        return f"{base}_{self.lbl}"
    def text(self):
        return "\n".join(self.lines) + "\n"
    def extend(self, lst):
        for l in lst: self(l)

LAYOUT_HDR = """; Kernarg layout for this problem (80 bytes, ptrs only, base s[0:1]):
"""

def file_header(launches, mainname):
    s = LAYOUT_HDR
    if len(launches) == 1 and launches[0][0] == mainname:
        (k, g, b, lds) = launches[0]
        s += f"; @launch grid=({g[0]},{g[1]},{g[2]}) block=({b[0]},{b[1]},{b[2]}) lds={lds}\n"
    else:
        for (k, g, b, lds) in launches:
            s += f"; @launch kernel={k} grid=({g[0]},{g[1]},{g[2]}) block=({b[0]},{b[1]},{b[2]}) lds={lds}\n"
    s += '.amdgcn_target "amdgcn-amd-amdhsa--gfx950"\n.text\n'
    return s

def kernel_begin(name):
    return f".globl {name}\n.p2align 8\n.type {name},@function\n{name}:\n"

def kernel_desc(name, vgpr, sgpr=102, accum=None):
    if accum is None:
        accum = (vgpr + 3) // 4 * 4
    s = f".amdhsa_kernel {name}\n"
    s += f"  .amdhsa_next_free_vgpr {vgpr}\n  .amdhsa_next_free_sgpr {sgpr}\n  .amdhsa_accum_offset {accum}\n"
    s += "  .amdhsa_group_segment_fixed_size 0\n  .amdhsa_kernarg_size 80\n  .amdhsa_user_sgpr_count 2\n"
    s += "  .amdhsa_user_sgpr_kernarg_segment_ptr 1\n  .amdhsa_system_sgpr_workgroup_id_x 1\n"
    s += "  .amdhsa_float_denorm_mode_32 3\n"
    s += ".end_amdhsa_kernel\n"
    return s

def rodata(descs):
    return '.section .rodata,"a"\n.p2align 6\n' + "\n".join(".p2align 6\n" + d for d in descs)

_reg_re = re.compile(r"^(-|\|)?([vsa])(\d+)\|?$")
_rng_re = re.compile(r"^(-|\|)?([vsa])\[(\d+):(\d+)\]\|?$")
def regs_of(tok):
    tok = tok.strip()
    m = _reg_re.match(tok)
    if m: return {(m.group(2), int(m.group(3)))}
    m = _rng_re.match(tok)
    if m: return {(m.group(2), i) for i in range(int(m.group(3)), int(m.group(4)) + 1)}
    if tok == "vcc": return {("s", 106), ("s", 107)}
    if tok in ("vcc_lo",): return {("s", 106)}
    if tok == "exec": return {("s", 126), ("s", 127)}
    if tok == "m0": return {("s", 124)}
    return set()

TRANS = ("v_exp_f32", "v_log_f32", "v_rcp_f32", "v_rsq_f32", "v_sqrt_f32", "v_sin_f32", "v_cos_f32")
class I:
    pass
def parse(line):
    l = line.split(";")[0].split("//")[0].strip()
    if not l or l.endswith(":") or l.startswith("."): return None
    p = l.split(None, 1)
    x = I(); x.op = p[0]; x.text = l
    rest = p[1] if len(p) > 1 else ""
    rest = re.split(r"\s(?=op_sel|neg_lo|neg_hi)", rest)[0]
    ops = [t.strip() for t in rest.split(",")] if rest else []
    mods = ""
    if ops:
        q = ops[-1].split(None, 1)
        ops[-1] = q[0]
        if len(q) > 1: mods = q[1]
    x.ops = ops; x.mods = mods
    op = x.op
    x.kind = "other"; x.w = set(); x.r = set()
    R = [regs_of(o) for o in ops]
    if op.startswith("v_mfma"):
        x.kind = "mfma"; x.w = R[0]; x.a = R[1] | R[2]; x.c = R[3]; x.r = x.a | x.c
        x.passes = 8 if ("32x32x16" in op or "32x32x8" in op) else (4 if "16x16x32" in op or "16x16x16" in op else 16)
    elif op.startswith("v_cmp"):
        x.kind = "valu"; x.w = R[0]; x.r = set().union(*R[1:]) if len(R) > 1 else set()
    elif op.startswith("v_readlane") or op.startswith("v_readfirstlane"):
        x.kind = "valu"; x.w = R[0]; x.r = set().union(*R[1:]); x.rdlane = True
    elif op.startswith("v_permlane"):
        x.kind = "valu"; x.w = R[0] | R[1]; x.r = R[0] | R[1]; x.perm = True
    elif op.startswith("v_"):
        x.kind = "valu"; x.w = R[0]; x.r = set().union(*R[1:]) if len(R) > 1 else set()
        if op.startswith(("v_fmac", "v_mac", "v_dot2c", "v_pk_fmac")): x.r |= R[0]
        if op.startswith("v_cndmask") and len(ops) == 3: x.r |= regs_of("vcc")
        if op.startswith(("v_add_co", "v_sub_co", "v_addc_co", "v_subb_co")): x.w |= R[1]
    elif op.startswith(("buffer_load", "global_load")):
        x.kind = "vmem"
        if " lds" in (" " + mods) or "_lds_" in op:
            x.lds = True; x.r = set().union(*R) | regs_of("m0")
        else:
            x.w = R[0]; x.r = set().union(*R[1:])
    elif op.startswith(("buffer_store", "global_store", "buffer_atomic", "global_atomic")):
        x.kind = "vmem"; x.r = set().union(*R)
        if op.startswith("buffer_store"): x.sdata = R[0]
        else: x.sdata = R[1] if len(R) > 1 else set()
        x.wide = ("x3" in op or "x4" in op)
    elif op.startswith("ds_read") or op.startswith("ds_bpermute") or op.startswith("ds_swizzle"):
        x.kind = "ds"; x.w = R[0]; x.r = set().union(*R[1:]) if len(R) > 1 else set()
    elif op.startswith("ds_"):
        x.kind = "ds"; x.r = set().union(*R)
    elif op == "s_nop":
        x.kind = "nop"; x.n = int(ops[0]) + 1
    elif op.startswith("s_"):
        x.kind = "salu"
        if op.startswith(("s_cmp", "s_waitcnt", "s_barrier", "s_branch", "s_cbranch", "s_endpgm", "s_sleep", "s_setprio", "s_bitcmp")):
            x.r = set().union(*R) if R else set()
        else:
            x.w = R[0] if R else set(); x.r = set().union(*R[1:]) if len(R) > 1 else set()
            if "saveexec" in op: x.w = x.w | regs_of("exec")
    x.dpp = ("row_" in mods or "quad_perm" in mods or "wave_" in mods)
    return x

def vonly(s): return {r for r in s if r[0] in "va"}
def sonly(s): return {r for r in s if r[0] == "s"}

def check_hazards(lines, name=""):
    ins = []
    for ln, l in enumerate(lines):
        x = parse(l)
        if x is not None:
            x.ln = ln; ins.append(x)
    errs = []
    n = len(ins)
    for i, c in enumerate(ins):
        if c.kind == "nop": continue
        dist = 0
        j = i - 1
        while j >= 0 and dist < 24:
            p = ins[j]
            need = 0; why = ""
            def req(k, w):
                nonlocal need, why
                if k > need: need = k; why = w
            if p.kind == "valu":
                pw = vonly(p.w); ps = sonly(p.w)
                if c.kind == "mfma" and pw & c.r: req(2, "valu->mfma")
                if c.kind == "valu" and c.dpp and pw & c.r: req(2, "valu->dpp")
                if c.kind == "valu" and getattr(c, "rdlane", False) and pw & c.r: req(1, "valu->readlane")
                if c.kind == "valu" and getattr(c, "perm", False) and pw & c.r: req(2, "valu->permlane")
                if c.kind == "vmem" and ps & c.r: req(5, "valu sgpr->vmem")
                if c.kind == "valu" and ps & c.r:
                    req(4 if getattr(c, "rdlane", False) else 2, "valu sgpr->valu")
                if p.op.startswith("v_dot"):
                    if c.op == p.op:
                        ab = set().union(*[regs_of(o) for o in c.ops[1:3]])
                        if pw & ab: req(3, "dot->dot AB")
                    elif pw & (c.r | c.w): req(3, "dot->other")
                if p.op in TRANS and c.kind in ("valu",) and c.op not in TRANS and pw & c.r: req(1, "trans->valu")
                if p.op in TRANS and c.kind in ("vmem", "ds") and pw & c.r: req(1, "trans->mem")
            if p.kind == "mfma":
                P = p.passes
                big = {2: 5, 4: 8, 8: 12, 16: 20}[P]
                if c.kind == "valu" and p.w & (c.r | c.w): req(big, "mfma D->valu")
                if c.kind in ("vmem", "ds") and p.w & (c.r | c.w): req(big, "mfma D->mem")
                if c.kind == "mfma":
                    if p.w & c.a: req(big, "mfma D->mfma AB")
                    if p.w & c.c:
                        if not (p.w == c.c and P == c.passes): req({2: 4, 4: 6, 8: 10, 16: 18}[P], "mfma D->srcC overlap")
                    if p.w & c.w and not (p.w == c.w): req({2: 4, 4: 6, 8: 10, 16: 18}[P], "mfma D->D partial")
                if c.kind == "valu" and p.c & c.w: req({2: 1, 4: 3, 8: 7, 16: 15}[P], "mfma srcC WAR valu")
            if p.kind == "salu" and ("s", 124) in p.w and c.kind == "vmem" and getattr(c, "lds", False): req(1, "m0->lds dma")
            if p.kind == "salu" and ("s", 124) in p.w and c.kind == "ds" and "addtid" in c.op: req(1, "m0->addtid")
            if p.kind == "vmem" and getattr(p, "wide", False) and hasattr(p, "sdata"):
                if c.kind == "valu" and p.sdata & c.w: req(2, "store data WAR valu")
                elif p.sdata & c.w: req(1, "store data WAR")
            if need > dist:
                errs.append(f"{name}: line {c.ln} '{c.text}' needs {need} ws after line {p.ln} '{p.text}' ({why}), has {dist}")
            dist += p.n if p.kind == "nop" else 1
            j -= 1
    return errs
```

```python
from core import *
import re
from layout import *
import p0, p1, p2, p3
from p0 import srd, SRD_WS, SRD_A, SRD_B, SRD_C, P_X, P_WQKV, P_WO, P_G, P_U, P_D, P_OUT, P_DBG, P_WS
from p1 import build_seq, epi_instrs, NSLOT, V_A, V_QK, V_V, V_H, FR, ACC, BF, PF
from p1 import S_TB, S_FB, S_T32, S_CQ0, S_CQ1, S_CP0, S_J, S_T

FX = 0x000000
FW = 0x010000
FO = 0x020000
FG = 0x080000
K_QK, K_V, K_H0, K_H1 = 0, 1, 2, 3
CT_NONCE, CT_PROG, CT_ATT = 0, 16, 32
RING = 32768
LN_LDS = 1024
L_Q = 512; L_K = L_Q + 10240; L_V = L_K + 51200; L_ONES = L_V + 51200
L_R1 = 512; L_R2 = L_R1 + 81920
p0.LN_LDS = LN_LDS
p2.L_Q, p2.L_K, p2.L_V, p2.L_ONES = L_Q, L_K, L_V, L_ONES
p3.L_R1, p3.L_R2 = L_R1, L_R2
S_NONCE, S_SPIN = 0, 1
S_ST = 10
S_FL = 58
V_NONCE, V_Z, V_STAMP = 0, 3, 1
SPIN = 20000
WS = f"s[{SRD_WS}:{SRD_WS+3}]"

class Stamper:
    def __init__(self, on, cyc=False): self.on = on; self.prev = None; self.ins = "s_memtime" if cyc else "s_memrealtime"
    def mark(self, i):
        if not self.on: return []
        L = []
        if self.prev is not None: L.append(f"v_writelane_b32 v{V_STAMP}, s{S_ST}, {self.prev}")
        L.append(f"{self.ins} s[{S_ST}:{S_ST+1}]")
        self.prev = i
        return L
    def sync(self):
        if not self.on or self.prev is None: return []
        L = ["s_waitcnt lgkmcnt(0)", f"v_writelane_b32 v{V_STAMP}, s{S_ST}, {self.prev}"]
        self.prev = None
        return L
    def now(self, i): return self.sync() + self.mark(i) + self.sync()
    def flush(self, a):
        if not self.on: return
        a.extend(self.sync())
        a(f"s_mov_b64 exec, -1\ns_lshl_b32 s40, s2, 3\ns_add_u32 s40, s40, s3\ns_lshl_b32 s40, s40, 7\ns_add_u32 s40, s40, {STAMPS}")
        a(f"v_mbcnt_lo_u32_b32 v4, -1, 0\nv_mbcnt_hi_u32_b32 v4, -1, v4\nv_lshlrev_b32 v4, 2, v4\ns_mov_b32 exec_hi, 0")
        a(f"buffer_store_dword v{V_STAMP}, v4, {WS}, s40 offen\ns_mov_b64 exec, -1")

def poll(a, vaddr, soff, mlo, mhi, lab, vt, off=0):
    a(f"s_mov_b32 s{S_SPIN}, {SPIN}\ns_mov_b32 exec_lo, {mlo}\ns_mov_b32 exec_hi, {mhi}")
    a(f"{lab}:")
    a(f"buffer_load_dword v{vt}, v{vaddr}, {WS}, s{soff} offen offset:{off} sc1")
    a(f"s_waitcnt vmcnt(0)\nv_cmp_eq_u32 vcc, s{S_NONCE}, v{vt}\ns_nop 0\ns_cmp_eq_u64 vcc, exec\ns_cbranch_scc1 {lab}_ok")
    a(f"s_sub_u32 s{S_SPIN}, s{S_SPIN}, 1\ns_cmp_lg_u32 s{S_SPIN}, 0\ns_cbranch_scc1 {lab}")
    a(f"{lab}_ok:\ns_mov_b64 exec, -1")

def lds_poll4(a, off, lab, vt):
    a(f"v_mov_b32 v{vt+4}, {off}\ns_mov_b32 s{S_SPIN}, {SPIN*8}")
    a(f"{lab}:\nds_read_b128 v[{vt}:{vt+3}], v{vt+4}\ns_waitcnt lgkmcnt(0)")
    a(f"v_min_u32 v{vt}, v{vt}, v{vt+1}\nv_min3_u32 v{vt}, v{vt}, v{vt+2}, v{vt+3}\ns_nop 0\nv_readfirstlane_b32 s40, v{vt}")
    a(f"s_cmp_lg_u32 s40, 0\ns_cbranch_scc1 {lab}_ok\ns_sub_u32 s{S_SPIN}, s{S_SPIN}, 1\ns_cmp_lg_u32 s{S_SPIN}, 0\ns_cbranch_scc1 {lab}\n{lab}_ok:")

def flag_store(soff, off=0):
    return f"buffer_store_dword v{V_NONCE}, v{V_Z}, {WS}, s{soff} offen offset:{off} sc1"

class Emit:
    def __init__(self, a): self.a = a; self.vm = []; self.ds = []
    def __call__(self, ins, tag=None):
        for l in ins.split("\n") if isinstance(ins, str) else ins:
            l = l.strip()
            if not l: continue
            if l.startswith("buffer_"): self.vm.append(tag)
            elif l.startswith("ds_"): self.ds.append(tag)
            self.a(l)
    def vm_after(self, pred):
        for i in range(len(self.vm) - 1, -1, -1):
            if pred(self.vm[i]): return len(self.vm) - 1 - i
        return None
    def ds_after(self, pred):
        for i in range(len(self.ds) - 1, -1, -1):
            if pred(self.ds[i]): return len(self.ds) - 1 - i
        return None

X4 = None
XE_BASE = 16384
def ring_plan(ty, nb=3, bar_every=16):
    mf, stages, tiles = build_seq(ty, nb, corr=bool(X4 and X4["corr"]), nb0t=(X4["nb0"] if X4 else None))
    N = len(mf); ns = len(stages)
    phase = (-ns) % NSLOT
    nc = [k for k in range(N) if mf[k].get("corr") is None]
    bars = [-1]
    while True:
        pos = bars[-1] + PF + 1
        kind = tiles[mf[nc[min(pos, len(nc)-1)]]["tile"]]["kind"]
        step = 8 if kind == "QKH" else bar_every
        if X4 and pos < X4["bar0_n"]: step = X4["bar0"]
        nxt = bars[-1] + step if bars[-1] >= 0 else step - PF - 1
        if nxt >= len(nc) - PF - 1: break
        bars.append(nxt)
    bars = [-1] + [nc[b + PF + 1] - PF - 1 for b in bars[1:]]
    def done_at(b):
        d = -1
        for s in range(ns):
            if all(k <= b for k in range(N) if mf[k]["stage"] == s): d = s
            else: break
        return d
    out = []
    for b in bars:
        out.append(b)
        if done_at(b) >= ns - 6: break
    bars = out
    info = []
    for i, b in enumerate(bars):
        lo = b + PF + 1 if b >= 0 else 0
        hi = (bars[i+1] + PF) if i + 1 < len(bars) else N - 1
        need = max(mf[k]["stage"] for k in range(lo, hi + 1))
        info.append((need, done_at(b)))
    prog = max(k for k in range(N) if mf[k]["stage"] <= ns - 4)
    slot = [(s + phase) % NSLOT for s in range(ns)]
    prev = [s - NSLOT if s >= NSLOT else None for s in range(ns)]
    xb = None; xrd = None
    if X4:
        nx = X4["nx"]; nw = NSLOT - nx
        for s in range(nw + 8): slot[s] = (phase + s % nw) % NSLOT
        xs = [(phase + nw + i) % NSLOT for i in range(nx)]
        xb = ([XE_BASE] if X4["xe"] else []) + [RING + 16384 * i for i in xs]
        xrd = [min(k for k in range(N) if mf[k]["bf"] is not None and mf[k]["bf"] // 4 == m) - PF for m in range(10)]
        occ = {}
        for s in range(ns):
            if slot[s] in occ: prev[s] = occ[slot[s]]
            elif slot[s] in xs:
                last = max(m for m in range(10) if xb[m % len(xb)] == RING + 16384 * slot[s])
                prev[s] = ("x", xrd[last] + PF)
            else: prev[s] = None
            occ[slot[s]] = s
    return dict(mf=mf, stages=stages, tiles=tiles, N=N, ns=ns, phase=phase, bars=bars, info=info, prog=prog, slot=slot, prev=prev, xb=xb, xrd=xrd)

def gen_compute(a, ty, st, opt):
    P = ring_plan(ty)
    mf, stages, tiles, N, phase, bars = P["mf"], P["stages"], P["tiles"], P["N"], P["phase"], P["bars"]
    sc = "" if opt.get("nosc") else "sc1"
    e = Emit(a)
    PRE = opt.get("pre", 16); XRATE = opt.get("xrate", 2); FDELAY = opt.get("fdelay", 48)
    jobs = []
    for ti, t in enumerate(tiles):
        if t["kind"] == "P": groups = [(0, t["accs"][0:2]), (1, t["accs"][2:4])]
        elif t["kind"] == "QKH": groups = [(0, t["accs"][0:1])]
        else: groups = [(0, t["accs"][0:1]), (1, t["accs"][1:2])]
        for ft, ac in groups:
            last = max(i for i in range(t["m0"], t["m1"]) if mf[i]["acc"] in ac)
            nxt = [i for i in range(t["m1"], N) if mf[i]["acc"] in ac]
            dl = min(nxt) if nxt else N + 1000
            jobs.append(dict(ready=last, dl=dl, ins=epi_instrs(t["kind"], t["idx"], ft, [ACC[x] for x in ac], sc), tile=ti, kind=t["kind"]))
    jobs.sort(key=lambda j: j["ready"])
    fill = {g: [] for g in range(N)}
    tail = []
    cur = 0
    LOCAL = opt.get("front", 0) == 3
    L4 = opt.get("front", 0) == 4
    xpost = {g: [] for g in range(-1, N)}
    if L4:
        xb, xrd = P["xb"], P["xrd"]; nxs = len(xb)
        curb = x4_base(P)
        def addfill(g, L):
            for i_, x_ in enumerate(L): fill[g + i_ // 3].append(x_)
        for m in range(10):
            g = max(xrd[m], -1)
            xpost[g].append(("WAITX", m))
            d = xb[m % nxs] - curb
            if not 0 <= d <= 49152:
                xpost[g] += [(f"v_add_u32 v{X4_R+k_}, {d & 0xffffffff}, v{X4_R+k_}", None) for k_ in range(4)]
                curb = xb[m % nxs]; d = 0
            xpost[g] += [(f"ds_read_b128 v[{BF+16*m+4*k_}:{BF+16*m+4*k_+3}], v{X4_R+k_} offset:{d}", ("xr", m)) for k_ in range(4)]
            if m + nxs < 10:
                g2 = xrd[m] + PF
                for tg in range(4):
                    fill[g2 + tg] += [(x_, ("xd", m + nxs) if x_.startswith("buffer") else None) for x_ in x4_dma(P, m + nxs, tg)]
        g = xrd[9] + PF
        rs = x4_restore(ty)
        addfill(g, [(x_, None) for x_ in rs])
        cur = g + (len(rs) + 2) // 3
        nb_ = opt.get("nonce_bar", 6)
        fill[bars[nb_] + 1].append((f"ds_read_b32 v{V_NONCE}, v{V_NONCE}", ("nonce",)))
        fill[bars[nb_] + 8].append((f"v_readfirstlane_b32 s{S_NONCE}, v{V_NONCE}", None))
    npre = 0
    if LOCAL:
        D_ = [min(k for k in range(N) if mf[k]["bf"] == j) for j in range(40)]
        R = opt.get("nrate", 6)
        def plan(npre):
            seq = [(x_, D_[j]) for j in range(npre, 40) for x_ in norm_instrs(j)]
            g = 0; out = {}
            for i in range(0, len(seq), R):
                for x_, d in seq[i:i+R]:
                    if g > d - 2: return None
                    out.setdefault(g, []).append(x_)
                g += 1
            return out, g
        npre = 1
        while plan(npre) is None: npre += 1
        npre = max(npre, opt.get("npre", 0))
        out, g = plan(npre)
        for gg, L in out.items(): fill[gg] += [(x_, None) for x_ in L]
        rs = norm_restore()
        for i in range(0, len(rs), 4):
            fill[g] += [(x_, None) for x_ in rs[i:i+4]]; g += 1
        cur = g
        opt["_npre"] = npre
    for j in jobs:
        start = max(j["ready"] + 4, cur)
        n = len(j["ins"])
        tagged = [(x, ("st", j["tile"])) for x in j["ins"]]
        end = min(j["dl"] - 1, N)
        avail = end - start
        if start >= N - 1 or avail <= 0:
            assert j["dl"] > N, (ty, j["ready"], j["dl"], cur, N, n)
            tail += tagged; j["last_gap"] = N; continue
        if j["dl"] > N: end = N; avail = end - start
        per = max(-(-n // avail), min(3, n))
        g = start; k = 0
        while k < n and g < N:
            fill[g] += tagged[k:k+per]; k += per; g += 1
        if k < n:
            assert j["dl"] > N
            tail += tagged[k:]; g = N + 1
        assert g <= end + 1 or j["dl"] > N
        j["last_gap"] = g - 1
        cur = g
    if p1.ORD == 0:
        if ty == "A": groups = [(K_QK, [0, 1]), (K_H0, [2])]
        if ty == "B": groups = [(K_QK, [0]), (K_H0, [1])]
        if ty == "C": groups = [(K_QK, [0]), (K_V, [1, 2])]
    else:
        if ty == "A": groups = [(K_H0, [0]), (K_QK, [1, 2])]
        if ty == "B": groups = [(K_H0, [0]), (K_QK, [1])]
        if ty == "C": groups = [(K_V, [0, 1]), (K_QK, [2])]
    flags = {}
    for kind, tl in groups:
        lg = max(j["last_gap"] for j in jobs if j["tile"] in tl)
        g = lg + (opt.get("fdelay_qk", FDELAY) if kind == K_QK else FDELAY)
        assert g < N - 1, (ty, kind, g)
        flags.setdefault(g, []).append((kind, tl))
    barset = set(b for b in bars if b >= 0)
    def rd(k):
        x = mf[k]
        if x.get("corr") is not None: return [f"ds_read_b64 v[{FR + 4 * (k % PF)}:{FR + 4 * (k % PF) + 1}], v{V_CT} offset:{CTAB + 256 * x['corr']}"]
        slot = P["slot"][x["stage"]]
        adr = V_A + 2 * x["adr"] + slot // 4
        off = (slot % 4) * 16384 + x["ksp"] * 2048
        fr = FR + 4 * (k % PF)
        return [f"ds_read_b64_tr_b16 v[{fr}:{fr+1}], v{adr} offset:{off}", f"ds_read_b64_tr_b16 v[{fr+2}:{fr+3}], v{adr} offset:{off+512}"]
    def xn_load(ks):
        L = []
        if ks % 4 == 0 and ks > 0: L.append("s_add_u32 s50, s50, 4096")
        L.append(f"buffer_load_dwordx4 v[{BF+4*ks}:{BF+4*ks+3}], v{V_H}, {WS}, s50 offen offset:{(ks%4)*1024} sc1")
        return L
    if opt.get("prio_g1"): a(f"s_setprio {opt['prio_g1']}")
    nx = 0
    if LOCAL:
        nx = 40
        for j in range(npre): a.extend(norm_instrs(j))
        a(f"v_cmp_eq_u32 vcc, 0, v2\nv_mov_b32 v{V_Z}, 0x80000000\nv_mov_b32 v{V_NONCE}, {CT_NONCE}\nv_cndmask_b32 v{V_Z}, v{V_Z}, 0, vcc")
        a.extend(st.now(3))
    elif L4:
        nx = 40
        e.vm += [("xd", m) for m in range(len(P["xb"])) for _ in range(4) if not (X4_NODMA[0] and m >= X4_NODMA[0] - 1)]
        a(f"v_cmp_eq_u32 vcc, 0, v2\nv_mov_b32 v{V_Z}, 0x80000000\nv_mov_b32 v{V_NONCE}, {CT_NONCE}\nv_cndmask_b32 v{V_Z}, v{V_Z}, 0, vcc")
    else:
        a(f"s_mul_i32 s50, s{S_T32}, {XN_T}\ns_add_u32 s50, s50, {XN}")
        while nx < PRE: e(xn_load(nx), ("xn", nx)); nx += 1
    def xemit(L):
        out = []
        for ins, tag in L:
            if ins == "WAITX": out.append(("WAITX", tag))
            else: out.append((ins, tag))
        return out
    def emit1(ins, tag):
        if ins == "WAITX":
            if not opt.get("x4nowait") and not (X4_NODMA[0] and tag >= X4_NODMA[0] - 1): a(f"s_waitcnt vmcnt({min(63, e.vm_after(lambda t: t == ('xd', tag)))})")
            if tag == 2: a.extend(st.mark(2))
            if tag == 1: a.extend(st.mark(3))
            if tag == 3: a.extend(st.mark(18))
            if tag == 0: a.extend(st.now(1))
            if tag == 9: a.extend(st.mark(20))
            if tag == 5: a.extend(st.mark(19))
        else: e(ins, tag)
    if L4:
        for ins, tag in xpost[-1]: emit1(ins, tag)
    a("s_barrier")
    a.extend(st.mark(4))
    if LOCAL:
        e(f"ds_read_b32 v{V_NONCE}, v{V_NONCE}", ("nonce",))
        fill[1].append((f"v_readfirstlane_b32 s{S_NONCE}, v{V_NONCE}", None))
    for k in range(PF): e(rd(k), ("rd", k))
    seen_bf = -1
    m16cnt = {}
    tile_last = {t["m1"] - 1: i for i, t in enumerate(tiles)}
    for k in range(N):
        x = mf[k]
        w = f"lgkmcnt({e.ds_after(lambda t: t == ('rd', k))})"
        if not LOCAL and not L4 and x["bf"] is not None and x["bf"] > seen_bf:
            seen_bf = x["bf"]
            assert ("xn", x["bf"]) in e.vm
            w = f"vmcnt({min(63, e.vm_after(lambda t: t == ('xn', x['bf'])))}) " + w
        a("s_waitcnt " + w)
        fr = FR + 4 * (k % PF); ac = ACC[x["acc"]]; bf = BF + 4 * (x["bf"] or 0)
        c = "0" if x["first"] else f"v[{ac}:{ac+15}]"
        post = []
        if k in barset: post.append(("s_barrier", None))
        post += xpost[k]
        if k + PF < N: post += [(i_, ("rd", k + PF)) for i_ in rd(k + PF)]
        if nx < 40 and k % XRATE == XRATE - 1:
            post += [(i_, ("xn", nx)) for i_ in xn_load(nx)]; nx += 1
        post += list(fill[k])
        if opt.get("m16x"):
            if x["first"]: m16cnt[x["acc"]] = 0
            cn = m16cnt[x["acc"]]; m16cnt[x["acc"]] += 1
            nh = (len(post) + 1) // 2 if opt["m16x"] == 2 else (0 if opt["m16x"] == 1 else len(post) // 2)
            for h in range(2):
                q = ac + 8 * (cn & 1) + 4 * h
                c2 = "0" if cn < 2 else f"v[{q}:{q+3}]"
                b2 = BF + 4 * (x["bf"] ^ h)
                if x["swap"]: a(f"v_mfma_f32_16x16x32_bf16 v[{q}:{q+3}], v[{b2}:{b2+3}], v[{fr}:{fr+3}], {c2}")
                else:         a(f"v_mfma_f32_16x16x32_bf16 v[{q}:{q+3}], v[{fr}:{fr+3}], v[{b2}:{b2+3}], {c2}")
                if h == 0:
                    for ins, tag in post[:nh]: e(ins, tag)
                    post = post[nh:]
        elif x.get("corr") is not None:
            if x["swap"]: a(f"v_mfma_f32_32x32x8_bf16 v[{ac}:{ac+15}], v[{V_SF}:{V_SF+1}], v[{fr}:{fr+1}], {c}")
            else:         a(f"v_mfma_f32_32x32x8_bf16 v[{ac}:{ac+15}], v[{fr}:{fr+1}], v[{V_SF}:{V_SF+1}], {c}")
        elif x["swap"]: a(f"v_mfma_f32_32x32x16_bf16 v[{ac}:{ac+15}], v[{bf}:{bf+3}], v[{fr}:{fr+3}], {c}")
        else:         a(f"v_mfma_f32_32x32x16_bf16 v[{ac}:{ac+15}], v[{fr}:{fr+3}], v[{bf}:{bf+3}], {c}")
        for ins, tag in post: emit1(ins, tag)
        for kind, tl in flags.get(k, []):
            n = e.vm_after(lambda t: t is not None and t[0] == "st" and t[1] in tl)
            if not opt.get("nofw"): a(f"s_waitcnt vmcnt({min(63, n)})")
            e(flag_store(S_FL, kind * 128), ("flag", kind))
        if k == P["prog"]:
            e(f"ds_write_b32 v13, v{V_NONCE if L4 else 14}", ("prog",))
        if k in tile_last: a.extend(st.mark(5 + tile_last[k]))
    if tail:
        a("s_nop 7\ns_nop 3")
        for ins, tag in tail: e(ins, tag)
    a.extend(st.sync())
    if opt.get("dumpxn"):
        a(f"s_mul_i32 s50, s{S_T32}, {XN_T}\ns_add_u32 s50, s50, {XN}")
        for ks in range(40):
            a(f"buffer_store_dwordx4 v[{BF+4*ks}:{BF+4*ks+3}], v{V_H}, {WS}, s50 offen\ns_add_u32 s50, s50, 1024")
        a("s_waitcnt vmcnt(0)")
    return P

def setup_compute(a, ty):
    p1.setup_compute(a, ty)
    for r in range(4, 10): a(f"v_add_u32 v{r}, {RING}, v{r}")
    a(f"s_lshl_b32 s{S_FL}, s{S_T32}, 4\ns_add_u32 s{S_FL}, s{S_FL}, s{S_FB}\ns_lshl_b32 s{S_FL}, s{S_FL}, 9\ns_add_u32 s{S_FL}, s{S_FL}, {FG}")
    a(f"s_lshl_b32 s40, s3, 2\ns_add_u32 s40, s40, {CT_PROG}\nv_mov_b32 v13, s40\nv_mov_b32 v14, 1")

S_XB, S_XW, S_XT = 72, 73, 74
V_XD, V_XR = 20, 22
V_NR, V_NC, V_NT = 10, 11, 12
def x_slot(P, m): return (P["phase"] + 2 + m % 6) % NSLOT
def x_dma(a, P, m):
    for tg in range(4):
        a(f"s_add_u32 m0, s{S_XW}, {x_slot(P, m) * 16384 + tg * 1024}")
        a(f"s_add_u32 s{S_XT}, s{S_XB}, {tg * 10240 + m * 128}")
        a(f"buffer_load_dwordx4 v{V_XD + (tg & 1)}, s[{p0.SRD_A}:{p0.SRD_A+3}], s{S_XT} offen lds")
def x_batch1(a, P):
    a(f"s_lshl_b32 s40, s{S_TB}, 2\ns_add_u32 s40, s40, s3\ns_mul_i32 s{S_XB}, s40, 40960\ns_lshl_b32 s40, s3, 12\ns_add_u32 s{S_XW}, s40, {RING}")
    a("v_lshrrev_b32 v16, 3, v2\nv_mul_u32_u24 v16, 1280, v16\nv_lshrrev_b32 v17, 4, v2\nv_and_b32 v18, 7, v2\nv_xor_b32 v18, v18, v17")
    a(f"v_lshl_add_u32 v{V_XD}, v18, 4, v16\nv_xor_b32 v{V_XD+1}, 64, v{V_XD}")
    for m in range(6): x_dma(a, P, m)
    a("v_bfe_u32 v16, v2, 3, 2\nv_lshlrev_b32 v16, 10, v16\nv_and_b32 v17, 7, v2\nv_lshl_add_u32 v16, v17, 7, v16")
    a(f"v_bfe_u32 v17, v2, 1, 3\nv_lshrrev_b32 v18, 5, v2\nv_xor_b32 v17, v17, v18\nv_lshl_add_u32 v16, v17, 4, v16\nv_add_u32 v{V_XR}, s{S_XW}, v16")
    for k in range(1, 4): a(f"v_xor_b32 v{V_XR+k}, {32*k}, v{V_XR}")
    for k in range(4): a(f"v_add_u32 v{V_XR+4+k}, 0x10000, v{V_XR+k}")
def x_stats(a, m):
    for i in range(16):
        r = BF + 16 * m + i
        if m == 0 and i < 2:
            a(f"v_dot2_f32_bf16 v{32+i}, v{r}, s75, 0\nv_dot2_f32_bf16 v{34+i}, v{r}, v{r}, 0")
        else:
            a(f"v_dot2c_f32_bf16 v{32+(i&1)}, s75, v{r}\nv_dot2c_f32_bf16 v{34+(i&1)}, v{r}, v{r}")
        if m == 0 and i == 1: a("s_nop 2")
def x_columns(a, P, st, opt):
    a("s_mov_b32 s75, 0x3f803f80")
    issued = 24
    for m in range(10):
        a(f"s_waitcnt vmcnt({issued - 4 * (m + 1)})")
        if m == 0: a.extend(st.now(1))
        if m == 9: a.extend(st.now(20))
        sl = x_slot(P, m)
        for k in range(4):
            r = BF + 16 * m + 4 * k
            a(f"ds_read_b128 v[{r}:{r+3}], v{V_XR + k + (4 if sl >= 4 else 0)} offset:{(sl % 4) * 16384}")
        if m > 0: x_stats(a, m - 1)
        a("s_waitcnt lgkmcnt(0)")
        if m <= 3: x_dma(a, P, m + 6); issued += 4
    a("s_barrier")
    a.extend(st.now(19))
    x_stats(a, 9)
    rnd = p0.rnd
    a("s_nop 2\nv_add_f32 v32, v32, v33\nv_add_f32 v34, v34, v35\nv_mov_b32 v33, v32\nv_mov_b32 v35, v34\ns_nop 1")
    a("v_permlane32_swap_b32 v32, v33\nv_permlane32_swap_b32 v34, v35\ns_nop 1\nv_add_f32 v32, v32, v33\nv_add_f32 v34, v34, v35")
    a("v_mul_f32 v32, 0x3acccccd, v32\nv_mul_f32 v34, 0x3acccccd, v34")
    a("v_fma_f32 v34, -v32, v32, v34\nv_max_f32 v34, 0, v34")
    rnd(a, 32); rnd(a, 34)
    a("v_add_f32 v34, 0x3727c5ac, v34")
    rnd(a, 34)
    a("v_sqrt_f32 v34, v34\ns_nop 0")
    rnd(a, 34)
    a(f"v_rcp_f32 v{V_NR}, v34\ns_nop 0\nv_mul_f32 v{V_NC}, v32, v{V_NR}\nv_sub_f32 v{V_NC}, 0, v{V_NC}")
    a.extend(st.now(18))
def norm_instrs(j):
    L = []
    for p in range(2):
        r0, r1 = BF + 4 * j + 2 * p, BF + 4 * j + 2 * p + 1
        t = V_NT
        L += [f"v_lshlrev_b32 v{t}, 16, v{r0}", f"v_and_b32 v{t+1}, 0xffff0000, v{r0}", f"v_lshlrev_b32 v{t+2}, 16, v{r1}", f"v_and_b32 v{t+3}, 0xffff0000, v{r1}"]
        L += [f"v_fma_f32 v{t+q}, v{t+q}, v{V_NR}, v{V_NC}" for q in range(4)]
        L += [f"v_cvt_pk_bf16_f32 v{r0}, v{t}, v{t+1}", f"v_cvt_pk_bf16_f32 v{r1}, v{t+2}, v{t+3}"]
    return L
def norm_restore():
    return [f"v_lshlrev_b32 v{V_QK}, 3, v2", f"v_lshlrev_b32 v{V_H}, 4, v2", "v_lshrrev_b32 v13, 5, v2", f"v_mul_u32_u24 v13, {VT_HF}, v13", "v_and_b32 v14, 31, v2",
            f"v_lshl_add_u32 v{V_V}, v14, 4, v13", "v_mov_b32 v13, s3", "v_lshlrev_b32 v13, 2, v13", f"v_add_u32 v13, {CT_PROG}, v13", "v_mov_b32 v14, 1"]

X4_R, X4_D = 8, 12
V_SF, V_CT = 14, 10
CTAB = 1024
S_HX = 79
def x4_base(P): return min(P["xb"]) if max(P["xb"]) - min(P["xb"]) <= 49152 else P["xb"][0]
def x4_dma(P, m, tg):
    return [f"s_add_u32 m0, s{S_XW}, {P['xb'][m % len(P['xb'])] + tg * 1024}", f"s_add_u32 s{S_XT}, s{S_XB}, {tg * 10240 + m * 128}",
            f"buffer_load_dwordx4 v{X4_D + (tg & 1)}, s[{p0.SRD_A}:{p0.SRD_A+3}], s{S_XT} offen lds" if not (X4_NODMA[0] and m >= X4_NODMA[0] - 1) else "s_nop 0"]
X4_NODMA = [0]
def x4_batch1(a, P):
    a(f"s_lshl_b32 s40, s{S_TB}, 2\ns_add_u32 s40, s40, s3\ns_mul_i32 s{S_XB}, s40, 40960\ns_lshl_b32 s{S_XW}, s3, 12")
    a("v_lshrrev_b32 v16, 3, v2\nv_mul_u32_u24 v16, 1280, v16\nv_lshrrev_b32 v17, 4, v2\nv_and_b32 v18, 7, v2\nv_xor_b32 v18, v18, v17")
    a(f"v_lshl_add_u32 v{X4_D}, v18, 4, v16\nv_xor_b32 v{X4_D+1}, 64, v{X4_D}")
    for m in range(len(P["xb"])):
        for tg in range(4): a.extend(x4_dma(P, m, tg))
    a(f"v_mov_b32 v20, v{X4_D}\nv_mov_b32 v21, v{X4_D+1}")
def x4_setup(a, P):
    a("v_bfe_u32 v16, v2, 3, 2\nv_lshlrev_b32 v16, 10, v16\nv_and_b32 v17, 7, v2\nv_lshl_add_u32 v16, v17, 7, v16")
    a(f"v_bfe_u32 v17, v2, 1, 3\nv_lshrrev_b32 v18, 5, v2\nv_xor_b32 v17, v17, v18\nv_lshl_add_u32 v16, v17, 4, v16")
    a(f"s_add_u32 s40, s{S_XW}, {x4_base(P)}\nv_add_u32 v{X4_R}, s40, v16\ns_lshl_b32 s{S_HX}, s49, 6")
    for k in range(1, 4): a(f"v_xor_b32 v{X4_R+k}, {32*k}, v{X4_R}")
    a(f"v_mov_b32 v{X4_D}, v20\nv_mov_b32 v{X4_D+1}, v21\nv_mov_b32 v{V_SF}, 0\nv_mov_b32 v{V_SF+1}, 0")
def x4_restore(ty):
    L = [f"v_lshlrev_b32 v{V_QK}, 3, v2", f"v_lshlrev_b32 v{V_H}, 4, v2", "v_lshrrev_b32 v13, 5, v2", f"v_mul_u32_u24 v13, {VT_HF}, v13", "v_and_b32 v14, 31, v2",
         f"v_lshl_add_u32 v{V_V}, v14, 4, v13", "v_mov_b32 v13, s3", "v_lshlrev_b32 v13, 2, v13", f"v_add_u32 v13, {CT_PROG}, v13", "v_mov_b32 v14, 0"]
    if ty == "A": L += [f"v_xor_b32 v8, s{S_HX}, v4", f"v_xor_b32 v9, s{S_HX}, v5"]
    return L

WT_VB = 32
WT_SRD_D, WT_SRD_O = 80, 84
def wt_loads(a, n, sw):
    vb = WT_VB
    g_, l16, gh, gl, col, row, pa = vb, vb+1, vb+2, vb+3, vb+4, vb+5, vb+6
    t = vb + 8
    if n == 0:
        a(f"v_lshrrev_b32 v{g_}, 4, v2\nv_and_b32 v{l16}, 15, v2\nv_lshrrev_b32 v{gh}, 1, v{g_}\nv_and_b32 v{gl}, 1, v{g_}")
        a(f"v_lshrrev_b32 v{pa}, 2, v{l16}\nv_lshlrev_b32 v{pa}, 3, v{pa}\nv_and_b32 v{pa+1}, 3, v{l16}\nv_add_u32 v{pa}, v{pa}, v{pa+1}")
        a("s_and_b32 s41, s2, 7\ns_lshr_b32 s42, s2, 3\ns_mul_i32 s43, s41, 80")
    lab = f"WT_{n}_{a.label('x')}"
    G = 96 + 8 * n
    a(f"s_add_u32 s50, s{sw}, {4*n}\ns_mul_i32 s51, s50, 52\ns_lshr_b32 s51, s51, 8")
    a("s_mul_i32 s52, s51, 5\ns_sub_u32 s52, s50, s52")
    a("s_lshl_b32 s53, s51, 5\ns_add_u32 s53, s53, s42")
    a(f"s_mov_b32 s{44+n}, -1")
    a(f"s_cmp_ge_u32 s50, 15\ns_cbranch_scc1 {lab}_skip\ns_cmp_ge_u32 s53, 74\ns_cbranch_scc1 {lab}_skip")
    a(f"s_mul_i32 s54, s41, {WT_F}\ns_mul_i32 s55, s53, {WT_K}\ns_add_u32 s54, s54, s55\ns_lshl_b32 s55, s52, 10\ns_add_u32 s54, s54, s55\ns_add_u32 s{44+n}, s54, {WT}")
    a("s_lshr_b32 s55, s52, 1\ns_lshl_b32 s55, s55, 5\ns_and_b32 s56, s52, 1\ns_lshl_b32 s56, s56, 2\ns_add_u32 s55, s55, s56\ns_add_u32 s55, s55, s43")
    a(f"s_cmp_eq_u32 s52, 4\ns_cselect_b64 s[56:57], -1, 0\nv_cndmask_b32 v{col}, v{pa}, v{l16}, s[56:57]\nv_add_u32 v{col}, s55, v{col}\nv_lshlrev_b32 v{col}, 1, v{col}")
    a(f"s_cmp_ge_u32 s53, 54\ns_cbranch_scc1 {lab}_o")
    a(f"s_lshl_b32 s55, s53, 5\nv_lshlrev_b32 v{row}, 4, v{gh}\nv_lshl_add_u32 v{row}, v{gl}, 2, v{row}\nv_add_u32 v{row}, s55, v{row}")
    a(f"s_movk_i32 s56, 1280\nv_mul_lo_u32 v{row}, v{row}, s56\nv_add_u32 v{row}, v{row}, v{col}\nv_add_u32 v{col}, 10240, v{row}")
    for j in range(8):
        a(f"buffer_load_ushort v{G+j}, v{row if j < 4 else col}, s[{WT_SRD_D}:{WT_SRD_D+3}], 0 offen offset:{(j%4)*1280}")
    a(f"s_branch {lab}_skip\n{lab}_o:")
    a(f"s_sub_u32 s55, s53, 54\ns_lshl_b32 s55, s55, 1\nv_add_u32 v{t}, s55, v{gh}")
    a(f"v_mul_u32_u24 v{t+1}, 52, v{t}\nv_lshrrev_b32 v{t+1}, 8, v{t+1}")
    a(f"v_mul_u32_u24 v{t+2}, 5, v{t+1}\nv_sub_u32 v{t+2}, v{t}, v{t+2}")
    a(f"v_lshlrev_b32 v{t+1}, 2, v{t+1}")
    a(f"v_add_u32 v{t+3}, v{t+1}, v{t+2}\nv_mul_u32_u24 v{t+3}, 20, v{t+3}\nv_lshl_add_u32 v{t+3}, v{gl}, 2, v{t+3}")
    a(f"v_add_u32 v{t+4}, v{t+1}, v{gl}\nv_mul_u32_u24 v{t+4}, 20, v{t+4}\nv_add_u32 v{t+4}, 16, v{t+4}")
    a(f"v_cmp_eq_u32 vcc, 4, v{t+2}\nv_mov_b32 v{t+5}, 8\nv_mov_b32 v{t+6}, 40\nv_cndmask_b32 v{t+3}, v{t+3}, v{t+4}, vcc\nv_cndmask_b32 v{t+5}, v{t+5}, v{t+6}, vcc")
    a(f"s_movk_i32 s56, 1280\nv_mul_lo_u32 v{row}, v{t+3}, s56\nv_mul_lo_u32 v{t+5}, v{t+5}, s56\nv_add_u32 v{row}, v{row}, v{col}\nv_add_u32 v{col}, v{row}, v{t+5}")
    for j in range(8):
        a(f"buffer_load_ushort v{G+j}, v{row if j < 4 else col}, s[{WT_SRD_O}:{WT_SRD_O+3}], 0 offen offset:{(j%4)*1280}")
    a(f"{lab}_skip:")

def wt_stores(a):
    a(f"v_lshlrev_b32 v{WT_VB+15}, 4, v2")
    for n in range(4):
        lab = a.label("WTS")
        G = 96 + 8 * n
        a(f"s_cmp_eq_u32 s{44+n}, -1\ns_cbranch_scc1 {lab}")
        for q in range(4): a(f"v_lshl_or_b32 v{128+4*n+q}, v{G+2*q+1}, 16, v{G+2*q}")
        a(f"buffer_store_dwordx4 v[{128+4*n}:{131+4*n}], v{WT_VB+15}, {WS}, s{44+n} offen sc1")
        a(f"{lab}:")

WT_LDS = 12288
def wt2_issue(a):
    lab = a.label("W2")
    a("s_mov_b32 s88, -1\ns_sub_u32 s50, s3, 4\ns_lshr_b32 s42, s2, 3\ns_lshl_b32 s53, s50, 5\ns_add_u32 s53, s53, s42")
    a(f"s_cmp_ge_u32 s53, 74\ns_cbranch_scc1 {lab}_skip")
    a(f"s_and_b32 s41, s2, 7\ns_mul_i32 s54, s41, {WT_F}\ns_mul_i32 s55, s53, {WT_K}\ns_add_u32 s54, s54, s55\ns_add_u32 s88, s54, {WT}")
    a(f"s_mul_i32 s43, s41, 160\ns_mul_i32 s51, s50, 5120\ns_add_u32 s51, s51, {WT_LDS}")
    for p in range(5):
        a(f"v_add_u32 v{40+p}, {64*p}, v2\nv_mul_u32_u24 v{32+p}, 205, v{40+p}\nv_lshrrev_b32 v{32+p}, 11, v{32+p}")
        a(f"v_mul_u32_u24 v46, 10, v{32+p}\nv_sub_u32 v{40+p}, v{40+p}, v46\nv_lshlrev_b32 v{40+p}, 4, v{40+p}")
    a(f"s_cmp_ge_u32 s53, 54\ns_cbranch_scc1 {lab}_o")
    a("s_mul_i32 s55, s53, 40960\ns_add_u32 s55, s55, s43")
    for p in range(5):
        a(f"v_mul_u32_u24 v46, 1280, v{32+p}\nv_add_u32 v{40+p}, v{40+p}, v46")
        a(f"s_add_u32 m0, s51, {1024*p}\ns_nop 0")
        a(f"buffer_load_dwordx4 v{40+p}, s[{WT_SRD_D}:{WT_SRD_D+3}], s55 offen lds")
    a(f"s_branch {lab}_skip\n{lab}_o:")
    for gh in range(2):
        a(f"s_sub_u32 s55, s53, 54\ns_lshl_b32 s55, s55, 1\ns_add_u32 s55, s55, {gh}\ns_mul_i32 s56, s55, 52\ns_lshr_b32 s56, s56, 8")
        a(f"s_mul_i32 s57, s56, 5\ns_sub_u32 s57, s55, s57\ns_lshl_b32 s56, s56, 2")
        a(f"s_add_u32 s55, s56, s57\ns_mul_i32 s55, s55, 20\ns_mul_i32 s56, s56, 20\ns_add_u32 s56, s56, 16")
        a(f"s_cmp_eq_u32 s57, 4\ns_cselect_b32 s{58+2*gh}, s56, s55\ns_cselect_b32 s{59+2*gh}, 1, 0")
    a("v_mov_b32 v47, s58\nv_mov_b32 v48, s60\nv_mov_b32 v49, s59\nv_mov_b32 v50, s61")
    for p in range(5):
        a(f"v_and_b32 v51, 15, v{32+p}\nv_lshrrev_b32 v52, 2, v51\nv_mul_u32_u24 v52, 20, v52\nv_and_b32 v53, 3, v51\nv_add_u32 v52, v52, v53")
        a(f"v_cmp_le_u32 vcc, 16, v{32+p}\ns_nop 1\nv_cndmask_b32 v53, v47, v48, vcc\nv_cndmask_b32 v54, v49, v50, vcc")
        a(f"v_cmp_eq_u32 vcc, 1, v54\ns_nop 1\nv_cndmask_b32 v51, v51, v52, vcc\nv_add_u32 v51, v51, v53")
        a(f"v_mul_u32_u24 v51, 1280, v51\nv_add_u32 v{40+p}, v{40+p}, v51")
        a(f"s_add_u32 m0, s51, {1024*p}\ns_nop 0")
        a(f"buffer_load_dwordx4 v{40+p}, s[{WT_SRD_O}:{WT_SRD_O+3}], s43 offen lds")
    a(f"{lab}_skip:")

def wt2_finish(a, nyounger):
    lab = a.label("W2F")
    a(f"s_cmp_eq_u32 s88, -1\ns_cbranch_scc1 {lab}")
    a("v_lshrrev_b32 v32, 5, v2\nv_lshlrev_b32 v32, 4, v32\nv_bfe_u32 v33, v2, 4, 1\nv_lshl_add_u32 v32, v33, 2, v32\nv_bfe_u32 v33, v2, 2, 2\nv_add_u32 v32, v32, v33")
    a(f"s_sub_u32 s50, s3, 4\ns_mul_i32 s51, s50, 5120\ns_add_u32 s51, s51, {WT_LDS}")
    a("v_mul_u32_u24 v32, 160, v32\nv_add_u32 v32, s51, v32\nv_and_b32 v33, 3, v2\nv_lshl_add_u32 v34, v33, 4, v32\nv_lshl_add_u32 v35, v33, 3, v32\nv_lshlrev_b32 v36, 4, v2")
    a(f"s_waitcnt vmcnt({nyounger})")
    for ft in range(5):
        adr, off = (34, (ft >> 1) * 64 + (ft & 1) * 8) if ft < 4 else (35, 128)
        a(f"ds_read_b64_tr_b16 v[{64+4*ft}:{65+4*ft}], v{adr} offset:{off}\nds_read_b64_tr_b16 v[{66+4*ft}:{67+4*ft}], v{adr} offset:{off+1280}")
    a("s_add_u32 s52, s88, 4096")
    for ft in range(5):
        a(f"s_waitcnt lgkmcnt({2*(4-ft)})")
        a(f"buffer_store_dwordx4 v[{64+4*ft}:{67+4*ft}], v36, {WS}, s{88 if ft < 4 else 52} offen offset:{(ft%4)*1024} sc1")
    a(f"{lab}:")

def loader_issue(a, P, s):
    kind, idx, stg = P["stages"][s]
    slot = P["slot"][s]
    for i in range(4):
        if kind == "P":
            base = S_CP0 + idx; off = (64 * stg + 8 * i) * 3456; vo, sr = 5, SRD_B
        else:
            base = {"QK": S_CQ0, "QKH": S_CQ1, "V": S_CQ1 + idx}[kind]; off = (128 * stg + 8 * i) * 3840; vo, sr = 4, SRD_A
        a(f"s_add_u32 m0, s{S_J}, {RING + slot*16384 + i*1024}")
        a(f"s_add_u32 s{S_T}, s{base}, {off}")
        a(f"buffer_load_dwordx4 v{vo}, s[{sr}:{sr+3}], s{S_T} offen lds")

def weight_prefetch(a, ty, which="rest"):
    n = 0
    a("s_lshr_b32 s40, s2, 3\ns_and_b32 s40, s40, 7\ns_mul_i32 s40, s40, 80\ns_sub_u32 s41, s3, 4")
    a("s_mul_i32 s42, s41, 20\ns_add_u32 s42, s42, s40\nv_add_u32 v23, s42, v2\nv_mul_u32_u24 v23, 3840, v23")
    a("v_mov_b32 v25, 0x80000000\nv_cmp_gt_u32 vcc, 20, v2\ns_nop 1\nv_cndmask_b32 v23, v25, v23, vcc")
    a("s_and_b32 s42, s41, 1\ns_mul_i32 s42, s42, 40\ns_add_u32 s42, s42, s40\nv_add_u32 v24, s42, v2\nv_mul_u32_u24 v24, 3456, v24")
    a("v_cmp_gt_u32 vcc, 40, v2\ns_nop 1\nv_cndmask_b32 v24, v25, v24, vcc")
    qs = {"A": [45], "B": [], "C": [45, 46]}[ty]
    ps = {"A": [47, 48], "B": [47, 48], "C": [47]}[ty]
    if p1.ORD == 1:
        qs = {"A": [44, 45], "B": [44], "C": [44]}[ty]
        ps = {"A": [48], "B": [48], "C": [47]}[ty]
        if which == "first":
            qs = {"A": [], "B": [], "C": [45, 46]}[ty]
            ps = {"A": [47], "B": [47], "C": []}[ty]
    for q in qs:
        a(f"s_lshl_b32 s42, s{q}, 7\nbuffer_load_dword v26, v23, s[{SRD_A}:{SRD_A+3}], s42 offen"); n += 1
    for q in ps:
        a(f"s_lshl_b32 s42, s{q}, 7\nbuffer_load_dword v27, v24, s[{SRD_B}:{SRD_B+3}], s42 offen"); n += 1
    return n

EH_A, EH_R = 92, 94
def eh_prepoll(a):
    a("s_and_b32 s43, s2, 7\ns_lshr_b32 s41, s2, 3")
    a("s_and_b32 s42, s43, 1\ns_lshl_b32 s42, s42, 2\ns_and_b32 s40, s41, 3\ns_add_u32 s44, s42, s40")
    a("s_lshr_b32 s42, s43, 1\ns_lshl_b32 s42, s42, 3\ns_lshr_b32 s41, s41, 2\ns_add_u32 s45, s42, s41")
    a(f"s_lshl_b32 s40, s44, 7\ns_add_u32 s40, s40, {FW}\nv_and_b32 v16, 31, v2\nv_lshlrev_b32 v16, 10, v16\nv_add_u32 v{EH_A}, s40, v16")
    a(f"s_lshl_b32 s41, s45, 14\ns_add_u32 s41, s41, {FG + K_H0*128}")
    a("v_and_b32 v16, 15, v2\nv_min_u32 v16, 10, v16\nv_bfe_u32 v17, v2, 4, 1\nv_lshl_add_u32 v16, v17, 4, v16\nv_lshlrev_b32 v16, 9, v16")
    a(f"v_add_u32 v{EH_A+1}, s41, v16")
    for i in range(2): a(f"buffer_load_dword v{EH_R+i}, v{EH_A+i}, {WS}, 0 offen sc1")
    return 2
def eh_setup(a, nyounger):
    lab = a.label("EH")
    a(f"s_sub_u32 s57, s3, 4\ns_mul_i32 s{K_WT}, s44, {WT_F}\ns_add_u32 s{K_WT}, s{K_WT}, {WT}")
    a(f"s_lshl_b32 s40, s45, 1\ns_mul_i32 s{KS_H0}, s40, {HS_T}\ns_add_u32 s{KS_H0}, s{KS_H0}, {HS}")
    a(f"v_lshlrev_b32 v{V_LA}, 4, v2\nv_add_u32 v{V_LA2}, 4096, v{V_LA}")
    a(f"v_lshrrev_b32 v16, 4, v2\nv_and_b32 v17, 15, v2\nv_lshlrev_b32 v{V_LB}, 9, v16\nv_lshl_add_u32 v{V_LB}, v17, 4, v{V_LB}")
    h_bases(a)
    a(f"s_waitcnt vmcnt({min(63, nyounger)})")
    for i in range(2):
        a(f"v_cmp_eq_u32 vcc, s{S_NONCE}, v{EH_R+i}\ns_nop 0\ns_cmp_eq_u64 vcc, -1\ns_cbranch_scc1 {lab}_{i}")
        a("s_mov_b32 s43, 0")
        poll(a, EH_A + i, 43, -1, -1, f"{lab}_p{i}", EH_R + i)
        a(f"{lab}_{i}:")
def h_bases(a, J=57):
    a(f"s_lshr_b32 s40, s{J}, 1\ns_lshl_b32 s40, s40, 2\ns_and_b32 s41, s{J}, 1\ns_add_u32 s56, s40, s41")
    a(f"s_add_u32 s42, s{J}, 40\ns_cmp_lt_u32 s{J}, 2\ns_cselect_b32 s55, s42, s{J}")
    a(f"s_add_u32 s40, s{J}, 2\ns_lshr_b32 s40, s40, 1\ns_lshl_b32 s40, s40, 2\ns_add_u32 s54, s40, s41\ns_add_u32 s54, s54, 2")
def eh_item(a, n):
    L = [f"s_add_u32 s{K_KAP}, s56, {8*n}"] + k_addr(None, False) + k_wt(n % NBUF) + k_act(n % NBUF)
    assert n <= 4
    for x in L: a(x)
    return 9

def slot_free(P, s, bi):
    p = P["prev"][s]
    if p is None: return True
    if bi < 0: return False
    if isinstance(p, tuple): return P["bars"][bi] >= p[1]
    return P["info"][bi][1] >= p
def gen_loader(a, P, st, opt, npf=0):
    info, ns = P["info"], P["ns"]
    issued = opt.get("_issued", NSLOT)
    q = [("stage", s) for s in range(issued) for _ in range(4)] + [("pf",)] * npf
    if "_q0" in opt: q = list(opt["_q0"])
    WT_LD = opt.get("wt_ld", 2); WT_ST = WT_LD + opt.get("wt_gap", 9); WT_FL = WT_ST + 9
    nb = len(info)
    new_wt = opt.get("front", 0) >= 1
    WT2_AT = opt.get("wt2_at", -1)
    fw_done = False
    if new_wt:
        WT_LD = WT_ST = -1; wt_mark2 = NSLOT
        WT_FL = min(bi for bi, (need, done) in enumerate(info) if need >= NSLOT)
        if WT2_AT >= 0: WT_FL = -2; wt_mark2 = 1000
    assert WT_FL < nb - 1
    EH = opt.get("eh", 0); eh_plan = {}
    if EH:
        i_ = issued; bL = None
        for bi in range(nb):
            while i_ < ns and slot_free(P, i_, bi - 1): i_ += 1
            if i_ == ns and bL is None: bL = bi
        if opt["_ty"] in ("A" if opt.get("eh_bc", 0) == 0 else "ABC"):
            first = bL + opt.get("eh_at", 0); ppb = first - opt.get("eh_pp", 2)
            for n in range(EH): eh_plan.setdefault(min(first + n * opt.get("eh_step", 1), nb - 1), []).append(n)
        else:
            ppb = nb - 2
            eh_plan[nb - 1] = list(range(EH))
        assert ppb >= 1 and min(eh_plan) >= bL
        eh_mark = None
    L4 = opt.get("front", 0) == 4
    NB_ = opt.get("nonce_bar", 6); WT2_ISS = opt.get("wt2_iss", 0); w2_first = None; w2_fin = False; n_first = None
    for bi, (need, done) in enumerate(info):
        while issued < ns and slot_free(P, issued, bi - 1):
            loader_issue(a, P, issued); q += [("stage", issued)] * 4; issued += 1
        if bi == nb - 1:
            assert issued == ns
            need = ns - 1
        assert issued > need
        last = max(i for i, t in enumerate(q) if t == ("stage", need))
        a(f"s_waitcnt vmcnt({min(63, len(q) - 1 - last)})")
        if L4 and bi == NB_:
            lab = a.label("NN")
            a(f"s_cmp_lg_u32 s3, 4\ns_cbranch_scc1 {lab}_x\ns_waitcnt vmcnt({min(63, len(q) - n_first)})")
            a(f"v_readfirstlane_b32 s40, v28\ns_cmp_lg_u32 s40, 0\ns_cbranch_scc1 {lab}_1\ns_mov_b32 s{S_SPIN}, {SPIN}\nv_mov_b32 v29, 0")
            a(f"{lab}_p:\nbuffer_load_dword v28, v29, s[{SRD_C}:{SRD_C+3}], 0 offen sc1\ns_waitcnt vmcnt(0)\nv_readfirstlane_b32 s40, v28\ns_cmp_lg_u32 s40, 0\ns_cbranch_scc1 {lab}_1")
            a(f"s_sub_u32 s{S_SPIN}, s{S_SPIN}, 1\ns_cmp_lg_u32 s{S_SPIN}, 0\ns_cbranch_scc1 {lab}_p")
            a(f"{lab}_1:\nv_mov_b32 v29, {CT_NONCE}\nds_write_b32 v29, v28\ns_waitcnt lgkmcnt(0)\n{lab}_x:")
        a("s_barrier")
        if bi == 0 and opt.get("front", 0) == 2: opt["_get_nonce"]()
        if L4:
            if bi == NB_: opt["_get_nonce"]()
            if bi == 0:
                lab = a.label("NL")
                a(f"s_cmp_lg_u32 s3, 4\ns_cbranch_scc1 {lab}\nv_mov_b32 v29, 0\nbuffer_load_dword v28, v29, s[{SRD_C}:{SRD_C+3}], 0 offen sc1\n{lab}:")
                n_first = len(q)
            if bi == WT2_ISS: wt2_issue(a); w2_first = issued
            elif w2_first is not None and not w2_fin and need >= w2_first and bi >= WT2_AT:
                wt2_finish(a, 63); w2_fin = True; wt_mark2 = issued
            elif w2_fin and not fw_done and need >= wt_mark2 and bi > NB_:
                WT_FL = bi; fw_done = True
                assert bi < nb - 1
        if bi == WT_LD:
            a(f"s_sub_u32 s59, s3, 4")
            if not opt.get("nowt"):
                for n in range(4): wt_loads(a, n, 59)
            wt_mark = issued
        if bi == WT_ST:
            last = max(i for i, t in enumerate(q) if t == ("stage", wt_mark))
            a(f"s_waitcnt vmcnt({min(63, len(q) - 1 - last)})")
            if not opt.get("nowt"): wt_stores(a)
            wt_mark2 = issued
        if EH and bi == ppb:
            n = eh_prepoll(a); q += [("pf",)] * n; eh_mark = len(q)
        pp_first = opt.get("pp_first", 0)
        if pp_first and opt.get("tail", 0) >= 1 and bi == nb - 1 - opt.get("pp_back", 3):
            n = prepoll_issue(a); q += [("pf",)] * n
        for n in eh_plan.get(bi, []):
            if n == 0: eh_setup(a, len(q) - eh_mark)
            q += [("pf",)] * eh_item(a, n)
        if not pp_first and opt.get("tail", 0) >= 1 and bi == nb - 1 - opt.get("pp_back", 3):
            n = prepoll_issue(a); q += [("pf",)] * n
        if bi == opt.get("wpf_at", -1) and opt.get("wpf", 1) == 3:
            n = weight_prefetch(a, opt["_ty"]); q += [("pf",)] * n
        if new_wt and WT2_AT >= 0 and not L4:
            if bi == WT2_AT:
                wt2_finish(a, 63)
                wt_mark2 = issued
            elif bi > WT2_AT and not fw_done and need >= wt_mark2:
                WT_FL = bi; fw_done = True
                assert bi < nb - 1
        if bi == WT_FL:
            assert need >= wt_mark2, (need, wt_mark2)
            lab = a.label("FW")
            a(f"s_cmp_lg_u32 s3, 4\ns_cbranch_scc1 {lab}\ns_lshl_b32 s40, s2, 7\ns_add_u32 s40, s40, {FW}")
            a(flag_store(40))
            a(f"{lab}:")

def attn_dma_dyn(a, kind, m, vb, sj, sj5):
    t = 64
    if kind == "Q":
        a(f"s_lshl_b32 s{t}, s{p2.A_TB2}, 1\ns_add_u32 s{t}, s{t}, {m}")
        a(f"s_mul_i32 s{t+1}, s{t}, {QS_T}\ns_mul_i32 s{t}, s{p2.A_HQ}, 5120\ns_add_u32 s{t+1}, s{t+1}, s{t}\ns_add_u32 s{t+1}, s{t+1}, {QS}")
        p2.dma5(a, L_Q + m * 5120, [vb+5]*5, t+1, "sc1", True)
    elif kind == "K": p2.dma_k(a, m, vb, "sc1", t)
    else: p2.dma_v(a, m, vb, "sc1", t)

def qk_producers(hq):
    def fbs(q):
        if q < 8: return [q]
        if q < 12: return [q - 8, q - 4]
        return [q - 4]
    t1, t2 = (80 * hq) >> 6, (80 * hq + 79) >> 6
    L = []
    for q in (t1, t2, 10 + t1, 10 + t2):
        for f in fbs(q):
            if f not in L: L.append(f)
    while len(L) < 6: L.append(L[0])
    assert len(L) == 6
    return L

def poll_qk(a, lab):
    tab = [sum(f << (4 * i) for i, f in enumerate(qk_producers(h))) for h in range(8)]
    a(f"s_mov_b32 s41, {tab[0]}")
    for h in range(1, 8):
        a(f"s_mov_b32 s42, {tab[h]}\ns_cmp_eq_u32 s{p2.A_HQ}, {h}\ns_cselect_b32 s41, s42, s41")
    a("v_mul_u32_u24 v16, 43, v2\nv_lshrrev_b32 v16, 8, v16")
    a("v_mul_u32_u24 v17, 6, v16\nv_sub_u32 v17, v2, v17\nv_lshlrev_b32 v17, 2, v17")
    a("v_lshrrev_b32 v17, v17, s41\nv_and_b32 v17, 15, v17")
    a(f"s_lshl_b32 s42, s{p2.A_TB2}, 1\ns_sub_i32 s42, s42, 8\nv_add_u32 v16, s42, v16\nv_max_i32 v16, 0, v16")
    a("v_lshl_add_u32 v16, v16, 4, v17\nv_lshlrev_b32 v16, 9, v16")
    a(f"s_mov_b32 s43, {FG}")
    poll(a, 16, 43, -1, 0x0fffffff, lab, 18, off=K_QK * 128)

def poll_v(a, lab):
    a(f"s_mul_i32 s41, s{p2.A_HQ}, 80\ns_add_u32 s42, s41, 79\ns_lshr_b32 s41, s41, 7\ns_lshr_b32 s42, s42, 7")
    a("s_add_u32 s41, s41, 11\ns_add_u32 s42, s42, 11")
    a("v_and_b32 v17, 1, v2\nv_cmp_eq_u32 vcc, 1, v17\nv_mov_b32 v17, s41\nv_mov_b32 v18, s42\nv_cndmask_b32 v17, v17, v18, vcc")
    a(f"v_lshrrev_b32 v16, 1, v2\ns_lshl_b32 s42, s{p2.A_TB2}, 1\ns_sub_i32 s42, s42, 8\nv_add_u32 v16, s42, v16\nv_max_i32 v16, 0, v16")
    a("v_lshl_add_u32 v16, v16, 4, v17\nv_lshlrev_b32 v16, 9, v16")
    a(f"s_mov_b32 s43, {FG}")
    poll(a, 16, 43, 0xfffff, 0, lab, 18, off=K_V * 128)

PP_A, PP_R = 84, 88
def prepoll_issue(a):
    p2.attn_params(a)
    p2.attn_dma_setup(a, 8)
    tab = [sum(f << (4 * i) for i, f in enumerate(qk_producers(h))) for h in range(8)]
    a(f"s_mov_b32 s41, {tab[0]}")
    for h in range(1, 8):
        a(f"s_mov_b32 s42, {tab[h]}\ns_cmp_eq_u32 s{p2.A_HQ}, {h}\ns_cselect_b32 s41, s42, s41")
    A0, A1, A2, A3 = PP_A, PP_A + 1, PP_A + 2, PP_A + 3
    a(f"v_min_u32 v18, 59, v2\nv_mul_u32_u24 v16, 43, v18\nv_lshrrev_b32 v16, 8, v16")
    a("v_mul_u32_u24 v17, 6, v16\nv_sub_u32 v17, v18, v17\nv_lshlrev_b32 v17, 2, v17")
    a("v_lshrrev_b32 v17, v17, s41\nv_and_b32 v17, 15, v17")
    a(f"s_lshl_b32 s42, s{p2.A_TB2}, 1\ns_sub_i32 s42, s42, 8\nv_add_u32 v16, s42, v16\nv_max_i32 v16, 0, v16")
    a(f"v_lshl_add_u32 v16, v16, 4, v17\nv_lshlrev_b32 v16, 9, v16\nv_add_u32 v{A0}, {FG + K_QK*128}, v16")
    a(f"s_mul_i32 s41, s{p2.A_HQ}, 80\ns_add_u32 s43, s41, 79\ns_lshr_b32 s41, s41, 7\ns_lshr_b32 s43, s43, 7")
    a("s_add_u32 s41, s41, 11\ns_add_u32 s43, s43, 11")
    a("v_min_u32 v18, 19, v2\nv_and_b32 v17, 1, v18\nv_cmp_eq_u32 vcc, 1, v17\nv_mov_b32 v17, s41\nv_mov_b32 v19, s43\nv_cndmask_b32 v17, v17, v19, vcc")
    a("v_lshrrev_b32 v16, 1, v18\nv_add_u32 v16, s42, v16\nv_max_i32 v16, 0, v16")
    a(f"v_lshl_add_u32 v16, v16, 4, v17\nv_lshlrev_b32 v16, 9, v16\nv_add_u32 v{A1}, {FG + K_V*128}, v16")
    a("s_and_b32 s43, s2, 7\ns_lshr_b32 s41, s2, 3")
    a("s_and_b32 s42, s43, 1\ns_lshl_b32 s42, s42, 2\ns_and_b32 s40, s41, 3\ns_add_u32 s40, s42, s40")
    a("s_lshr_b32 s42, s43, 1\ns_lshl_b32 s42, s42, 3\ns_lshr_b32 s41, s41, 2\ns_add_u32 s41, s42, s41")
    a(f"s_lshl_b32 s40, s40, 7\ns_add_u32 s40, s40, {FW}\nv_and_b32 v16, 31, v2\nv_lshlrev_b32 v16, 10, v16\nv_add_u32 v{A2}, s40, v16")
    a(f"s_lshl_b32 s41, s41, 14\ns_add_u32 s41, s41, {FG + K_H0*128}")
    a("v_and_b32 v16, 15, v2\nv_min_u32 v16, 10, v16\nv_bfe_u32 v17, v2, 4, 1\nv_lshl_add_u32 v16, v17, 4, v16\nv_lshlrev_b32 v16, 9, v16")
    a(f"v_add_u32 v{A3}, s41, v16")
    for i in range(4): a(f"buffer_load_dword v{PP_R+i}, v{PP_A+i}, {WS}, 0 offen sc1")
    return 4
def prepoll_check(a, i, lab, fallback):
    a(f"v_cmp_eq_u32 vcc, s{S_NONCE}, v{PP_R+i}\ns_nop 0\ns_cmp_eq_u64 vcc, -1\ns_cbranch_scc1 {lab}_pk")
    fallback()
    a(f"{lab}_pk:")
def dma5_dyn(a, slds, vregs, soff, step4):
    a(f"s_mov_b32 m0, s{slds}\ns_nop 0")
    for p in range(4):
        a(f"buffer_load_dwordx4 v{vregs[p]}, {WS}, s{soff} offen offset:{p*1024} sc1 lds")
    a(f"s_add_u32 m0, s{slds}, 4096")
    a(f"s_add_u32 s{soff}, s{soff}, 4096" if step4 else "s_nop 0")
    a(f"buffer_load_dwordx4 v{vregs[4]}, {WS}, s{soff} offen sc1 lds")
def qk_job(a, i, vb):
    a(f"s_add_u32 s64, s57, {4*i}\ns_mul_i32 s67, s64, 5120\ns_add_u32 s67, s67, {L_Q}")
    a(f"s_lshl_b32 s65, s{p2.A_TB2}, 1\ns_add_u32 s65, s65, s64")
    a(f"s_sub_i32 s66, s65, 10\ns_max_i32 s66, s66, 0")
    if i == 0:
        a(f"s_cmp_lt_u32 s64, 2\ns_cselect_b32 s65, s65, s66\ns_mov_b32 s66, {KS}\ns_cselect_b32 s66, {QS}, s66")
        a(f"s_mul_i32 s65, s65, {QS_T}\ns_add_u32 s65, s65, s66")
    else:
        a(f"s_mul_i32 s65, s66, {QS_T}\ns_add_u32 s65, s65, {KS}")
    a(f"s_mul_i32 s66, s{p2.A_HQ}, 5120\ns_add_u32 s65, s65, s66")
    dma5_dyn(a, 67, [vb+5]*5, 65, True)
def v_job(a, i, vb):
    a(f"s_add_u32 s64, s57, {4*i}\ns_mul_i32 s67, s64, 5120\ns_add_u32 s67, s67, {L_V}")
    a(f"s_lshl_b32 s65, s{p2.A_TB2}, 1\ns_add_u32 s65, s65, s64\ns_sub_i32 s65, s65, 8\ns_max_i32 s65, s65, 0")
    a(f"s_mul_i32 s65, s65, {VT_T}\ns_mul_i32 s66, s{p2.A_HQ}, 1280\ns_add_u32 s65, s65, s66\ns_add_u32 s65, s65, {VT - 4096}")
    dma5_dyn(a, 67, [vb+p for p in range(5)], 65, False)

from p3 import K_TB2, K_FB, K_WT, K_H0 as KS_H0, K_O0, K_KAP, K_A, K_B0, K_B1, BUF, NBUF, V_LA, V_LA2, V_LB, k_mfmas
def k_addr(kap_expr_lines, o_part):
    b = K_O0 if o_part else KS_H0
    stride = OS_T if o_part else HS_T
    return [f"s_mul_i32 s{K_A}, s{K_KAP}, {WT_K}", f"s_lshl_b32 s{K_B0}, s{K_KAP}, 11", f"s_add_u32 s{K_A}, s{K_A}, s{K_WT}",
            f"s_add_u32 s{K_B0}, s{K_B0}, s{b}", f"s_add_u32 s{K_B1}, s{K_B0}, {stride}"]
def k_wt(b):
    r = BUF + 36 * b
    return [f"buffer_load_dwordx4 v[{r+4*ft}:{r+3+4*ft}], v{V_LA if ft < 4 else V_LA2}, {WS}, s{K_A} offen offset:{(ft%4)*1024} sc1" for ft in range(5)]
def k_act(b):
    r = BUF + 36 * b
    return [f"buffer_load_dwordx4 v[{r+20+4*tt}:{r+23+4*tt}], v{V_LB}, {WS}, s{K_B0 if tt < 2 else K_B1} offen offset:{(tt%2)*256} sc1" for tt in range(4)]

def poll_fw(a, lab):
    a(f"v_lshlrev_b32 v16, 10, v2\ns_lshl_b32 s43, s{K_FB}, 7\ns_add_u32 s43, s43, {FW}")
    poll(a, 16, 43, -1, 0, lab, 18)
def poll_fh(a, lab, kind):
    a(f"s_lshl_b32 s43, s{K_TB2}, 14\ns_add_u32 s43, s43, {FG}\nv_lshlrev_b32 v250, 9, v2")
    m = 0x07ff07ff if kind == K_H0 else -1
    poll(a, 250, 43, m, 0, lab, 251, off=kind * 128)
def poll_fo(a, lab):
    a(f"s_lshl_b32 s43, s{K_TB2}, 12\ns_add_u32 s43, s43, {FO}\nv_lshlrev_b32 v16, 7, v2")
    poll(a, 16, 43, -1, 0, lab, 18)

def h_stream(a, st, role, mid=None, eh=0):
    J = 57
    e = Emit(a)
    def set_kap(n):
        if n <= 4:   return [f"s_add_u32 s{K_KAP}, s56, {8*n}"]
        if n == 5:   return [f"s_mov_b32 s{K_KAP}, s55"]
        if n <= 10:  return [f"s_add_u32 s{K_KAP}, s54, {8*(n-6)}"]
        return [f"s_add_u32 s{K_KAP}, s{J}, {44 + 4*(n-11)}"] + ([f"s_min_u32 s{K_KAP}, s{K_KAP}, 53"] if n == 13 else [])
    h_bases(a, J)
    NI = 14; pf = 3; LATE = 5
    if role == "pre":
        for n in range(pf):
            if mid is not None and n == mid[0]: mid[1](e)
            if n < eh: continue
            e(set_kap(n) + k_addr(None, False)); e(k_wt(n % NBUF), ("wt", n)); e(k_act(n % NBUF), ("act", n))
        if mid is not None and mid[0] >= pf: mid[1](e)
        return e
    return None

def h_stream_main(a, e, st, bv_at, eh=0, h1pp=-1):
    J = 57; NI = 14; pf = 3; LATE = 5
    def set_kap(n):
        if n <= 4:   return [f"s_add_u32 s{K_KAP}, s56, {8*n}"]
        if n == 5:   return [f"s_mov_b32 s{K_KAP}, s55"]
        if n <= 10:  return [f"s_add_u32 s{K_KAP}, s54, {8*(n-6)}"]
        return [f"s_add_u32 s{K_KAP}, s{J}, {44 + 4*(n-11)}"] + ([f"s_min_u32 s{K_KAP}, s{K_KAP}, 53"] if n == 13 else [])
    lab = a.label("HS")
    for n in range(NI):
        if n == bv_at: a("s_barrier")
        if n == LATE - 1:
            a.extend(st.now(12))
            if h1pp >= 0:
                a(f"s_waitcnt vmcnt({min(63, e.vm_after(lambda t: t == ('h1',)))})")
                a(f"v_cmp_eq_u32 vcc, s{S_NONCE}, v251\ns_nop 0\ns_cmp_eq_u64 vcc, -1\ns_cbranch_scc1 {lab}_h1k")
                poll_fh(a, lab + "_fh1", K_H1)
                a(f"{lab}_h1k:")
            else:
                poll_fh(a, lab + "_fh1", K_H1)
                e.vm = []
            a.extend(st.now(13))
            for m in range(LATE, n + pf):
                e(set_kap(m) + k_addr(None, False)); e(k_act(m % NBUF), ("act", m))
        w1 = e.vm_after(lambda t: t == ("wt", n)); w2 = e.vm_after(lambda t: t == ("act", n))
        ws_ = [x for x in (w1, w2) if x is not None]
        if ws_: a(f"s_waitcnt vmcnt({min(63, min(ws_))})")
        if n == NI - 1: a(f"s_cmp_ge_u32 s{J}, 2\ns_cbranch_scc1 {lab}_skip")
        m = k_mfmas(n % NBUF, n == 0)
        ld = []
        nn = n + pf
        if n == h1pp:
            ld += [(f"s_lshl_b32 s43, s{K_TB2}, 14", None), (f"s_add_u32 s43, s43, {FG}", None), ("v_and_b32 v250, 31, v2", None), ("v_lshlrev_b32 v250, 9, v250", None),
                   (f"buffer_load_dword v251, v250, {WS}, s43 offen offset:{K_H1 * 128} sc1", ("h1",))]
        if nn < NI and nn >= eh:
            ld += [(x, None) for x in set_kap(nn) + k_addr(None, False)] + [(x, ("wt", nn)) for x in k_wt(nn % NBUF)]
            if not (LATE <= nn < LATE - 1 + pf): ld += [(x, ("act", nn)) for x in k_act(nn % NBUF)]
        li = 0
        for x in m:
            a(x)
            if li < len(ld): e(ld[li][0], ld[li][1]); li += 1
        while li < len(ld): e(ld[li][0], ld[li][1]); li += 1
    a(f"{lab}_skip:")

def o_stream(a, st):
    e = Emit(a)
    NI = 5; pf = 3
    def set_kap(n): return [f"s_add_u32 s{K_KAP}, s3, {54 + 4*n}"]
    for n in range(pf):
        e(set_kap(n) + k_addr(None, True)); e(k_wt(n), ("wt", n))
    a.extend(st.now(12))
    poll_fo(a, "FOp")
    e.vm = []
    a.extend(st.now(13))
    for n in range(pf):
        e(set_kap(n) + k_addr(None, True)); e(k_act(n), ("act", n))
    for n in range(NI):
        w1 = e.vm_after(lambda t: t == ("wt", n)); w2 = e.vm_after(lambda t: t == ("act", n))
        ws_ = [x for x in (w1, w2) if x is not None]
        a(f"s_waitcnt vmcnt({min(63, min(ws_))})")
        m = k_mfmas(n % NBUF, n == 0)
        ld = []
        nn = n + pf
        if nn < NI:
            ld = [(x, None) for x in set_kap(nn) + k_addr(None, True)] + [(x, ("wt", nn)) for x in k_wt(nn % NBUF)] + [(x, ("act", nn)) for x in k_act(nn % NBUF)]
        li = 0
        for x in m:
            a(x)
            if li < len(ld): e(ld[li][0], ld[li][1]); li += 1
        while li < len(ld): e(ld[li][0], ld[li][1]); li += 1

def k3_setup(a):
    p3.k3_params(a)
    p3.k3_setup(a)

def reduce_phase(a, lab, st):
    from p3 import ACC as KACC, V_XO, V_XO2, K_XO, VX
    a(f"v_lshlrev_b32 v9, 4, v2")
    a("s_nop 7")
    a(f"s_cmp_lt_u32 s3, 4\ns_cbranch_scc1 {lab}_lo")
    a.extend(st.now(14))
    lds_poll4(a, CT_ATT, lab + "_wa", 96)
    a(f"s_sub_u32 s40, s3, 4\ns_mul_i32 s40, s40, 20480\nv_add_u32 v10, s40, v9")
    for t in range(20): a(f"ds_write_b128 v10, v[{KACC+4*t}:{KACC+4*t+3}] offset:{L_R1 + 1024*t}")
    a.extend(st.now(15))
    a(f"s_waitcnt lgkmcnt(0)\ns_barrier\ns_barrier\ns_branch {lab}_end")
    a(f"{lab}_lo:")
    a(f"s_mul_i32 s40, s3, 20480\nv_add_u32 v10, s40, v9")
    a.extend(st.now(14))
    a("s_barrier")
    a.extend(st.now(15))
    for half in range(2):
        for t in range(10): a(f"ds_read_b128 v[{BUF+4*t}:{BUF+4*t+3}], v10 offset:{L_R1 + 1024*(10*half+t)}")
        for t in range(10):
            a(f"s_waitcnt lgkmcnt({9-t})")
            for r in range(4): a(f"v_add_f32 v{KACC+4*(10*half+t)+r}, v{KACC+4*(10*half+t)+r}, v{BUF+4*t+r}")
    a(f"v_add_u32 v11, {L_R2}, v10")
    for tt in range(4):
        a(f"s_cmp_eq_u32 s3, {tt}\ns_cbranch_scc1 {lab}_w{tt}")
        for ft in range(5): a(f"ds_write_b128 v11, v[{KACC+4*(tt*5+ft)}:{KACC+4*(tt*5+ft)+3}] offset:{1024*(tt*5+ft)}")
        a(f"{lab}_w{tt}:")
    OWN = BUF + 100
    for tt in range(4):
        a(f"s_cmp_lg_u32 s3, {tt}\ns_cbranch_scc1 {lab}_m{tt}")
        for q in range(20): a(f"v_mov_b32 v{OWN+q}, v{KACC+20*tt+q}")
        a(f"{lab}_m{tt}:")
    a("s_waitcnt lgkmcnt(0)\ns_barrier")
    a(f"s_mul_i32 s41, s3, 5120")
    for d in range(1, 4):
        a(f"s_add_u32 s40, s3, {d}\ns_and_b32 s40, s40, 3\ns_mul_i32 s40, s40, 20480\ns_add_u32 s40, s40, s41\ns_add_u32 s40, s40, {L_R2}\nv_add_u32 v{11+d}, s40, v9")
        for ft in range(5): a(f"ds_read_b128 v[{BUF+20*(d-1)+4*ft}:{BUF+20*(d-1)+4*ft+3}], v{11+d} offset:{1024*ft}")
    for d in range(1, 4):
        a(f"s_waitcnt lgkmcnt({5*(3-d)})")
        for q in range(20): a(f"v_add_f32 v{OWN+q}, v{OWN+q}, v{BUF+20*(d-1)+q}")
    a("s_waitcnt vmcnt(0)")
    for q in range(10):
        a(f"v_lshlrev_b32 v{BUF+2*q}, 16, v{VX+q}\nv_and_b32 v{BUF+2*q+1}, 0xffff0000, v{VX+q}")
    for q in range(20): a(f"v_add_f32 v{OWN+q}, v{OWN+q}, v{BUF+q}")
    for q in range(10): a(f"v_cvt_pk_bf16_f32 v{BUF+24+q}, v{OWN+2*q}, v{OWN+2*q+1}")
    o = BUF + 24
    osc = OUT_SC
    a(f"buffer_store_dwordx4 v[{o}:{o+3}], v{V_XO}, s[{SRD_B}:{SRD_B+3}], s{K_XO} offen{osc}")
    a(f"buffer_store_dwordx4 v[{o+4}:{o+7}], v{V_XO}, s[{SRD_B}:{SRD_B+3}], s{K_XO} offen offset:64{osc}")
    a(f"buffer_store_dwordx2 v[{o+8}:{o+9}], v{V_XO2}, s[{SRD_B}:{SRD_B+3}], s{K_XO} offen{osc}")
    a(f"{lab}_end:")

def kernel(name, stamps=False, opt=None):
    opt = opt or {}
    p1.ORD = opt.get("ord", 0)
    global OUT_SC, NO_BV, X4
    X4 = None
    X4_NODMA[0] = opt.get("x4nodma", 0)
    if opt.get("front", 0) == 4:
        X4 = dict(nx=opt.get("nx", 4), xe=opt.get("xe", 0), bar0=opt.get("bar0", 8), bar0_n=opt.get("bar0_n", 160),
                  nb0=opt.get("nb0", 3), corr=opt.get("corr", 0))
    NO_BV = opt.get("tail", 0) == 1
    OUT_SC = {0: "", 1: " sc1", 2: " sc0 sc1", 3: " nt", 4: " sc1 nt", 5: " sc0 sc1 nt"}[opt.get("osc", 0)]
    a = Asm()
    st = Stamper(stamps, bool(opt.get("cyc")))
    a(kernel_begin(name))
    a("s_cmp_ge_u32 s2, 256\ns_cbranch_scc1 F_exit")
    XIT = opt.get("xit", 0)
    if XIT == 1 and not stamps: a("s_branch F_exit")
    a("s_load_dwordx16 s[4:19], s[0:1], 0\ns_load_dwordx4 s[20:23], s[0:1], 64\ns_memrealtime s[46:47]")
    a("v_lshrrev_b32 v1, 6, v0\nv_and_b32 v2, 63, v0\nv_readfirstlane_b32 s3, v1")
    a("s_waitcnt lgkmcnt(0)")
    FRONT = opt.get("front", 0)
    if FRONT == 0: p0.p0_x_loads(a)
    elif FRONT in (3, 4):
        srd(a, p0.SRD_A, P_X, S * D * 2)
        p1.IL0 = 1
    else:
        srd(a, p0.SRD_A, P_X, S * D * 2)
        a("s_cmp_ge_u32 s3, 4\ns_cbranch_scc1 F_nx")
        p0.ln2_loads(a)
        a("F_nx:")
    srd(a, SRD_WS, P_WS, WS_BYTES)
    if stamps:
        a(f"v_mov_b32 v{V_STAMP}, 0\nv_writelane_b32 v{V_STAMP}, s46, 0")
        if opt.get("cyc"): a.extend(st.now(17))
    srd(a, SRD_C, P_DBG, 256)
    a("s_cmp_lg_u32 s3, 3\ns_cbranch_scc1 F_n0")
    a("s_cmp_lg_u32 s2, 0\ns_cbranch_scc1 F_n0")
    a(f"s_or_b32 s46, s46, 1\nv_mov_b32 v4, s46\nv_mov_b32 v5, 0\ns_mov_b64 exec, 1\nbuffer_store_dword v4, v5, s[{SRD_C}:{SRD_C+3}], 0 offen sc1\ns_mov_b64 exec, -1")
    a("F_n0:")
    p1.setup_common(a)
    a("s_cmp_ge_u32 s3, 4\ns_cbranch_scc1 F_ldr0")
    def get_nonce():
        a(f"v_cmp_eq_u32 vcc, 0, v2\nv_mov_b32 v15, {CT_NONCE}\nv_mov_b32 v{V_Z}, 0x80000000\nds_read_b32 v{V_NONCE}, v15\nv_cndmask_b32 v{V_Z}, v{V_Z}, 0, vcc")
        a(f"s_waitcnt lgkmcnt(0)\nv_readfirstlane_b32 s{S_NONCE}, v{V_NONCE}")
    def nonce_spin():
        a(f"s_mov_b32 s{S_SPIN}, {SPIN}\nv_mov_b32 v5, 0")
        a(f"F_np:\nbuffer_load_dword v4, v5, s[{SRD_C}:{SRD_C+3}], 0 offen sc1\ns_waitcnt vmcnt(0)\nv_readfirstlane_b32 s40, v4\ns_cmp_lg_u32 s40, 0\ns_cbranch_scc1 F_np1")
        a(f"s_sub_u32 s{S_SPIN}, s{S_SPIN}, 1\ns_cmp_lg_u32 s{S_SPIN}, 0\ns_cbranch_scc1 F_np")
    if FRONT in (3, 4): pass
    elif FRONT < 2:
        a("s_cmp_lg_u32 s3, 0\ns_cbranch_scc1 F_c0")
        a("v_mov_b32 v4, 0\nv_lshlrev_b32 v5, 2, v2\nds_write_b32 v5, v4")
        a("F_c0:")
        a("s_waitcnt vmcnt(0)")
        a.extend(st.now(1))
        if FRONT == 0: p0.p0_ln(a)
        else: p0.ln2(a)
        a("s_waitcnt lgkmcnt(0)\ns_barrier")
        p0.p0_xn_stores(a, "sc1")
        a("s_cmp_lg_u32 s3, 3\ns_cbranch_scc1 F_c1")
        nonce_spin()
        a(f"F_np1:\nv_mov_b32 v5, {CT_NONCE}\nds_write_b32 v5, v4")
        a("F_c1:")
        a("s_waitcnt vmcnt(0) lgkmcnt(0)")
        a.extend(st.now(2))
        a("s_barrier")
        get_nonce()
        a("s_cmp_lg_u32 s3, 0\ns_cbranch_scc1 F_c2")
        a(f"s_lshl_b32 s40, s2, 7\ns_add_u32 s40, s40, {FX}")
        a(flag_store(40))
        a("F_c2:")
    else:
        a("s_cmp_lg_u32 s3, 0\ns_cbranch_scc1 F_c0")
        a("v_mov_b32 v4, 0\nv_lshlrev_b32 v5, 2, v2\ns_mov_b64 exec, -2\nds_write_b32 v5, v4\ns_mov_b64 exec, -1")
        a("F_c0:")
        a("s_waitcnt vmcnt(0)")
        a.extend(st.now(1))
        p0.ln2(a)
        a.extend(st.now(18))
        a("s_waitcnt lgkmcnt(0)\ns_barrier")
        a.extend(st.now(19))
        a(f"v_mov_b32 v5, 0\nbuffer_load_dword v46, v5, s[{SRD_C}:{SRD_C+3}], 0 offen sc1")
        p0.p0_xn_stores(a, "sc1")
        a("s_barrier")
        a(f"v_cmp_eq_u32 vcc, 0, v2\nv_mov_b32 v{V_Z}, 0x80000000")
        a(f"s_lshl_b32 s41, s2, 5\ns_add_u32 s41, s41, s3\ns_lshl_b32 s41, s41, 2\ns_add_u32 s41, s41, {FX}")
        a(f"v_cndmask_b32 v{V_Z}, v{V_Z}, 0, vcc")
        a("s_waitcnt vmcnt(0)")
        a.extend(st.now(20))
        if stamps: a(f"s_mov_b32 s{S_SPIN}, {SPIN}")
        a("v_mov_b32 v4, v46\nv_readfirstlane_b32 s40, v46\ns_cmp_lg_u32 s40, 0\ns_cbranch_scc1 F_np1")
        nonce_spin()
        a(f"F_np1:\nv_mov_b32 v{V_NONCE}, v4\ns_mov_b32 s{S_NONCE}, s40")
        a(flag_store(41))
        if stamps: a(f"s_sub_u32 s42, {SPIN+1}, s{S_SPIN}\nv_writelane_b32 v{V_STAMP}, s42, 21")
        a("s_cmp_lg_u32 s3, 3\ns_cbranch_scc1 F_c1")
        a(f"v_mov_b32 v5, {CT_NONCE}\nds_write_b32 v5, v4\ns_waitcnt lgkmcnt(0)")
        a("F_c1:")
        a.extend(st.now(2))
    if XIT == 2: a("s_waitcnt vmcnt(0)\ns_branch F_fin")
    metas = {}
    a(f"s_cmp_ge_u32 s{S_FB}, 11\ns_cbranch_scc1 F_cC\ns_cmp_ge_u32 s{S_FB}, 8\ns_cbranch_scc1 F_cB")
    for ty in "ABC":
        a(f"F_c{ty}:")
        if FRONT == 3:
            Pp = ring_plan(ty)
            x_batch1(a, Pp)
            setup_compute(a, ty)
            x_columns(a, Pp, st, opt)
            metas[ty] = gen_compute(a, ty, st, opt)
            a("s_branch F_att")
            continue
        if FRONT == 4:
            Pp = ring_plan(ty)
            x4_batch1(a, Pp)
            setup_compute(a, ty)
            x4_setup(a, Pp)
            metas[ty] = gen_compute(a, ty, st, opt)
            a("s_branch F_att")
            continue
        setup_compute(a, ty)
        if FRONT < 2:
            a(f"s_lshl_b32 s43, s{S_T32}, 9\ns_add_u32 s43, s43, {FX}\nv_lshlrev_b32 v16, 7, v2")
            poll(a, 16, 43, 0xf, 0, f"FXp{ty}", 17)
        else:
            a(f"s_lshl_b32 s43, s{S_T32}, 9\ns_add_u32 s43, s43, {FX}\nv_lshrrev_b32 v16, 2, v2\nv_lshlrev_b32 v16, 7, v16\nv_and_b32 v17, 3, v2\nv_lshl_add_u32 v16, v17, 2, v16")
            poll(a, 16, 43, 0xffff, 0, f"FXp{ty}", 17)
        a.extend(st.now(3))
        metas[ty] = gen_compute(a, ty, st, opt)
        a("s_branch F_att")
    a("F_att:")
    if opt.get("prio_att"): a(f"s_setprio {opt['prio_att']}")
    a.extend(st.now(9))
    p2.attn_params(a)
    a(f"s_mov_b32 s{p2.A_QSEL}, 0\ns_mov_b32 s{p2.A_HH}, s3")
    p2.attn_setup(a)
    global H1_EARLY
    H1_EARLY = opt.get("h1early", 0)
    if H1_EARLY:
        a("s_waitcnt vmcnt(0)")
        a(flag_store(S_FL, K_H1 * 128))
    a("s_barrier")
    if XIT == 3: a("s_waitcnt vmcnt(0)\ns_branch F_fin")
    a.extend(st.now(10))
    a("s_mov_b32 s59, 0")
    a("F_task:")
    attn_task(a, "AT", st)
    a(f"s_cmp_lg_u32 s59, 0\ns_cbranch_scc1 F_att_done")
    a(f"s_mov_b32 s59, 1\ns_mov_b32 s{p2.A_QSEL}, 1")
    a(f"v_add_u32 v{p2.V_AK}, 5120, v{p2.V_AK}\nv_add_u32 v{p2.V_AS}, 5120, v{p2.V_AS}\nv_lshl_add_u32 v{p2.V_AV}, v{p2.V_SV}, 1, v{p2.V_AV}")
    a("s_branch F_task")
    a("F_att_done:")
    if opt.get("prio_att") and not opt.get("prio_keep"): a("s_setprio 0")
    a(f"s_lshl_b32 s40, s3, 2\ns_add_u32 s40, s40, {CT_ATT}\nv_mov_b32 v4, s40\nv_mov_b32 v5, 1\nds_write_b32 v4, v5")
    a(f"s_lshl_b32 s40, s{p2.A_TB2}, 3\ns_add_u32 s40, s40, s{p2.A_HQ}\ns_lshl_b32 s40, s40, 2\ns_add_u32 s40, s40, s3\ns_lshl_b32 s40, s40, 7\ns_add_u32 s58, s40, {FO}")
    k3_setup(a)
    srd(a, SRD_A, P_X, S * D * 2)
    srd(a, SRD_B, P_OUT, S * D * 2)
    a("s_waitcnt vmcnt(0)")
    a(flag_store(58))
    a.extend(st.now(11))
    p3.x_loads(a, SRD_A)
    o_stream(a, st)
    a("s_branch F_red")
    a("F_ldr0:")
    a(f"s_cmp_ge_u32 s{S_FB}, 11\ns_cbranch_scc1 F_lC\ns_cmp_ge_u32 s{S_FB}, 8\ns_cbranch_scc1 F_lB")
    for ty in "ABC":
        P = metas[ty]
        a(f"F_l{ty}:")
        tmp = Asm(); p1.setup_loader(tmp, ty)
        for l in tmp.lines:
            a(re.sub(r"\bv1([345])\b", lambda m: "v" + str(20 + int(m.group(1)) - 3), l))
        opt["_ty"] = ty
        if FRONT == 0:
            for s in range(NSLOT): loader_issue(a, P, s)
            npf = weight_prefetch(a, ty) if opt.get("wpf", 1) else 0
            srd(a, WT_SRD_D, P_D, F * D * 2)
            srd(a, WT_SRD_O, P_WO, D * D * 2)
            a(f"s_waitcnt vmcnt({32 + npf})")
            a.extend(st.now(1))
            p0.p0_ln(a)
            a("s_waitcnt lgkmcnt(0)\ns_barrier")
            a("s_barrier")
            get_nonce()
            a.extend(st.now(2))
        elif FRONT == 3:
            srd(a, WT_SRD_D, P_D, F * D * 2)
            srd(a, WT_SRD_O, P_WO, D * D * 2)
            if opt.get("epf", 0) >= 1: weight_prefetch(a, ty, "first")
            n1 = opt.get("pre_ln", 1); n2 = opt.get("pre_x", 2)
            assert n1 <= n2 <= 2 and opt.get("wt2_at", -1) >= 0 and opt.get("wpf", 1) != 1
            for s in range(n1): loader_issue(a, P, s)
            lab = a.label("LN")
            a(f"s_cmp_lg_u32 s3, 4\ns_cbranch_scc1 {lab}_c0")
            a("v_mov_b32 v24, 0\nv_lshlrev_b32 v25, 2, v2\ns_mov_b64 exec, -2\nds_write_b32 v25, v24\ns_mov_b64 exec, -1")
            a(f"{lab}_c0:")
            a(f"s_mov_b32 s{S_SPIN}, {SPIN}\nv_mov_b32 v25, 0")
            a(f"{lab}_np:\nbuffer_load_dword v24, v25, s[{SRD_C}:{SRD_C+3}], 0 offen sc1\ns_waitcnt vmcnt(0)\nv_readfirstlane_b32 s40, v24\ns_cmp_lg_u32 s40, 0\ns_cbranch_scc1 {lab}_n1")
            a(f"s_sub_u32 s{S_SPIN}, s{S_SPIN}, 1\ns_cmp_lg_u32 s{S_SPIN}, 0\ns_cbranch_scc1 {lab}_np")
            a(f"{lab}_n1:\nv_mov_b32 v{V_NONCE}, v24\ns_mov_b32 s{S_NONCE}, s40")
            a(f"v_cmp_eq_u32 vcc, 0, v2\nv_mov_b32 v{V_Z}, 0x80000000\ns_nop 0\nv_cndmask_b32 v{V_Z}, v{V_Z}, 0, vcc")
            a(f"s_cmp_lg_u32 s3, 4\ns_cbranch_scc1 {lab}_c1")
            a(f"v_mov_b32 v25, {CT_NONCE}\nds_write_b32 v25, v24")
            a(f"{lab}_c1:")
            a.extend(st.now(1))
            wt2_issue(a)
            for s in range(n1, n2): loader_issue(a, P, s)
            a("s_waitcnt lgkmcnt(0)")
            a.extend(st.now(2))
            a("s_barrier")
            for s in range(n2, NSLOT): loader_issue(a, P, s)
            npf = 0
            if opt.get("wpf", 1) == 2: npf += weight_prefetch(a, ty)
        elif FRONT == 4:
            nw = NSLOT - X4["nx"]
            q0 = []
            pf_pos = opt.get("pf_pos", nw)
            def pfs():
                n = 0
                if opt.get("xpf", 0):
                    c0 = opt.get("xpf_c", 4); nc = 10 - c0
                    srd(a, WT_SRD_D, P_X, S * D * 2)
                    a(f"s_lshr_b32 s40, s2, 6\ns_lshl_b32 s41, s{S_TB}, 2\ns_add_u32 s40, s40, s41\ns_mul_i32 s40, s40, 40960\ns_sub_u32 s41, s3, 4")
                    a(f"v_and_b32 v23, 31, v2\nv_mul_u32_u24 v23, 1280, v23\nv_lshrrev_b32 v25, 5, v2")
                    for r in range(-(-nc // 8)):
                        a(f"s_lshl_b32 s42, s41, 1\ns_add_u32 s42, s42, {c0 + 8 * r}\nv_add_u32 v26, s42, v25\nv_cmp_gt_u32 vcc, 10, v26\nv_lshl_add_u32 v26, v26, 7, v23")
                        a(f"v_mov_b32 v27, 0x80000000\nv_cndmask_b32 v26, v27, v26, vcc\nbuffer_load_dword v30, v26, s[{WT_SRD_D}:{WT_SRD_D+3}], s40 offen"); n += 1
                if opt.get("epf", 0) >= 1: n += weight_prefetch(a, ty, "first")
                return n
            for s in range(nw):
                if s == pf_pos: q0 += [("pf",)] * pfs()
                loader_issue(a, P, s); q0 += [("stage", s)] * 4
            if pf_pos >= nw: q0 += [("pf",)] * pfs()
            opt["_issued"] = nw; opt["_q0"] = q0
            srd(a, WT_SRD_D, P_D, F * D * 2)
            srd(a, WT_SRD_O, P_WO, D * D * 2)
            lab = a.label("L4")
            a(f"s_cmp_lg_u32 s3, 4\ns_cbranch_scc1 {lab}_c0")
            a("v_mov_b32 v24, 0\nv_lshlrev_b32 v25, 2, v2\ns_mov_b64 exec, -2\nds_write_b32 v25, v24\ns_mov_b64 exec, -1")
            a(f"v_mov_b32 v32, 0\nv_mov_b32 v33, 0\nv_mov_b32 v34, 0\nv_mov_b32 v35, 0\nv_lshlrev_b32 v25, 4, v2")
            for i in range(3): a(f"ds_write_b128 v25, v[32:35] offset:{CTAB + 1024 * i}")
            a(f"{lab}_c0:")
            a(f"v_cmp_eq_u32 vcc, 0, v2\nv_mov_b32 v{V_Z}, 0x80000000\ns_nop 0\nv_cndmask_b32 v{V_Z}, v{V_Z}, 0, vcc")
            a.extend(st.now(1))
            a("s_waitcnt lgkmcnt(0)")
            opt["_get_nonce"] = get_nonce
            npf = 0
        else:
            srd(a, WT_SRD_D, P_D, F * D * 2)
            srd(a, WT_SRD_O, P_WO, D * D * 2)
            npf0 = 0
            if opt.get("epf", 0) >= 1: weight_prefetch(a, ty, "first")
            if opt.get("epf", 0) >= 2: weight_prefetch(a, ty)
            wt2_issue(a)
            n1 = opt.get("pre_ln", 4); n2 = n1 + opt.get("mid_ln", NSLOT - n1)
            for s in range(n1): loader_issue(a, P, s)
            a.extend(st.now(1))
            a("s_barrier")
            for s in range(n1, n2): loader_issue(a, P, s)
            npf = weight_prefetch(a, ty) if opt.get("wpf", 1) == 1 else 0
            if FRONT >= 2: assert n2 == n1 and opt.get("wpf", 1) != 1
            a("s_barrier")
            for s in range(n2, NSLOT): loader_issue(a, P, s)
            assert npf == 0 or n2 == NSLOT
            if FRONT < 2: get_nonce()
            else: opt["_get_nonce"] = get_nonce; assert opt.get("wt2_at", -1) >= 0
            if opt.get("wt2_at", -1) < 0: wt2_finish(a, 32 + npf)
            if opt.get("wpf", 1) == 2: npf += weight_prefetch(a, ty)
            a.extend(st.now(2))
        if XIT == 2: a("s_waitcnt vmcnt(0)\ns_branch F_fin")
        gen_loader(a, P, st, opt, npf)
        a("s_branch F_ltail")
    a("F_ltail:")
    a.extend(st.now(8))
    if opt.get("tail", 0) >= 1:
        vb = 8
        a("s_sub_u32 s57, s3, 4\ns_waitcnt vmcnt(0)")
        prepoll_check(a, 0, "PQK", lambda: poll_qk(a, "PQK"))
        for i in range(3): qk_job(a, i, vb)
        a.extend(st.now(9))
        lds_poll4(a, CT_PROG, "PPR", 20)
        prepoll_check(a, 1, "PV", lambda: poll_v(a, "PV"))
        a("s_cmp_lg_u32 s3, 7\ns_cbranch_scc1 F_l1")
        a(f"v_mov_b32 v20, 0x3f803f80\nv_mov_b32 v21, 0x3f803f80\nv_mov_b32 v22, 0x3f803f80\nv_mov_b32 v23, 0x3f803f80\nv_mov_b32 v24, {L_ONES}")
        a("ds_write_b128 v24, v[20:23]")
        a("F_l1:")
        for i in range(2): v_job(a, i, vb)
        a("s_cmp_ge_u32 s57, 2\ns_cbranch_scc1 F_l2")
        v_job(a, 2, vb)
        a("F_l2:")
        a.extend(st.now(10))
        k3_setup(a)
        prepoll_check(a, 2, "PW", lambda: poll_fw(a, "PW"))
        prepoll_check(a, 3, "PH", lambda: poll_fh(a, "PH", K_H0))
        def bend(e):
            a(f"s_waitcnt vmcnt({len(e.vm) + (10 if opt['tail'] == 2 else 0)}) lgkmcnt(0)")
            a.extend(st.now(11))
            a("s_barrier")
            if XIT == 3: a("s_waitcnt vmcnt(0)\ns_branch F_fin")
        e = h_stream(a, st, "pre", (opt.get("hpre", 3), bend), eh=opt.get("eh", 0))
        assert opt["tail"] == 1 or opt.get("bv_at", 2) >= 1
        h_stream_main(a, e, st, None if opt["tail"] == 1 else opt.get("bv_at", 2), eh=opt.get("eh", 0), h1pp=opt.get("h1pp", -1))
        a("s_branch F_red")
    if opt.get("tail", 0) == 0: old_tail(a, st, opt, XIT)
    a("F_red:")
    reduce_phase(a, "RD", st)
    a("F_fin:")
    if stamps:
        a("s_waitcnt vmcnt(0)")
        a.extend(st.now(16))
        st.flush(a)
    a("F_exit:\ns_endpgm")
    return a, kernel_desc(name, 256, 102), (name, (256,1,1), (512,1,1), 163840), metas

def old_tail(a, st, opt, XIT):
    p2.attn_params(a)
    vb = 8
    a("s_cmp_ge_u32 s3, 6\ns_cbranch_scc1 F_lt67")
    p2.attn_dma_setup(a, vb)
    a("s_cmp_eq_u32 s3, 5\ns_cbranch_scc1 F_lt5")
    poll_qk(a, "PQK")
    a.extend(st.now(9))
    for m in range(2): attn_dma_dyn(a, "Q", m, vb, None, None)
    for m in range(10): attn_dma_dyn(a, "K", m, vb, None, None)
    k3_setup(a)
    a("s_sub_u32 s57, s3, 4")
    a("s_waitcnt vmcnt(0)")
    a.extend(st.now(10))
    a("s_barrier")
    if XIT == 3: a("s_waitcnt vmcnt(0)\ns_branch F_fin")
    a("s_branch F_lt45")
    a("F_lt5:")
    lds_poll4(a, CT_PROG, "PPR", 20)
    poll_v(a, "PV")
    a.extend(st.now(9))
    a(f"v_mov_b32 v20, 0x3f803f80\nv_mov_b32 v21, 0x3f803f80\nv_mov_b32 v22, 0x3f803f80\nv_mov_b32 v23, 0x3f803f80\nv_mov_b32 v24, {L_ONES}")
    a("ds_write_b128 v24, v[20:23]")
    for m in range(10): attn_dma_dyn(a, "V", m, vb, None, None)
    k3_setup(a)
    a("s_sub_u32 s57, s3, 4")
    a("s_waitcnt lgkmcnt(0)")
    a("s_barrier")
    if XIT == 3: a("s_waitcnt vmcnt(0)\ns_branch F_fin")
    a("F_lt45:")
    poll_fw(a, "PW45")
    poll_fh(a, "PH45", K_H0)
    a.extend(st.now(11))
    a("s_barrier")
    e = h_stream(a, st, "pre")
    h_stream_main(a, e, st, None)
    a("s_branch F_red")
    a("F_lt67:")
    k3_setup(a)
    a("s_sub_u32 s57, s3, 4")
    poll_fw(a, "PW67")
    poll_fh(a, "PH67", K_H0)
    a.extend(st.now(11))
    e = h_stream(a, st, "pre")
    a("s_barrier")
    if XIT == 3: a("s_waitcnt vmcnt(0)\ns_branch F_fin")
    h_stream_main(a, e, st, opt.get("bv_at", 2))

H1_EARLY = 0
def attn_task(a, lab, st):
    tmp = Asm()
    p2.attn_task(tmp, lab, "sc1")
    lines = tmp.lines
    idx = next(i for i, l in enumerate(lines) if l.startswith(f"{lab}_noneg:"))
    a.extend(lines[:idx + 1])
    a(f"s_cmp_lg_u32 s59, 0\ns_cbranch_scc1 {lab}_nb")
    if not H1_EARLY:
        a("s_waitcnt vmcnt(0)")
        a(flag_store(S_FL, K_H1 * 128))
    if not NO_BV: a("s_barrier")
    a(f"{lab}_nb:")
    a.extend(lines[idx + 1:])
```

```python
from core import *
from layout import *
from p0 import *

NSLOT = 8
V_A = 4
V_QK, V_V, V_H = 10, 11, 12
FR = 16
ACC = [32, 48, 64, 80]
BF = 96
PF = 4

S_TB, S_FB, S_TYPE = 60, 61, 62
S_T32 = 63
S_QK0, S_QK1, S_V0, S_V0b, S_V1, S_V1b, S_H0, S_H1 = 64, 65, 66, 67, 68, 69, 70, 71
S_CQ0, S_CQ1, S_CQ2, S_CP0, S_CP1 = 72, 73, 74, 75, 76
S_J = 77
S_T = 78
S_QSC0, S_QSC1 = 56, 57
QSCALE = 0x3ea52b48
import struct, math
QSCALE = struct.unpack('<I', struct.pack('<f', 20 ** -0.5 * math.log2(math.e)))[0]

IL0 = 0
ORD = 0
def tiles_of(ty):
    if ORD == 0:
        if ty == "A": return [("QK", 0), ("QKH", 1), ("P", 0), ("P", 1)]
        if ty == "B": return [("QK", 0), ("P", 0), ("P", 1)]
        if ty == "C": return [("QK", 0), ("V", 0), ("V", 1), ("P", 0)]
    if ty == "A": return [("P", 0), ("QK", 0), ("QKH", 1), ("P", 1)]
    if ty == "B": return [("P", 0), ("QK", 0), ("P", 1)]
    if ty == "C": return [("VV", 0), ("QK", 0), ("P", 0)]

def build_seq(ty, nb=3, corr=False, nb0t=None):
    mf = []; stages = []; tiles = []
    if ORD == 0:
        if ty == "A": accs = [(0, 1), (2,), (0, 1, 2, 3), (0, 1, 2, 3)]
        if ty == "B": accs = [(0, 1), (2, 3, 0, 1), (2, 3, 0, 1)]
        if ty == "C": accs = [(0, 1), (2, 3), (0, 1), (2, 3, 0, 1)]
    else:
        if ty == "A": accs = [(0, 1, 2, 3), (0, 1), (2,), (0, 1, 2, 3)]
        if ty == "B": accs = [(0, 1, 2, 3), (0, 1), (2, 3, 0, 1)]
        if ty == "C": accs = [(0, 1, 2, 3), (0, 1), (2, 3, 0, 1)]
    for ti, (kind, idx) in enumerate(tiles_of(ty)):
        ac = accs[ti]; st0 = len(stages); m0 = len(mf)
        if kind == "VV":
            tno = len(tiles)
            def one(s, k8, v, ft):
                mf.append(dict(stage=st0+2*s+v, ksp=k8, adr=ft, bf=8*s+k8, acc=ac[2*v+ft], first=(s == 0 and k8 == 0), swap=True, tile=tno+v))
            for s in range(5):
                stages.append(("V", 0, s)); stages.append(("V", 1, s))
                if s < 4:
                    for k8 in range(8):
                        for v in range(2):
                            for ft in range(2): one(s, k8, v, ft)
                else:
                    for v in range(2):
                        for k8 in range(8):
                            for ft in range(2): one(s, k8, v, ft)
                        tiles.append(dict(kind="V", idx=v, accs=ac[2*v:2*v+2], m0=m0, m1=len(mf)))
            continue
        if kind in ("QK", "V", "QKH"):
            for s in range(5):
                stages.append((kind, idx, s))
                for k8 in range(8):
                    for ft in ((0, 1) if kind != "QKH" else (2,)):
                        acc = ac[ft] if kind != "QKH" else ac[0]
                        mf.append(dict(stage=st0+s, ksp=k8, adr=ft, bf=8*s+k8, acc=acc, first=(s == 0 and k8 == 0), swap=(kind == "V"), tile=len(tiles)))
        else:
            for s in range(10): stages.append((kind, idx, s))
            order = []
            nb0 = 0 if ti == 0 else nb
            if ti == 0 and nb0t is not None: nb = nb0t
            elif nb0t is not None: nb = 3
            order += [(s, 0) for s in range(nb0)] + [(s, 1) for s in range(nb0)]
            for s in range(nb0, 10 - nb): order += [(s, 0), (s, 1)]
            order += [(s, 0) for s in range(10 - nb, 10)] + [(s, 1) for s in range(10 - nb, 10)]
            seq = [(s, ft, k4) for (s, ft) in order for k4 in range(4)]
            if IL0 and ti == 0:
                seq = [(s, ft, k4) for s in range(10 - nb) for k4 in range(4) for ft in range(2)] + seq[8 * (10 - nb):]
            for (s, ft, k4) in seq:
                for m in range(2):
                    mf.append(dict(stage=st0+s, ksp=m*4+k4, adr=ft, bf=4*s+k4, acc=ac[2*ft+m], first=(s == 0 and k4 == 0), swap=False, tile=len(tiles)))
        tiles.append(dict(kind=kind, idx=idx, accs=ac, m0=m0, m1=len(mf)))
    if corr:
        ins = {}; g0 = 0
        for ti, t in enumerate(tiles):
            last = {ac: max(i for i in range(t["m0"], t["m1"]) if mf[i]["acc"] == ac and mf[i]["tile"] == ti) for ac in t["accs"]}
            for p0_ in range(0, len(t["accs"]), 2):
                pair = t["accs"][p0_:p0_+2]
                at = max(last[x] for x in pair)
                for n, x in enumerate(pair):
                    ins.setdefault(at, []).append(dict(stage=mf[at]["stage"], ksp=None, adr=None, bf=None, acc=x, first=False, swap=mf[at]["swap"], tile=ti, corr=g0 + p0_ + n))
            g0 += len(t["accs"])
        new = []; pos = {}
        for i, x in enumerate(mf):
            pos[i] = len(new); new.append(x); new += ins.get(i, [])
        for ti, t in enumerate(tiles):
            t["m0"] = pos[t["m0"]]; t["m1"] = max(i for i, x in enumerate(new) if x["tile"] == ti) + 1
        mf = new
    return mf, stages, tiles

def epi_instrs(kind, idx, ft, accs, sc):
    L = []
    ws = f"s[{SRD_WS}:{SRD_WS+3}]"
    if kind in ("QK", "QKH"):
        r = accs[0]
        sreg = S_QK0 if kind == "QK" else S_QK1
        fo = ft * 2048 if kind == "QK" else 0
        ssc = S_QSC0 if kind == "QK" else S_QSC1
        for rg in range(4):
            for q in range(4): L.append(f"v_mul_f32 v{r+4*rg+q}, s{ssc}, v{r+4*rg+q}")
            L.append(f"v_cvt_pk_bf16_f32 v{r+4*rg}, v{r+4*rg}, v{r+4*rg+1}")
            L.append(f"v_cvt_pk_bf16_f32 v{r+4*rg+1}, v{r+4*rg+2}, v{r+4*rg+3}")
            L.append(f"buffer_store_dwordx2 v[{r+4*rg}:{r+4*rg+1}], v{V_QK}, {ws}, s{sreg} offen offset:{fo + rg*512} {sc}")
    elif kind == "V":
        r = accs[0]
        for s in range(2):
            sreg = (S_V0 if idx == 0 else S_V1) + s
            for q in range(4):
                L.append(f"v_cvt_pk_bf16_f32 v{r+8*s+q}, v{r+8*s+2*q}, v{r+8*s+2*q+1}")
            L.append(f"buffer_store_dwordx4 v[{r+8*s}:{r+8*s+3}], v{V_V}, {ws}, s{sreg} offen offset:{ft*512} {sc}")
    else:
        g, u = accs
        sreg = S_H0 + idx
        for s in range(2):
            for q in range(8):
                L.append(f"v_max_f32 v{g+8*s+q}, 0, v{g+8*s+q}")
                L.append(f"v_mul_f32 v{g+8*s+q}, v{g+8*s+q}, v{u+8*s+q}")
            for q in range(4):
                L.append(f"v_cvt_pk_bf16_f32 v{g+8*s+q}, v{g+8*s+2*q}, v{g+8*s+2*q+1}")
            L.append(f"buffer_store_dwordx4 v[{g+8*s}:{g+8*s+3}], v{V_H}, {ws}, s{sreg} offen offset:{(2*ft+s)*1024} {sc}")
    return L

def gen_compute(a, ty, sc, bar_every=16, nb=3, hooks=None, bwait=True, stamps=False, opt=None):
    opt = opt or {}
    mf, stages, tiles = build_seq(ty, nb)
    N = len(mf)
    jobs = []
    for ti, t in enumerate(tiles):
        if t["kind"] == "P": groups = [(0, t["accs"][0:2]), (1, t["accs"][2:4])]
        elif t["kind"] == "QKH": groups = [(0, t["accs"][0:1])]
        else: groups = [(0, t["accs"][0:1]), (1, t["accs"][1:2])]
        for ft, ac in groups:
            last = max(i for i in range(t["m0"], t["m1"]) if mf[i]["acc"] in ac)
            nxt = [i for i in range(t["m1"], N) if mf[i]["acc"] in ac]
            dl = min(nxt) if nxt else N + 1000
            jobs.append(dict(ready=last, dl=dl, ins=epi_instrs(t["kind"], t["idx"], ft, [ACC[x] for x in ac], sc), tile=ti, kind=t["kind"]))
    jobs.sort(key=lambda j: j["ready"])
    fill = {g: [] for g in range(N)}
    tail = []
    cur = 0
    for j in jobs:
        start = max(j["ready"] + 4, cur)
        end = min(j["dl"] - 1, N)
        avail = end - start
        n = len(j["ins"])
        if start >= N - 1 or avail <= 0:
            assert j["dl"] > N, (ty, j["ready"], j["dl"])
            tail += j["ins"]; continue
        if j["dl"] > N: end = N; avail = end - start
        per = -(-n // avail)
        per = max(per, min(3, n))
        g = start; k = 0
        while k < n and g < N:
            fill[g] += j["ins"][k:k+per]; k += per; g += 1
        if k < n:
            assert j["dl"] > N
            tail += j["ins"][k:]
        assert g <= end + 1 or j["dl"] > N, (ty, j, g, end)
        j["last_gap"] = g - 1
        cur = g
    maxfill = max(len(v) for v in fill.values())
    bars = [-1]
    m = 0
    while True:
        step = bar_every
        pos = (bars[-1] + PF + 1)
        kind = tiles[mf[min(pos, N-1)]["tile"]]["kind"]
        if kind == "QKH": step = 8
        nxt = bars[-1] + step if bars[-1] >= 0 else step - PF - 1
        if nxt >= N - PF - 1: break
        bars.append(nxt)
    barset = {b: i for i, b in enumerate(bars)}
    info = []
    for i, b in enumerate(bars):
        lo = b + PF + 1 if b >= 0 else 0
        hi = (bars[i+1] + PF) if i + 1 < len(bars) else N - 1
        need = max(mf[k]["stage"] for k in range(lo, hi + 1))
        done = -1
        for s in range(len(stages)):
            if all(k <= b for k in range(N) if mf[k]["stage"] == s): done = s
            else: break
        info.append((need, done))
    def rd(k):
        x = mf[k]; slot = x["stage"] % NSLOT
        adr = V_A + 2 * x["adr"] + slot // 4
        off = (slot % 4) * 16384 + x["ksp"] * 2048
        fr = FR + 4 * (k % PF)
        return [f"ds_read_b64_tr_b16 v[{fr}:{fr+1}], v{adr} offset:{off}", f"ds_read_b64_tr_b16 v[{fr+2}:{fr+3}], v{adr} offset:{off+512}"]
    hooks = hooks or {}
    a("s_barrier")
    if stamps: a(stamp(1))
    if opt.get("nords"): rd = lambda k: []
    tile_last = {t["m1"] - 1: i for i, t in enumerate(tiles)}
    for k in range(PF): a.extend(rd(k))
    seen_bf = -1
    for k in range(N):
        x = mf[k]
        outstanding = min(PF - 1, N - 1 - k) * 2
        w = f"s_waitcnt lgkmcnt({outstanding})"
        if bwait and x["tile"] == 0 and x["bf"] > seen_bf:
            seen_bf = x["bf"]
            w = f"s_waitcnt vmcnt({39 - x['bf']}) lgkmcnt({outstanding})"
        a(w)
        fr = FR + 4 * (k % PF); ac = ACC[x["acc"]]; bf = BF + 4 * x["bf"]
        c = "0" if x["first"] else f"v[{ac}:{ac+15}]"
        if x["swap"]: a(f"v_mfma_f32_32x32x16_bf16 v[{ac}:{ac+15}], v[{bf}:{bf+3}], v[{fr}:{fr+3}], {c}")
        else:         a(f"v_mfma_f32_32x32x16_bf16 v[{ac}:{ac+15}], v[{fr}:{fr+3}], v[{bf}:{bf+3}], {c}")
        if k in barset and k >= 0:
            bi = barset[k]
            if bi in hooks: a.extend(hooks[bi])
            a("s_barrier")
        if k + PF < N: a.extend(rd(k + PF))
        if not opt.get("noepi"): a.extend(fill[k])
        if stamps and k in tile_last: a(stamp(2 + tile_last[k]))
    if tail and not opt.get("noepi"):
        a("s_nop 7\ns_nop 3")
        a.extend(tail)
    return dict(info=info, stages=stages, tiles=tiles, jobs=jobs, bars=bars, maxfill=maxfill, N=N)

def gen_loader(a, meta, hooks=None, pre_issued=0, opt=None):
    opt = opt or {}
    info, stages = meta["info"], meta["stages"]
    ns = len(stages)
    hooks = hooks or {}
    issued = pre_issued
    def issue(s):
        kind, idx, st = stages[s]
        slot = s % NSLOT
        tile_no = None
        for i in range(4):
            if kind == "P":
                base = S_CP0 + idx; off = (64 * st + 8 * i) * 3456; vo, sr = 5, SRD_B
            else:
                base = {"QK": S_CQ0, "QKH": S_CQ1, "V": S_CQ1 + idx}[kind]; off = (128 * st + 8 * i) * 3840; vo, sr = 4, SRD_A
            a(f"s_add_u32 m0, s{S_J}, {slot*16384 + i*1024}")
            a(f"s_add_u32 s{S_T}, s{base}, {off}")
            if not opt.get("nodma"): a(f"buffer_load_dwordx4 v{vo}, s[{sr}:{sr+3}], s{S_T} offen lds")
    for bi, (need, done) in enumerate(info):
        allowed = min(ns, (info[bi-1][1] if bi > 0 else -1) + NSLOT + 1)
        while issued < allowed:
            issue(issued); issued += 1
        assert issued > need, (bi, need, issued)
        a(f"s_waitcnt vmcnt({min(63, 4 * (issued - 1 - need))})")
        a("s_barrier")
        if bi in hooks: a.extend(hooks[bi])

def setup_common(a):
    a("s_and_b32 s40, s2, 7\ns_lshr_b32 s41, s2, 3")
    a(f"s_lshr_b32 s42, s40, 2\ns_lshl_b32 s42, s42, 3\ns_and_b32 s43, s41, 7\ns_add_u32 s{S_TB}, s42, s43")
    a(f"s_and_b32 s42, s40, 3\ns_lshr_b32 s43, s41, 3\ns_lshl_b32 s43, s43, 2\ns_add_u32 s{S_FB}, s42, s43")

def type_params(a, ty):
    if ty == "A":
        a(f"s_mov_b32 s44, s{S_FB}\ns_and_b32 s45, s{S_FB}, 3\ns_add_u32 s45, s45, 8\ns_mov_b32 s46, 0\ns_lshl_b32 s47, s{S_FB}, 1\ns_add_u32 s48, s47, 1\ns_lshr_b32 s49, s{S_FB}, 2")
    if ty == "B":
        a(f"s_add_u32 s44, s{S_FB}, 4\ns_mov_b32 s45, 0\ns_mov_b32 s46, 0\ns_lshl_b32 s47, s{S_FB}, 1\ns_add_u32 s48, s47, 1\ns_mov_b32 s49, 0")
    if ty == "C":
        a(f"s_add_u32 s44, s{S_FB}, 4\ns_lshl_b32 s45, s{S_FB}, 1\ns_sub_u32 s45, s45, 2\ns_add_u32 s46, s45, 1\ns_add_u32 s47, s{S_FB}, 11\ns_mov_b32 s48, 0\ns_mov_b32 s49, 0")

def qk_store_base(a, dst, q):
    a(f"s_mov_b32 s52, {QS}\ns_cmp_ge_u32 s{q}, 10\ns_cselect_b32 s50, {KS - 10*4096}, s52\ns_lshl_b32 s51, s{q}, 12\ns_add_u32 s50, s50, s51\ns_mul_i32 s51, s{S_T32}, {QS_T}\ns_add_u32 s{dst}, s50, s51")

def setup_compute(a, ty):
    type_params(a, ty)
    a(f"s_mov_b32 s53, {QSCALE}")
    a(f"s_lshl_b32 s{S_T32}, s{S_TB}, 2\ns_add_u32 s{S_T32}, s{S_T32}, s3")
    a("v_lshrrev_b32 v13, 5, v2\nv_lshlrev_b32 v13, 3, v13\nv_bfe_u32 v14, v2, 2, 2\nv_add_u32 v13, v13, v14\nv_lshlrev_b32 v13, 7, v13")
    a("v_bfe_u32 v14, v2, 3, 1\nv_lshl_add_u32 v13, v14, 6, v13")
    a("v_bfe_u32 v14, v2, 4, 1\nv_lshl_add_u32 v13, v14, 5, v13\nv_and_b32 v14, 3, v2\nv_lshl_add_u32 v4, v14, 3, v13")
    a("v_add_u32 v5, 0x10000, v4\nv_xor_b32 v6, 64, v4\nv_xor_b32 v7, 64, v5")
    a("s_lshl_b32 s50, s49, 6\nv_xor_b32 v8, s50, v4\nv_xor_b32 v9, s50, v5")
    a(f"v_lshlrev_b32 v{V_QK}, 3, v2\nv_lshlrev_b32 v{V_H}, 4, v2")
    a(f"v_lshrrev_b32 v13, 5, v2\nv_mul_u32_u24 v13, {VT_HF}, v13\nv_and_b32 v14, 31, v2\nv_lshl_add_u32 v{V_V}, v14, 4, v13")
    qk_store_base(a, S_QK0, 44)
    a(f"s_cmp_ge_u32 s44, 10\ns_cselect_b32 s{S_QSC0}, 1.0, s53")
    if ty == "A":
        qk_store_base(a, S_QK1, 45)
        a(f"s_cmp_ge_u32 s45, 10\ns_cselect_b32 s{S_QSC1}, 1.0, s53")
        a(f"s_lshl_b32 s50, s49, 11\ns_add_u32 s{S_QK1}, s{S_QK1}, s50")
    if ty == "C":
        for n, (q, d) in enumerate([(45, S_V0), (46, S_V1)]):
            a(f"s_sub_u32 s50, s{q}, 20\ns_lshl_b32 s50, s50, 10\ns_mul_i32 s51, s{S_T32}, {VT_T}\ns_add_u32 s50, s50, s51\ns_add_u32 s{d}, s50, {VT}\ns_add_u32 s{d+1}, s{d}, {VT_S}")
    for n, q in enumerate([47, 48]):
        a(f"s_lshl_b32 s50, s{q}, 12\ns_mul_i32 s51, s{S_T32}, {HS_T}\ns_add_u32 s50, s50, s51\ns_add_u32 s{S_H0+n}, s50, {HS}")

def x_scatter_loads(a):
    srd(a, SRD_C, P_X, S * D * 2)
    a(f"s_mul_i32 s50, s{S_T32}, {32*1280}")
    a("v_and_b32 v13, 31, v2\nv_mul_u32_u24 v13, 1280, v13\nv_lshrrev_b32 v14, 5, v2\nv_lshl_add_u32 v13, v14, 4, v13")
    for ks in range(40):
        a(f"buffer_load_dwordx4 v[{BF+4*ks}:{BF+4*ks+3}], v13, s[{SRD_C}:{SRD_C+3}], s50 offen offset:{ks*32}")

def xn_loads(a, sc):
    a(f"s_mul_i32 s50, s{S_T32}, {XN_T}\ns_add_u32 s50, s50, {XN}")
    for ks in range(40):
        if ks % 4 == 0 and ks > 0: a("s_add_u32 s50, s50, 4096")
        a(f"buffer_load_dwordx4 v[{BF+4*ks}:{BF+4*ks+3}], v{V_H}, s[{SRD_WS}:{SRD_WS+3}], s50 offen offset:{(ks%4)*1024} {sc}")

def setup_loader(a, ty):
    type_params(a, ty)
    a(f"s_sub_u32 s40, s3, 4\ns_lshl_b32 s{S_J}, s40, 12")
    srd(a, SRD_A, P_WQKV, D * 1920 * 2)
    a(f"s_cmp_ge_u32 s40, 2\ns_cbranch_scc1 LD_up_{ty}")
    srd(a, SRD_B, P_G, D * F * 2)
    a(f"s_branch LD_sr_{ty}\nLD_up_{ty}:")
    srd(a, SRD_B, P_U, D * F * 2)
    a(f"LD_sr_{ty}:")
    a("v_lshrrev_b32 v13, 3, v2\nv_and_b32 v14, 7, v2\nv_bfe_u32 v15, v2, 4, 1\nv_lshlrev_b32 v15, 2, v15\nv_xor_b32 v14, v14, v15\nv_lshlrev_b32 v14, 4, v14")
    a("v_mul_u32_u24 v4, 3840, v13\nv_add_u32 v4, v4, v14\nv_mul_u32_u24 v5, 3456, v13\nv_add_u32 v5, v5, v14")
    a(f"s_mul_i32 s50, s40, {32*3840}")
    for n, q in enumerate([44, 45, 46]):
        a(f"s_lshl_b32 s51, s{q}, 7\ns_add_u32 s{S_CQ0+n}, s51, s50")
    a(f"s_and_b32 s50, s40, 1\ns_mul_i32 s50, s50, {32*3456}")
    for n, q in enumerate([47, 48]):
        a(f"s_lshl_b32 s51, s{q}, 7\ns_add_u32 s{S_CP0+n}, s51, s50")

ST0 = 80
def stamp(slot, st0=ST0):
    return f"s_memtime s[{st0+2*slot}:{st0+2*slot+1}]"
def stamp_flush(a, n, base_slot, wave, lab, st0=ST0):
    a(f"s_cmp_eq_u32 s3, {wave}\ns_cbranch_scc0 {lab}")
    a("s_waitcnt lgkmcnt(0)")
    a(f"s_lshl_b32 s40, s2, 8\ns_add_u32 s40, s40, {STAMPS + base_slot*8}\nv_mov_b32 v13, 0\ns_mov_b64 exec, 1")
    for i in range(n):
        a(f"v_mov_b32 v14, s{st0+2*i}\nv_mov_b32 v15, s{st0+2*i+1}\nbuffer_store_dwordx2 v[14:15], v13, s[{SRD_WS}:{SRD_WS+3}], s40 offen offset:{8*i}\ns_nop 1")
    a(f"{lab}:")

def stamp_flush_all(a, n, base_off, lab, st0=ST0):
    a("s_waitcnt lgkmcnt(0)")
    a(f"s_lshl_b32 s40, s2, 3\ns_add_u32 s40, s40, s3\ns_lshl_b32 s40, s40, 6\ns_add_u32 s40, s40, {STAMPS + base_off}\nv_mov_b32 v13, 0\ns_mov_b64 exec, 1")
    for i in range(n):
        a(f"v_mov_b32 v14, s{st0+2*i}\nv_mov_b32 v15, s{st0+2*i+1}\nbuffer_store_dwordx2 v[14:15], v13, s[{SRD_WS}:{SRD_WS+3}], s40 offen offset:{8*i}\ns_nop 1")

def kernel_p1(name="p1_kernel", sc="", stamps=False, nb=3, opt=None):
    opt = opt or {}
    a = Asm()
    prologue(a, name, "P1_end")
    setup_common(a)
    metas = {}
    a(f"s_cmp_ge_u32 s3, 4\ns_cbranch_scc1 P1_loader")
    a(f"s_cmp_ge_u32 s{S_FB}, 11\ns_cbranch_scc1 P1_cC\ns_cmp_ge_u32 s{S_FB}, 8\ns_cbranch_scc1 P1_cB")
    for ty in "ABC":
        a(f"P1_c{ty}:")
        setup_compute(a, ty)
        if stamps: a(stamp(0))
        if opt.get("xscat"): x_scatter_loads(a)
        else: xn_loads(a, sc)
        metas[ty] = gen_compute(a, ty, sc, nb=nb, stamps=stamps, opt=opt)
        if stamps:
            a(stamp(7)); a("s_waitcnt vmcnt(0)"); a(stamp(8))
            stamp_flush(a, 9, 0, 0, f"P1_sf{ty}")
        a("s_branch P1_end")
    a("P1_loader:")
    a(f"s_cmp_ge_u32 s{S_FB}, 11\ns_cbranch_scc1 P1_lC\ns_cmp_ge_u32 s{S_FB}, 8\ns_cbranch_scc1 P1_lB")
    for ty in "ABC":
        a(f"P1_l{ty}:")
        setup_loader(a, ty)
        gen_loader(a, metas[ty], opt=opt)
        a("s_branch P1_end")
    a("P1_end:\ns_endpgm")
    return a, kernel_desc(name, 256, 102), (name, (256,1,1), (512,1,1), 163840), metas
```

```python
import sys, os
sys.path.insert(0, os.path.dirname(os.path.abspath(__file__)))
from core import *
from layout import *
from build import assemble
import fused
out = sys.argv[1]
opt = {}
for o in sys.argv[2:]:
    if "=" in o: k, v = o.split("="); opt[k] = int(v)
    else: opt[o] = True
k = fused.kernel(MAIN, stamps=bool(opt.get("stamps")), opt=opt)
for ty, m in k[3].items():
    print(ty, "N", m["N"], "ns", m["ns"], "phase", m["phase"], "bars", len(m["bars"]), "prog", m["prog"], "info", m["info"][-3:])
assemble([k[:3]], out)
import re
bad = 0
for l in open(out):
    l = l.strip()
    m = re.search(r"\boffset:(\d+)", l)
    if m and ((l.startswith("buffer_") and int(m.group(1)) > 4095) or (l.startswith("ds_") and int(m.group(1)) > 65535)): print("BAD OFFSET", l); bad += 1
    for m in re.finditer(r"\boffset[01]:(\d+)", l):
        if int(m.group(1)) > 255: print("BAD OFFSET", l); bad += 1
    m = re.search(r"vmcnt\((\d+)\)", l)
    if m and int(m.group(1)) > 63: print("BAD VMCNT", l); bad += 1
    m = re.search(r"lgkmcnt\((\d+)\)", l)
    if m and int(m.group(1)) > 15: print("BAD LGKM", l); bad += 1
assert bad == 0
```

```python
from core import *
import re
from layout import *
import p0, p1, p2, p3
from p0 import srd, SRD_WS, SRD_A, SRD_B, SRD_C, P_X, P_WQKV, P_WO, P_G, P_U, P_D, P_OUT, P_DBG, P_WS
from p1 import build_seq, epi_instrs, NSLOT, V_A, V_QK, V_V, V_H, FR, ACC, BF, PF
from p1 import S_TB, S_FB, S_T32, S_CQ0, S_CQ1, S_CP0, S_J, S_T

FX = 0x000000
FW = 0x010000
FO = 0x020000
FG = 0x080000
K_QK, K_V, K_H0, K_H1 = 0, 1, 2, 3
CT_NONCE, CT_PROG, CT_ATT = 0, 16, 32
RING = 32768
LN_LDS = 1024
L_Q = 512; L_K = L_Q + 10240; L_V = L_K + 51200; L_ONES = L_V + 51200
L_R1 = 512; L_R2 = L_R1 + 81920
p0.LN_LDS = LN_LDS
p2.L_Q, p2.L_K, p2.L_V, p2.L_ONES = L_Q, L_K, L_V, L_ONES
p3.L_R1, p3.L_R2 = L_R1, L_R2
S_NONCE, S_SPIN = 0, 1
S_ST = 10
S_FL = 58
V_NONCE, V_Z, V_STAMP = 0, 3, 1
SPIN = 20000
WS = f"s[{SRD_WS}:{SRD_WS+3}]"

class Stamper:
    def __init__(self, on, cyc=False): self.on = on; self.prev = None; self.ins = "s_memtime" if cyc else "s_memrealtime"
    def mark(self, i):
        if not self.on: return []
        L = []
        if self.prev is not None: L.append(f"v_writelane_b32 v{V_STAMP}, s{S_ST}, {self.prev}")
        L.append(f"{self.ins} s[{S_ST}:{S_ST+1}]")
        self.prev = i
        return L
    def sync(self):
        if not self.on or self.prev is None: return []
        L = ["s_waitcnt lgkmcnt(0)", f"v_writelane_b32 v{V_STAMP}, s{S_ST}, {self.prev}"]
        self.prev = None
        return L
    def now(self, i): return self.sync() + self.mark(i) + self.sync()
    def flush(self, a):
        if not self.on: return
        a.extend(self.sync())
        a(f"s_mov_b64 exec, -1\ns_lshl_b32 s40, s2, 3\ns_add_u32 s40, s40, s3\ns_lshl_b32 s40, s40, 7\ns_add_u32 s40, s40, {STAMPS}")
        a(f"v_mbcnt_lo_u32_b32 v4, -1, 0\nv_mbcnt_hi_u32_b32 v4, -1, v4\nv_lshlrev_b32 v4, 2, v4\ns_mov_b32 exec_hi, 0")
        a(f"buffer_store_dword v{V_STAMP}, v4, {WS}, s40 offen\ns_mov_b64 exec, -1")

def poll(a, vaddr, soff, mlo, mhi, lab, vt, off=0):
    a(f"s_mov_b32 s{S_SPIN}, {SPIN}\ns_mov_b32 exec_lo, {mlo}\ns_mov_b32 exec_hi, {mhi}")
    a(f"{lab}:")
    a(f"buffer_load_dword v{vt}, v{vaddr}, {WS}, s{soff} offen offset:{off} sc1")
    a(f"s_waitcnt vmcnt(0)\nv_cmp_eq_u32 vcc, s{S_NONCE}, v{vt}\ns_nop 0\ns_cmp_eq_u64 vcc, exec\ns_cbranch_scc1 {lab}_ok")
    a(f"s_sub_u32 s{S_SPIN}, s{S_SPIN}, 1\ns_cmp_lg_u32 s{S_SPIN}, 0\ns_cbranch_scc1 {lab}")
    a(f"{lab}_ok:\ns_mov_b64 exec, -1")

def lds_poll4(a, off, lab, vt):
    a(f"v_mov_b32 v{vt+4}, {off}\ns_mov_b32 s{S_SPIN}, {SPIN*8}")
    a(f"{lab}:\nds_read_b128 v[{vt}:{vt+3}], v{vt+4}\ns_waitcnt lgkmcnt(0)")
    a(f"v_min_u32 v{vt}, v{vt}, v{vt+1}\nv_min3_u32 v{vt}, v{vt}, v{vt+2}, v{vt+3}\ns_nop 0\nv_readfirstlane_b32 s40, v{vt}")
    a(f"s_cmp_lg_u32 s40, 0\ns_cbranch_scc1 {lab}_ok\ns_sub_u32 s{S_SPIN}, s{S_SPIN}, 1\ns_cmp_lg_u32 s{S_SPIN}, 0\ns_cbranch_scc1 {lab}\n{lab}_ok:")

def flag_store(soff, off=0):
    return f"buffer_store_dword v{V_NONCE}, v{V_Z}, {WS}, s{soff} offen offset:{off} sc1"

class Emit:
    def __init__(self, a): self.a = a; self.vm = []; self.ds = []
    def __call__(self, ins, tag=None):
        for l in ins.split("\n") if isinstance(ins, str) else ins:
            l = l.strip()
            if not l: continue
            if l.startswith("buffer_"): self.vm.append(tag)
            elif l.startswith("ds_"): self.ds.append(tag)
            self.a(l)
    def vm_after(self, pred):
        for i in range(len(self.vm) - 1, -1, -1):
            if pred(self.vm[i]): return len(self.vm) - 1 - i
        return None
    def ds_after(self, pred):
        for i in range(len(self.ds) - 1, -1, -1):
            if pred(self.ds[i]): return len(self.ds) - 1 - i
        return None

X4 = None
XE_BASE = 16384
def ring_plan(ty, nb=3, bar_every=16):
    mf, stages, tiles = build_seq(ty, nb, corr=bool(X4 and X4["corr"]), nb0t=(X4["nb0"] if X4 else None))
    N = len(mf); ns = len(stages)
    phase = (-ns) % NSLOT
    nc = [k for k in range(N) if mf[k].get("corr") is None]
    bars = [-1]
    while True:
        pos = bars[-1] + PF + 1
        kind = tiles[mf[nc[min(pos, len(nc)-1)]]["tile"]]["kind"]
        step = 8 if kind == "QKH" else bar_every
        if X4 and pos < X4["bar0_n"]: step = X4["bar0"]
        nxt = bars[-1] + step if bars[-1] >= 0 else step - PF - 1
        if nxt >= len(nc) - PF - 1: break
        bars.append(nxt)
    bars = [-1] + [nc[b + PF + 1] - PF - 1 for b in bars[1:]]
    def done_at(b):
        d = -1
        for s in range(ns):
            if all(k <= b for k in range(N) if mf[k]["stage"] == s): d = s
            else: break
        return d
    out = []
    for b in bars:
        out.append(b)
        if done_at(b) >= ns - 6: break
    bars = out
    info = []
    for i, b in enumerate(bars):
        lo = b + PF + 1 if b >= 0 else 0
        hi = (bars[i+1] + PF) if i + 1 < len(bars) else N - 1
        need = max(mf[k]["stage"] for k in range(lo, hi + 1))
        info.append((need, done_at(b)))
    prog = max(k for k in range(N) if mf[k]["stage"] <= ns - 4)
    slot = [(s + phase) % NSLOT for s in range(ns)]
    prev = [s - NSLOT if s >= NSLOT else None for s in range(ns)]
    xb = None; xrd = None
    if X4:
        nx = X4["nx"]; nw = NSLOT - nx
        for s in range(nw + 8): slot[s] = (phase + s % nw) % NSLOT
        xs = [(phase + nw + i) % NSLOT for i in range(nx)]
        xb = ([XE_BASE] if X4["xe"] else []) + [RING + 16384 * i for i in xs]
        xrd = [min(k for k in range(N) if mf[k]["bf"] is not None and mf[k]["bf"] // 4 == m) - PF for m in range(10)]
        occ = {}
        for s in range(ns):
            if slot[s] in occ: prev[s] = occ[slot[s]]
            elif slot[s] in xs:
                last = max(m for m in range(10) if xb[m % len(xb)] == RING + 16384 * slot[s])
                prev[s] = ("x", xrd[last] + PF)
            else: prev[s] = None
            occ[slot[s]] = s
    return dict(mf=mf, stages=stages, tiles=tiles, N=N, ns=ns, phase=phase, bars=bars, info=info, prog=prog, slot=slot, prev=prev, xb=xb, xrd=xrd)

def gen_compute(a, ty, st, opt):
    P = ring_plan(ty)
    mf, stages, tiles, N, phase, bars = P["mf"], P["stages"], P["tiles"], P["N"], P["phase"], P["bars"]
    sc = "" if opt.get("nosc") else "sc1"
    e = Emit(a)
    PRE = opt.get("pre", 16); XRATE = opt.get("xrate", 2); FDELAY = opt.get("fdelay", 48)
    jobs = []
    for ti, t in enumerate(tiles):
        if t["kind"] == "P": groups = [(0, t["accs"][0:2]), (1, t["accs"][2:4])]
        elif t["kind"] == "QKH": groups = [(0, t["accs"][0:1])]
        else: groups = [(0, t["accs"][0:1]), (1, t["accs"][1:2])]
        for ft, ac in groups:
            last = max(i for i in range(t["m0"], t["m1"]) if mf[i]["acc"] in ac)
            nxt = [i for i in range(t["m1"], N) if mf[i]["acc"] in ac]
            dl = min(nxt) if nxt else N + 1000
            jobs.append(dict(ready=last, dl=dl, ins=epi_instrs(t["kind"], t["idx"], ft, [ACC[x] for x in ac], sc), tile=ti, kind=t["kind"]))
    jobs.sort(key=lambda j: j["ready"])
    fill = {g: [] for g in range(N)}
    tail = []
    cur = 0
    LOCAL = opt.get("front", 0) == 3
    L4 = opt.get("front", 0) == 4
    xpost = {g: [] for g in range(-1, N)}
    if L4:
        xb, xrd = P["xb"], P["xrd"]; nxs = len(xb)
        curb = x4_base(P)
        def addfill(g, L):
            for i_, x_ in enumerate(L): fill[g + i_ // 3].append(x_)
        for m in range(10):
            g = max(xrd[m], -1)
            xpost[g].append(("WAITX", m))
            d = xb[m % nxs] - curb
            if not 0 <= d <= 49152:
                xpost[g] += [(f"v_add_u32 v{X4_R+k_}, {d & 0xffffffff}, v{X4_R+k_}", None) for k_ in range(4)]
                curb = xb[m % nxs]; d = 0
            xpost[g] += [(f"ds_read_b128 v[{BF+16*m+4*k_}:{BF+16*m+4*k_+3}], v{X4_R+k_} offset:{d}", ("xr", m)) for k_ in range(4)]
            if m + nxs < 10:
                g2 = xrd[m] + PF
                for tg in range(4):
                    fill[g2 + tg] += [(x_, ("xd", m + nxs) if x_.startswith("buffer") else None) for x_ in x4_dma(P, m + nxs, tg)]
        g = xrd[9] + PF
        rs = x4_restore(ty)
        addfill(g, [(x_, None) for x_ in rs])
        cur = g + (len(rs) + 2) // 3
        nb_ = opt.get("nonce_bar", 6)
        fill[bars[nb_] + 1].append((f"ds_read_b32 v{V_NONCE}, v{V_NONCE}", ("nonce",)))
        fill[bars[nb_] + 8].append((f"v_readfirstlane_b32 s{S_NONCE}, v{V_NONCE}", None))
    npre = 0
    if LOCAL:
        D_ = [min(k for k in range(N) if mf[k]["bf"] == j) for j in range(40)]
        R = opt.get("nrate", 6)
        def plan(npre):
            seq = [(x_, D_[j]) for j in range(npre, 40) for x_ in norm_instrs(j)]
            g = 0; out = {}
            for i in range(0, len(seq), R):
                for x_, d in seq[i:i+R]:
                    if g > d - 2: return None
                    out.setdefault(g, []).append(x_)
                g += 1
            return out, g
        npre = 1
        while plan(npre) is None: npre += 1
        npre = max(npre, opt.get("npre", 0))
        out, g = plan(npre)
        for gg, L in out.items(): fill[gg] += [(x_, None) for x_ in L]
        rs = norm_restore()
        for i in range(0, len(rs), 4):
            fill[g] += [(x_, None) for x_ in rs[i:i+4]]; g += 1
        cur = g
        opt["_npre"] = npre
    for j in jobs:
        start = max(j["ready"] + 4, cur)
        n = len(j["ins"])
        tagged = [(x, ("st", j["tile"])) for x in j["ins"]]
        end = min(j["dl"] - 1, N)
        avail = end - start
        if start >= N - 1 or avail <= 0:
            assert j["dl"] > N, (ty, j["ready"], j["dl"], cur, N, n)
            tail += tagged; j["last_gap"] = N; continue
        if j["dl"] > N: end = N; avail = end - start
        per = max(-(-n // avail), min(3, n))
        g = start; k = 0
        while k < n and g < N:
            fill[g] += tagged[k:k+per]; k += per; g += 1
        if k < n:
            assert j["dl"] > N
            tail += tagged[k:]; g = N + 1
        assert g <= end + 1 or j["dl"] > N
        j["last_gap"] = g - 1
        cur = g
    if p1.ORD == 0:
        if ty == "A": groups = [(K_QK, [0, 1]), (K_H0, [2])]
        if ty == "B": groups = [(K_QK, [0]), (K_H0, [1])]
        if ty == "C": groups = [(K_QK, [0]), (K_V, [1, 2])]
    else:
        if ty == "A": groups = [(K_H0, [0]), (K_QK, [1, 2])]
        if ty == "B": groups = [(K_H0, [0]), (K_QK, [1])]
        if ty == "C": groups = [(K_V, [0, 1]), (K_QK, [2])]
    flags = {}
    for kind, tl in groups:
        lg = max(j["last_gap"] for j in jobs if j["tile"] in tl)
        g = lg + (opt.get("fdelay_qk", FDELAY) if kind == K_QK else FDELAY)
        assert g < N - 1, (ty, kind, g)
        flags.setdefault(g, []).append((kind, tl))
    barset = set(b for b in bars if b >= 0)
    def rd(k):
        x = mf[k]
        if x.get("corr") is not None: return [f"ds_read_b64 v[{FR + 4 * (k % PF)}:{FR + 4 * (k % PF) + 1}], v{V_CT} offset:{CTAB + 256 * x['corr']}"]
        slot = P["slot"][x["stage"]]
        adr = V_A + 2 * x["adr"] + slot // 4
        off = (slot % 4) * 16384 + x["ksp"] * 2048
        fr = FR + 4 * (k % PF)
        return [f"ds_read_b64_tr_b16 v[{fr}:{fr+1}], v{adr} offset:{off}", f"ds_read_b64_tr_b16 v[{fr+2}:{fr+3}], v{adr} offset:{off+512}"]
    def xn_load(ks):
        L = []
        if ks % 4 == 0 and ks > 0: L.append("s_add_u32 s50, s50, 4096")
        L.append(f"buffer_load_dwordx4 v[{BF+4*ks}:{BF+4*ks+3}], v{V_H}, {WS}, s50 offen offset:{(ks%4)*1024} sc1")
        return L
    if opt.get("prio_g1"): a(f"s_setprio {opt['prio_g1']}")
    nx = 0
    if LOCAL:
        nx = 40
        for j in range(npre): a.extend(norm_instrs(j))
        a(f"v_cmp_eq_u32 vcc, 0, v2\nv_mov_b32 v{V_Z}, 0x80000000\nv_mov_b32 v{V_NONCE}, {CT_NONCE}\nv_cndmask_b32 v{V_Z}, v{V_Z}, 0, vcc")
        a.extend(st.now(3))
    elif L4:
        nx = 40
        e.vm += [("xd", m) for m in range(len(P["xb"])) for _ in range(4) if not (X4_NODMA[0] and m >= X4_NODMA[0] - 1)]
        a(f"v_cmp_eq_u32 vcc, 0, v2\nv_mov_b32 v{V_Z}, 0x80000000\nv_mov_b32 v{V_NONCE}, {CT_NONCE}\nv_cndmask_b32 v{V_Z}, v{V_Z}, 0, vcc")
    else:
        a(f"s_mul_i32 s50, s{S_T32}, {XN_T}\ns_add_u32 s50, s50, {XN}")
        while nx < PRE: e(xn_load(nx), ("xn", nx)); nx += 1
    def xemit(L):
        out = []
        for ins, tag in L:
            if ins == "WAITX": out.append(("WAITX", tag))
            else: out.append((ins, tag))
        return out
    def emit1(ins, tag):
        if ins == "WAITX":
            if not opt.get("x4nowait") and not (X4_NODMA[0] and tag >= X4_NODMA[0] - 1): a(f"s_waitcnt vmcnt({min(63, e.vm_after(lambda t: t == ('xd', tag)))})")
            if tag == 2: a.extend(st.mark(2))
            if tag == 1: a.extend(st.mark(3))
            if tag == 3: a.extend(st.mark(18))
            if tag == 0: a.extend(st.now(1))
            if tag == 9: a.extend(st.mark(20))
            if tag == 5: a.extend(st.mark(19))
        else: e(ins, tag)
    if L4:
        for ins, tag in xpost[-1]: emit1(ins, tag)
    a("s_barrier")
    a.extend(st.mark(4))
    if LOCAL:
        e(f"ds_read_b32 v{V_NONCE}, v{V_NONCE}", ("nonce",))
        fill[1].append((f"v_readfirstlane_b32 s{S_NONCE}, v{V_NONCE}", None))
    for k in range(PF): e(rd(k), ("rd", k))
    seen_bf = -1
    m16cnt = {}
    tile_last = {t["m1"] - 1: i for i, t in enumerate(tiles)}
    for k in range(N):
        x = mf[k]
        w = f"lgkmcnt({e.ds_after(lambda t: t == ('rd', k))})"
        if not LOCAL and not L4 and x["bf"] is not None and x["bf"] > seen_bf:
            seen_bf = x["bf"]
            assert ("xn", x["bf"]) in e.vm
            w = f"vmcnt({min(63, e.vm_after(lambda t: t == ('xn', x['bf'])))}) " + w
        a("s_waitcnt " + w)
        fr = FR + 4 * (k % PF); ac = ACC[x["acc"]]; bf = BF + 4 * (x["bf"] or 0)
        c = "0" if x["first"] else f"v[{ac}:{ac+15}]"
        post = []
        if k in barset: post.append(("s_barrier", None))
        post += xpost[k]
        if k + PF < N: post += [(i_, ("rd", k + PF)) for i_ in rd(k + PF)]
        if nx < 40 and k % XRATE == XRATE - 1:
            post += [(i_, ("xn", nx)) for i_ in xn_load(nx)]; nx += 1
        post += list(fill[k])
        if opt.get("m16x"):
            if x["first"]: m16cnt[x["acc"]] = 0
            cn = m16cnt[x["acc"]]; m16cnt[x["acc"]] += 1
            nh = (len(post) + 1) // 2 if opt["m16x"] == 2 else (0 if opt["m16x"] == 1 else len(post) // 2)
            for h in range(2):
                q = ac + 8 * (cn & 1) + 4 * h
                c2 = "0" if cn < 2 else f"v[{q}:{q+3}]"
                b2 = BF + 4 * (x["bf"] ^ h)
                if x["swap"]: a(f"v_mfma_f32_16x16x32_bf16 v[{q}:{q+3}], v[{b2}:{b2+3}], v[{fr}:{fr+3}], {c2}")
                else:         a(f"v_mfma_f32_16x16x32_bf16 v[{q}:{q+3}], v[{fr}:{fr+3}], v[{b2}:{b2+3}], {c2}")
                if h == 0:
                    for ins, tag in post[:nh]: e(ins, tag)
                    post = post[nh:]
        elif x.get("corr") is not None:
            if x["swap"]: a(f"v_mfma_f32_32x32x8_bf16 v[{ac}:{ac+15}], v[{V_SF}:{V_SF+1}], v[{fr}:{fr+1}], {c}")
            else:         a(f"v_mfma_f32_32x32x8_bf16 v[{ac}:{ac+15}], v[{fr}:{fr+1}], v[{V_SF}:{V_SF+1}], {c}")
        elif x["swap"]: a(f"v_mfma_f32_32x32x16_bf16 v[{ac}:{ac+15}], v[{bf}:{bf+3}], v[{fr}:{fr+3}], {c}")
        else:         a(f"v_mfma_f32_32x32x16_bf16 v[{ac}:{ac+15}], v[{fr}:{fr+3}], v[{bf}:{bf+3}], {c}")
        for ins, tag in post: emit1(ins, tag)
        for kind, tl in flags.get(k, []):
            n = e.vm_after(lambda t: t is not None and t[0] == "st" and t[1] in tl)
            if not opt.get("nofw"): a(f"s_waitcnt vmcnt({min(63, n)})")
            e(flag_store(S_FL, kind * 128), ("flag", kind))
        if k == P["prog"]:
            e(f"ds_write_b32 v13, v{V_NONCE if L4 else 14}", ("prog",))
        if k in tile_last: a.extend(st.mark(5 + tile_last[k]))
    if tail:
        a("s_nop 7\ns_nop 3")
        for ins, tag in tail: e(ins, tag)
    a.extend(st.sync())
    if opt.get("dumpxn"):
        a(f"s_mul_i32 s50, s{S_T32}, {XN_T}\ns_add_u32 s50, s50, {XN}")
        for ks in range(40):
            a(f"buffer_store_dwordx4 v[{BF+4*ks}:{BF+4*ks+3}], v{V_H}, {WS}, s50 offen\ns_add_u32 s50, s50, 1024")
        a("s_waitcnt vmcnt(0)")
    return P

def setup_compute(a, ty):
    p1.setup_compute(a, ty)
    for r in range(4, 10): a(f"v_add_u32 v{r}, {RING}, v{r}")
    a(f"s_lshl_b32 s{S_FL}, s{S_T32}, 4\ns_add_u32 s{S_FL}, s{S_FL}, s{S_FB}\ns_lshl_b32 s{S_FL}, s{S_FL}, 9\ns_add_u32 s{S_FL}, s{S_FL}, {FG}")
    a(f"s_lshl_b32 s40, s3, 2\ns_add_u32 s40, s40, {CT_PROG}\nv_mov_b32 v13, s40\nv_mov_b32 v14, 1")

S_XB, S_XW, S_XT = 72, 73, 74
V_XD, V_XR = 20, 22
V_NR, V_NC, V_NT = 10, 11, 12
def x_slot(P, m): return (P["phase"] + 2 + m % 6) % NSLOT
def x_dma(a, P, m):
    for tg in range(4):
        a(f"s_add_u32 m0, s{S_XW}, {x_slot(P, m) * 16384 + tg * 1024}")
        a(f"s_add_u32 s{S_XT}, s{S_XB}, {tg * 10240 + m * 128}")
        a(f"buffer_load_dwordx4 v{V_XD + (tg & 1)}, s[{p0.SRD_A}:{p0.SRD_A+3}], s{S_XT} offen lds")
def x_batch1(a, P):
    a(f"s_lshl_b32 s40, s{S_TB}, 2\ns_add_u32 s40, s40, s3\ns_mul_i32 s{S_XB}, s40, 40960\ns_lshl_b32 s40, s3, 12\ns_add_u32 s{S_XW}, s40, {RING}")
    a("v_lshrrev_b32 v16, 3, v2\nv_mul_u32_u24 v16, 1280, v16\nv_lshrrev_b32 v17, 4, v2\nv_and_b32 v18, 7, v2\nv_xor_b32 v18, v18, v17")
    a(f"v_lshl_add_u32 v{V_XD}, v18, 4, v16\nv_xor_b32 v{V_XD+1}, 64, v{V_XD}")
    for m in range(6): x_dma(a, P, m)
    a("v_bfe_u32 v16, v2, 3, 2\nv_lshlrev_b32 v16, 10, v16\nv_and_b32 v17, 7, v2\nv_lshl_add_u32 v16, v17, 7, v16")
    a(f"v_bfe_u32 v17, v2, 1, 3\nv_lshrrev_b32 v18, 5, v2\nv_xor_b32 v17, v17, v18\nv_lshl_add_u32 v16, v17, 4, v16\nv_add_u32 v{V_XR}, s{S_XW}, v16")
    for k in range(1, 4): a(f"v_xor_b32 v{V_XR+k}, {32*k}, v{V_XR}")
    for k in range(4): a(f"v_add_u32 v{V_XR+4+k}, 0x10000, v{V_XR+k}")
def x_stats(a, m):
    for i in range(16):
        r = BF + 16 * m + i
        if m == 0 and i < 2:
            a(f"v_dot2_f32_bf16 v{32+i}, v{r}, s75, 0\nv_dot2_f32_bf16 v{34+i}, v{r}, v{r}, 0")
        else:
            a(f"v_dot2c_f32_bf16 v{32+(i&1)}, s75, v{r}\nv_dot2c_f32_bf16 v{34+(i&1)}, v{r}, v{r}")
        if m == 0 and i == 1: a("s_nop 2")
def x_columns(a, P, st, opt):
    a("s_mov_b32 s75, 0x3f803f80")
    issued = 24
    for m in range(10):
        a(f"s_waitcnt vmcnt({issued - 4 * (m + 1)})")
        if m == 0: a.extend(st.now(1))
        if m == 9: a.extend(st.now(20))
        sl = x_slot(P, m)
        for k in range(4):
            r = BF + 16 * m + 4 * k
            a(f"ds_read_b128 v[{r}:{r+3}], v{V_XR + k + (4 if sl >= 4 else 0)} offset:{(sl % 4) * 16384}")
        if m > 0: x_stats(a, m - 1)
        a("s_waitcnt lgkmcnt(0)")
        if m <= 3: x_dma(a, P, m + 6); issued += 4
    a("s_barrier")
    a.extend(st.now(19))
    x_stats(a, 9)
    rnd = p0.rnd
    a("s_nop 2\nv_add_f32 v32, v32, v33\nv_add_f32 v34, v34, v35\nv_mov_b32 v33, v32\nv_mov_b32 v35, v34\ns_nop 1")
    a("v_permlane32_swap_b32 v32, v33\nv_permlane32_swap_b32 v34, v35\ns_nop 1\nv_add_f32 v32, v32, v33\nv_add_f32 v34, v34, v35")
    a("v_mul_f32 v32, 0x3acccccd, v32\nv_mul_f32 v34, 0x3acccccd, v34")
    a("v_fma_f32 v34, -v32, v32, v34\nv_max_f32 v34, 0, v34")
    rnd(a, 32); rnd(a, 34)
    a("v_add_f32 v34, 0x3727c5ac, v34")
    rnd(a, 34)
    a("v_sqrt_f32 v34, v34\ns_nop 0")
    rnd(a, 34)
    a(f"v_rcp_f32 v{V_NR}, v34\ns_nop 0\nv_mul_f32 v{V_NC}, v32, v{V_NR}\nv_sub_f32 v{V_NC}, 0, v{V_NC}")
    a.extend(st.now(18))
def norm_instrs(j):
    L = []
    for p in range(2):
        r0, r1 = BF + 4 * j + 2 * p, BF + 4 * j + 2 * p + 1
        t = V_NT
        L += [f"v_lshlrev_b32 v{t}, 16, v{r0}", f"v_and_b32 v{t+1}, 0xffff0000, v{r0}", f"v_lshlrev_b32 v{t+2}, 16, v{r1}", f"v_and_b32 v{t+3}, 0xffff0000, v{r1}"]
        L += [f"v_fma_f32 v{t+q}, v{t+q}, v{V_NR}, v{V_NC}" for q in range(4)]
        L += [f"v_cvt_pk_bf16_f32 v{r0}, v{t}, v{t+1}", f"v_cvt_pk_bf16_f32 v{r1}, v{t+2}, v{t+3}"]
    return L
def norm_restore():
    return [f"v_lshlrev_b32 v{V_QK}, 3, v2", f"v_lshlrev_b32 v{V_H}, 4, v2", "v_lshrrev_b32 v13, 5, v2", f"v_mul_u32_u24 v13, {VT_HF}, v13", "v_and_b32 v14, 31, v2",
            f"v_lshl_add_u32 v{V_V}, v14, 4, v13", "v_mov_b32 v13, s3", "v_lshlrev_b32 v13, 2, v13", f"v_add_u32 v13, {CT_PROG}, v13", "v_mov_b32 v14, 1"]

X4_R, X4_D = 8, 12
V_SF, V_CT = 14, 10
CTAB = 1024
S_HX = 79
def x4_base(P): return min(P["xb"]) if max(P["xb"]) - min(P["xb"]) <= 49152 else P["xb"][0]
def x4_dma(P, m, tg):
    return [f"s_add_u32 m0, s{S_XW}, {P['xb'][m % len(P['xb'])] + tg * 1024}", f"s_add_u32 s{S_XT}, s{S_XB}, {tg * 10240 + m * 128}",
            f"buffer_load_dwordx4 v{X4_D + (tg & 1)}, s[{p0.SRD_A}:{p0.SRD_A+3}], s{S_XT} offen lds" if not (X4_NODMA[0] and m >= X4_NODMA[0] - 1) else "s_nop 0"]
X4_NODMA = [0]
def x4_batch1(a, P):
    a(f"s_lshl_b32 s40, s{S_TB}, 2\ns_add_u32 s40, s40, s3\ns_mul_i32 s{S_XB}, s40, 40960\ns_lshl_b32 s{S_XW}, s3, 12")
    a("v_lshrrev_b32 v16, 3, v2\nv_mul_u32_u24 v16, 1280, v16\nv_lshrrev_b32 v17, 4, v2\nv_and_b32 v18, 7, v2\nv_xor_b32 v18, v18, v17")
    a(f"v_lshl_add_u32 v{X4_D}, v18, 4, v16\nv_xor_b32 v{X4_D+1}, 64, v{X4_D}")
    for m in range(len(P["xb"])):
        for tg in range(4): a.extend(x4_dma(P, m, tg))
    a(f"v_mov_b32 v20, v{X4_D}\nv_mov_b32 v21, v{X4_D+1}")
def x4_setup(a, P):
    a("v_bfe_u32 v16, v2, 3, 2\nv_lshlrev_b32 v16, 10, v16\nv_and_b32 v17, 7, v2\nv_lshl_add_u32 v16, v17, 7, v16")
    a(f"v_bfe_u32 v17, v2, 1, 3\nv_lshrrev_b32 v18, 5, v2\nv_xor_b32 v17, v17, v18\nv_lshl_add_u32 v16, v17, 4, v16")
    a(f"s_add_u32 s40, s{S_XW}, {x4_base(P)}\nv_add_u32 v{X4_R}, s40, v16\ns_lshl_b32 s{S_HX}, s49, 6")
    for k in range(1, 4): a(f"v_xor_b32 v{X4_R+k}, {32*k}, v{X4_R}")
    a(f"v_mov_b32 v{X4_D}, v20\nv_mov_b32 v{X4_D+1}, v21\nv_mov_b32 v{V_SF}, 0\nv_mov_b32 v{V_SF+1}, 0")
def x4_restore(ty):
    L = [f"v_lshlrev_b32 v{V_QK}, 3, v2", f"v_lshlrev_b32 v{V_H}, 4, v2", "v_lshrrev_b32 v13, 5, v2", f"v_mul_u32_u24 v13, {VT_HF}, v13", "v_and_b32 v14, 31, v2",
         f"v_lshl_add_u32 v{V_V}, v14, 4, v13", "v_mov_b32 v13, s3", "v_lshlrev_b32 v13, 2, v13", f"v_add_u32 v13, {CT_PROG}, v13", "v_mov_b32 v14, 0"]
    if ty == "A": L += [f"v_xor_b32 v8, s{S_HX}, v4", f"v_xor_b32 v9, s{S_HX}, v5"]
    return L

WT_VB = 32
WT_SRD_D, WT_SRD_O = 80, 84
def wt_loads(a, n, sw):
    vb = WT_VB
    g_, l16, gh, gl, col, row, pa = vb, vb+1, vb+2, vb+3, vb+4, vb+5, vb+6
    t = vb + 8
    if n == 0:
        a(f"v_lshrrev_b32 v{g_}, 4, v2\nv_and_b32 v{l16}, 15, v2\nv_lshrrev_b32 v{gh}, 1, v{g_}\nv_and_b32 v{gl}, 1, v{g_}")
        a(f"v_lshrrev_b32 v{pa}, 2, v{l16}\nv_lshlrev_b32 v{pa}, 3, v{pa}\nv_and_b32 v{pa+1}, 3, v{l16}\nv_add_u32 v{pa}, v{pa}, v{pa+1}")
        a("s_and_b32 s41, s2, 7\ns_lshr_b32 s42, s2, 3\ns_mul_i32 s43, s41, 80")
    lab = f"WT_{n}_{a.label('x')}"
    G = 96 + 8 * n
    a(f"s_add_u32 s50, s{sw}, {4*n}\ns_mul_i32 s51, s50, 52\ns_lshr_b32 s51, s51, 8")
    a("s_mul_i32 s52, s51, 5\ns_sub_u32 s52, s50, s52")
    a("s_lshl_b32 s53, s51, 5\ns_add_u32 s53, s53, s42")
    a(f"s_mov_b32 s{44+n}, -1")
    a(f"s_cmp_ge_u32 s50, 15\ns_cbranch_scc1 {lab}_skip\ns_cmp_ge_u32 s53, 74\ns_cbranch_scc1 {lab}_skip")
    a(f"s_mul_i32 s54, s41, {WT_F}\ns_mul_i32 s55, s53, {WT_K}\ns_add_u32 s54, s54, s55\ns_lshl_b32 s55, s52, 10\ns_add_u32 s54, s54, s55\ns_add_u32 s{44+n}, s54, {WT}")
    a("s_lshr_b32 s55, s52, 1\ns_lshl_b32 s55, s55, 5\ns_and_b32 s56, s52, 1\ns_lshl_b32 s56, s56, 2\ns_add_u32 s55, s55, s56\ns_add_u32 s55, s55, s43")
    a(f"s_cmp_eq_u32 s52, 4\ns_cselect_b64 s[56:57], -1, 0\nv_cndmask_b32 v{col}, v{pa}, v{l16}, s[56:57]\nv_add_u32 v{col}, s55, v{col}\nv_lshlrev_b32 v{col}, 1, v{col}")
    a(f"s_cmp_ge_u32 s53, 54\ns_cbranch_scc1 {lab}_o")
    a(f"s_lshl_b32 s55, s53, 5\nv_lshlrev_b32 v{row}, 4, v{gh}\nv_lshl_add_u32 v{row}, v{gl}, 2, v{row}\nv_add_u32 v{row}, s55, v{row}")
    a(f"s_movk_i32 s56, 1280\nv_mul_lo_u32 v{row}, v{row}, s56\nv_add_u32 v{row}, v{row}, v{col}\nv_add_u32 v{col}, 10240, v{row}")
    for j in range(8):
        a(f"buffer_load_ushort v{G+j}, v{row if j < 4 else col}, s[{WT_SRD_D}:{WT_SRD_D+3}], 0 offen offset:{(j%4)*1280}")
    a(f"s_branch {lab}_skip\n{lab}_o:")
    a(f"s_sub_u32 s55, s53, 54\ns_lshl_b32 s55, s55, 1\nv_add_u32 v{t}, s55, v{gh}")
    a(f"v_mul_u32_u24 v{t+1}, 52, v{t}\nv_lshrrev_b32 v{t+1}, 8, v{t+1}")
    a(f"v_mul_u32_u24 v{t+2}, 5, v{t+1}\nv_sub_u32 v{t+2}, v{t}, v{t+2}")
    a(f"v_lshlrev_b32 v{t+1}, 2, v{t+1}")
    a(f"v_add_u32 v{t+3}, v{t+1}, v{t+2}\nv_mul_u32_u24 v{t+3}, 20, v{t+3}\nv_lshl_add_u32 v{t+3}, v{gl}, 2, v{t+3}")
    a(f"v_add_u32 v{t+4}, v{t+1}, v{gl}\nv_mul_u32_u24 v{t+4}, 20, v{t+4}\nv_add_u32 v{t+4}, 16, v{t+4}")
    a(f"v_cmp_eq_u32 vcc, 4, v{t+2}\nv_mov_b32 v{t+5}, 8\nv_mov_b32 v{t+6}, 40\nv_cndmask_b32 v{t+3}, v{t+3}, v{t+4}, vcc\nv_cndmask_b32 v{t+5}, v{t+5}, v{t+6}, vcc")
    a(f"s_movk_i32 s56, 1280\nv_mul_lo_u32 v{row}, v{t+3}, s56\nv_mul_lo_u32 v{t+5}, v{t+5}, s56\nv_add_u32 v{row}, v{row}, v{col}\nv_add_u32 v{col}, v{row}, v{t+5}")
    for j in range(8):
        a(f"buffer_load_ushort v{G+j}, v{row if j < 4 else col}, s[{WT_SRD_O}:{WT_SRD_O+3}], 0 offen offset:{(j%4)*1280}")
    a(f"{lab}_skip:")

def wt_stores(a):
    a(f"v_lshlrev_b32 v{WT_VB+15}, 4, v2")
    for n in range(4):
        lab = a.label("WTS")
        G = 96 + 8 * n
        a(f"s_cmp_eq_u32 s{44+n}, -1\ns_cbranch_scc1 {lab}")
        for q in range(4): a(f"v_lshl_or_b32 v{128+4*n+q}, v{G+2*q+1}, 16, v{G+2*q}")
        a(f"buffer_store_dwordx4 v[{128+4*n}:{131+4*n}], v{WT_VB+15}, {WS}, s{44+n} offen sc1")
        a(f"{lab}:")

WT_LDS = 12288
def wt2_issue(a):
    lab = a.label("W2")
    a("s_mov_b32 s88, -1\ns_sub_u32 s50, s3, 4\ns_lshr_b32 s42, s2, 3\ns_lshl_b32 s53, s50, 5\ns_add_u32 s53, s53, s42")
    a(f"s_cmp_ge_u32 s53, 74\ns_cbranch_scc1 {lab}_skip")
    a(f"s_and_b32 s41, s2, 7\ns_mul_i32 s54, s41, {WT_F}\ns_mul_i32 s55, s53, {WT_K}\ns_add_u32 s54, s54, s55\ns_add_u32 s88, s54, {WT}")
    a(f"s_mul_i32 s43, s41, 160\ns_mul_i32 s51, s50, 5120\ns_add_u32 s51, s51, {WT_LDS}")
    for p in range(5):
        a(f"v_add_u32 v{40+p}, {64*p}, v2\nv_mul_u32_u24 v{32+p}, 205, v{40+p}\nv_lshrrev_b32 v{32+p}, 11, v{32+p}")
        a(f"v_mul_u32_u24 v46, 10, v{32+p}\nv_sub_u32 v{40+p}, v{40+p}, v46\nv_lshlrev_b32 v{40+p}, 4, v{40+p}")
    a(f"s_cmp_ge_u32 s53, 54\ns_cbranch_scc1 {lab}_o")
    a("s_mul_i32 s55, s53, 40960\ns_add_u32 s55, s55, s43")
    for p in range(5):
        a(f"v_mul_u32_u24 v46, 1280, v{32+p}\nv_add_u32 v{40+p}, v{40+p}, v46")
        a(f"s_add_u32 m0, s51, {1024*p}\ns_nop 0")
        a(f"buffer_load_dwordx4 v{40+p}, s[{WT_SRD_D}:{WT_SRD_D+3}], s55 offen lds")
    a(f"s_branch {lab}_skip\n{lab}_o:")
    for gh in range(2):
        a(f"s_sub_u32 s55, s53, 54\ns_lshl_b32 s55, s55, 1\ns_add_u32 s55, s55, {gh}\ns_mul_i32 s56, s55, 52\ns_lshr_b32 s56, s56, 8")
        a(f"s_mul_i32 s57, s56, 5\ns_sub_u32 s57, s55, s57\ns_lshl_b32 s56, s56, 2")
        a(f"s_add_u32 s55, s56, s57\ns_mul_i32 s55, s55, 20\ns_mul_i32 s56, s56, 20\ns_add_u32 s56, s56, 16")
        a(f"s_cmp_eq_u32 s57, 4\ns_cselect_b32 s{58+2*gh}, s56, s55\ns_cselect_b32 s{59+2*gh}, 1, 0")
    a("v_mov_b32 v47, s58\nv_mov_b32 v48, s60\nv_mov_b32 v49, s59\nv_mov_b32 v50, s61")
    for p in range(5):
        a(f"v_and_b32 v51, 15, v{32+p}\nv_lshrrev_b32 v52, 2, v51\nv_mul_u32_u24 v52, 20, v52\nv_and_b32 v53, 3, v51\nv_add_u32 v52, v52, v53")
        a(f"v_cmp_le_u32 vcc, 16, v{32+p}\ns_nop 1\nv_cndmask_b32 v53, v47, v48, vcc\nv_cndmask_b32 v54, v49, v50, vcc")
        a(f"v_cmp_eq_u32 vcc, 1, v54\ns_nop 1\nv_cndmask_b32 v51, v51, v52, vcc\nv_add_u32 v51, v51, v53")
        a(f"v_mul_u32_u24 v51, 1280, v51\nv_add_u32 v{40+p}, v{40+p}, v51")
        a(f"s_add_u32 m0, s51, {1024*p}\ns_nop 0")
        a(f"buffer_load_dwordx4 v{40+p}, s[{WT_SRD_O}:{WT_SRD_O+3}], s43 offen lds")
    a(f"{lab}_skip:")

def wt2_finish(a, nyounger):
    lab = a.label("W2F")
    a(f"s_cmp_eq_u32 s88, -1\ns_cbranch_scc1 {lab}")
    a("v_lshrrev_b32 v32, 5, v2\nv_lshlrev_b32 v32, 4, v32\nv_bfe_u32 v33, v2, 4, 1\nv_lshl_add_u32 v32, v33, 2, v32\nv_bfe_u32 v33, v2, 2, 2\nv_add_u32 v32, v32, v33")
    a(f"s_sub_u32 s50, s3, 4\ns_mul_i32 s51, s50, 5120\ns_add_u32 s51, s51, {WT_LDS}")
    a("v_mul_u32_u24 v32, 160, v32\nv_add_u32 v32, s51, v32\nv_and_b32 v33, 3, v2\nv_lshl_add_u32 v34, v33, 4, v32\nv_lshl_add_u32 v35, v33, 3, v32\nv_lshlrev_b32 v36, 4, v2")
    a(f"s_waitcnt vmcnt({nyounger})")
    for ft in range(5):
        adr, off = (34, (ft >> 1) * 64 + (ft & 1) * 8) if ft < 4 else (35, 128)
        a(f"ds_read_b64_tr_b16 v[{64+4*ft}:{65+4*ft}], v{adr} offset:{off}\nds_read_b64_tr_b16 v[{66+4*ft}:{67+4*ft}], v{adr} offset:{off+1280}")
    a("s_add_u32 s52, s88, 4096")
    for ft in range(5):
        a(f"s_waitcnt lgkmcnt({2*(4-ft)})")
        a(f"buffer_store_dwordx4 v[{64+4*ft}:{67+4*ft}], v36, {WS}, s{88 if ft < 4 else 52} offen offset:{(ft%4)*1024} sc1")
    a(f"{lab}:")

def loader_issue(a, P, s):
    kind, idx, stg = P["stages"][s]
    slot = P["slot"][s]
    for i in range(4):
        if kind == "P":
            base = S_CP0 + idx; off = (64 * stg + 8 * i) * 3456; vo, sr = 5, SRD_B
        else:
            base = {"QK": S_CQ0, "QKH": S_CQ1, "V": S_CQ1 + idx}[kind]; off = (128 * stg + 8 * i) * 3840; vo, sr = 4, SRD_A
        a(f"s_add_u32 m0, s{S_J}, {RING + slot*16384 + i*1024}")
        a(f"s_add_u32 s{S_T}, s{base}, {off}")
        a(f"buffer_load_dwordx4 v{vo}, s[{sr}:{sr+3}], s{S_T} offen lds")

def weight_prefetch(a, ty, which="rest"):
    n = 0
    a("s_lshr_b32 s40, s2, 3\ns_and_b32 s40, s40, 7\ns_mul_i32 s40, s40, 80\ns_sub_u32 s41, s3, 4")
    a("s_mul_i32 s42, s41, 20\ns_add_u32 s42, s42, s40\nv_add_u32 v23, s42, v2\nv_mul_u32_u24 v23, 3840, v23")
    a("v_mov_b32 v25, 0x80000000\nv_cmp_gt_u32 vcc, 20, v2\ns_nop 1\nv_cndmask_b32 v23, v25, v23, vcc")
    a("s_and_b32 s42, s41, 1\ns_mul_i32 s42, s42, 40\ns_add_u32 s42, s42, s40\nv_add_u32 v24, s42, v2\nv_mul_u32_u24 v24, 3456, v24")
    a("v_cmp_gt_u32 vcc, 40, v2\ns_nop 1\nv_cndmask_b32 v24, v25, v24, vcc")
    qs = {"A": [45], "B": [], "C": [45, 46]}[ty]
    ps = {"A": [47, 48], "B": [47, 48], "C": [47]}[ty]
    if p1.ORD == 1:
        qs = {"A": [44, 45], "B": [44], "C": [44]}[ty]
        ps = {"A": [48], "B": [48], "C": [47]}[ty]
        if which == "first":
            qs = {"A": [], "B": [], "C": [45, 46]}[ty]
            ps = {"A": [47], "B": [47], "C": []}[ty]
    for q in qs:
        a(f"s_lshl_b32 s42, s{q}, 7\nbuffer_load_dword v26, v23, s[{SRD_A}:{SRD_A+3}], s42 offen"); n += 1
    for q in ps:
        a(f"s_lshl_b32 s42, s{q}, 7\nbuffer_load_dword v27, v24, s[{SRD_B}:{SRD_B+3}], s42 offen"); n += 1
    return n

def wtpf_flag(a):
    a("s_and_b32 s43, s2, 7\ns_lshr_b32 s41, s2, 3\ns_and_b32 s42, s43, 1\ns_lshl_b32 s42, s42, 2\ns_and_b32 s40, s41, 3\ns_add_u32 s40, s42, s40")
    a(f"s_lshl_b32 s42, s40, 7\ns_add_u32 s42, s42, {FW}\nv_and_b32 v93, 31, v2\nv_lshlrev_b32 v93, 10, v93\nv_add_u32 v92, s42, v93")
    a(f"buffer_load_dword v94, v92, {WS}, 0 offen sc1")
    a(f"s_lshr_b32 s41, s41, 2\ns_mul_i32 s41, s41, 370\ns_sub_u32 s42, s3, 4\ns_lshl_b32 s42, s42, 7\ns_add_u32 s41, s41, s42")
    a(f"v_add_u32 v93, s41, v2\nv_add_u32 v92, 64, v93\nv_min_u32 v93, {74*40-1}, v93\nv_min_u32 v92, {74*40-1}, v92")
    a(f"s_mul_i32 s40, s40, {WT_F}\ns_add_u32 s40, s40, {WT}\nv_lshlrev_b32 v93, 7, v93\nv_lshlrev_b32 v92, 7, v92")
    a(f"v_add_u32 v93, s40, v93\nv_add_u32 v92, s40, v92")
    return 1
def wtpf_issue(a, nyounger):
    a(f"s_waitcnt vmcnt({min(63, nyounger)})")
    a(f"v_cmp_eq_u32 vcc, s{S_NONCE}, v94\ns_nop 0\ns_cmp_eq_u64 vcc, -1\ns_cselect_b32 s40, 0, 0x80000000")
    a("v_or_b32 v93, s40, v93\nv_or_b32 v92, s40, v92")
    a(f"buffer_load_dword v94, v93, {WS}, 0 offen sc1\nbuffer_load_dword v95, v92, {WS}, 0 offen sc1")
    return 2
def hpf_lines():
    return [f"s_and_b32 s40, s{K_FB}, 3", "s_lshl_b32 s40, s40, 2", "s_add_u32 s40, s40, s57",
            "s_lshl_b32 s41, s40, 2", "s_add_u32 s41, s41, 14", "s_lshl_b32 s42, s40, 1", "s_add_u32 s42, s42, 28", "s_min_u32 s42, s42, 52",
            "s_cmp_lt_u32 s40, 8", "s_cselect_b32 s41, s41, s42", "s_lshl_b32 s41, s41, 11", f"s_add_u32 s41, s41, s{KS_H0}",
            "v_lshrrev_b32 v252, 5, v2", f"v_mul_u32_u24 v252, {HS_T}, v252", "v_and_b32 v253, 31, v2", "v_lshl_add_u32 v252, v253, 7, v252",
            f"buffer_load_dword v253, v252, {WS}, s41 offen sc1"]

EH_A, EH_R = 92, 94
def eh_prepoll(a):
    a("s_and_b32 s43, s2, 7\ns_lshr_b32 s41, s2, 3")
    a("s_and_b32 s42, s43, 1\ns_lshl_b32 s42, s42, 2\ns_and_b32 s40, s41, 3\ns_add_u32 s44, s42, s40")
    a("s_lshr_b32 s42, s43, 1\ns_lshl_b32 s42, s42, 3\ns_lshr_b32 s41, s41, 2\ns_add_u32 s45, s42, s41")
    a(f"s_lshl_b32 s40, s44, 7\ns_add_u32 s40, s40, {FW}\nv_and_b32 v16, 31, v2\nv_lshlrev_b32 v16, 10, v16\nv_add_u32 v{EH_A}, s40, v16")
    a(f"s_lshl_b32 s41, s45, 14\ns_add_u32 s41, s41, {FG + K_H0*128}")
    a("v_and_b32 v16, 15, v2\nv_min_u32 v16, 10, v16\nv_bfe_u32 v17, v2, 4, 1\nv_lshl_add_u32 v16, v17, 4, v16\nv_lshlrev_b32 v16, 9, v16")
    a(f"v_add_u32 v{EH_A+1}, s41, v16")
    for i in range(2): a(f"buffer_load_dword v{EH_R+i}, v{EH_A+i}, {WS}, 0 offen sc1")
    return 2
def eh_setup(a, nyounger):
    lab = a.label("EH")
    a(f"s_sub_u32 s57, s3, 4\ns_mul_i32 s{K_WT}, s44, {WT_F}\ns_add_u32 s{K_WT}, s{K_WT}, {WT}")
    a(f"s_lshl_b32 s40, s45, 1\ns_mul_i32 s{KS_H0}, s40, {HS_T}\ns_add_u32 s{KS_H0}, s{KS_H0}, {HS}")
    a(f"v_lshlrev_b32 v{V_LA}, 4, v2\nv_add_u32 v{V_LA2}, 4096, v{V_LA}")
    a(f"v_lshrrev_b32 v16, 4, v2\nv_and_b32 v17, 15, v2\nv_lshlrev_b32 v{V_LB}, 9, v16\nv_lshl_add_u32 v{V_LB}, v17, 4, v{V_LB}")
    h_bases(a)
    a(f"s_waitcnt vmcnt({min(63, nyounger)})")
    for i in range(2):
        a(f"v_cmp_eq_u32 vcc, s{S_NONCE}, v{EH_R+i}\ns_nop 0\ns_cmp_eq_u64 vcc, -1\ns_cbranch_scc1 {lab}_{i}")
        a("s_mov_b32 s43, 0")
        poll(a, EH_A + i, 43, -1, -1, f"{lab}_p{i}", EH_R + i)
        a(f"{lab}_{i}:")
def h_bases(a, J=57):
    a(f"s_lshr_b32 s40, s{J}, 1\ns_lshl_b32 s40, s40, 2\ns_and_b32 s41, s{J}, 1\ns_add_u32 s56, s40, s41")
    a(f"s_add_u32 s42, s{J}, 40\ns_cmp_lt_u32 s{J}, 2\ns_cselect_b32 s55, s42, s{J}")
    a(f"s_add_u32 s40, s{J}, 2\ns_lshr_b32 s40, s40, 1\ns_lshl_b32 s40, s40, 2\ns_add_u32 s54, s40, s41\ns_add_u32 s54, s54, 2")
def eh_item(a, n):
    L = [f"s_add_u32 s{K_KAP}, s56, {8*n}"] + k_addr(None, False) + k_wt(n % NBUF) + k_act(n % NBUF)
    assert n <= 4
    for x in L: a(x)
    return 9

def slot_free(P, s, bi):
    p = P["prev"][s]
    if p is None: return True
    if bi < 0: return False
    if isinstance(p, tuple): return P["bars"][bi] >= p[1]
    return P["info"][bi][1] >= p
def gen_loader(a, P, st, opt, npf=0):
    info, ns = P["info"], P["ns"]
    issued = opt.get("_issued", NSLOT)
    q = [("stage", s) for s in range(issued) for _ in range(4)] + [("pf",)] * npf
    if "_q0" in opt: q = list(opt["_q0"])
    WT_LD = opt.get("wt_ld", 2); WT_ST = WT_LD + opt.get("wt_gap", 9); WT_FL = WT_ST + 9
    nb = len(info)
    new_wt = opt.get("front", 0) >= 1
    WT2_AT = opt.get("wt2_at", -1)
    fw_done = False
    if new_wt:
        WT_LD = WT_ST = -1; wt_mark2 = NSLOT
        WT_FL = min(bi for bi, (need, done) in enumerate(info) if need >= NSLOT)
        if WT2_AT >= 0: WT_FL = -2; wt_mark2 = 1000
    assert WT_FL < nb - 1
    EH = opt.get("eh", 0); eh_plan = {}
    if EH:
        i_ = issued; bL = None
        for bi in range(nb):
            while i_ < ns and slot_free(P, i_, bi - 1): i_ += 1
            if i_ == ns and bL is None: bL = bi
        if opt["_ty"] in ("A" if opt.get("eh_bc", 0) == 0 else "ABC"):
            first = bL + opt.get("eh_at", 0); ppb = first - opt.get("eh_pp", 2)
            for n in range(EH): eh_plan.setdefault(min(first + n * opt.get("eh_step", 1), nb - 1), []).append(n)
        else:
            ppb = nb - 2
            eh_plan[nb - 1] = list(range(EH))
        assert ppb >= 1 and min(eh_plan) >= bL
        eh_mark = None
    L4 = opt.get("front", 0) == 4
    NB_ = opt.get("nonce_bar", 6); WT2_ISS = opt.get("wt2_iss", 0); w2_first = None; w2_fin = False; n_first = None
    for bi, (need, done) in enumerate(info):
        while issued < ns and slot_free(P, issued, bi - 1):
            loader_issue(a, P, issued); q += [("stage", issued)] * 4; issued += 1
        if bi == nb - 1:
            assert issued == ns
            need = ns - 1
        assert issued > need
        last = max(i for i, t in enumerate(q) if t == ("stage", need))
        a(f"s_waitcnt vmcnt({min(63, len(q) - 1 - last)})")
        if L4 and bi == NB_:
            lab = a.label("NN")
            a(f"s_cmp_lg_u32 s3, 4\ns_cbranch_scc1 {lab}_x\ns_waitcnt vmcnt({min(63, len(q) - n_first)})")
            a(f"v_readfirstlane_b32 s40, v28\ns_cmp_lg_u32 s40, 0\ns_cbranch_scc1 {lab}_1\ns_mov_b32 s{S_SPIN}, {SPIN}\nv_mov_b32 v29, 0")
            a(f"{lab}_p:\nbuffer_load_dword v28, v29, s[{SRD_C}:{SRD_C+3}], 0 offen sc1\ns_waitcnt vmcnt(0)\nv_readfirstlane_b32 s40, v28\ns_cmp_lg_u32 s40, 0\ns_cbranch_scc1 {lab}_1")
            a(f"s_sub_u32 s{S_SPIN}, s{S_SPIN}, 1\ns_cmp_lg_u32 s{S_SPIN}, 0\ns_cbranch_scc1 {lab}_p")
            a(f"{lab}_1:\nv_mov_b32 v29, {CT_NONCE}\nds_write_b32 v29, v28\ns_waitcnt lgkmcnt(0)\n{lab}_x:")
        a("s_barrier")
        if bi == 0 and opt.get("front", 0) == 2: opt["_get_nonce"]()
        if L4:
            if bi == NB_: opt["_get_nonce"]()
            if bi == 0:
                lab = a.label("NL")
                a(f"s_cmp_lg_u32 s3, 4\ns_cbranch_scc1 {lab}\nv_mov_b32 v29, 0\nbuffer_load_dword v28, v29, s[{SRD_C}:{SRD_C+3}], 0 offen sc1\n{lab}:")
                n_first = len(q)
            if bi == WT2_ISS: wt2_issue(a); w2_first = issued
            elif w2_first is not None and not w2_fin and need >= w2_first and bi >= WT2_AT:
                wt2_finish(a, 63); w2_fin = True; wt_mark2 = issued
            elif w2_fin and not fw_done and need >= wt_mark2 and bi > NB_:
                WT_FL = bi; fw_done = True
                assert bi < nb - 1
        if bi == WT_LD:
            a(f"s_sub_u32 s59, s3, 4")
            if not opt.get("nowt"):
                for n in range(4): wt_loads(a, n, 59)
            wt_mark = issued
        if bi == WT_ST:
            last = max(i for i, t in enumerate(q) if t == ("stage", wt_mark))
            a(f"s_waitcnt vmcnt({min(63, len(q) - 1 - last)})")
            if not opt.get("nowt"): wt_stores(a)
            wt_mark2 = issued
        if EH and bi == ppb:
            n = eh_prepoll(a); q += [("pf",)] * n; eh_mark = len(q)
        pp_first = opt.get("pp_first", 0)
        if pp_first and opt.get("tail", 0) >= 1 and bi == nb - 1 - opt.get("pp_back", 3):
            n = prepoll_issue(a); q += [("pf",)] * n
        for n in eh_plan.get(bi, []):
            if n == 0: eh_setup(a, len(q) - eh_mark)
            q += [("pf",)] * eh_item(a, n)
        if not pp_first and opt.get("tail", 0) >= 1 and bi == nb - 1 - opt.get("pp_back", 3):
            n = prepoll_issue(a); q += [("pf",)] * n
        if opt.get("wtpf") and bi == nb - 1 - opt["wtpf"]:
            assert bi > WT_FL >= 0 or True
            n = wtpf_flag(a); q += [("pf",)] * n; wtpf_mark = len(q)
        if opt.get("wtpf") and bi == nb - 1 - opt["wtpf"] + opt.get("wtpf_d", 2):
            n = wtpf_issue(a, len(q) - wtpf_mark); q += [("pf",)] * n
        if bi == opt.get("wpf_at", -1) and opt.get("wpf", 1) == 3:
            n = weight_prefetch(a, opt["_ty"]); q += [("pf",)] * n
        if new_wt and WT2_AT >= 0 and not L4:
            if bi == WT2_AT:
                wt2_finish(a, 63)
                wt_mark2 = issued
            elif bi > WT2_AT and not fw_done and need >= wt_mark2:
                WT_FL = bi; fw_done = True
                assert bi < nb - 1
        if bi == WT_FL:
            assert need >= wt_mark2, (need, wt_mark2)
            lab = a.label("FW")
            a(f"s_cmp_lg_u32 s3, 4\ns_cbranch_scc1 {lab}\ns_lshl_b32 s40, s2, 7\ns_add_u32 s40, s40, {FW}")
            a(flag_store(40))
            a(f"{lab}:")

def attn_dma_dyn(a, kind, m, vb, sj, sj5):
    t = 64
    if kind == "Q":
        a(f"s_lshl_b32 s{t}, s{p2.A_TB2}, 1\ns_add_u32 s{t}, s{t}, {m}")
        a(f"s_mul_i32 s{t+1}, s{t}, {QS_T}\ns_mul_i32 s{t}, s{p2.A_HQ}, 5120\ns_add_u32 s{t+1}, s{t+1}, s{t}\ns_add_u32 s{t+1}, s{t+1}, {QS}")
        p2.dma5(a, L_Q + m * 5120, [vb+5]*5, t+1, "sc1", True)
    elif kind == "K": p2.dma_k(a, m, vb, "sc1", t)
    else: p2.dma_v(a, m, vb, "sc1", t)

def qk_producers(hq):
    def fbs(q):
        if q < 8: return [q]
        if q < 12: return [q - 8, q - 4]
        return [q - 4]
    t1, t2 = (80 * hq) >> 6, (80 * hq + 79) >> 6
    L = []
    for q in (t1, t2, 10 + t1, 10 + t2):
        for f in fbs(q):
            if f not in L: L.append(f)
    while len(L) < 6: L.append(L[0])
    assert len(L) == 6
    return L

def poll_qk(a, lab):
    tab = [sum(f << (4 * i) for i, f in enumerate(qk_producers(h))) for h in range(8)]
    a(f"s_mov_b32 s41, {tab[0]}")
    for h in range(1, 8):
        a(f"s_mov_b32 s42, {tab[h]}\ns_cmp_eq_u32 s{p2.A_HQ}, {h}\ns_cselect_b32 s41, s42, s41")
    a("v_mul_u32_u24 v16, 43, v2\nv_lshrrev_b32 v16, 8, v16")
    a("v_mul_u32_u24 v17, 6, v16\nv_sub_u32 v17, v2, v17\nv_lshlrev_b32 v17, 2, v17")
    a("v_lshrrev_b32 v17, v17, s41\nv_and_b32 v17, 15, v17")
    a(f"s_lshl_b32 s42, s{p2.A_TB2}, 1\ns_sub_i32 s42, s42, 8\nv_add_u32 v16, s42, v16\nv_max_i32 v16, 0, v16")
    a("v_lshl_add_u32 v16, v16, 4, v17\nv_lshlrev_b32 v16, 9, v16")
    a(f"s_mov_b32 s43, {FG}")
    poll(a, 16, 43, -1, 0x0fffffff, lab, 18, off=K_QK * 128)

def poll_v(a, lab):
    a(f"s_mul_i32 s41, s{p2.A_HQ}, 80\ns_add_u32 s42, s41, 79\ns_lshr_b32 s41, s41, 7\ns_lshr_b32 s42, s42, 7")
    a("s_add_u32 s41, s41, 11\ns_add_u32 s42, s42, 11")
    a("v_and_b32 v17, 1, v2\nv_cmp_eq_u32 vcc, 1, v17\nv_mov_b32 v17, s41\nv_mov_b32 v18, s42\nv_cndmask_b32 v17, v17, v18, vcc")
    a(f"v_lshrrev_b32 v16, 1, v2\ns_lshl_b32 s42, s{p2.A_TB2}, 1\ns_sub_i32 s42, s42, 8\nv_add_u32 v16, s42, v16\nv_max_i32 v16, 0, v16")
    a("v_lshl_add_u32 v16, v16, 4, v17\nv_lshlrev_b32 v16, 9, v16")
    a(f"s_mov_b32 s43, {FG}")
    poll(a, 16, 43, 0xfffff, 0, lab, 18, off=K_V * 128)

PP_A, PP_R = 84, 88
def prepoll_issue(a):
    p2.attn_params(a)
    p2.attn_dma_setup(a, 8)
    tab = [sum(f << (4 * i) for i, f in enumerate(qk_producers(h))) for h in range(8)]
    a(f"s_mov_b32 s41, {tab[0]}")
    for h in range(1, 8):
        a(f"s_mov_b32 s42, {tab[h]}\ns_cmp_eq_u32 s{p2.A_HQ}, {h}\ns_cselect_b32 s41, s42, s41")
    A0, A1, A2, A3 = PP_A, PP_A + 1, PP_A + 2, PP_A + 3
    a(f"v_min_u32 v18, 59, v2\nv_mul_u32_u24 v16, 43, v18\nv_lshrrev_b32 v16, 8, v16")
    a("v_mul_u32_u24 v17, 6, v16\nv_sub_u32 v17, v18, v17\nv_lshlrev_b32 v17, 2, v17")
    a("v_lshrrev_b32 v17, v17, s41\nv_and_b32 v17, 15, v17")
    a(f"s_lshl_b32 s42, s{p2.A_TB2}, 1\ns_sub_i32 s42, s42, 8\nv_add_u32 v16, s42, v16\nv_max_i32 v16, 0, v16")
    a(f"v_lshl_add_u32 v16, v16, 4, v17\nv_lshlrev_b32 v16, 9, v16\nv_add_u32 v{A0}, {FG + K_QK*128}, v16")
    a(f"s_mul_i32 s41, s{p2.A_HQ}, 80\ns_add_u32 s43, s41, 79\ns_lshr_b32 s41, s41, 7\ns_lshr_b32 s43, s43, 7")
    a("s_add_u32 s41, s41, 11\ns_add_u32 s43, s43, 11")
    a("v_min_u32 v18, 19, v2\nv_and_b32 v17, 1, v18\nv_cmp_eq_u32 vcc, 1, v17\nv_mov_b32 v17, s41\nv_mov_b32 v19, s43\nv_cndmask_b32 v17, v17, v19, vcc")
    a("v_lshrrev_b32 v16, 1, v18\nv_add_u32 v16, s42, v16\nv_max_i32 v16, 0, v16")
    a(f"v_lshl_add_u32 v16, v16, 4, v17\nv_lshlrev_b32 v16, 9, v16\nv_add_u32 v{A1}, {FG + K_V*128}, v16")
    a("s_and_b32 s43, s2, 7\ns_lshr_b32 s41, s2, 3")
    a("s_and_b32 s42, s43, 1\ns_lshl_b32 s42, s42, 2\ns_and_b32 s40, s41, 3\ns_add_u32 s40, s42, s40")
    a("s_lshr_b32 s42, s43, 1\ns_lshl_b32 s42, s42, 3\ns_lshr_b32 s41, s41, 2\ns_add_u32 s41, s42, s41")
    a(f"s_lshl_b32 s40, s40, 7\ns_add_u32 s40, s40, {FW}\nv_and_b32 v16, 31, v2\nv_lshlrev_b32 v16, 10, v16\nv_add_u32 v{A2}, s40, v16")
    a(f"s_lshl_b32 s41, s41, 14\ns_add_u32 s41, s41, {FG + K_H0*128}")
    a("v_and_b32 v16, 15, v2\nv_min_u32 v16, 10, v16\nv_bfe_u32 v17, v2, 4, 1\nv_lshl_add_u32 v16, v17, 4, v16\nv_lshlrev_b32 v16, 9, v16")
    a(f"v_add_u32 v{A3}, s41, v16")
    for i in range(4): a(f"buffer_load_dword v{PP_R+i}, v{PP_A+i}, {WS}, 0 offen sc1")
    return 4
def prepoll_check(a, i, lab, fallback):
    a(f"v_cmp_eq_u32 vcc, s{S_NONCE}, v{PP_R+i}\ns_nop 0\ns_cmp_eq_u64 vcc, -1\ns_cbranch_scc1 {lab}_pk")
    fallback()
    a(f"{lab}_pk:")
def dma5_dyn(a, slds, vregs, soff, step4):
    a(f"s_mov_b32 m0, s{slds}\ns_nop 0")
    for p in range(4):
        a(f"buffer_load_dwordx4 v{vregs[p]}, {WS}, s{soff} offen offset:{p*1024} sc1 lds")
    a(f"s_add_u32 m0, s{slds}, 4096")
    a(f"s_add_u32 s{soff}, s{soff}, 4096" if step4 else "s_nop 0")
    a(f"buffer_load_dwordx4 v{vregs[4]}, {WS}, s{soff} offen sc1 lds")
def qk_job(a, i, vb):
    a(f"s_add_u32 s64, s57, {4*i}\ns_mul_i32 s67, s64, 5120\ns_add_u32 s67, s67, {L_Q}")
    a(f"s_lshl_b32 s65, s{p2.A_TB2}, 1\ns_add_u32 s65, s65, s64")
    a(f"s_sub_i32 s66, s65, 10\ns_max_i32 s66, s66, 0")
    if i == 0:
        a(f"s_cmp_lt_u32 s64, 2\ns_cselect_b32 s65, s65, s66\ns_mov_b32 s66, {KS}\ns_cselect_b32 s66, {QS}, s66")
        a(f"s_mul_i32 s65, s65, {QS_T}\ns_add_u32 s65, s65, s66")
    else:
        a(f"s_mul_i32 s65, s66, {QS_T}\ns_add_u32 s65, s65, {KS}")
    a(f"s_mul_i32 s66, s{p2.A_HQ}, 5120\ns_add_u32 s65, s65, s66")
    dma5_dyn(a, 67, [vb+5]*5, 65, True)
def v_job(a, i, vb):
    a(f"s_add_u32 s64, s57, {4*i}\ns_mul_i32 s67, s64, 5120\ns_add_u32 s67, s67, {L_V}")
    a(f"s_lshl_b32 s65, s{p2.A_TB2}, 1\ns_add_u32 s65, s65, s64\ns_sub_i32 s65, s65, 8\ns_max_i32 s65, s65, 0")
    a(f"s_mul_i32 s65, s65, {VT_T}\ns_mul_i32 s66, s{p2.A_HQ}, 1280\ns_add_u32 s65, s65, s66\ns_add_u32 s65, s65, {VT - 4096}")
    dma5_dyn(a, 67, [vb+p for p in range(5)], 65, False)

from p3 import K_TB2, K_FB, K_WT, K_H0 as KS_H0, K_O0, K_KAP, K_A, K_B0, K_B1, BUF, NBUF, V_LA, V_LA2, V_LB, k_mfmas
def k_addr(kap_expr_lines, o_part):
    b = K_O0 if o_part else KS_H0
    stride = OS_T if o_part else HS_T
    return [f"s_mul_i32 s{K_A}, s{K_KAP}, {WT_K}", f"s_lshl_b32 s{K_B0}, s{K_KAP}, 11", f"s_add_u32 s{K_A}, s{K_A}, s{K_WT}",
            f"s_add_u32 s{K_B0}, s{K_B0}, s{b}", f"s_add_u32 s{K_B1}, s{K_B0}, {stride}"]
def k_wt(b):
    r = BUF + 36 * b
    return [f"buffer_load_dwordx4 v[{r+4*ft}:{r+3+4*ft}], v{V_LA if ft < 4 else V_LA2}, {WS}, s{K_A} offen offset:{(ft%4)*1024} sc1" for ft in range(5)]
def k_act(b):
    r = BUF + 36 * b
    return [f"buffer_load_dwordx4 v[{r+20+4*tt}:{r+23+4*tt}], v{V_LB}, {WS}, s{K_B0 if tt < 2 else K_B1} offen offset:{(tt%2)*256} sc1" for tt in range(4)]

def poll_fw(a, lab):
    a(f"v_lshlrev_b32 v16, 10, v2\ns_lshl_b32 s43, s{K_FB}, 7\ns_add_u32 s43, s43, {FW}")
    poll(a, 16, 43, -1, 0, lab, 18)
def poll_fh(a, lab, kind):
    a(f"s_lshl_b32 s43, s{K_TB2}, 14\ns_add_u32 s43, s43, {FG}\nv_lshlrev_b32 v250, 9, v2")
    m = 0x07ff07ff if kind == K_H0 else -1
    poll(a, 250, 43, m, 0, lab, 251, off=kind * 128)
def poll_fo(a, lab):
    a(f"s_lshl_b32 s43, s{K_TB2}, 12\ns_add_u32 s43, s43, {FO}\nv_lshlrev_b32 v16, 7, v2")
    poll(a, 16, 43, -1, 0, lab, 18)

def h_stream(a, st, role, mid=None, eh=0):
    J = 57
    e = Emit(a)
    def set_kap(n):
        if n <= 4:   return [f"s_add_u32 s{K_KAP}, s56, {8*n}"]
        if n == 5:   return [f"s_mov_b32 s{K_KAP}, s55"]
        if n <= 10:  return [f"s_add_u32 s{K_KAP}, s54, {8*(n-6)}"]
        return [f"s_add_u32 s{K_KAP}, s{J}, {44 + 4*(n-11)}"] + ([f"s_min_u32 s{K_KAP}, s{K_KAP}, 53"] if n == 13 else [])
    h_bases(a, J)
    NI = 14; pf = 3; LATE = 5
    if role == "pre":
        for n in range(pf):
            if mid is not None and n == mid[0]: mid[1](e)
            if n < eh: continue
            e(set_kap(n) + k_addr(None, False)); e(k_wt(n % NBUF), ("wt", n)); e(k_act(n % NBUF), ("act", n))
        if mid is not None and mid[0] >= pf: mid[1](e)
        return e
    return None

def h_stream_main(a, e, st, bv_at, eh=0, h1pp=-1):
    J = 57; NI = 14; pf = 3; LATE = 5
    def set_kap(n):
        if n <= 4:   return [f"s_add_u32 s{K_KAP}, s56, {8*n}"]
        if n == 5:   return [f"s_mov_b32 s{K_KAP}, s55"]
        if n <= 10:  return [f"s_add_u32 s{K_KAP}, s54, {8*(n-6)}"]
        return [f"s_add_u32 s{K_KAP}, s{J}, {44 + 4*(n-11)}"] + ([f"s_min_u32 s{K_KAP}, s{K_KAP}, 53"] if n == 13 else [])
    lab = a.label("HS")
    for n in range(NI):
        if n == bv_at: a("s_barrier")
        if n == LATE - 1:
            a.extend(st.now(12))
            if h1pp >= 0:
                a(f"s_waitcnt vmcnt({min(63, e.vm_after(lambda t: t == ('h1',)))})")
                a(f"v_cmp_eq_u32 vcc, s{S_NONCE}, v251\ns_nop 0\ns_cmp_eq_u64 vcc, -1\ns_cbranch_scc1 {lab}_h1k")
                poll_fh(a, lab + "_fh1", K_H1)
                a(f"{lab}_h1k:")
            else:
                poll_fh(a, lab + "_fh1", K_H1)
                e.vm = []
            a.extend(st.now(13))
            if XOPT.get("hpf") == 1:
                L = hpf_lines(); e(L[:-1]); e(L[-1], ("hpf",))
            for m in range(LATE, n + pf):
                e(set_kap(m) + k_addr(None, False)); e(k_act(m % NBUF), ("act", m))
            if XOPT.get("hpf") == 2:
                L = hpf_lines(); e(L[:-1]); e(L[-1], ("hpf",))
        w1 = e.vm_after(lambda t: t == ("wt", n)); w2 = e.vm_after(lambda t: t == ("act", n))
        ws_ = [x for x in (w1, w2) if x is not None]
        if ws_: a(f"s_waitcnt vmcnt({min(63, min(ws_))})")
        if n == NI - 1: a(f"s_cmp_ge_u32 s{J}, 2\ns_cbranch_scc1 {lab}_skip")
        m = k_mfmas(n % NBUF, n == 0)
        if XOPT.get("nohm"): m = ["s_nop 0"] * len(m)
        ld = []
        nn = n + pf
        if n == h1pp:
            ld += [(f"s_lshl_b32 s43, s{K_TB2}, 14", None), (f"s_add_u32 s43, s43, {FG}", None), ("v_and_b32 v250, 31, v2", None), ("v_lshlrev_b32 v250, 9, v250", None),
                   (f"buffer_load_dword v251, v250, {WS}, s43 offen offset:{K_H1 * 128} sc1", ("h1",))]
        if nn < NI and nn >= eh:
            ld += [(x, None) for x in set_kap(nn) + k_addr(None, False)] + [(x, ("wt", nn)) for x in k_wt(nn % NBUF)]
            if not (LATE <= nn < LATE - 1 + pf): ld += [(x, ("act", nn)) for x in k_act(nn % NBUF)]
        li = 0
        for x in m:
            a(x)
            if li < len(ld): e(ld[li][0], ld[li][1]); li += 1
        while li < len(ld): e(ld[li][0], ld[li][1]); li += 1
    a(f"{lab}_skip:")

def o_stream(a, st):
    e = Emit(a)
    NI = 5; pf = 3
    def set_kap(n): return [f"s_add_u32 s{K_KAP}, s3, {54 + 4*n}"]
    for n in range(pf):
        e(set_kap(n) + k_addr(None, True)); e(k_wt(n), ("wt", n))
    a.extend(st.now(12))
    poll_fo(a, "FOp")
    e.vm = []
    a.extend(st.now(13))
    for n in range(pf):
        e(set_kap(n) + k_addr(None, True)); e(k_act(n), ("act", n))
    for n in range(NI):
        w1 = e.vm_after(lambda t: t == ("wt", n)); w2 = e.vm_after(lambda t: t == ("act", n))
        ws_ = [x for x in (w1, w2) if x is not None]
        a(f"s_waitcnt vmcnt({min(63, min(ws_))})")
        m = k_mfmas(n % NBUF, n == 0)
        ld = []
        nn = n + pf
        if nn < NI:
            ld = [(x, None) for x in set_kap(nn) + k_addr(None, True)] + [(x, ("wt", nn)) for x in k_wt(nn % NBUF)] + [(x, ("act", nn)) for x in k_act(nn % NBUF)]
        li = 0
        for x in m:
            a(x)
            if li < len(ld): e(ld[li][0], ld[li][1]); li += 1
        while li < len(ld): e(ld[li][0], ld[li][1]); li += 1

def k3_setup(a):
    p3.k3_params(a)
    p3.k3_setup(a)

def reduce_phase(a, lab, st):
    from p3 import ACC as KACC, V_XO, V_XO2, K_XO, VX
    a(f"v_lshlrev_b32 v9, 4, v2")
    a("s_nop 7")
    a(f"s_cmp_lt_u32 s3, 4\ns_cbranch_scc1 {lab}_lo")
    a.extend(st.now(14))
    lds_poll4(a, CT_ATT, lab + "_wa", 96)
    a(f"s_sub_u32 s40, s3, 4\ns_mul_i32 s40, s40, 20480\nv_add_u32 v10, s40, v9")
    for t in range(20): a(f"ds_write_b128 v10, v[{KACC+4*t}:{KACC+4*t+3}] offset:{L_R1 + 1024*t}")
    a.extend(st.now(15))
    a(f"s_waitcnt lgkmcnt(0)\ns_barrier\ns_barrier\ns_branch {lab}_end")
    a(f"{lab}_lo:")
    a(f"s_mul_i32 s40, s3, 20480\nv_add_u32 v10, s40, v9")
    a.extend(st.now(14))
    a("s_barrier")
    a.extend(st.now(15))
    for half in range(2):
        for t in range(10): a(f"ds_read_b128 v[{BUF+4*t}:{BUF+4*t+3}], v10 offset:{L_R1 + 1024*(10*half+t)}")
        for t in range(10):
            a(f"s_waitcnt lgkmcnt({9-t})")
            for r in range(4): a(f"v_add_f32 v{KACC+4*(10*half+t)+r}, v{KACC+4*(10*half+t)+r}, v{BUF+4*t+r}")
    a(f"v_add_u32 v11, {L_R2}, v10")
    for tt in range(4):
        a(f"s_cmp_eq_u32 s3, {tt}\ns_cbranch_scc1 {lab}_w{tt}")
        for ft in range(5): a(f"ds_write_b128 v11, v[{KACC+4*(tt*5+ft)}:{KACC+4*(tt*5+ft)+3}] offset:{1024*(tt*5+ft)}")
        a(f"{lab}_w{tt}:")
    OWN = BUF + 100
    for tt in range(4):
        a(f"s_cmp_lg_u32 s3, {tt}\ns_cbranch_scc1 {lab}_m{tt}")
        for q in range(20): a(f"v_mov_b32 v{OWN+q}, v{KACC+20*tt+q}")
        a(f"{lab}_m{tt}:")
    a("s_waitcnt lgkmcnt(0)\ns_barrier")
    a(f"s_mul_i32 s41, s3, 5120")
    for d in range(1, 4):
        a(f"s_add_u32 s40, s3, {d}\ns_and_b32 s40, s40, 3\ns_mul_i32 s40, s40, 20480\ns_add_u32 s40, s40, s41\ns_add_u32 s40, s40, {L_R2}\nv_add_u32 v{11+d}, s40, v9")
        for ft in range(5): a(f"ds_read_b128 v[{BUF+20*(d-1)+4*ft}:{BUF+20*(d-1)+4*ft+3}], v{11+d} offset:{1024*ft}")
    for d in range(1, 4):
        a(f"s_waitcnt lgkmcnt({5*(3-d)})")
        for q in range(20): a(f"v_add_f32 v{OWN+q}, v{OWN+q}, v{BUF+20*(d-1)+q}")
    a("s_waitcnt vmcnt(0)")
    for q in range(10):
        a(f"v_lshlrev_b32 v{BUF+2*q}, 16, v{VX+q}\nv_and_b32 v{BUF+2*q+1}, 0xffff0000, v{VX+q}")
    for q in range(20): a(f"v_add_f32 v{OWN+q}, v{OWN+q}, v{BUF+q}")
    for q in range(10): a(f"v_cvt_pk_bf16_f32 v{BUF+24+q}, v{OWN+2*q}, v{OWN+2*q+1}")
    o = BUF + 24
    osc = OUT_SC
    a(f"buffer_store_dwordx4 v[{o}:{o+3}], v{V_XO}, s[{SRD_B}:{SRD_B+3}], s{K_XO} offen{osc}")
    a(f"buffer_store_dwordx4 v[{o+4}:{o+7}], v{V_XO}, s[{SRD_B}:{SRD_B+3}], s{K_XO} offen offset:64{osc}")
    a(f"buffer_store_dwordx2 v[{o+8}:{o+9}], v{V_XO2}, s[{SRD_B}:{SRD_B+3}], s{K_XO} offen{osc}")
    a(f"{lab}_end:")

CT_H = 48
def k_mfmas_o1(b):
    from p3 import ACC as KACC
    r = BUF + 36 * b
    L = []
    for ft in range(5):
        for tt in range(2):
            ac = KACC + (tt * 5 + ft) * 4
            L.append(f"v_mfma_f32_16x16x32_bf16 v[{ac}:{ac+3}], v[{r+4*ft}:{r+3+4*ft}], v[{r+20+4*tt}:{r+23+4*tt}], v[{ac}:{ac+3}]")
    return L
def h_stream_main2(a, e, st, h1pp, o1pp, o1chk):
    J = 57; NH = 14; NI = 19; pf = 3; LATE = 5
    def set_kap(n):
        if n <= 4:   return [f"s_add_u32 s{K_KAP}, s56, {8*n}"]
        if n == 5:   return [f"s_mov_b32 s{K_KAP}, s55"]
        if n <= 10:  return [f"s_add_u32 s{K_KAP}, s54, {8*(n-6)}"]
        if n <= 13:  return [f"s_add_u32 s{K_KAP}, s{J}, {44 + 4*(n-11)}"] + ([f"s_min_u32 s{K_KAP}, s{K_KAP}, 53"] if n == 13 else [])
        return [f"s_add_u32 s{K_KAP}, s{J}, {54 + 4*(n-14)}"]
    def addr(n): return set_kap(n) + k_addr(None, n >= NH)
    def act(n): return k_act(n % NBUF)[:2] if n >= NH else k_act(n % NBUF)
    lab = a.label("HS")
    assert 0 <= h1pp < LATE - 1 and LATE <= o1pp < o1chk and NH - pf <= o1chk <= NH
    for n in range(NI):
        if n == LATE - 1:
            a.extend(st.now(12))
            a(f"s_waitcnt vmcnt({min(63, e.vm_after(lambda t: t == ('h1',)))})")
            a(f"v_cmp_eq_u32 vcc, s{S_NONCE}, v251\ns_nop 0\ns_cmp_eq_u64 vcc, -1\ns_cbranch_scc1 {lab}_h1k")
            poll_fh(a, lab + "_fh1", K_H1)
            a(f"{lab}_h1k:")
            a.extend(st.now(13))
            for m in range(LATE, n + pf):
                e(set_kap(m) + k_addr(None, False)); e(k_act(m % NBUF), ("act", m))
        if XOPT.get("hst") and 5 <= n <= 11: a.extend(st.now(n - 4))
        if n == o1chk:
            a.extend(st.now(18))
            a(f"s_waitcnt vmcnt({min(63, e.vm_after(lambda t: t == ('o1',)))})")
            a(f"v_cmp_eq_u32 vcc, s{S_NONCE}, v251\ns_nop 0\ns_cmp_eq_u64 vcc, -1\ns_cbranch_scc1 {lab}_o1k")
            a(f"s_lshl_b32 s43, s{K_TB2}, 12\ns_add_u32 s43, s43, {FO}")
            poll(a, 250, 43, -1, 0, lab + "_fo1", 251, off=64)
            a(f"{lab}_o1k:")
            a.extend(st.now(17))
            for m in range(NH, n + pf):
                e(addr(m)); e(act(m), ("act", m))
        w1 = e.vm_after(lambda t: t == ("wt", n)); w2 = e.vm_after(lambda t: t == ("act", n))
        ws_ = [x for x in (w1, w2) if x is not None]
        m = k_mfmas(n % NBUF, n == 0) if n < NH else k_mfmas_o1(n % NBUF)
        ld = []
        nn = n + pf
        if n == h1pp:
            ld += [(f"s_lshl_b32 s43, s{K_TB2}, 14", None), (f"s_add_u32 s43, s43, {FG}", None), ("v_and_b32 v250, 31, v2", None), ("v_lshlrev_b32 v250, 9, v250", None),
                   (f"buffer_load_dword v251, v250, {WS}, s43 offen offset:{K_H1 * 128} sc1", ("h1",))]
        if n == o1pp:
            ld += [(f"s_lshl_b32 s43, s{K_TB2}, 12", None), (f"s_add_u32 s43, s43, {FO}", None), ("v_and_b32 v250, 31, v2", None), ("v_lshlrev_b32 v250, 7, v250", None),
                   (f"buffer_load_dword v251, v250, {WS}, s43 offen offset:64 sc1", ("o1",))]
        if nn < NI:
            ld += [(x, None) for x in addr(nn)] + [(x, ("wt", nn)) for x in k_wt(nn % NBUF)]
            deferred = (LATE <= nn < LATE - 1 + pf) or (NH <= nn < o1chk + pf)
            if not deferred: ld += [(x, ("act", nn)) for x in act(nn)]
        if n == NH - 1:
            for x in ld: e(x[0], x[1])
            w1 = e.vm_after(lambda t: t == ("wt", n)); w2 = e.vm_after(lambda t: t == ("act", n))
            a(f"s_cmp_ge_u32 s{J}, 2\ns_cbranch_scc1 {lab}_skip")
            a(f"s_waitcnt vmcnt({min(63, min(w1, w2))})")
            for x in m: a(x)
            a(f"{lab}_skip:")
            continue
        if ws_: a(f"s_waitcnt vmcnt({min(63, min(ws_))})")
        li = 0
        for x in m:
            a(x)
            if li < len(ld): e(ld[li][0], ld[li][1]); li += 1
        while li < len(ld): e(ld[li][0], ld[li][1]); li += 1

def tail2_loader_reduce(a, st):
    from p3 import ACC as KACC
    a(f"v_lshlrev_b32 v9, 4, v2")
    a("s_nop 7")
    a.extend(st.now(14))
    lds_poll4(a, CT_ATT, "R2_wa", 96)
    a(f"s_sub_u32 s40, s3, 4\ns_mul_i32 s41, s40, 20480\nv_add_u32 v10, s41, v9")
    a(f"s_lshl_b32 s40, s40, 2\ns_add_u32 s40, s40, {CT_H}\nv_mov_b32 v11, s40\nv_mov_b32 v12, 1")
    for t in range(20): a(f"ds_write_b128 v10, v[{KACC+4*t}:{KACC+4*t+3}] offset:{L_R1 + 1024*t}")
    a("s_waitcnt lgkmcnt(0)\nds_write_b32 v11, v12")
    a.extend(st.now(15))
    a("s_waitcnt lgkmcnt(0)\ns_barrier")

def tail2_compute(a, st, opt):
    from p3 import V_XO, V_XO2, K_XO, VX
    WB = lambda n: 96 + 20 * n
    AB = lambda n: 196 + 8 * n
    A2 = 16; HSUM = 56; T1 = 76; S_X2 = 70; VX2 = 250
    def set_kap(n): return [f"s_add_u32 s{K_KAP}, s3, {54 + 4*n}"]
    p3.x_loads(a, SRD_A)
    a(f"s_add_u32 s{S_X2}, s{K_XO}, 40960\ns_cmp_lt_u32 s3, 2\ns_cselect_b32 s{S_X2}, s{S_X2}, s{K_XO}")
    a(f"buffer_load_dwordx4 v[{VX2}:{VX2+3}], v{V_XO}, s[{SRD_A}:{SRD_A+3}], s{S_X2} offen offset:64")
    for n in range(5):
        a.extend(set_kap(n) + k_addr(None, True))
        for ft in range(5):
            a(f"buffer_load_dwordx4 v[{WB(n)+4*ft}:{WB(n)+3+4*ft}], v{V_LA if ft < 4 else V_LA2}, {WS}, s{K_A} offen offset:{(ft%4)*1024} sc1")
    a("s_waitcnt vmcnt(29)")
    a(flag_store(58))
    a.extend(st.now(11))
    poll_fo(a, "FOp")
    a.extend(st.now(13))
    for n in range(5):
        a.extend(set_kap(n) + k_addr(None, True))
        for t in range(2):
            a(f"buffer_load_dwordx4 v[{AB(n)+4*t}:{AB(n)+3+4*t}], v{V_LB}, {WS}, s{K_B1} offen offset:{t*256} sc1")
    a(f"v_lshlrev_b32 v9, 4, v2\ns_mul_i32 s40, s3, 5120\nv_add_u32 v10, s40, v9\nv_add_u32 v11, 40960, v10")
    lds_poll4(a, CT_H, "T2_wh", T1)
    a.extend(st.now(12))
    for j, dst in ((0, HSUM), (1, T1), (2, A2)):
        for ft in range(5): a(f"ds_read_b128 v[{dst+4*ft}:{dst+4*ft+3}], v{10 if j < 2 else 11} offset:{L_R1 + (j % 2) * 20480 + 1024*ft}")
    a("s_waitcnt lgkmcnt(5)")
    for ft in range(5): a(f"ds_read_b128 v[{A2+20+4*ft}:{A2+20+4*ft+3}], v11 offset:{L_R1 + 20480 + 1024*ft}")
    for q in range(20): a(f"v_add_f32 v{HSUM+q}, v{HSUM+q}, v{T1+q}")
    a("s_waitcnt lgkmcnt(5)")
    for q in range(20): a(f"v_add_f32 v{HSUM+q}, v{HSUM+q}, v{A2+q}")
    a("s_waitcnt lgkmcnt(0)")
    for q in range(20): a(f"v_add_f32 v{HSUM+q}, v{HSUM+q}, v{A2+20+q}")
    a(f"v_add_u32 v13, {L_R2}, v9")
    osc = OUT_SC
    for w in range(4):
        if w < 3: a(f"s_cmp_lg_u32 s3, {w}\ns_cbranch_scc1 T2_n{w}")
        nst = 0
        if w < 2:
            for q in range(10): a(f"v_lshlrev_b32 v{T1+2*q}, 16, v{VX+q}\nv_and_b32 v{T1+2*q+1}, 0xffff0000, v{VX+q}")
            for q in range(20): a(f"v_add_f32 v{HSUM+q}, v{HSUM+q}, v{T1+q}")
            for q in range(10): a(f"v_cvt_pk_bf16_f32 v{T1+q}, v{HSUM+2*q}, v{HSUM+2*q+1}")
            a(f"buffer_store_dwordx4 v[{T1}:{T1+3}], v{V_XO}, s[{SRD_B}:{SRD_B+3}], s{K_XO} offen{osc}")
            a(f"buffer_store_dwordx4 v[{T1+4}:{T1+7}], v{V_XO}, s[{SRD_B}:{SRD_B+3}], s{K_XO} offen offset:64{osc}")
            a(f"buffer_store_dwordx2 v[{T1+8}:{T1+9}], v{V_XO2}, s[{SRD_B}:{SRD_B+3}], s{K_XO} offen{osc}")
            nst = 3
        for n in range(5):
            a(f"s_waitcnt vmcnt({2 * (4 - n) + nst})")
            for ft in range(5):
                for t in range(2):
                    ac = A2 + (t * 5 + ft) * 4
                    c = f"v[{ac}:{ac+3}]" if n else (f"v[{HSUM+4*ft}:{HSUM+4*ft+3}]" if t == w - 2 else "0")
                    a(f"v_mfma_f32_16x16x32_bf16 v[{ac}:{ac+3}], v[{WB(n)+4*ft}:{WB(n)+3+4*ft}], v[{AB(n)+4*t}:{AB(n)+3+4*t}], {c}")
        if w == 0: a.extend(st.now(14))
        else: a.extend(st.sync()); a.extend(st.now(14))
        owner = lambda t, ft: (2 + t) if ft in (0, 1, 4) else t
        mine = [(t, ft) for t in range(2) for ft in range(5) if owner(t, ft) == w]
        wr = [(t, ft) for ft in range(5) for t in range(2) if owner(t, ft) != w]
        a("s_nop 7\ns_nop 1")
        for (t, ft) in wr:
            ac = A2 + (t * 5 + ft) * 4
            a(f"ds_write_b128 v13, v[{ac}:{ac+3}] offset:{w * 10240 + (t * 5 + ft) * 1024}")
        a("s_waitcnt lgkmcnt(0)\ns_barrier")
        a.extend(st.now(15))
        tmp = 56
        srcs = [x for x in range(4) if x != w]
        for si, src in enumerate(srcs):
            for k, (t, ft) in enumerate(mine):
                d = tmp + 4 * (si * len(mine) + k)
                a(f"ds_read_b128 v[{d}:{d+3}], v13 offset:{src * 10240 + (t * 5 + ft) * 1024}")
        xs = {}
        for k, (t, ft) in enumerate(mine):
            if w >= 2: src0 = VX + 2 * ft
            else: src0 = VX2 + 2 * (ft - 2)
            u = 96 + 4 * k
            a(f"v_lshlrev_b32 v{u}, 16, v{src0}\nv_and_b32 v{u+1}, 0xffff0000, v{src0}\nv_lshlrev_b32 v{u+2}, 16, v{src0+1}\nv_and_b32 v{u+3}, 0xffff0000, v{src0+1}")
            ac = A2 + (t * 5 + ft) * 4
            for r in range(4): a(f"v_add_f32 v{ac+r}, v{ac+r}, v{u+r}")
        for si in range(3):
            a(f"s_waitcnt lgkmcnt({len(mine) * (2 - si)})")
            for k, (t, ft) in enumerate(mine):
                ac = A2 + (t * 5 + ft) * 4; d = tmp + 4 * (si * len(mine) + k)
                for r in range(4): a(f"v_add_f32 v{ac+r}, v{ac+r}, v{d+r}")
        o = 120
        for k, (t, ft) in enumerate(mine):
            ac = A2 + (t * 5 + ft) * 4
            a(f"v_cvt_pk_bf16_f32 v{o+2*k}, v{ac}, v{ac+1}\nv_cvt_pk_bf16_f32 v{o+2*k+1}, v{ac+2}, v{ac+3}")
        if w >= 2:
            assert [ft for _, ft in mine] == [0, 1, 4]
            a(f"buffer_store_dwordx4 v[{o}:{o+3}], v{V_XO}, s[{SRD_B}:{SRD_B+3}], s{K_XO} offen{osc}")
            a(f"buffer_store_dwordx2 v[{o+4}:{o+5}], v{V_XO2}, s[{SRD_B}:{SRD_B+3}], s{K_XO} offen{osc}")
        else:
            assert [ft for _, ft in mine] == [2, 3]
            a(f"buffer_store_dwordx4 v[{o}:{o+3}], v{V_XO}, s[{SRD_B}:{SRD_B+3}], s{S_X2} offen offset:64{osc}")
        a("s_branch F_fin")
        if w < 3: a(f"T2_n{w}:")

CT_HB = 64
def o_regs(m):
    if m < 4:
        b = BUF + 36 * ((m + 2) % 4)
        return [b + 4 * ft for ft in range(5)], [b + 20, b + 24]
    sp = [BUF + 36 * k + 28 for k in range(4)]
    return [sp[0], sp[0] + 4, sp[1], sp[1] + 4, sp[2]], [sp[2] + 4, sp[3]]
def o_wt(m):
    w, _ = o_regs(m)
    return [f"buffer_load_dwordx4 v[{w[ft]}:{w[ft]+3}], v{V_LA if ft < 4 else V_LA2}, {WS}, s{K_A} offen offset:{(ft%4)*1024} sc1" for ft in range(5)]
def o_act(m, half):
    _, c = o_regs(m)
    return [f"buffer_load_dwordx4 v[{c[t]}:{c[t]+3}], v{V_LB}, {WS}, s{K_B1 if half else K_B0} offen offset:{t*256} sc1" for t in range(2)]
def o_mfma(m, half):
    from p3 import ACC as KACC
    w, c = o_regs(m)
    L = []
    for ft in range(5):
        for t in range(2):
            ac = KACC + ((2 * half + t) * 5 + ft) * 4
            L.append(f"v_mfma_f32_16x16x32_bf16 v[{ac}:{ac+3}], v[{w[ft]}:{w[ft]+3}], v[{c[t]}:{c[t]+3}], v[{ac}:{ac+3}]")
    return L
def h_stream_main3(a, e, st, h1pp, o1pp, o1chk):
    from p3 import ACC as KACC
    J = 57; NH = 14; pf = 3; LATE = 5
    def set_kap(n):
        if n <= 4:   return [f"s_add_u32 s{K_KAP}, s56, {8*n}"]
        if n == 5:   return [f"s_mov_b32 s{K_KAP}, s55"]
        if n <= 10:  return [f"s_add_u32 s{K_KAP}, s54, {8*(n-6)}"]
        return [f"s_add_u32 s{K_KAP}, s{J}, {44 + 4*(n-11)}"] + ([f"s_min_u32 s{K_KAP}, s{K_KAP}, 53"] if n == 13 else [])
    def oaddr(m): return [f"s_add_u32 s{K_KAP}, s{J}, {54 + 4*m}"] + k_addr(None, True)
    lab = a.label("HS")
    assert 0 <= h1pp < LATE - 1 and LATE <= o1pp < o1chk and 11 <= o1chk <= NH
    def o1_check():
        a(f"s_waitcnt vmcnt({min(63, e.vm_after(lambda t: t == ('o1',)))})")
        a(f"v_cmp_eq_u32 vcc, s{S_NONCE}, v251\ns_nop 0\ns_cmp_eq_u64 vcc, -1\ns_cbranch_scc1 {lab}_o1k")
        a(f"s_lshl_b32 s43, s{K_TB2}, 12\ns_add_u32 s43, s43, {FO}")
        poll(a, 250, 43, -1, 0, lab + "_fo1", 251, off=64)
        a(f"{lab}_o1k:")
        a.extend(st.now(17))
    for n in range(NH):
        if n == LATE - 1:
            a.extend(st.now(12))
            a(f"s_waitcnt vmcnt({min(63, e.vm_after(lambda t: t == ('h1',)))})")
            a(f"v_cmp_eq_u32 vcc, s{S_NONCE}, v251\ns_nop 0\ns_cmp_eq_u64 vcc, -1\ns_cbranch_scc1 {lab}_h1k")
            poll_fh(a, lab + "_fh1", K_H1)
            a(f"{lab}_h1k:")
            a.extend(st.now(13))
            for m in range(LATE, n + pf):
                e(set_kap(m) + k_addr(None, False)); e(k_act(m % NBUF), ("act", m))
        if n == o1chk:
            o1_check()
            for m in range(0, n - 11):
                e(oaddr(m)); e(o_act(m, 0), ("oa", m))
        w1 = e.vm_after(lambda t: t == ("wt", n)); w2 = e.vm_after(lambda t: t == ("act", n))
        ws_ = [x for x in (w1, w2) if x is not None]
        mf = k_mfmas(n % NBUF, n == 0)
        ld = []
        nn = n + pf
        if n == h1pp:
            ld += [(f"s_lshl_b32 s43, s{K_TB2}, 14", None), (f"s_add_u32 s43, s43, {FG}", None), ("v_and_b32 v250, 31, v2", None), ("v_lshlrev_b32 v250, 9, v250", None),
                   (f"buffer_load_dword v251, v250, {WS}, s43 offen offset:{K_H1 * 128} sc1", ("h1",))]
        if n == o1pp:
            ld += [(f"s_lshl_b32 s43, s{K_TB2}, 12", None), (f"s_add_u32 s43, s43, {FO}", None), ("v_and_b32 v250, 31, v2", None), ("v_lshlrev_b32 v250, 7, v250", None),
                   (f"buffer_load_dword v251, v250, {WS}, s43 offen offset:64 sc1", ("o1",))]
        if nn < NH:
            ld += [(x, None) for x in set_kap(nn) + k_addr(None, False)] + [(x, ("wt", nn)) for x in k_wt(nn % NBUF)]
            if not (LATE <= nn < LATE - 1 + pf): ld += [(x, ("act", nn)) for x in k_act(nn % NBUF)]
        else:
            m = nn - NH
            ld += [(x, None) for x in oaddr(m)] + [(x, ("ow", m)) for x in o_wt(m)]
            if n >= o1chk: ld += [(x, ("oa", m)) for x in o_act(m, 0)]
        if n == NH - 1:
            for x in ld: e(x[0], x[1])
            w1 = e.vm_after(lambda t: t == ("wt", n)); w2 = e.vm_after(lambda t: t == ("act", n))
            a(f"s_cmp_ge_u32 s{J}, 2\ns_cbranch_scc1 {lab}_skip")
            a(f"s_waitcnt vmcnt({min(63, min(w1, w2))})")
            for x in mf: a(x)
            a(f"{lab}_skip:")
            continue
        if ws_: a(f"s_waitcnt vmcnt({min(63, min(ws_))})")
        li = 0
        for x in mf:
            a(x)
            if li < len(ld): e(ld[li][0], ld[li][1]); li += 1
        while li < len(ld): e(ld[li][0], ld[li][1]); li += 1
    if o1chk == NH:
        o1_check()
        for m in range(3): e(oaddr(m)); e(o_act(m, 0), ("oa", m))
    for m in (3, 4):
        e(oaddr(m)); e(o_wt(m), ("ow", m)); e(o_act(m, 0), ("oa", m))
    e([f"s_lshl_b32 s43, s{K_TB2}, 12", f"s_add_u32 s43, s43, {FO}", "v_and_b32 v250, 31, v2", "v_lshlrev_b32 v250, 7, v250"])
    a.extend(st.now(14))
    for m in range(5):
        w1 = e.vm_after(lambda t: t == ("ow", m)); w2 = e.vm_after(lambda t: t == ("oa", m))
        a(f"s_waitcnt vmcnt({min(63, min(w1, w2))})")
        if m == XOPT.get("o2pp", 3): a(f"buffer_load_dword v251, v250, {WS}, s43 offen sc1"); e.vm.append(("o2",))
        for x in o_mfma(m, 0): a(x)
    a(f"v_lshlrev_b32 v9, 4, v2")
    lds_poll4(a, CT_ATT, "R3_wa", 8 + 2)
    a(f"s_sub_u32 s40, s3, 4\ns_mul_i32 s41, s40, 20480\nv_add_u32 v10, s41, v9")
    a(f"s_lshl_b32 s40, s40, 2\ns_add_u32 s41, s40, {CT_H}\nv_mov_b32 v11, s41\nv_mov_b32 v12, 1\ns_add_u32 s41, s40, {CT_HB}\nv_mov_b32 v13, s41")
    a(f"s_waitcnt vmcnt({min(63, e.vm_after(lambda t: t == ('o2',)))})")
    a(f"v_cmp_eq_u32 vcc, s{S_NONCE}, v251\ns_nop 0\ns_cmp_eq_u64 vcc, -1\ns_cbranch_scc1 {lab}_o2e")
    for t in range(10): a(f"ds_write_b128 v10, v[{KACC+4*t}:{KACC+4*t+3}] offset:{L_R1 + 1024*t}")
    a("s_waitcnt lgkmcnt(0)\nds_write_b32 v11, v12")
    poll(a, 250, 43, -1, 0, lab + "_fo2", 251, off=0)
    a.extend(st.now(18))
    for m in range(5):
        for x in oaddr(m) + o_act(m, 1): a(x)
    a(f"s_branch {lab}_o2j")
    a(f"{lab}_o2e:")
    a.extend(st.now(18))
    for m in range(5):
        for x in oaddr(m) + o_act(m, 1): a(x)
    for t in range(10): a(f"ds_write_b128 v10, v[{KACC+4*t}:{KACC+4*t+3}] offset:{L_R1 + 1024*t}")
    a("s_waitcnt lgkmcnt(0)\nds_write_b32 v11, v12")
    a(f"{lab}_o2j:")
    for m in range(5):
        a(f"s_waitcnt vmcnt({2 * (4 - m)})")
        for x in o_mfma(m, 1): a(x)
    a.extend(st.now(19))
    a("s_nop 7\ns_nop 1")
    for ft in range(5):
        for t in range(2):
            k = (2 + t) * 5 + ft
            a(f"ds_write_b128 v10, v[{KACC+4*k}:{KACC+4*k+3}] offset:{L_R1 + 1024*k}")
    a.extend(st.now(15))
    a("s_waitcnt lgkmcnt(0)\ns_barrier")

def o_regs4(m):
    sp = [BUF + 36 * k + 28 for k in range(4)]
    if m < 4:
        b = BUF + 36 * ((m + 2) % 4)
        c = [b + 20, b + 24]
        return [b + 4 * ft for ft in range(5)], c, ([sp[1], sp[1] + 4] if m == 3 else c)
    c = [sp[0], sp[0] + 4]
    return [sp[2], sp[2] + 4, sp[3], sp[3] + 4, 240], c, c
def o_wt4(m):
    w = o_regs4(m)[0]
    return [f"buffer_load_dwordx4 v[{w[ft]}:{w[ft]+3}], v{V_LA if ft < 4 else V_LA2}, {WS}, s{K_A} offen offset:{(ft%4)*1024} sc1" for ft in range(5)]
def o_act4(m, half):
    c = o_regs4(m)[1 + half]
    return [f"buffer_load_dwordx4 v[{c[t]}:{c[t]+3}], v{V_LB}, {WS}, s{K_B1 if half else K_B0} offen offset:{t*256} sc1" for t in range(2)]
def o_mfma4(m, half):
    from p3 import ACC as KACC
    w = o_regs4(m)[0]; c = o_regs4(m)[1 + half]
    L = []
    for ft in range(5):
        for t in range(2):
            ac = KACC + ((2 * half + t) * 5 + ft) * 4
            L.append(f"v_mfma_f32_16x16x32_bf16 v[{ac}:{ac+3}], v[{w[ft]}:{w[ft]+3}], v[{c[t]}:{c[t]+3}], v[{ac}:{ac+3}]")
    return L
def h_stream_main4(a, e, st, h1pp, o1pp, o1chk, o2at):
    from p3 import ACC as KACC
    J = 57; NH = 14; pf = 3; LATE = 5
    def set_kap(n):
        if n <= 4:   return [f"s_add_u32 s{K_KAP}, s56, {8*n}"]
        if n == 5:   return [f"s_mov_b32 s{K_KAP}, s55"]
        if n <= 10:  return [f"s_add_u32 s{K_KAP}, s54, {8*(n-6)}"]
        return [f"s_add_u32 s{K_KAP}, s{J}, {44 + 4*(n-11)}"] + ([f"s_min_u32 s{K_KAP}, s{K_KAP}, 53"] if n == 13 else [])
    def oaddr(m): return [f"s_add_u32 s{K_KAP}, s{J}, {54 + 4*m}"] + k_addr(None, True)
    lab = a.label("HS")
    assert 0 <= h1pp < LATE - 1 and LATE <= o1pp < o1chk and 12 <= o1chk <= NH and o2at in (12, 13)
    FOA = [f"s_lshl_b32 s43, s{K_TB2}, 12", f"s_add_u32 s43, s43, {FO}"]
    def o1_check():
        a(f"s_waitcnt vmcnt({min(63, e.vm_after(lambda t: t == ('o1',)))})")
        a(f"v_cmp_eq_u32 vcc, s{S_NONCE}, v251\ns_nop 0\ns_cmp_eq_u64 vcc, -1\ns_cbranch_scc1 {lab}_o1k")
        for x in FOA: a(x)
        poll(a, 250, 43, -1, 0, lab + "_fo1", 251, off=64)
        a(f"{lab}_o1k:")
        a.extend(st.now(17))
    wt_done = []; act_done = []
    for n in range(NH):
        if n == LATE - 1:
            a.extend(st.now(12))
            a(f"s_waitcnt vmcnt({min(63, e.vm_after(lambda t: t == ('h1',)))})")
            a(f"v_cmp_eq_u32 vcc, s{S_NONCE}, v251\ns_nop 0\ns_cmp_eq_u64 vcc, -1\ns_cbranch_scc1 {lab}_h1k")
            poll_fh(a, lab + "_fh1", K_H1)
            a(f"{lab}_h1k:")
            a.extend(st.now(13))
            for m in range(LATE, n + pf):
                e(set_kap(m) + k_addr(None, False)); e(k_act(m % NBUF), ("act", m))
        if n == o1chk:
            o1_check()
            for m in wt_done:
                if m == 4 and n < 13: continue
                e(oaddr(m)); e(o_act4(m, 0), ("oa", m)); act_done.append(m)
        w1 = e.vm_after(lambda t: t == ("wt", n)); w2 = e.vm_after(lambda t: t == ("act", n))
        ws_ = [x for x in (w1, w2) if x is not None]
        mf = k_mfmas(n % NBUF, n == 0)
        ld = []
        nn = n + pf
        if n == h1pp:
            ld += [(f"s_lshl_b32 s43, s{K_TB2}, 14", None), (f"s_add_u32 s43, s43, {FG}", None), ("v_and_b32 v250, 31, v2", None), ("v_lshlrev_b32 v250, 9, v250", None),
                   (f"buffer_load_dword v251, v250, {WS}, s43 offen offset:{K_H1 * 128} sc1", ("h1",))]
        if n == o1pp:
            ld += [(x, None) for x in FOA] + [("v_and_b32 v250, 31, v2", None), ("v_lshlrev_b32 v250, 7, v250", None),
                   (f"buffer_load_dword v251, v250, {WS}, s43 offen offset:64 sc1", ("o1",))]
        if nn < NH:
            ld += [(x, None) for x in set_kap(nn) + k_addr(None, False)] + [(x, ("wt", nn)) for x in k_wt(nn % NBUF)]
            if not (LATE <= nn < LATE - 1 + pf): ld += [(x, ("act", nn)) for x in k_act(nn % NBUF)]
        else:
            m = nn - NH
            ld += [(x, None) for x in oaddr(m)] + [(x, ("ow", m)) for x in o_wt4(m)]; wt_done.append(m)
            if n >= o1chk: ld += [(x, ("oa", m)) for x in o_act4(m, 0)]; act_done.append(m)
            if n == 12:
                ld += [(x, None) for x in oaddr(4)] + [(x, ("ow", 4)) for x in o_wt4(4)]; wt_done.append(4)
            if n == 13 and n >= o1chk and 4 not in act_done:
                ld += [(x, None) for x in oaddr(4)] + [(x, ("oa", 4)) for x in o_act4(4, 0)]; act_done.append(4)
        if n == o2at:
            ld += [(x, None) for x in FOA] + [("v_and_b32 v248, 31, v2", None), ("v_lshlrev_b32 v248, 7, v248", None),
                   (f"buffer_load_dword v249, v248, {WS}, s43 offen sc1", ("o2",))]
        if n == NH - 1:
            for x in ld: e(x[0], x[1])
            w1 = e.vm_after(lambda t: t == ("wt", n)); w2 = e.vm_after(lambda t: t == ("act", n))
            a(f"s_cmp_ge_u32 s{J}, 2\ns_cbranch_scc1 {lab}_skip")
            a(f"s_waitcnt vmcnt({min(63, min(w1, w2))})")
            for x in mf: a(x)
            a(f"{lab}_skip:")
            continue
        if ws_: a(f"s_waitcnt vmcnt({min(63, min(ws_))})")
        li = 0
        for x in mf:
            a(x)
            if li < len(ld): e(ld[li][0], ld[li][1]); li += 1
        while li < len(ld): e(ld[li][0], ld[li][1]); li += 1
    e(oaddr(3)); e(o_wt4(3), ("ow", 3))
    if o1chk == NH: o1_check()
    e(oaddr(3)); e(o_act4(3, 0), ("oa", 3)); act_done.append(3)
    for m in (0, 1, 2, 4):
        if m not in act_done: e(oaddr(m)); e(o_act4(m, 0), ("oa", m)); act_done.append(m)
    a.extend(st.now(14))
    ORDER = (4, 0, 1, 2, 3)
    base = {m: min(e.vm_after(lambda t: t == ("ow", m)), e.vm_after(lambda t: t == ("oa", m))) for m in ORDER}
    def partial_setup(tag):
        a(f"v_lshlrev_b32 v9, 4, v2")
        lds_poll4(a, CT_ATT, f"R3_wa{tag}", 8 + 2)
        a(f"s_sub_u32 s40, s3, 4\ns_mul_i32 s41, s40, 20480\nv_add_u32 v10, s41, v9")
        a(f"s_lshl_b32 s40, s40, 2\ns_add_u32 s41, s40, {CT_H}\nv_mov_b32 v11, s41\nv_mov_b32 v12, 1")
        a("s_nop 7\ns_nop 1")
        for t in range(10): a(f"ds_write_b128 v10, v[{KACC+4*t}:{KACC+4*t+3}] offset:{L_R1 + 1024*t}")
        a("s_waitcnt lgkmcnt(0)\nds_write_b32 v11, v12")
    a(f"s_waitcnt vmcnt({min(63, e.vm_after(lambda t: t == ('o2',)))})")
    a(f"v_cmp_eq_u32 vcc, s{S_NONCE}, v249\ns_nop 0\ns_cmp_eq_u64 vcc, -1\ns_cbranch_scc0 {lab}_slow")
    a.extend(st.now(18))
    for x in oaddr(3) + o_act4(3, 1): a(x)
    extra = 2
    for m in ORDER:
        a(f"s_waitcnt vmcnt({min(63, base[m] + extra)})")
        for x in o_mfma4(m, 0): a(x)
        if m != 3:
            for x in oaddr(m) + o_act4(m, 1): a(x)
            extra += 2
    partial_setup("f")
    a(f"s_branch {lab}_join")
    a(f"{lab}_slow:")
    for m in ORDER:
        a(f"s_waitcnt vmcnt({min(63, base[m])})")
        for x in o_mfma4(m, 0): a(x)
    partial_setup("s")
    for x in FOA: a(x)
    a("v_mov_b32 v250, v248")
    poll(a, 250, 43, -1, 0, lab + "_fo2", 251, off=0)
    a.extend(st.now(18))
    for m in (3, 4, 0, 1, 2):
        for x in oaddr(m) + o_act4(m, 1): a(x)
    a(f"{lab}_join:")
    for i, m in enumerate((3, 4, 0, 1, 2)):
        a(f"s_waitcnt vmcnt({2 * (4 - i)})")
        for x in o_mfma4(m, 1): a(x)
    a.extend(st.now(19))
    a("s_nop 7\ns_nop 1")
    for ft in range(5):
        for t in range(2):
            k = (2 + t) * 5 + ft
            a(f"ds_write_b128 v10, v[{KACC+4*k}:{KACC+4*k+3}] offset:{L_R1 + 1024*k}")
    a.extend(st.now(15))
    a("s_waitcnt lgkmcnt(0)\ns_barrier")

def tail3_compute(a, st, opt):
    from p3 import V_XO, V_XO2, K_XO
    VXP = 240; VXQ = 246; S_XQ = 70
    a(f"buffer_load_dwordx4 v[{VXP}:{VXP+3}], v{V_XO}, s[{SRD_A}:{SRD_A+3}], s{K_XO} offen")
    a(f"buffer_load_dwordx2 v[{VXP+4}:{VXP+5}], v{V_XO2}, s[{SRD_A}:{SRD_A+3}], s{K_XO} offen")
    a(f"s_add_u32 s{S_XQ}, s{K_XO}, 40960\ns_sub_u32 s41, s{K_XO}, 40960\ns_cmp_lt_u32 s3, 2\ns_cselect_b32 s{S_XQ}, s{S_XQ}, s41")
    a(f"buffer_load_dwordx4 v[{VXQ}:{VXQ+3}], v{V_XO}, s[{SRD_A}:{SRD_A+3}], s{S_XQ} offen offset:64")
    a("s_waitcnt vmcnt(3)")
    a(flag_store(58))
    a.extend(st.now(11))
    osc = OUT_SC
    a(f"v_lshlrev_b32 v9, 4, v2\nv_add_u32 v11, 40960, v9")
    def fin(w, kind, lab):
        tt = w if kind == "P" else w ^ 2
        fts = [0, 1, 4] if kind == "P" else [2, 3]
        nf = len(fts); T = 16
        for j in range(4):
            for k, ft in enumerate(fts):
                d = T + 4 * (j * nf + k)
                a(f"ds_read_b128 v[{d}:{d+3}], v{9 if j < 2 else 11} offset:{L_R1 + (j % 2) * 20480 + (tt * 5 + ft) * 1024}")
        X = 80; vx = VXP if kind == "P" else VXQ
        for q in range(2 * nf): a(f"v_lshlrev_b32 v{X+2*q}, 16, v{vx+q}\nv_and_b32 v{X+2*q+1}, 0xffff0000, v{vx+q}")
        for j in range(4):
            a(f"s_waitcnt lgkmcnt({nf * (3 - j)})")
            for q in range(4 * nf): a(f"v_add_f32 v{X+q}, v{X+q}, v{T + 4*j*nf + q}")
        o = 96
        for q in range(2 * nf): a(f"v_cvt_pk_bf16_f32 v{o+q}, v{X+2*q}, v{X+2*q+1}")
        if kind == "P":
            a(f"buffer_store_dwordx4 v[{o}:{o+3}], v{V_XO}, s[{SRD_B}:{SRD_B+3}], s{K_XO} offen{osc}")
            a(f"buffer_store_dwordx2 v[{o+4}:{o+5}], v{V_XO2}, s[{SRD_B}:{SRD_B+3}], s{K_XO} offen{osc}")
        else:
            a(f"buffer_store_dwordx4 v[{o}:{o+3}], v{V_XO}, s[{SRD_B}:{SRD_B+3}], s{S_XQ} offen offset:64{osc}")
    lds_poll4(a, CT_H, "T3_wh", 16)
    a.extend(st.now(12))
    a("s_waitcnt vmcnt(0)")
    for w in range(4):
        if w < 3: a(f"s_cmp_lg_u32 s3, {w}\ns_cbranch_scc1 T3_n{w}")
        fin(w, "P" if w < 2 else "Q", f"T3a{w}")
        a.extend(st.now(13))
        a("s_barrier")
        a.extend(st.now(15))
        fin(w, "Q" if w < 2 else "P", f"T3b{w}")
        a("s_branch F_fin")
        if w < 3: a(f"T3_n{w}:")

XOPT = {}
def kernel(name, stamps=False, opt=None):
    XOPT.clear(); XOPT.update(opt or {})
    opt = opt or {}
    p1.ORD = opt.get("ord", 0)
    global OUT_SC, NO_BV, X4
    X4 = None
    X4_NODMA[0] = opt.get("x4nodma", 0)
    if opt.get("front", 0) == 4:
        X4 = dict(nx=opt.get("nx", 4), xe=opt.get("xe", 0), bar0=opt.get("bar0", 8), bar0_n=opt.get("bar0_n", 160),
                  nb0=opt.get("nb0", 3), corr=opt.get("corr", 0))
    NO_BV = opt.get("tail", 0) == 1
    OUT_SC = {0: "", 1: " sc1", 2: " sc0 sc1", 3: " nt", 4: " sc1 nt", 5: " sc0 sc1 nt"}[opt.get("osc", 0)]
    a = Asm()
    st = Stamper(stamps, bool(opt.get("cyc")))
    a(kernel_begin(name))
    a("s_cmp_ge_u32 s2, 256\ns_cbranch_scc1 F_exit")
    XIT = opt.get("xit", 0)
    if XIT == 1 and not stamps: a("s_branch F_exit")
    a("s_load_dwordx16 s[4:19], s[0:1], 0\ns_load_dwordx4 s[20:23], s[0:1], 64\ns_memrealtime s[46:47]")
    a("v_lshrrev_b32 v1, 6, v0\nv_and_b32 v2, 63, v0\nv_readfirstlane_b32 s3, v1")
    a("s_waitcnt lgkmcnt(0)")
    FRONT = opt.get("front", 0)
    if FRONT == 0: p0.p0_x_loads(a)
    elif FRONT in (3, 4):
        srd(a, p0.SRD_A, P_X, S * D * 2)
        p1.IL0 = 1
    else:
        srd(a, p0.SRD_A, P_X, S * D * 2)
        a("s_cmp_ge_u32 s3, 4\ns_cbranch_scc1 F_nx")
        p0.ln2_loads(a)
        a("F_nx:")
    srd(a, SRD_WS, P_WS, WS_BYTES)
    if stamps:
        a(f"v_mov_b32 v{V_STAMP}, 0\nv_writelane_b32 v{V_STAMP}, s46, 0")
        if opt.get("cyc"): a.extend(st.now(17))
    srd(a, SRD_C, P_DBG, 256)
    a("s_cmp_lg_u32 s3, 3\ns_cbranch_scc1 F_n0")
    a("s_cmp_lg_u32 s2, 0\ns_cbranch_scc1 F_n0")
    a(f"s_or_b32 s46, s46, 1\nv_mov_b32 v4, s46\nv_mov_b32 v5, 0\ns_mov_b64 exec, 1\nbuffer_store_dword v4, v5, s[{SRD_C}:{SRD_C+3}], 0 offen sc1\ns_mov_b64 exec, -1")
    a("F_n0:")
    p1.setup_common(a)
    a("s_cmp_ge_u32 s3, 4\ns_cbranch_scc1 F_ldr0")
    def get_nonce():
        a(f"v_cmp_eq_u32 vcc, 0, v2\nv_mov_b32 v15, {CT_NONCE}\nv_mov_b32 v{V_Z}, 0x80000000\nds_read_b32 v{V_NONCE}, v15\nv_cndmask_b32 v{V_Z}, v{V_Z}, 0, vcc")
        a(f"s_waitcnt lgkmcnt(0)\nv_readfirstlane_b32 s{S_NONCE}, v{V_NONCE}")
    def nonce_spin():
        a(f"s_mov_b32 s{S_SPIN}, {SPIN}\nv_mov_b32 v5, 0")
        a(f"F_np:\nbuffer_load_dword v4, v5, s[{SRD_C}:{SRD_C+3}], 0 offen sc1\ns_waitcnt vmcnt(0)\nv_readfirstlane_b32 s40, v4\ns_cmp_lg_u32 s40, 0\ns_cbranch_scc1 F_np1")
        a(f"s_sub_u32 s{S_SPIN}, s{S_SPIN}, 1\ns_cmp_lg_u32 s{S_SPIN}, 0\ns_cbranch_scc1 F_np")
    if FRONT in (3, 4): pass
    elif FRONT < 2:
        a("s_cmp_lg_u32 s3, 0\ns_cbranch_scc1 F_c0")
        a("v_mov_b32 v4, 0\nv_lshlrev_b32 v5, 2, v2\nds_write_b32 v5, v4")
        a("F_c0:")
        a("s_waitcnt vmcnt(0)")
        a.extend(st.now(1))
        if FRONT == 0: p0.p0_ln(a)
        else: p0.ln2(a)
        a("s_waitcnt lgkmcnt(0)\ns_barrier")
        p0.p0_xn_stores(a, "sc1")
        a("s_cmp_lg_u32 s3, 3\ns_cbranch_scc1 F_c1")
        nonce_spin()
        a(f"F_np1:\nv_mov_b32 v5, {CT_NONCE}\nds_write_b32 v5, v4")
        a("F_c1:")
        a("s_waitcnt vmcnt(0) lgkmcnt(0)")
        a.extend(st.now(2))
        a("s_barrier")
        get_nonce()
        a("s_cmp_lg_u32 s3, 0\ns_cbranch_scc1 F_c2")
        a(f"s_lshl_b32 s40, s2, 7\ns_add_u32 s40, s40, {FX}")
        a(flag_store(40))
        a("F_c2:")
    else:
        a("s_cmp_lg_u32 s3, 0\ns_cbranch_scc1 F_c0")
        a("v_mov_b32 v4, 0\nv_lshlrev_b32 v5, 2, v2\ns_mov_b64 exec, -2\nds_write_b32 v5, v4\ns_mov_b64 exec, -1")
        a("F_c0:")
        a("s_waitcnt vmcnt(0)")
        a.extend(st.now(1))
        p0.ln2(a)
        a.extend(st.now(18))
        a("s_waitcnt lgkmcnt(0)\ns_barrier")
        a.extend(st.now(19))
        a(f"v_mov_b32 v5, 0\nbuffer_load_dword v46, v5, s[{SRD_C}:{SRD_C+3}], 0 offen sc1")
        p0.p0_xn_stores(a, "sc1")
        a("s_barrier")
        a(f"v_cmp_eq_u32 vcc, 0, v2\nv_mov_b32 v{V_Z}, 0x80000000")
        a(f"s_lshl_b32 s41, s2, 5\ns_add_u32 s41, s41, s3\ns_lshl_b32 s41, s41, 2\ns_add_u32 s41, s41, {FX}")
        a(f"v_cndmask_b32 v{V_Z}, v{V_Z}, 0, vcc")
        a("s_waitcnt vmcnt(0)")
        a.extend(st.now(20))
        if stamps: a(f"s_mov_b32 s{S_SPIN}, {SPIN}")
        a("v_mov_b32 v4, v46\nv_readfirstlane_b32 s40, v46\ns_cmp_lg_u32 s40, 0\ns_cbranch_scc1 F_np1")
        nonce_spin()
        a(f"F_np1:\nv_mov_b32 v{V_NONCE}, v4\ns_mov_b32 s{S_NONCE}, s40")
        a(flag_store(41))
        if stamps: a(f"s_sub_u32 s42, {SPIN+1}, s{S_SPIN}\nv_writelane_b32 v{V_STAMP}, s42, 21")
        a("s_cmp_lg_u32 s3, 3\ns_cbranch_scc1 F_c1")
        a(f"v_mov_b32 v5, {CT_NONCE}\nds_write_b32 v5, v4\ns_waitcnt lgkmcnt(0)")
        a("F_c1:")
        a.extend(st.now(2))
    if XIT == 2: a("s_waitcnt vmcnt(0)\ns_branch F_fin")
    metas = {}
    a(f"s_cmp_ge_u32 s{S_FB}, 11\ns_cbranch_scc1 F_cC\ns_cmp_ge_u32 s{S_FB}, 8\ns_cbranch_scc1 F_cB")
    for ty in "ABC":
        a(f"F_c{ty}:")
        if FRONT == 3:
            Pp = ring_plan(ty)
            x_batch1(a, Pp)
            setup_compute(a, ty)
            x_columns(a, Pp, st, opt)
            metas[ty] = gen_compute(a, ty, st, opt)
            a("s_branch F_att")
            continue
        if FRONT == 4:
            Pp = ring_plan(ty)
            x4_batch1(a, Pp)
            setup_compute(a, ty)
            x4_setup(a, Pp)
            metas[ty] = gen_compute(a, ty, st, opt)
            a("s_branch F_att")
            continue
        setup_compute(a, ty)
        if FRONT < 2:
            a(f"s_lshl_b32 s43, s{S_T32}, 9\ns_add_u32 s43, s43, {FX}\nv_lshlrev_b32 v16, 7, v2")
            poll(a, 16, 43, 0xf, 0, f"FXp{ty}", 17)
        else:
            a(f"s_lshl_b32 s43, s{S_T32}, 9\ns_add_u32 s43, s43, {FX}\nv_lshrrev_b32 v16, 2, v2\nv_lshlrev_b32 v16, 7, v16\nv_and_b32 v17, 3, v2\nv_lshl_add_u32 v16, v17, 2, v16")
            poll(a, 16, 43, 0xffff, 0, f"FXp{ty}", 17)
        a.extend(st.now(3))
        metas[ty] = gen_compute(a, ty, st, opt)
        a("s_branch F_att")
    a("F_att:")
    if opt.get("prio_att"): a(f"s_setprio {opt['prio_att']}")
    a.extend(st.now(9))
    p2.attn_params(a)
    a(f"s_mov_b32 s{p2.A_QSEL}, 0\ns_mov_b32 s{p2.A_HH}, s3")
    p2.attn_setup(a)
    global H1_EARLY
    H1_EARLY = opt.get("h1early", 0)
    if H1_EARLY:
        a("s_waitcnt vmcnt(0)")
        a(flag_store(S_FL, K_H1 * 128))
    a("s_barrier")
    if XIT == 3: a("s_waitcnt vmcnt(0)\ns_branch F_fin")
    a.extend(st.now(10))
    if opt.get("nt"):
        a(f"s_lshl_b32 s40, s{p2.A_TB2}, 3\ns_add_u32 s40, s40, s{p2.A_HQ}\ns_lshl_b32 s40, s40, 2\ns_add_u32 s40, s40, s3\ns_lshl_b32 s40, s40, 7\ns_add_u32 s58, s40, {FO}")
    a("s_mov_b32 s59, 0")
    a("F_task:")
    attn_task(a, "AT", st)
    a(f"s_cmp_lg_u32 s59, 0\ns_cbranch_scc1 F_att_done")
    if opt.get("xst"): a.extend(st.now(18))
    a(f"s_mov_b32 s59, 1\ns_mov_b32 s{p2.A_QSEL}, 1")
    a(f"v_add_u32 v{p2.V_AK}, 5120, v{p2.V_AK}\nv_add_u32 v{p2.V_AS}, 5120, v{p2.V_AS}\nv_lshl_add_u32 v{p2.V_AV}, v{p2.V_SV}, 1, v{p2.V_AV}")
    a("s_branch F_task")
    a("F_att_done:")
    if opt.get("xst"): st.prev = None; a.extend(st.now(19))
    if opt.get("prio_att") and not opt.get("prio_keep"): a("s_setprio 0")
    a(f"s_lshl_b32 s40, s3, 2\ns_add_u32 s40, s40, {CT_ATT}\nv_mov_b32 v4, s40\nv_mov_b32 v5, 1\nds_write_b32 v4, v5")
    a(f"s_lshl_b32 s40, s{p2.A_TB2}, 3\ns_add_u32 s40, s40, s{p2.A_HQ}\ns_lshl_b32 s40, s40, 2\ns_add_u32 s40, s40, s3\ns_lshl_b32 s40, s40, 7\ns_add_u32 s58, s40, {FO}")
    k3_setup(a)
    srd(a, SRD_A, P_X, S * D * 2)
    srd(a, SRD_B, P_OUT, S * D * 2)
    if opt.get("nt") in (2, 3):
        tail3_compute(a, st, opt)
    elif opt.get("nt"):
        tail2_compute(a, st, opt)
    else:
        a("s_waitcnt vmcnt(0)")
        a(flag_store(58))
        a.extend(st.now(11))
        p3.x_loads(a, SRD_A)
        o_stream(a, st)
        a("s_branch F_red")
    a("F_ldr0:")
    a(f"s_cmp_ge_u32 s{S_FB}, 11\ns_cbranch_scc1 F_lC\ns_cmp_ge_u32 s{S_FB}, 8\ns_cbranch_scc1 F_lB")
    for ty in "ABC":
        P = metas[ty]
        a(f"F_l{ty}:")
        tmp = Asm(); p1.setup_loader(tmp, ty)
        for l in tmp.lines:
            a(re.sub(r"\bv1([345])\b", lambda m: "v" + str(20 + int(m.group(1)) - 3), l))
        opt["_ty"] = ty
        if FRONT == 0:
            for s in range(NSLOT): loader_issue(a, P, s)
            npf = weight_prefetch(a, ty) if opt.get("wpf", 1) else 0
            srd(a, WT_SRD_D, P_D, F * D * 2)
            srd(a, WT_SRD_O, P_WO, D * D * 2)
            a(f"s_waitcnt vmcnt({32 + npf})")
            a.extend(st.now(1))
            p0.p0_ln(a)
            a("s_waitcnt lgkmcnt(0)\ns_barrier")
            a("s_barrier")
            get_nonce()
            a.extend(st.now(2))
        elif FRONT == 3:
            srd(a, WT_SRD_D, P_D, F * D * 2)
            srd(a, WT_SRD_O, P_WO, D * D * 2)
            if opt.get("epf", 0) >= 1: weight_prefetch(a, ty, "first")
            n1 = opt.get("pre_ln", 1); n2 = opt.get("pre_x", 2)
            assert n1 <= n2 <= 2 and opt.get("wt2_at", -1) >= 0 and opt.get("wpf", 1) != 1
            for s in range(n1): loader_issue(a, P, s)
            lab = a.label("LN")
            a(f"s_cmp_lg_u32 s3, 4\ns_cbranch_scc1 {lab}_c0")
            a("v_mov_b32 v24, 0\nv_lshlrev_b32 v25, 2, v2\ns_mov_b64 exec, -2\nds_write_b32 v25, v24\ns_mov_b64 exec, -1")
            a(f"{lab}_c0:")
            a(f"s_mov_b32 s{S_SPIN}, {SPIN}\nv_mov_b32 v25, 0")
            a(f"{lab}_np:\nbuffer_load_dword v24, v25, s[{SRD_C}:{SRD_C+3}], 0 offen sc1\ns_waitcnt vmcnt(0)\nv_readfirstlane_b32 s40, v24\ns_cmp_lg_u32 s40, 0\ns_cbranch_scc1 {lab}_n1")
            a(f"s_sub_u32 s{S_SPIN}, s{S_SPIN}, 1\ns_cmp_lg_u32 s{S_SPIN}, 0\ns_cbranch_scc1 {lab}_np")
            a(f"{lab}_n1:\nv_mov_b32 v{V_NONCE}, v24\ns_mov_b32 s{S_NONCE}, s40")
            a(f"v_cmp_eq_u32 vcc, 0, v2\nv_mov_b32 v{V_Z}, 0x80000000\ns_nop 0\nv_cndmask_b32 v{V_Z}, v{V_Z}, 0, vcc")
            a(f"s_cmp_lg_u32 s3, 4\ns_cbranch_scc1 {lab}_c1")
            a(f"v_mov_b32 v25, {CT_NONCE}\nds_write_b32 v25, v24")
            a(f"{lab}_c1:")
            a.extend(st.now(1))
            wt2_issue(a)
            for s in range(n1, n2): loader_issue(a, P, s)
            a("s_waitcnt lgkmcnt(0)")
            a.extend(st.now(2))
            a("s_barrier")
            for s in range(n2, NSLOT): loader_issue(a, P, s)
            npf = 0
            if opt.get("wpf", 1) == 2: npf += weight_prefetch(a, ty)
        elif FRONT == 4:
            nw = NSLOT - X4["nx"]
            q0 = []
            pf_pos = opt.get("pf_pos", nw)
            def pfs():
                n = 0
                if opt.get("xpf", 0):
                    c0 = opt.get("xpf_c", 4); nc = 10 - c0
                    srd(a, WT_SRD_D, P_X, S * D * 2)
                    a(f"s_lshr_b32 s40, s2, 6\ns_lshl_b32 s41, s{S_TB}, 2\ns_add_u32 s40, s40, s41\ns_mul_i32 s40, s40, 40960\ns_sub_u32 s41, s3, 4")
                    a(f"v_and_b32 v23, 31, v2\nv_mul_u32_u24 v23, 1280, v23\nv_lshrrev_b32 v25, 5, v2")
                    for r in range(-(-nc // 8)):
                        a(f"s_lshl_b32 s42, s41, 1\ns_add_u32 s42, s42, {c0 + 8 * r}\nv_add_u32 v26, s42, v25\nv_cmp_gt_u32 vcc, 10, v26\nv_lshl_add_u32 v26, v26, 7, v23")
                        a(f"v_mov_b32 v27, 0x80000000\nv_cndmask_b32 v26, v27, v26, vcc\nbuffer_load_dword v30, v26, s[{WT_SRD_D}:{WT_SRD_D+3}], s40 offen"); n += 1
                if opt.get("epf", 0) >= 1: n += weight_prefetch(a, ty, "first")
                return n
            for s in range(nw):
                if s == pf_pos: q0 += [("pf",)] * pfs()
                loader_issue(a, P, s); q0 += [("stage", s)] * 4
            if pf_pos >= nw: q0 += [("pf",)] * pfs()
            opt["_issued"] = nw; opt["_q0"] = q0
            srd(a, WT_SRD_D, P_D, F * D * 2)
            srd(a, WT_SRD_O, P_WO, D * D * 2)
            lab = a.label("L4")
            a(f"s_cmp_lg_u32 s3, 4\ns_cbranch_scc1 {lab}_c0")
            a("v_mov_b32 v24, 0\nv_lshlrev_b32 v25, 2, v2\ns_mov_b64 exec, -2\nds_write_b32 v25, v24\ns_mov_b64 exec, -1")
            a(f"v_mov_b32 v32, 0\nv_mov_b32 v33, 0\nv_mov_b32 v34, 0\nv_mov_b32 v35, 0\nv_lshlrev_b32 v25, 4, v2")
            for i in range(3): a(f"ds_write_b128 v25, v[32:35] offset:{CTAB + 1024 * i}")
            a(f"{lab}_c0:")
            a(f"v_cmp_eq_u32 vcc, 0, v2\nv_mov_b32 v{V_Z}, 0x80000000\ns_nop 0\nv_cndmask_b32 v{V_Z}, v{V_Z}, 0, vcc")
            a.extend(st.now(1))
            a("s_waitcnt lgkmcnt(0)")
            opt["_get_nonce"] = get_nonce
            npf = 0
        else:
            srd(a, WT_SRD_D, P_D, F * D * 2)
            srd(a, WT_SRD_O, P_WO, D * D * 2)
            npf0 = 0
            if opt.get("epf", 0) >= 1: weight_prefetch(a, ty, "first")
            if opt.get("epf", 0) >= 2: weight_prefetch(a, ty)
            wt2_issue(a)
            n1 = opt.get("pre_ln", 4); n2 = n1 + opt.get("mid_ln", NSLOT - n1)
            for s in range(n1): loader_issue(a, P, s)
            a.extend(st.now(1))
            a("s_barrier")
            for s in range(n1, n2): loader_issue(a, P, s)
            npf = weight_prefetch(a, ty) if opt.get("wpf", 1) == 1 else 0
            if FRONT >= 2: assert n2 == n1 and opt.get("wpf", 1) != 1
            a("s_barrier")
            for s in range(n2, NSLOT): loader_issue(a, P, s)
            assert npf == 0 or n2 == NSLOT
            if FRONT < 2: get_nonce()
            else: opt["_get_nonce"] = get_nonce; assert opt.get("wt2_at", -1) >= 0
            if opt.get("wt2_at", -1) < 0: wt2_finish(a, 32 + npf)
            if opt.get("wpf", 1) == 2: npf += weight_prefetch(a, ty)
            a.extend(st.now(2))
        if XIT == 2: a("s_waitcnt vmcnt(0)\ns_branch F_fin")
        gen_loader(a, P, st, opt, npf)
        a("s_branch F_ltail")
    a("F_ltail:")
    a.extend(st.now(8))
    if opt.get("tail", 0) >= 1:
        vb = 8
        a("s_sub_u32 s57, s3, 4\ns_waitcnt vmcnt(0)")
        prepoll_check(a, 0, "PQK", lambda: poll_qk(a, "PQK"))
        for i in range(3): qk_job(a, i, vb)
        a.extend(st.now(9))
        lds_poll4(a, CT_PROG, "PPR", 20)
        prepoll_check(a, 1, "PV", lambda: poll_v(a, "PV"))
        a("s_cmp_lg_u32 s3, 7\ns_cbranch_scc1 F_l1")
        a(f"v_mov_b32 v20, 0x3f803f80\nv_mov_b32 v21, 0x3f803f80\nv_mov_b32 v22, 0x3f803f80\nv_mov_b32 v23, 0x3f803f80\nv_mov_b32 v24, {L_ONES}")
        a("ds_write_b128 v24, v[20:23]")
        a("F_l1:")
        for i in range(2): v_job(a, i, vb)
        a("s_cmp_ge_u32 s57, 2\ns_cbranch_scc1 F_l2")
        v_job(a, 2, vb)
        a("F_l2:")
        a.extend(st.now(10))
        k3_setup(a)
        prepoll_check(a, 2, "PW", lambda: poll_fw(a, "PW"))
        prepoll_check(a, 3, "PH", lambda: poll_fh(a, "PH", K_H0))
        def bend(e):
            a(f"s_waitcnt vmcnt({len(e.vm) + (10 if opt['tail'] == 2 else 0)}) lgkmcnt(0)")
            a.extend(st.now(11))
            a("s_barrier")
            if XIT == 3: a("s_waitcnt vmcnt(0)\ns_branch F_fin")
        e = h_stream(a, st, "pre", (opt.get("hpre", 3), bend), eh=opt.get("eh", 0))
        assert opt["tail"] == 1 or opt.get("bv_at", 2) >= 1
        if opt.get("nt") == 3:
            h_stream_main4(a, e, st, opt["h1pp"], opt.get("o1pp", 11), opt.get("o1chk", 13), opt.get("o2at", 13))
            a("s_branch F_fin")
        elif opt.get("nt") == 2:
            h_stream_main3(a, e, st, opt["h1pp"], opt.get("o1pp", 9), opt.get("o1chk", 11))
            a("s_branch F_fin")
        elif opt.get("nt"):
            h_stream_main2(a, e, st, opt["h1pp"], opt.get("o1pp", 9), opt.get("o1chk", 11))
            tail2_loader_reduce(a, st)
            a("s_branch F_fin")
        else:
            h_stream_main(a, e, st, None if opt["tail"] == 1 else opt.get("bv_at", 2), eh=opt.get("eh", 0), h1pp=opt.get("h1pp", -1))
            a("s_branch F_red")
    if opt.get("tail", 0) == 0: old_tail(a, st, opt, XIT)
    if not opt.get("nt"):
        a("F_red:")
        reduce_phase(a, "RD", st)
    a("F_fin:")
    if stamps:
        a("s_waitcnt vmcnt(0)")
        a.extend(st.now(16))
        st.flush(a)
    a("F_exit:\ns_endpgm")
    return a, kernel_desc(name, 256, 102), (name, (256,1,1), (512,1,1), 163840), metas

def old_tail(a, st, opt, XIT):
    p2.attn_params(a)
    vb = 8
    a("s_cmp_ge_u32 s3, 6\ns_cbranch_scc1 F_lt67")
    p2.attn_dma_setup(a, vb)
    a("s_cmp_eq_u32 s3, 5\ns_cbranch_scc1 F_lt5")
    poll_qk(a, "PQK")
    a.extend(st.now(9))
    for m in range(2): attn_dma_dyn(a, "Q", m, vb, None, None)
    for m in range(10): attn_dma_dyn(a, "K", m, vb, None, None)
    k3_setup(a)
    a("s_sub_u32 s57, s3, 4")
    a("s_waitcnt vmcnt(0)")
    a.extend(st.now(10))
    a("s_barrier")
    if XIT == 3: a("s_waitcnt vmcnt(0)\ns_branch F_fin")
    a("s_branch F_lt45")
    a("F_lt5:")
    lds_poll4(a, CT_PROG, "PPR", 20)
    poll_v(a, "PV")
    a.extend(st.now(9))
    a(f"v_mov_b32 v20, 0x3f803f80\nv_mov_b32 v21, 0x3f803f80\nv_mov_b32 v22, 0x3f803f80\nv_mov_b32 v23, 0x3f803f80\nv_mov_b32 v24, {L_ONES}")
    a("ds_write_b128 v24, v[20:23]")
    for m in range(10): attn_dma_dyn(a, "V", m, vb, None, None)
    k3_setup(a)
    a("s_sub_u32 s57, s3, 4")
    a("s_waitcnt lgkmcnt(0)")
    a("s_barrier")
    if XIT == 3: a("s_waitcnt vmcnt(0)\ns_branch F_fin")
    a("F_lt45:")
    poll_fw(a, "PW45")
    poll_fh(a, "PH45", K_H0)
    a.extend(st.now(11))
    a("s_barrier")
    e = h_stream(a, st, "pre")
    h_stream_main(a, e, st, None)
    a("s_branch F_red")
    a("F_lt67:")
    k3_setup(a)
    a("s_sub_u32 s57, s3, 4")
    poll_fw(a, "PW67")
    poll_fh(a, "PH67", K_H0)
    a.extend(st.now(11))
    e = h_stream(a, st, "pre")
    a("s_barrier")
    if XIT == 3: a("s_waitcnt vmcnt(0)\ns_branch F_fin")
    h_stream_main(a, e, st, opt.get("bv_at", 2))

H1_EARLY = 0
def attn_task(a, lab, st):
    tmp = Asm()
    p2.attn_task(tmp, lab, "sc1")
    lines = tmp.lines
    idx = next(i for i, l in enumerate(lines) if l.startswith(f"{lab}_noneg:"))
    if XOPT.get("noexp"): lines = [l.replace("v_exp_f32", "v_mov_b32") for l in lines]
    a.extend(lines[:idx + 1])
    a(f"s_cmp_lg_u32 s59, 0\ns_cbranch_scc1 {lab}_nb")
    if not H1_EARLY:
        a("s_waitcnt vmcnt(0)")
        a(flag_store(S_FL, K_H1 * 128))
    if not NO_BV: a("s_barrier")
    a(f"{lab}_nb:")
    rest = lines[idx + 1:]
    if XOPT.get("nt"):
        ex = [i for i, l in enumerate(rest) if l.startswith("v_exp_f32") or (XOPT.get("noexp") and False)]
        at = ex[XOPT.get("o1at", 32)]
        a.extend(rest[:at])
        a(f"s_cmp_eq_u32 s59, 0\ns_cbranch_scc1 {lab}_no1\ns_waitcnt vmcnt(0)")
        a(flag_store(58, 64))
        a.extend(st.now(19))
        a(f"{lab}_no1:")
        rest = rest[at:]
    a.extend(rest)
```

```python
from core import *
import re
from layout import *
import p0, p1, p2, p3
from p0 import srd, SRD_WS, SRD_A, SRD_B, SRD_C, P_X, P_WQKV, P_WO, P_G, P_U, P_D, P_OUT, P_DBG, P_WS
from p1 import build_seq, epi_instrs, NSLOT, V_A, V_QK, V_V, V_H, FR, ACC, BF, PF
from p1 import S_TB, S_FB, S_T32, S_CQ0, S_CQ1, S_CP0, S_J, S_T

FX = 0x000000
FW = 0x010000
FO = 0x020000
FG = 0x080000
K_QK, K_V, K_H0, K_H1 = 0, 1, 2, 3
CT_NONCE, CT_PROG, CT_ATT = 0, 16, 32
RING = 32768
LN_LDS = 1024
L_Q = 512; L_K = L_Q + 10240; L_V = L_K + 51200; L_ONES = L_V + 51200
L_R1 = 512; L_R2 = L_R1 + 81920
p0.LN_LDS = LN_LDS
p2.L_Q, p2.L_K, p2.L_V, p2.L_ONES = L_Q, L_K, L_V, L_ONES
p3.L_R1, p3.L_R2 = L_R1, L_R2
S_NONCE, S_SPIN = 0, 1
S_ST = 10
S_FL = 58
V_NONCE, V_Z, V_STAMP = 0, 3, 1
SPIN = 20000
WS = f"s[{SRD_WS}:{SRD_WS+3}]"

class Stamper:
    def __init__(self, on, cyc=False): self.on = on; self.prev = None; self.ins = "s_memtime" if cyc else "s_memrealtime"
    def mark(self, i):
        if not self.on: return []
        L = []
        if self.prev is not None: L.append(f"v_writelane_b32 v{V_STAMP}, s{S_ST}, {self.prev}")
        L.append(f"{self.ins} s[{S_ST}:{S_ST+1}]")
        self.prev = i
        return L
    def sync(self):
        if not self.on or self.prev is None: return []
        L = ["s_waitcnt lgkmcnt(0)", f"v_writelane_b32 v{V_STAMP}, s{S_ST}, {self.prev}"]
        self.prev = None
        return L
    def now(self, i): return self.sync() + self.mark(i) + self.sync()
    def flush(self, a):
        if not self.on: return
        a.extend(self.sync())
        a(f"s_mov_b64 exec, -1\ns_lshl_b32 s40, s2, 3\ns_add_u32 s40, s40, s3\ns_lshl_b32 s40, s40, 7\ns_add_u32 s40, s40, {STAMPS}")
        a(f"v_mbcnt_lo_u32_b32 v4, -1, 0\nv_mbcnt_hi_u32_b32 v4, -1, v4\nv_lshlrev_b32 v4, 2, v4\ns_mov_b32 exec_hi, 0")
        a(f"buffer_store_dword v{V_STAMP}, v4, {WS}, s40 offen\ns_mov_b64 exec, -1")

def poll(a, vaddr, soff, mlo, mhi, lab, vt, off=0):
    a(f"s_mov_b32 s{S_SPIN}, {SPIN}\ns_mov_b32 exec_lo, {mlo}\ns_mov_b32 exec_hi, {mhi}")
    a(f"{lab}:")
    a(f"buffer_load_dword v{vt}, v{vaddr}, {WS}, s{soff} offen offset:{off} sc1")
    a(f"s_waitcnt vmcnt(0)\nv_cmp_eq_u32 vcc, s{S_NONCE}, v{vt}\ns_nop 0\ns_cmp_eq_u64 vcc, exec\ns_cbranch_scc1 {lab}_ok")
    a(f"s_sub_u32 s{S_SPIN}, s{S_SPIN}, 1\ns_cmp_lg_u32 s{S_SPIN}, 0\ns_cbranch_scc1 {lab}")
    a(f"{lab}_ok:\ns_mov_b64 exec, -1")

def lds_poll4(a, off, lab, vt):
    a(f"v_mov_b32 v{vt+4}, {off}\ns_mov_b32 s{S_SPIN}, {SPIN*8}")
    a(f"{lab}:\nds_read_b128 v[{vt}:{vt+3}], v{vt+4}\ns_waitcnt lgkmcnt(0)")
    a(f"v_min_u32 v{vt}, v{vt}, v{vt+1}\nv_min3_u32 v{vt}, v{vt}, v{vt+2}, v{vt+3}\ns_nop 0\nv_readfirstlane_b32 s40, v{vt}")
    a(f"s_cmp_lg_u32 s40, 0\ns_cbranch_scc1 {lab}_ok\ns_sub_u32 s{S_SPIN}, s{S_SPIN}, 1\ns_cmp_lg_u32 s{S_SPIN}, 0\ns_cbranch_scc1 {lab}\n{lab}_ok:")

def flag_store(soff, off=0):
    return f"buffer_store_dword v{V_NONCE}, v{V_Z}, {WS}, s{soff} offen offset:{off} sc1"

class Emit:
    def __init__(self, a): self.a = a; self.vm = []; self.ds = []
    def __call__(self, ins, tag=None):
        for l in ins.split("\n") if isinstance(ins, str) else ins:
            l = l.strip()
            if not l: continue
            if l.startswith("buffer_"): self.vm.append(tag)
            elif l.startswith("ds_"): self.ds.append(tag)
            self.a(l)
    def vm_after(self, pred):
        for i in range(len(self.vm) - 1, -1, -1):
            if pred(self.vm[i]): return len(self.vm) - 1 - i
        return None
    def ds_after(self, pred):
        for i in range(len(self.ds) - 1, -1, -1):
            if pred(self.ds[i]): return len(self.ds) - 1 - i
        return None

X4 = None
XE_BASE = 16384
def ring_plan(ty, nb=3, bar_every=16):
    mf, stages, tiles = build_seq(ty, nb, corr=bool(X4 and X4["corr"]), nb0t=(X4["nb0"] if X4 else None))
    N = len(mf); ns = len(stages)
    phase = (-ns) % NSLOT
    nc = [k for k in range(N) if mf[k].get("corr") is None]
    bars = [-1]
    while True:
        pos = bars[-1] + PF + 1
        kind = tiles[mf[nc[min(pos, len(nc)-1)]]["tile"]]["kind"]
        step = 8 if kind == "QKH" else bar_every
        if X4 and pos < X4["bar0_n"]: step = X4["bar0"]
        nxt = bars[-1] + step if bars[-1] >= 0 else step - PF - 1
        if nxt >= len(nc) - PF - 1: break
        bars.append(nxt)
    bars = [-1] + [nc[b + PF + 1] - PF - 1 for b in bars[1:]]
    def done_at(b):
        d = -1
        for s in range(ns):
            if all(k <= b for k in range(N) if mf[k]["stage"] == s): d = s
            else: break
        return d
    out = []
    for b in bars:
        out.append(b)
        if done_at(b) >= ns - 6: break
    bars = out
    info = []
    for i, b in enumerate(bars):
        lo = b + PF + 1 if b >= 0 else 0
        hi = (bars[i+1] + PF) if i + 1 < len(bars) else N - 1
        need = max(mf[k]["stage"] for k in range(lo, hi + 1))
        info.append((need, done_at(b)))
    prog = max(k for k in range(N) if mf[k]["stage"] <= ns - 4)
    slot = [(s + phase) % NSLOT for s in range(ns)]
    prev = [s - NSLOT if s >= NSLOT else None for s in range(ns)]
    xb = None; xrd = None
    if X4:
        nx = X4["nx"]; nw = NSLOT - nx
        for s in range(nw + 8): slot[s] = (phase + s % nw) % NSLOT
        xs = [(phase + nw + i) % NSLOT for i in range(nx)]
        xb = ([XE_BASE] if X4["xe"] else []) + [RING + 16384 * i for i in xs]
        xrd = [min(k for k in range(N) if mf[k]["bf"] is not None and mf[k]["bf"] // 4 == m) - PF for m in range(10)]
        occ = {}
        for s in range(ns):
            if slot[s] in occ: prev[s] = occ[slot[s]]
            elif slot[s] in xs:
                last = max(m for m in range(10) if xb[m % len(xb)] == RING + 16384 * slot[s])
                prev[s] = ("x", xrd[last] + PF)
            else: prev[s] = None
            occ[slot[s]] = s
    return dict(mf=mf, stages=stages, tiles=tiles, N=N, ns=ns, phase=phase, bars=bars, info=info, prog=prog, slot=slot, prev=prev, xb=xb, xrd=xrd)

def gen_compute(a, ty, st, opt):
    P = ring_plan(ty)
    mf, stages, tiles, N, phase, bars = P["mf"], P["stages"], P["tiles"], P["N"], P["phase"], P["bars"]
    sc = "" if opt.get("nosc") else "sc1"
    e = Emit(a)
    PRE = opt.get("pre", 16); XRATE = opt.get("xrate", 2); FDELAY = opt.get("fdelay", 48)
    jobs = []
    for ti, t in enumerate(tiles):
        if t["kind"] == "P": groups = [(0, t["accs"][0:2]), (1, t["accs"][2:4])]
        elif t["kind"] == "QKH": groups = [(0, t["accs"][0:1])]
        else: groups = [(0, t["accs"][0:1]), (1, t["accs"][1:2])]
        for ft, ac in groups:
            last = max(i for i in range(t["m0"], t["m1"]) if mf[i]["acc"] in ac)
            nxt = [i for i in range(t["m1"], N) if mf[i]["acc"] in ac]
            dl = min(nxt) if nxt else N + 1000
            jobs.append(dict(ready=last, dl=dl, ins=epi_instrs(t["kind"], t["idx"], ft, [ACC[x] for x in ac], sc), tile=ti, kind=t["kind"]))
    jobs.sort(key=lambda j: j["ready"])
    fill = {g: [] for g in range(N)}
    tail = []
    cur = 0
    LOCAL = opt.get("front", 0) == 3
    L4 = opt.get("front", 0) == 4
    xpost = {g: [] for g in range(-1, N)}
    if L4:
        xb, xrd = P["xb"], P["xrd"]; nxs = len(xb)
        curb = x4_base(P)
        def addfill(g, L):
            for i_, x_ in enumerate(L): fill[g + i_ // 3].append(x_)
        for m in range(10):
            g = max(xrd[m], -1)
            xpost[g].append(("WAITX", m))
            d = xb[m % nxs] - curb
            if not 0 <= d <= 49152:
                xpost[g] += [(f"v_add_u32 v{X4_R+k_}, {d & 0xffffffff}, v{X4_R+k_}", None) for k_ in range(4)]
                curb = xb[m % nxs]; d = 0
            xpost[g] += [(f"ds_read_b128 v[{BF+16*m+4*k_}:{BF+16*m+4*k_+3}], v{X4_R+k_} offset:{d}", ("xr", m)) for k_ in range(4)]
            if m + nxs < 10:
                g2 = xrd[m] + PF
                for tg in range(4):
                    fill[g2 + tg] += [(x_, ("xd", m + nxs) if x_.startswith("buffer") else None) for x_ in x4_dma(P, m + nxs, tg)]
        g = xrd[9] + PF
        rs = x4_restore(ty)
        addfill(g, [(x_, None) for x_ in rs])
        cur = g + (len(rs) + 2) // 3
        nb_ = opt.get("nonce_bar", 6)
        fill[bars[nb_] + 1].append((f"ds_read_b32 v{V_NONCE}, v{V_NONCE}", ("nonce",)))
        fill[bars[nb_] + 8].append((f"v_readfirstlane_b32 s{S_NONCE}, v{V_NONCE}", None))
    npre = 0
    if LOCAL:
        D_ = [min(k for k in range(N) if mf[k]["bf"] == j) for j in range(40)]
        R = opt.get("nrate", 6)
        def plan(npre):
            seq = [(x_, D_[j]) for j in range(npre, 40) for x_ in norm_instrs(j)]
            g = 0; out = {}
            for i in range(0, len(seq), R):
                for x_, d in seq[i:i+R]:
                    if g > d - 2: return None
                    out.setdefault(g, []).append(x_)
                g += 1
            return out, g
        npre = 1
        while plan(npre) is None: npre += 1
        npre = max(npre, opt.get("npre", 0))
        out, g = plan(npre)
        for gg, L in out.items(): fill[gg] += [(x_, None) for x_ in L]
        rs = norm_restore()
        for i in range(0, len(rs), 4):
            fill[g] += [(x_, None) for x_ in rs[i:i+4]]; g += 1
        cur = g
        opt["_npre"] = npre
    for j in jobs:
        start = max(j["ready"] + 4, cur)
        n = len(j["ins"])
        tagged = [(x, ("st", j["tile"])) for x in j["ins"]]
        end = min(j["dl"] - 1, N)
        avail = end - start
        if start >= N - 1 or avail <= 0:
            assert j["dl"] > N, (ty, j["ready"], j["dl"], cur, N, n)
            tail += tagged; j["last_gap"] = N; continue
        if j["dl"] > N: end = N; avail = end - start
        per = max(-(-n // avail), min(3, n))
        g = start; k = 0
        while k < n and g < N:
            fill[g] += tagged[k:k+per]; k += per; g += 1
        if k < n:
            assert j["dl"] > N
            tail += tagged[k:]; g = N + 1
        assert g <= end + 1 or j["dl"] > N
        j["last_gap"] = g - 1
        cur = g
    if p1.ORD == 0:
        if ty == "A": groups = [(K_QK, [0, 1]), (K_H0, [2])]
        if ty == "B": groups = [(K_QK, [0]), (K_H0, [1])]
        if ty == "C": groups = [(K_QK, [0]), (K_V, [1, 2])]
    else:
        if ty == "A": groups = [(K_H0, [0]), (K_QK, [1, 2])]
        if ty == "B": groups = [(K_H0, [0]), (K_QK, [1])]
        if ty == "C": groups = [(K_V, [0, 1]), (K_QK, [2])]
    flags = {}
    for kind, tl in groups:
        lg = max(j["last_gap"] for j in jobs if j["tile"] in tl)
        g = lg + (opt.get("fdelay_qk", FDELAY) if kind == K_QK else FDELAY)
        assert g < N - 1, (ty, kind, g)
        flags.setdefault(g, []).append((kind, tl))
    barset = set(b for b in bars if b >= 0)
    def rd(k):
        x = mf[k]
        if x.get("corr") is not None: return [f"ds_read_b64 v[{FR + 4 * (k % PF)}:{FR + 4 * (k % PF) + 1}], v{V_CT} offset:{CTAB + 256 * x['corr']}"]
        slot = P["slot"][x["stage"]]
        adr = V_A + 2 * x["adr"] + slot // 4
        off = (slot % 4) * 16384 + x["ksp"] * 2048
        fr = FR + 4 * (k % PF)
        return [f"ds_read_b64_tr_b16 v[{fr}:{fr+1}], v{adr} offset:{off}", f"ds_read_b64_tr_b16 v[{fr+2}:{fr+3}], v{adr} offset:{off+512}"]
    def xn_load(ks):
        L = []
        if ks % 4 == 0 and ks > 0: L.append("s_add_u32 s50, s50, 4096")
        L.append(f"buffer_load_dwordx4 v[{BF+4*ks}:{BF+4*ks+3}], v{V_H}, {WS}, s50 offen offset:{(ks%4)*1024} sc1")
        return L
    if opt.get("prio_g1"): a(f"s_setprio {opt['prio_g1']}")
    nx = 0
    if LOCAL:
        nx = 40
        for j in range(npre): a.extend(norm_instrs(j))
        a(f"v_cmp_eq_u32 vcc, 0, v2\nv_mov_b32 v{V_Z}, 0x80000000\nv_mov_b32 v{V_NONCE}, {CT_NONCE}\nv_cndmask_b32 v{V_Z}, v{V_Z}, 0, vcc")
        a.extend(st.now(3))
    elif L4:
        nx = 40
        e.vm += [("xd", m) for m in range(len(P["xb"])) for _ in range(4) if not (X4_NODMA[0] and m >= X4_NODMA[0] - 1)]
        a(f"v_cmp_eq_u32 vcc, 0, v2\nv_mov_b32 v{V_Z}, 0x80000000\nv_mov_b32 v{V_NONCE}, {CT_NONCE}\nv_cndmask_b32 v{V_Z}, v{V_Z}, 0, vcc")
    else:
        a(f"s_mul_i32 s50, s{S_T32}, {XN_T}\ns_add_u32 s50, s50, {XN}")
        while nx < PRE: e(xn_load(nx), ("xn", nx)); nx += 1
    def xemit(L):
        out = []
        for ins, tag in L:
            if ins == "WAITX": out.append(("WAITX", tag))
            else: out.append((ins, tag))
        return out
    def emit1(ins, tag):
        if ins == "WAITX":
            if not opt.get("x4nowait") and not (X4_NODMA[0] and tag >= X4_NODMA[0] - 1): a(f"s_waitcnt vmcnt({min(63, e.vm_after(lambda t: t == ('xd', tag)))})")
            if tag == 2: a.extend(st.mark(2))
            if tag == 1: a.extend(st.mark(3))
            if tag == 3: a.extend(st.mark(18))
            if tag == 0: a.extend(st.now(1))
            if tag == 9: a.extend(st.mark(20))
            if tag == 5: a.extend(st.mark(19))
        else: e(ins, tag)
    if L4:
        for ins, tag in xpost[-1]: emit1(ins, tag)
    a("s_barrier")
    a.extend(st.mark(4))
    if LOCAL:
        e(f"ds_read_b32 v{V_NONCE}, v{V_NONCE}", ("nonce",))
        fill[1].append((f"v_readfirstlane_b32 s{S_NONCE}, v{V_NONCE}", None))
    for k in range(PF): e(rd(k), ("rd", k))
    seen_bf = -1
    m16cnt = {}
    tile_last = {t["m1"] - 1: i for i, t in enumerate(tiles)}
    for k in range(N):
        x = mf[k]
        w = f"lgkmcnt({e.ds_after(lambda t: t == ('rd', k))})"
        if not LOCAL and not L4 and x["bf"] is not None and x["bf"] > seen_bf:
            seen_bf = x["bf"]
            assert ("xn", x["bf"]) in e.vm
            w = f"vmcnt({min(63, e.vm_after(lambda t: t == ('xn', x['bf'])))}) " + w
        a("s_waitcnt " + w)
        fr = FR + 4 * (k % PF); ac = ACC[x["acc"]]; bf = BF + 4 * (x["bf"] or 0)
        c = "0" if x["first"] else f"v[{ac}:{ac+15}]"
        post = []
        if k in barset: post.append(("s_barrier", None))
        post += xpost[k]
        if k + PF < N: post += [(i_, ("rd", k + PF)) for i_ in rd(k + PF)]
        if nx < 40 and k % XRATE == XRATE - 1:
            post += [(i_, ("xn", nx)) for i_ in xn_load(nx)]; nx += 1
        post += list(fill[k])
        if opt.get("m16x"):
            if x["first"]: m16cnt[x["acc"]] = 0
            cn = m16cnt[x["acc"]]; m16cnt[x["acc"]] += 1
            nh = (len(post) + 1) // 2 if opt["m16x"] == 2 else (0 if opt["m16x"] == 1 else len(post) // 2)
            for h in range(2):
                q = ac + 8 * (cn & 1) + 4 * h
                c2 = "0" if cn < 2 else f"v[{q}:{q+3}]"
                b2 = BF + 4 * (x["bf"] ^ h)
                if x["swap"]: a(f"v_mfma_f32_16x16x32_bf16 v[{q}:{q+3}], v[{b2}:{b2+3}], v[{fr}:{fr+3}], {c2}")
                else:         a(f"v_mfma_f32_16x16x32_bf16 v[{q}:{q+3}], v[{fr}:{fr+3}], v[{b2}:{b2+3}], {c2}")
                if h == 0:
                    for ins, tag in post[:nh]: e(ins, tag)
                    post = post[nh:]
        elif x.get("corr") is not None:
            if x["swap"]: a(f"v_mfma_f32_32x32x8_bf16 v[{ac}:{ac+15}], v[{V_SF}:{V_SF+1}], v[{fr}:{fr+1}], {c}")
            else:         a(f"v_mfma_f32_32x32x8_bf16 v[{ac}:{ac+15}], v[{fr}:{fr+1}], v[{V_SF}:{V_SF+1}], {c}")
        elif x["swap"]: a(f"v_mfma_f32_32x32x16_bf16 v[{ac}:{ac+15}], v[{bf}:{bf+3}], v[{fr}:{fr+3}], {c}")
        else:         a(f"v_mfma_f32_32x32x16_bf16 v[{ac}:{ac+15}], v[{fr}:{fr+3}], v[{bf}:{bf+3}], {c}")
        for ins, tag in post: emit1(ins, tag)
        for kind, tl in flags.get(k, []):
            n = e.vm_after(lambda t: t is not None and t[0] == "st" and t[1] in tl)
            if not opt.get("nofw"): a(f"s_waitcnt vmcnt({min(63, n)})")
            e(flag_store(S_FL, kind * 128), ("flag", kind))
        if k == P["prog"]:
            e(f"ds_write_b32 v13, v{V_NONCE if L4 else 14}", ("prog",))
        if k in tile_last: a.extend(st.mark(5 + tile_last[k]))
    if tail:
        a("s_nop 7\ns_nop 3")
        for ins, tag in tail: e(ins, tag)
    a.extend(st.sync())
    if opt.get("dumpxn"):
        a(f"s_mul_i32 s50, s{S_T32}, {XN_T}\ns_add_u32 s50, s50, {XN}")
        for ks in range(40):
            a(f"buffer_store_dwordx4 v[{BF+4*ks}:{BF+4*ks+3}], v{V_H}, {WS}, s50 offen\ns_add_u32 s50, s50, 1024")
        a("s_waitcnt vmcnt(0)")
    return P

def setup_compute(a, ty):
    p1.setup_compute(a, ty)
    for r in range(4, 10): a(f"v_add_u32 v{r}, {RING}, v{r}")
    a(f"s_lshl_b32 s{S_FL}, s{S_T32}, 4\ns_add_u32 s{S_FL}, s{S_FL}, s{S_FB}\ns_lshl_b32 s{S_FL}, s{S_FL}, 9\ns_add_u32 s{S_FL}, s{S_FL}, {FG}")
    a(f"s_lshl_b32 s40, s3, 2\ns_add_u32 s40, s40, {CT_PROG}\nv_mov_b32 v13, s40\nv_mov_b32 v14, 1")

S_XB, S_XW, S_XT = 72, 73, 74
V_XD, V_XR = 20, 22
V_NR, V_NC, V_NT = 10, 11, 12
def x_slot(P, m): return (P["phase"] + 2 + m % 6) % NSLOT
def x_dma(a, P, m):
    for tg in range(4):
        a(f"s_add_u32 m0, s{S_XW}, {x_slot(P, m) * 16384 + tg * 1024}")
        a(f"s_add_u32 s{S_XT}, s{S_XB}, {tg * 10240 + m * 128}")
        a(f"buffer_load_dwordx4 v{V_XD + (tg & 1)}, s[{p0.SRD_A}:{p0.SRD_A+3}], s{S_XT} offen lds")
def x_batch1(a, P):
    a(f"s_lshl_b32 s40, s{S_TB}, 2\ns_add_u32 s40, s40, s3\ns_mul_i32 s{S_XB}, s40, 40960\ns_lshl_b32 s40, s3, 12\ns_add_u32 s{S_XW}, s40, {RING}")
    a("v_lshrrev_b32 v16, 3, v2\nv_mul_u32_u24 v16, 1280, v16\nv_lshrrev_b32 v17, 4, v2\nv_and_b32 v18, 7, v2\nv_xor_b32 v18, v18, v17")
    a(f"v_lshl_add_u32 v{V_XD}, v18, 4, v16\nv_xor_b32 v{V_XD+1}, 64, v{V_XD}")
    for m in range(6): x_dma(a, P, m)
    a("v_bfe_u32 v16, v2, 3, 2\nv_lshlrev_b32 v16, 10, v16\nv_and_b32 v17, 7, v2\nv_lshl_add_u32 v16, v17, 7, v16")
    a(f"v_bfe_u32 v17, v2, 1, 3\nv_lshrrev_b32 v18, 5, v2\nv_xor_b32 v17, v17, v18\nv_lshl_add_u32 v16, v17, 4, v16\nv_add_u32 v{V_XR}, s{S_XW}, v16")
    for k in range(1, 4): a(f"v_xor_b32 v{V_XR+k}, {32*k}, v{V_XR}")
    for k in range(4): a(f"v_add_u32 v{V_XR+4+k}, 0x10000, v{V_XR+k}")
def x_stats(a, m):
    for i in range(16):
        r = BF + 16 * m + i
        if m == 0 and i < 2:
            a(f"v_dot2_f32_bf16 v{32+i}, v{r}, s75, 0\nv_dot2_f32_bf16 v{34+i}, v{r}, v{r}, 0")
        else:
            a(f"v_dot2c_f32_bf16 v{32+(i&1)}, s75, v{r}\nv_dot2c_f32_bf16 v{34+(i&1)}, v{r}, v{r}")
        if m == 0 and i == 1: a("s_nop 2")
def x_columns(a, P, st, opt):
    a("s_mov_b32 s75, 0x3f803f80")
    issued = 24
    for m in range(10):
        a(f"s_waitcnt vmcnt({issued - 4 * (m + 1)})")
        if m == 0: a.extend(st.now(1))
        if m == 9: a.extend(st.now(20))
        sl = x_slot(P, m)
        for k in range(4):
            r = BF + 16 * m + 4 * k
            a(f"ds_read_b128 v[{r}:{r+3}], v{V_XR + k + (4 if sl >= 4 else 0)} offset:{(sl % 4) * 16384}")
        if m > 0: x_stats(a, m - 1)
        a("s_waitcnt lgkmcnt(0)")
        if m <= 3: x_dma(a, P, m + 6); issued += 4
    a("s_barrier")
    a.extend(st.now(19))
    x_stats(a, 9)
    rnd = p0.rnd
    a("s_nop 2\nv_add_f32 v32, v32, v33\nv_add_f32 v34, v34, v35\nv_mov_b32 v33, v32\nv_mov_b32 v35, v34\ns_nop 1")
    a("v_permlane32_swap_b32 v32, v33\nv_permlane32_swap_b32 v34, v35\ns_nop 1\nv_add_f32 v32, v32, v33\nv_add_f32 v34, v34, v35")
    a("v_mul_f32 v32, 0x3acccccd, v32\nv_mul_f32 v34, 0x3acccccd, v34")
    a("v_fma_f32 v34, -v32, v32, v34\nv_max_f32 v34, 0, v34")
    rnd(a, 32); rnd(a, 34)
    a("v_add_f32 v34, 0x3727c5ac, v34")
    rnd(a, 34)
    a("v_sqrt_f32 v34, v34\ns_nop 0")
    rnd(a, 34)
    a(f"v_rcp_f32 v{V_NR}, v34\ns_nop 0\nv_mul_f32 v{V_NC}, v32, v{V_NR}\nv_sub_f32 v{V_NC}, 0, v{V_NC}")
    a.extend(st.now(18))
def norm_instrs(j):
    L = []
    for p in range(2):
        r0, r1 = BF + 4 * j + 2 * p, BF + 4 * j + 2 * p + 1
        t = V_NT
        L += [f"v_lshlrev_b32 v{t}, 16, v{r0}", f"v_and_b32 v{t+1}, 0xffff0000, v{r0}", f"v_lshlrev_b32 v{t+2}, 16, v{r1}", f"v_and_b32 v{t+3}, 0xffff0000, v{r1}"]
        L += [f"v_fma_f32 v{t+q}, v{t+q}, v{V_NR}, v{V_NC}" for q in range(4)]
        L += [f"v_cvt_pk_bf16_f32 v{r0}, v{t}, v{t+1}", f"v_cvt_pk_bf16_f32 v{r1}, v{t+2}, v{t+3}"]
    return L
def norm_restore():
    return [f"v_lshlrev_b32 v{V_QK}, 3, v2", f"v_lshlrev_b32 v{V_H}, 4, v2", "v_lshrrev_b32 v13, 5, v2", f"v_mul_u32_u24 v13, {VT_HF}, v13", "v_and_b32 v14, 31, v2",
            f"v_lshl_add_u32 v{V_V}, v14, 4, v13", "v_mov_b32 v13, s3", "v_lshlrev_b32 v13, 2, v13", f"v_add_u32 v13, {CT_PROG}, v13", "v_mov_b32 v14, 1"]

X4_R, X4_D = 8, 12
V_SF, V_CT = 14, 10
CTAB = 1024
S_HX = 79
def x4_base(P): return min(P["xb"]) if max(P["xb"]) - min(P["xb"]) <= 49152 else P["xb"][0]
def x4_dma(P, m, tg):
    return [f"s_add_u32 m0, s{S_XW}, {P['xb'][m % len(P['xb'])] + tg * 1024}", f"s_add_u32 s{S_XT}, s{S_XB}, {tg * 10240 + m * 128}",
            f"buffer_load_dwordx4 v{X4_D + (tg & 1)}, s[{p0.SRD_A}:{p0.SRD_A+3}], s{S_XT} offen lds" if not (X4_NODMA[0] and m >= X4_NODMA[0] - 1) else "s_nop 0"]
X4_NODMA = [0]
def x4_batch1(a, P):
    a(f"s_lshl_b32 s40, s{S_TB}, 2\ns_add_u32 s40, s40, s3\ns_mul_i32 s{S_XB}, s40, 40960\ns_lshl_b32 s{S_XW}, s3, 12")
    a("v_lshrrev_b32 v16, 3, v2\nv_mul_u32_u24 v16, 1280, v16\nv_lshrrev_b32 v17, 4, v2\nv_and_b32 v18, 7, v2\nv_xor_b32 v18, v18, v17")
    a(f"v_lshl_add_u32 v{X4_D}, v18, 4, v16\nv_xor_b32 v{X4_D+1}, 64, v{X4_D}")
    for m in range(len(P["xb"])):
        for tg in range(4): a.extend(x4_dma(P, m, tg))
    a(f"v_mov_b32 v20, v{X4_D}\nv_mov_b32 v21, v{X4_D+1}")
def x4_setup(a, P):
    a("v_bfe_u32 v16, v2, 3, 2\nv_lshlrev_b32 v16, 10, v16\nv_and_b32 v17, 7, v2\nv_lshl_add_u32 v16, v17, 7, v16")
    a(f"v_bfe_u32 v17, v2, 1, 3\nv_lshrrev_b32 v18, 5, v2\nv_xor_b32 v17, v17, v18\nv_lshl_add_u32 v16, v17, 4, v16")
    a(f"s_add_u32 s40, s{S_XW}, {x4_base(P)}\nv_add_u32 v{X4_R}, s40, v16\ns_lshl_b32 s{S_HX}, s49, 6")
    for k in range(1, 4): a(f"v_xor_b32 v{X4_R+k}, {32*k}, v{X4_R}")
    a(f"v_mov_b32 v{X4_D}, v20\nv_mov_b32 v{X4_D+1}, v21\nv_mov_b32 v{V_SF}, 0\nv_mov_b32 v{V_SF+1}, 0")
def x4_restore(ty):
    L = [f"v_lshlrev_b32 v{V_QK}, 3, v2", f"v_lshlrev_b32 v{V_H}, 4, v2", "v_lshrrev_b32 v13, 5, v2", f"v_mul_u32_u24 v13, {VT_HF}, v13", "v_and_b32 v14, 31, v2",
         f"v_lshl_add_u32 v{V_V}, v14, 4, v13", "v_mov_b32 v13, s3", "v_lshlrev_b32 v13, 2, v13", f"v_add_u32 v13, {CT_PROG}, v13", "v_mov_b32 v14, 0"]
    if ty == "A": L += [f"v_xor_b32 v8, s{S_HX}, v4", f"v_xor_b32 v9, s{S_HX}, v5"]
    return L

WT_VB = 32
WT_SRD_D, WT_SRD_O = 80, 84
def wt_loads(a, n, sw):
    vb = WT_VB
    g_, l16, gh, gl, col, row, pa = vb, vb+1, vb+2, vb+3, vb+4, vb+5, vb+6
    t = vb + 8
    if n == 0:
        a(f"v_lshrrev_b32 v{g_}, 4, v2\nv_and_b32 v{l16}, 15, v2\nv_lshrrev_b32 v{gh}, 1, v{g_}\nv_and_b32 v{gl}, 1, v{g_}")
        a(f"v_lshrrev_b32 v{pa}, 2, v{l16}\nv_lshlrev_b32 v{pa}, 3, v{pa}\nv_and_b32 v{pa+1}, 3, v{l16}\nv_add_u32 v{pa}, v{pa}, v{pa+1}")
        a("s_and_b32 s41, s2, 7\ns_lshr_b32 s42, s2, 3\ns_mul_i32 s43, s41, 80")
    lab = f"WT_{n}_{a.label('x')}"
    G = 96 + 8 * n
    a(f"s_add_u32 s50, s{sw}, {4*n}\ns_mul_i32 s51, s50, 52\ns_lshr_b32 s51, s51, 8")
    a("s_mul_i32 s52, s51, 5\ns_sub_u32 s52, s50, s52")
    a("s_lshl_b32 s53, s51, 5\ns_add_u32 s53, s53, s42")
    a(f"s_mov_b32 s{44+n}, -1")
    a(f"s_cmp_ge_u32 s50, 15\ns_cbranch_scc1 {lab}_skip\ns_cmp_ge_u32 s53, 74\ns_cbranch_scc1 {lab}_skip")
    a(f"s_mul_i32 s54, s41, {WT_F}\ns_mul_i32 s55, s53, {WT_K}\ns_add_u32 s54, s54, s55\ns_lshl_b32 s55, s52, 10\ns_add_u32 s54, s54, s55\ns_add_u32 s{44+n}, s54, {WT}")
    a("s_lshr_b32 s55, s52, 1\ns_lshl_b32 s55, s55, 5\ns_and_b32 s56, s52, 1\ns_lshl_b32 s56, s56, 2\ns_add_u32 s55, s55, s56\ns_add_u32 s55, s55, s43")
    a(f"s_cmp_eq_u32 s52, 4\ns_cselect_b64 s[56:57], -1, 0\nv_cndmask_b32 v{col}, v{pa}, v{l16}, s[56:57]\nv_add_u32 v{col}, s55, v{col}\nv_lshlrev_b32 v{col}, 1, v{col}")
    a(f"s_cmp_ge_u32 s53, 54\ns_cbranch_scc1 {lab}_o")
    a(f"s_lshl_b32 s55, s53, 5\nv_lshlrev_b32 v{row}, 4, v{gh}\nv_lshl_add_u32 v{row}, v{gl}, 2, v{row}\nv_add_u32 v{row}, s55, v{row}")
    a(f"s_movk_i32 s56, 1280\nv_mul_lo_u32 v{row}, v{row}, s56\nv_add_u32 v{row}, v{row}, v{col}\nv_add_u32 v{col}, 10240, v{row}")
    for j in range(8):
        a(f"buffer_load_ushort v{G+j}, v{row if j < 4 else col}, s[{WT_SRD_D}:{WT_SRD_D+3}], 0 offen offset:{(j%4)*1280}")
    a(f"s_branch {lab}_skip\n{lab}_o:")
    a(f"s_sub_u32 s55, s53, 54\ns_lshl_b32 s55, s55, 1\nv_add_u32 v{t}, s55, v{gh}")
    a(f"v_mul_u32_u24 v{t+1}, 52, v{t}\nv_lshrrev_b32 v{t+1}, 8, v{t+1}")
    a(f"v_mul_u32_u24 v{t+2}, 5, v{t+1}\nv_sub_u32 v{t+2}, v{t}, v{t+2}")
    a(f"v_lshlrev_b32 v{t+1}, 2, v{t+1}")
    a(f"v_add_u32 v{t+3}, v{t+1}, v{t+2}\nv_mul_u32_u24 v{t+3}, 20, v{t+3}\nv_lshl_add_u32 v{t+3}, v{gl}, 2, v{t+3}")
    a(f"v_add_u32 v{t+4}, v{t+1}, v{gl}\nv_mul_u32_u24 v{t+4}, 20, v{t+4}\nv_add_u32 v{t+4}, 16, v{t+4}")
    a(f"v_cmp_eq_u32 vcc, 4, v{t+2}\nv_mov_b32 v{t+5}, 8\nv_mov_b32 v{t+6}, 40\nv_cndmask_b32 v{t+3}, v{t+3}, v{t+4}, vcc\nv_cndmask_b32 v{t+5}, v{t+5}, v{t+6}, vcc")
    a(f"s_movk_i32 s56, 1280\nv_mul_lo_u32 v{row}, v{t+3}, s56\nv_mul_lo_u32 v{t+5}, v{t+5}, s56\nv_add_u32 v{row}, v{row}, v{col}\nv_add_u32 v{col}, v{row}, v{t+5}")
    for j in range(8):
        a(f"buffer_load_ushort v{G+j}, v{row if j < 4 else col}, s[{WT_SRD_O}:{WT_SRD_O+3}], 0 offen offset:{(j%4)*1280}")
    a(f"{lab}_skip:")

def wt_stores(a):
    a(f"v_lshlrev_b32 v{WT_VB+15}, 4, v2")
    for n in range(4):
        lab = a.label("WTS")
        G = 96 + 8 * n
        a(f"s_cmp_eq_u32 s{44+n}, -1\ns_cbranch_scc1 {lab}")
        for q in range(4): a(f"v_lshl_or_b32 v{128+4*n+q}, v{G+2*q+1}, 16, v{G+2*q}")
        a(f"buffer_store_dwordx4 v[{128+4*n}:{131+4*n}], v{WT_VB+15}, {WS}, s{44+n} offen sc1")
        a(f"{lab}:")

WT_LDS = 12288
def wt2_issue(a):
    lab = a.label("W2")
    a("s_mov_b32 s88, -1\ns_sub_u32 s50, s3, 4\ns_lshr_b32 s42, s2, 3\ns_lshl_b32 s53, s50, 5\ns_add_u32 s53, s53, s42")
    a(f"s_cmp_ge_u32 s53, 74\ns_cbranch_scc1 {lab}_skip")
    a(f"s_and_b32 s41, s2, 7\ns_mul_i32 s54, s41, {WT_F}\ns_mul_i32 s55, s53, {WT_K}\ns_add_u32 s54, s54, s55\ns_add_u32 s88, s54, {WT}")
    a(f"s_mul_i32 s43, s41, 160\ns_mul_i32 s51, s50, 5120\ns_add_u32 s51, s51, {WT_LDS}")
    for p in range(5):
        a(f"v_add_u32 v{40+p}, {64*p}, v2\nv_mul_u32_u24 v{32+p}, 205, v{40+p}\nv_lshrrev_b32 v{32+p}, 11, v{32+p}")
        a(f"v_mul_u32_u24 v46, 10, v{32+p}\nv_sub_u32 v{40+p}, v{40+p}, v46\nv_lshlrev_b32 v{40+p}, 4, v{40+p}")
    a(f"s_cmp_ge_u32 s53, 54\ns_cbranch_scc1 {lab}_o")
    a("s_mul_i32 s55, s53, 40960\ns_add_u32 s55, s55, s43")
    for p in range(5):
        a(f"v_mul_u32_u24 v46, 1280, v{32+p}\nv_add_u32 v{40+p}, v{40+p}, v46")
        a(f"s_add_u32 m0, s51, {1024*p}\ns_nop 0")
        a(f"buffer_load_dwordx4 v{40+p}, s[{WT_SRD_D}:{WT_SRD_D+3}], s55 offen lds")
    a(f"s_branch {lab}_skip\n{lab}_o:")
    for gh in range(2):
        a(f"s_sub_u32 s55, s53, 54\ns_lshl_b32 s55, s55, 1\ns_add_u32 s55, s55, {gh}\ns_mul_i32 s56, s55, 52\ns_lshr_b32 s56, s56, 8")
        a(f"s_mul_i32 s57, s56, 5\ns_sub_u32 s57, s55, s57\ns_lshl_b32 s56, s56, 2")
        a(f"s_add_u32 s55, s56, s57\ns_mul_i32 s55, s55, 20\ns_mul_i32 s56, s56, 20\ns_add_u32 s56, s56, 16")
        a(f"s_cmp_eq_u32 s57, 4\ns_cselect_b32 s{58+2*gh}, s56, s55\ns_cselect_b32 s{59+2*gh}, 1, 0")
    a("v_mov_b32 v47, s58\nv_mov_b32 v48, s60\nv_mov_b32 v49, s59\nv_mov_b32 v50, s61")
    for p in range(5):
        a(f"v_and_b32 v51, 15, v{32+p}\nv_lshrrev_b32 v52, 2, v51\nv_mul_u32_u24 v52, 20, v52\nv_and_b32 v53, 3, v51\nv_add_u32 v52, v52, v53")
        a(f"v_cmp_le_u32 vcc, 16, v{32+p}\ns_nop 1\nv_cndmask_b32 v53, v47, v48, vcc\nv_cndmask_b32 v54, v49, v50, vcc")
        a(f"v_cmp_eq_u32 vcc, 1, v54\ns_nop 1\nv_cndmask_b32 v51, v51, v52, vcc\nv_add_u32 v51, v51, v53")
        a(f"v_mul_u32_u24 v51, 1280, v51\nv_add_u32 v{40+p}, v{40+p}, v51")
        a(f"s_add_u32 m0, s51, {1024*p}\ns_nop 0")
        a(f"buffer_load_dwordx4 v{40+p}, s[{WT_SRD_O}:{WT_SRD_O+3}], s43 offen lds")
    a(f"{lab}_skip:")

def wt2_finish(a, nyounger):
    lab = a.label("W2F")
    a(f"s_cmp_eq_u32 s88, -1\ns_cbranch_scc1 {lab}")
    a("v_lshrrev_b32 v32, 5, v2\nv_lshlrev_b32 v32, 4, v32\nv_bfe_u32 v33, v2, 4, 1\nv_lshl_add_u32 v32, v33, 2, v32\nv_bfe_u32 v33, v2, 2, 2\nv_add_u32 v32, v32, v33")
    a(f"s_sub_u32 s50, s3, 4\ns_mul_i32 s51, s50, 5120\ns_add_u32 s51, s51, {WT_LDS}")
    a("v_mul_u32_u24 v32, 160, v32\nv_add_u32 v32, s51, v32\nv_and_b32 v33, 3, v2\nv_lshl_add_u32 v34, v33, 4, v32\nv_lshl_add_u32 v35, v33, 3, v32\nv_lshlrev_b32 v36, 4, v2")
    a(f"s_waitcnt vmcnt({nyounger})")
    for ft in range(5):
        adr, off = (34, (ft >> 1) * 64 + (ft & 1) * 8) if ft < 4 else (35, 128)
        a(f"ds_read_b64_tr_b16 v[{64+4*ft}:{65+4*ft}], v{adr} offset:{off}\nds_read_b64_tr_b16 v[{66+4*ft}:{67+4*ft}], v{adr} offset:{off+1280}")
    a("s_add_u32 s52, s88, 4096")
    for ft in range(5):
        a(f"s_waitcnt lgkmcnt({2*(4-ft)})")
        a(f"buffer_store_dwordx4 v[{64+4*ft}:{67+4*ft}], v36, {WS}, s{88 if ft < 4 else 52} offen offset:{(ft%4)*1024} sc1")
    a(f"{lab}:")

def loader_issue(a, P, s):
    kind, idx, stg = P["stages"][s]
    slot = P["slot"][s]
    for i in range(4):
        if kind == "P":
            base = S_CP0 + idx; off = (64 * stg + 8 * i) * 3456; vo, sr = 5, SRD_B
        else:
            base = {"QK": S_CQ0, "QKH": S_CQ1, "V": S_CQ1 + idx}[kind]; off = (128 * stg + 8 * i) * 3840; vo, sr = 4, SRD_A
        a(f"s_add_u32 m0, s{S_J}, {RING + slot*16384 + i*1024}")
        a(f"s_add_u32 s{S_T}, s{base}, {off}")
        a(f"buffer_load_dwordx4 v{vo}, s[{sr}:{sr+3}], s{S_T} offen lds")

def weight_prefetch(a, ty, which="rest"):
    n = 0
    a("s_lshr_b32 s40, s2, 3\ns_and_b32 s40, s40, 7\ns_mul_i32 s40, s40, 80\ns_sub_u32 s41, s3, 4")
    a("s_mul_i32 s42, s41, 20\ns_add_u32 s42, s42, s40\nv_add_u32 v23, s42, v2\nv_mul_u32_u24 v23, 3840, v23")
    a("v_mov_b32 v25, 0x80000000\nv_cmp_gt_u32 vcc, 20, v2\ns_nop 1\nv_cndmask_b32 v23, v25, v23, vcc")
    a("s_and_b32 s42, s41, 1\ns_mul_i32 s42, s42, 40\ns_add_u32 s42, s42, s40\nv_add_u32 v24, s42, v2\nv_mul_u32_u24 v24, 3456, v24")
    a("v_cmp_gt_u32 vcc, 40, v2\ns_nop 1\nv_cndmask_b32 v24, v25, v24, vcc")
    qs = {"A": [45], "B": [], "C": [45, 46]}[ty]
    ps = {"A": [47, 48], "B": [47, 48], "C": [47]}[ty]
    if p1.ORD == 1:
        qs = {"A": [44, 45], "B": [44], "C": [44]}[ty]
        ps = {"A": [48], "B": [48], "C": [47]}[ty]
        if which == "first":
            qs = {"A": [], "B": [], "C": [45, 46]}[ty]
            ps = {"A": [47], "B": [47], "C": []}[ty]
    for q in qs:
        a(f"s_lshl_b32 s42, s{q}, 7\nbuffer_load_dword v26, v23, s[{SRD_A}:{SRD_A+3}], s42 offen"); n += 1
    for q in ps:
        a(f"s_lshl_b32 s42, s{q}, 7\nbuffer_load_dword v27, v24, s[{SRD_B}:{SRD_B+3}], s42 offen"); n += 1
    return n

def wtpf_flag(a):
    a("s_and_b32 s43, s2, 7\ns_lshr_b32 s41, s2, 3\ns_and_b32 s42, s43, 1\ns_lshl_b32 s42, s42, 2\ns_and_b32 s40, s41, 3\ns_add_u32 s40, s42, s40")
    a(f"s_lshl_b32 s42, s40, 7\ns_add_u32 s42, s42, {FW}\nv_and_b32 v93, 31, v2\nv_lshlrev_b32 v93, 10, v93\nv_add_u32 v92, s42, v93")
    a(f"buffer_load_dword v94, v92, {WS}, 0 offen sc1")
    a(f"s_lshr_b32 s41, s41, 2\ns_mul_i32 s41, s41, 370\ns_sub_u32 s42, s3, 4\ns_lshl_b32 s42, s42, 7\ns_add_u32 s41, s41, s42")
    a(f"v_add_u32 v93, s41, v2\nv_add_u32 v92, 64, v93\nv_min_u32 v93, {74*40-1}, v93\nv_min_u32 v92, {74*40-1}, v92")
    a(f"s_mul_i32 s40, s40, {WT_F}\ns_add_u32 s40, s40, {WT}\nv_lshlrev_b32 v93, 7, v93\nv_lshlrev_b32 v92, 7, v92")
    a(f"v_add_u32 v93, s40, v93\nv_add_u32 v92, s40, v92")
    return 1
def wtpf_issue(a, nyounger):
    a(f"s_waitcnt vmcnt({min(63, nyounger)})")
    a(f"v_cmp_eq_u32 vcc, s{S_NONCE}, v94\ns_nop 0\ns_cmp_eq_u64 vcc, -1\ns_cselect_b32 s40, 0, 0x80000000")
    a("v_or_b32 v93, s40, v93\nv_or_b32 v92, s40, v92")
    a(f"buffer_load_dword v94, v93, {WS}, 0 offen sc1\nbuffer_load_dword v95, v92, {WS}, 0 offen sc1")
    return 2
def hpf_lines():
    return [f"s_and_b32 s40, s{K_FB}, 3", "s_lshl_b32 s40, s40, 2", "s_add_u32 s40, s40, s57",
            "s_lshl_b32 s41, s40, 2", "s_add_u32 s41, s41, 14", "s_lshl_b32 s42, s40, 1", "s_add_u32 s42, s42, 28", "s_min_u32 s42, s42, 52",
            "s_cmp_lt_u32 s40, 8", "s_cselect_b32 s41, s41, s42", "s_lshl_b32 s41, s41, 11", f"s_add_u32 s41, s41, s{KS_H0}",
            "v_lshrrev_b32 v252, 5, v2", f"v_mul_u32_u24 v252, {HS_T}, v252", "v_and_b32 v253, 31, v2", "v_lshl_add_u32 v252, v253, 7, v252",
            f"buffer_load_dword v253, v252, {WS}, s41 offen sc1"]

EH_A, EH_R = 92, 94
def eh_prepoll(a):
    a("s_and_b32 s43, s2, 7\ns_lshr_b32 s41, s2, 3")
    a("s_and_b32 s42, s43, 1\ns_lshl_b32 s42, s42, 2\ns_and_b32 s40, s41, 3\ns_add_u32 s44, s42, s40")
    a("s_lshr_b32 s42, s43, 1\ns_lshl_b32 s42, s42, 3\ns_lshr_b32 s41, s41, 2\ns_add_u32 s45, s42, s41")
    a(f"s_lshl_b32 s40, s44, 7\ns_add_u32 s40, s40, {FW}\nv_and_b32 v16, 31, v2\nv_lshlrev_b32 v16, 10, v16\nv_add_u32 v{EH_A}, s40, v16")
    a(f"s_lshl_b32 s41, s45, 14\ns_add_u32 s41, s41, {FG + K_H0*128}")
    a("v_and_b32 v16, 15, v2\nv_min_u32 v16, 10, v16\nv_bfe_u32 v17, v2, 4, 1\nv_lshl_add_u32 v16, v17, 4, v16\nv_lshlrev_b32 v16, 9, v16")
    a(f"v_add_u32 v{EH_A+1}, s41, v16")
    for i in range(2): a(f"buffer_load_dword v{EH_R+i}, v{EH_A+i}, {WS}, 0 offen sc1")
    return 2
def eh_setup(a, nyounger):
    lab = a.label("EH")
    a(f"s_sub_u32 s57, s3, 4\ns_mul_i32 s{K_WT}, s44, {WT_F}\ns_add_u32 s{K_WT}, s{K_WT}, {WT}")
    a(f"s_lshl_b32 s40, s45, 1\ns_mul_i32 s{KS_H0}, s40, {HS_T}\ns_add_u32 s{KS_H0}, s{KS_H0}, {HS}")
    a(f"v_lshlrev_b32 v{V_LA}, 4, v2\nv_add_u32 v{V_LA2}, 4096, v{V_LA}")
    a(f"v_lshrrev_b32 v16, 4, v2\nv_and_b32 v17, 15, v2\nv_lshlrev_b32 v{V_LB}, 9, v16\nv_lshl_add_u32 v{V_LB}, v17, 4, v{V_LB}")
    h_bases(a)
    a(f"s_waitcnt vmcnt({min(63, nyounger)})")
    for i in range(2):
        a(f"v_cmp_eq_u32 vcc, s{S_NONCE}, v{EH_R+i}\ns_nop 0\ns_cmp_eq_u64 vcc, -1\ns_cbranch_scc1 {lab}_{i}")
        a("s_mov_b32 s43, 0")
        poll(a, EH_A + i, 43, -1, -1, f"{lab}_p{i}", EH_R + i)
        a(f"{lab}_{i}:")
WTR_A, WTR_F = 244, 246
def wtr_fb(a):
    a("s_and_b32 s43, s2, 1\ns_lshl_b32 s43, s43, 2\ns_lshr_b32 s41, s2, 3\ns_and_b32 s41, s41, 3\ns_add_u32 s43, s43, s41")
def wtr_prepoll(a):
    wtr_fb(a)
    a(f"s_lshl_b32 s40, s43, 7\ns_add_u32 s40, s40, {FW}\nv_and_b32 v{WTR_F}, 31, v2\nv_lshlrev_b32 v{WTR_F}, 10, v{WTR_F}\nv_add_u32 v{WTR_F}, s40, v{WTR_F}")
    a(f"v_lshlrev_b32 v{WTR_A}, 4, v2\nv_add_u32 v{WTR_A+1}, 4096, v{WTR_A}")
    a(f"buffer_load_dword v{WTR_F+1}, v{WTR_F}, {WS}, 0 offen sc1")
    return 1
def wtr_check(a, nyounger):
    lab = a.label("WR")
    a(f"s_waitcnt vmcnt({min(63, nyounger)})")
    a(f"v_cmp_eq_u32 vcc, s{S_NONCE}, v{WTR_F+1}\ns_nop 0\ns_cmp_eq_u64 vcc, -1\ns_cbranch_scc1 {lab}_k")
    a("s_mov_b32 s43, 0")
    poll(a, WTR_F, 43, -1, -1, f"{lab}_p", WTR_F + 1)
    a(f"{lab}_k:")
def wtr_item(a, n):
    assert n <= 3
    wtr_fb(a)
    a(f"s_mul_i32 s43, s43, {WT_F}\ns_add_u32 s43, s43, {WT}")
    a(f"s_sub_u32 s40, s3, 4\ns_lshr_b32 s41, s40, 1\ns_lshl_b32 s41, s41, 2\ns_and_b32 s40, s40, 1\ns_add_u32 s40, s40, s41\ns_add_u32 s40, s40, {8*n}")
    a(f"s_mul_i32 s40, s40, {WT_K}\ns_add_u32 s43, s43, s40")
    r = BUF + 36 * n
    for ft in range(5):
        a(f"buffer_load_dwordx4 v[{r+4*ft}:{r+3+4*ft}], v{WTR_A if ft < 4 else WTR_A+1}, {WS}, s43 offen offset:{(ft%4)*1024} sc1")
    return 5
def h_bases(a, J=57):
    a(f"s_lshr_b32 s40, s{J}, 1\ns_lshl_b32 s40, s40, 2\ns_and_b32 s41, s{J}, 1\ns_add_u32 s56, s40, s41")
    a(f"s_add_u32 s42, s{J}, 40\ns_cmp_lt_u32 s{J}, 2\ns_cselect_b32 s55, s42, s{J}")
    a(f"s_add_u32 s40, s{J}, 2\ns_lshr_b32 s40, s40, 1\ns_lshl_b32 s40, s40, 2\ns_add_u32 s54, s40, s41\ns_add_u32 s54, s54, 2")
def eh_item(a, n):
    L = [f"s_add_u32 s{K_KAP}, s56, {8*n}"] + k_addr(None, False) + k_wt(n % NBUF) + k_act(n % NBUF)
    assert n <= 4
    for x in L: a(x)
    return 9

def slot_free(P, s, bi):
    p = P["prev"][s]
    if p is None: return True
    if bi < 0: return False
    if isinstance(p, tuple): return P["bars"][bi] >= p[1]
    return P["info"][bi][1] >= p
def gen_loader(a, P, st, opt, npf=0):
    info, ns = P["info"], P["ns"]
    issued = opt.get("_issued", NSLOT)
    q = [("stage", s) for s in range(issued) for _ in range(4)] + [("pf",)] * npf
    if "_q0" in opt: q = list(opt["_q0"])
    WT_LD = opt.get("wt_ld", 2); WT_ST = WT_LD + opt.get("wt_gap", 9); WT_FL = WT_ST + 9
    nb = len(info)
    new_wt = opt.get("front", 0) >= 1
    WT2_AT = opt.get("wt2_at", -1)
    fw_done = False
    if new_wt:
        WT_LD = WT_ST = -1; wt_mark2 = NSLOT
        WT_FL = min(bi for bi, (need, done) in enumerate(info) if need >= NSLOT)
        if WT2_AT >= 0: WT_FL = -2; wt_mark2 = 1000
    assert WT_FL < nb - 1
    EH = opt.get("eh", 0); eh_plan = {}
    if EH:
        i_ = issued; bL = None
        for bi in range(nb):
            while i_ < ns and slot_free(P, i_, bi - 1): i_ += 1
            if i_ == ns and bL is None: bL = bi
        if opt["_ty"] in ("A" if opt.get("eh_bc", 0) == 0 else "ABC"):
            first = bL + opt.get("eh_at", 0); ppb = first - opt.get("eh_pp", 2)
            for n in range(EH): eh_plan.setdefault(min(first + n * opt.get("eh_step", 1), nb - 1), []).append(n)
        else:
            ppb = nb - 2
            eh_plan[nb - 1] = list(range(EH))
        assert ppb >= 1 and min(eh_plan) >= bL
        eh_mark = None
    L4 = opt.get("front", 0) == 4
    NB_ = opt.get("nonce_bar", 6); WT2_ISS = opt.get("wt2_iss", 0); w2_first = None; w2_fin = False; n_first = None
    for bi, (need, done) in enumerate(info):
        while issued < ns and slot_free(P, issued, bi - 1):
            loader_issue(a, P, issued); q += [("stage", issued)] * 4; issued += 1
        if bi == nb - 1:
            assert issued == ns
            need = ns - 1
        assert issued > need
        last = max(i for i, t in enumerate(q) if t == ("stage", need))
        a(f"s_waitcnt vmcnt({min(63, len(q) - 1 - last)})")
        if L4 and bi == NB_:
            lab = a.label("NN")
            a(f"s_cmp_lg_u32 s3, 4\ns_cbranch_scc1 {lab}_x\ns_waitcnt vmcnt({min(63, len(q) - n_first)})")
            a(f"v_readfirstlane_b32 s40, v28\ns_cmp_lg_u32 s40, 0\ns_cbranch_scc1 {lab}_1\ns_mov_b32 s{S_SPIN}, {SPIN}\nv_mov_b32 v29, 0")
            a(f"{lab}_p:\nbuffer_load_dword v28, v29, s[{SRD_C}:{SRD_C+3}], 0 offen sc1\ns_waitcnt vmcnt(0)\nv_readfirstlane_b32 s40, v28\ns_cmp_lg_u32 s40, 0\ns_cbranch_scc1 {lab}_1")
            a(f"s_sub_u32 s{S_SPIN}, s{S_SPIN}, 1\ns_cmp_lg_u32 s{S_SPIN}, 0\ns_cbranch_scc1 {lab}_p")
            a(f"{lab}_1:\nv_mov_b32 v29, {CT_NONCE}\nds_write_b32 v29, v28\ns_waitcnt lgkmcnt(0)\n{lab}_x:")
        a("s_barrier")
        if bi == 0 and opt.get("front", 0) == 2: opt["_get_nonce"]()
        if L4:
            if bi == NB_: opt["_get_nonce"]()
            if bi == 0:
                lab = a.label("NL")
                a(f"s_cmp_lg_u32 s3, 4\ns_cbranch_scc1 {lab}\nv_mov_b32 v29, 0\nbuffer_load_dword v28, v29, s[{SRD_C}:{SRD_C+3}], 0 offen sc1\n{lab}:")
                n_first = len(q)
            if bi == WT2_ISS: wt2_issue(a); w2_first = issued
            elif w2_first is not None and not w2_fin and need >= w2_first and bi >= WT2_AT:
                wt2_finish(a, 63); w2_fin = True; wt_mark2 = issued
            elif w2_fin and not fw_done and need >= wt_mark2 and bi > NB_:
                WT_FL = bi; fw_done = True
                assert bi < nb - 1
        if bi == WT_LD:
            a(f"s_sub_u32 s59, s3, 4")
            if not opt.get("nowt"):
                for n in range(4): wt_loads(a, n, 59)
            wt_mark = issued
        if bi == WT_ST:
            last = max(i for i, t in enumerate(q) if t == ("stage", wt_mark))
            a(f"s_waitcnt vmcnt({min(63, len(q) - 1 - last)})")
            if not opt.get("nowt"): wt_stores(a)
            wt_mark2 = issued
        if EH and bi == ppb:
            n = eh_prepoll(a); q += [("pf",)] * n; eh_mark = len(q)
        pp_first = opt.get("pp_first", 0)
        if pp_first and opt.get("tail", 0) >= 1 and bi == nb - 1 - opt.get("pp_back", 3):
            n = prepoll_issue(a); q += [("pf",)] * n
        for n in eh_plan.get(bi, []):
            if n == 0: eh_setup(a, len(q) - eh_mark)
            q += [("pf",)] * eh_item(a, n)
        if not pp_first and opt.get("tail", 0) >= 1 and bi == nb - 1 - opt.get("pp_back", 3):
            n = prepoll_issue(a); q += [("pf",)] * n
        WTR = opt.get("wtr", 0)
        if WTR:
            b0 = opt.get("wtr_pp", 10); b1 = b0 + opt.get("wtr_d", 2); stp = opt.get("wtr_step", 1)
            assert b1 + stp * (WTR - 1) < nb - 1 - opt.get("pp_back", 3)
            if bi == b0: n = wtr_prepoll(a); q += [("pf",)] * n; wtr_mark = len(q)
            if bi == b1: wtr_check(a, len(q) - wtr_mark)
            if bi >= b1 and (bi - b1) % stp == 0 and (bi - b1) // stp < WTR: n = wtr_item(a, (bi - b1) // stp); q += [("pf",)] * n
        if opt.get("wtpf") and bi == nb - 1 - opt["wtpf"]:
            assert bi > WT_FL >= 0 or True
            n = wtpf_flag(a); q += [("pf",)] * n; wtpf_mark = len(q)
        if opt.get("wtpf") and bi == nb - 1 - opt["wtpf"] + opt.get("wtpf_d", 2):
            n = wtpf_issue(a, len(q) - wtpf_mark); q += [("pf",)] * n
        if bi == opt.get("wpf_at", -1) and opt.get("wpf", 1) == 3:
            n = weight_prefetch(a, opt["_ty"]); q += [("pf",)] * n
        if new_wt and WT2_AT >= 0 and not L4:
            if bi == WT2_AT:
                wt2_finish(a, 63)
                wt_mark2 = issued
            elif bi > WT2_AT and not fw_done and need >= wt_mark2:
                WT_FL = bi; fw_done = True
                assert bi < nb - 1
        if bi == WT_FL:
            assert need >= wt_mark2, (need, wt_mark2)
            lab = a.label("FW")
            a(f"s_cmp_lg_u32 s3, 4\ns_cbranch_scc1 {lab}\ns_lshl_b32 s40, s2, 7\ns_add_u32 s40, s40, {FW}")
            a(flag_store(40))
            a(f"{lab}:")

def attn_dma_dyn(a, kind, m, vb, sj, sj5):
    t = 64
    if kind == "Q":
        a(f"s_lshl_b32 s{t}, s{p2.A_TB2}, 1\ns_add_u32 s{t}, s{t}, {m}")
        a(f"s_mul_i32 s{t+1}, s{t}, {QS_T}\ns_mul_i32 s{t}, s{p2.A_HQ}, 5120\ns_add_u32 s{t+1}, s{t+1}, s{t}\ns_add_u32 s{t+1}, s{t+1}, {QS}")
        p2.dma5(a, L_Q + m * 5120, [vb+5]*5, t+1, "sc1", True)
    elif kind == "K": p2.dma_k(a, m, vb, "sc1", t)
    else: p2.dma_v(a, m, vb, "sc1", t)

def qk_producers(hq):
    def fbs(q):
        if q < 8: return [q]
        if q < 12: return [q - 8, q - 4]
        return [q - 4]
    t1, t2 = (80 * hq) >> 6, (80 * hq + 79) >> 6
    L = []
    for q in (t1, t2, 10 + t1, 10 + t2):
        for f in fbs(q):
            if f not in L: L.append(f)
    while len(L) < 6: L.append(L[0])
    assert len(L) == 6
    return L

def poll_qk(a, lab):
    tab = [sum(f << (4 * i) for i, f in enumerate(qk_producers(h))) for h in range(8)]
    a(f"s_mov_b32 s41, {tab[0]}")
    for h in range(1, 8):
        a(f"s_mov_b32 s42, {tab[h]}\ns_cmp_eq_u32 s{p2.A_HQ}, {h}\ns_cselect_b32 s41, s42, s41")
    a("v_mul_u32_u24 v16, 43, v2\nv_lshrrev_b32 v16, 8, v16")
    a("v_mul_u32_u24 v17, 6, v16\nv_sub_u32 v17, v2, v17\nv_lshlrev_b32 v17, 2, v17")
    a("v_lshrrev_b32 v17, v17, s41\nv_and_b32 v17, 15, v17")
    a(f"s_lshl_b32 s42, s{p2.A_TB2}, 1\ns_sub_i32 s42, s42, 8\nv_add_u32 v16, s42, v16\nv_max_i32 v16, 0, v16")
    a("v_lshl_add_u32 v16, v16, 4, v17\nv_lshlrev_b32 v16, 9, v16")
    a(f"s_mov_b32 s43, {FG}")
    poll(a, 16, 43, -1, 0x0fffffff, lab, 18, off=K_QK * 128)

def poll_v(a, lab):
    a(f"s_mul_i32 s41, s{p2.A_HQ}, 80\ns_add_u32 s42, s41, 79\ns_lshr_b32 s41, s41, 7\ns_lshr_b32 s42, s42, 7")
    a("s_add_u32 s41, s41, 11\ns_add_u32 s42, s42, 11")
    a("v_and_b32 v17, 1, v2\nv_cmp_eq_u32 vcc, 1, v17\nv_mov_b32 v17, s41\nv_mov_b32 v18, s42\nv_cndmask_b32 v17, v17, v18, vcc")
    a(f"v_lshrrev_b32 v16, 1, v2\ns_lshl_b32 s42, s{p2.A_TB2}, 1\ns_sub_i32 s42, s42, 8\nv_add_u32 v16, s42, v16\nv_max_i32 v16, 0, v16")
    a("v_lshl_add_u32 v16, v16, 4, v17\nv_lshlrev_b32 v16, 9, v16")
    a(f"s_mov_b32 s43, {FG}")
    poll(a, 16, 43, 0xfffff, 0, lab, 18, off=K_V * 128)

PP_A, PP_R = 84, 88
def prepoll_issue(a):
    p2.attn_params(a)
    p2.attn_dma_setup(a, 8)
    tab = [sum(f << (4 * i) for i, f in enumerate(qk_producers(h))) for h in range(8)]
    a(f"s_mov_b32 s41, {tab[0]}")
    for h in range(1, 8):
        a(f"s_mov_b32 s42, {tab[h]}\ns_cmp_eq_u32 s{p2.A_HQ}, {h}\ns_cselect_b32 s41, s42, s41")
    A0, A1, A2, A3 = PP_A, PP_A + 1, PP_A + 2, PP_A + 3
    a(f"v_min_u32 v18, 59, v2\nv_mul_u32_u24 v16, 43, v18\nv_lshrrev_b32 v16, 8, v16")
    a("v_mul_u32_u24 v17, 6, v16\nv_sub_u32 v17, v18, v17\nv_lshlrev_b32 v17, 2, v17")
    a("v_lshrrev_b32 v17, v17, s41\nv_and_b32 v17, 15, v17")
    a(f"s_lshl_b32 s42, s{p2.A_TB2}, 1\ns_sub_i32 s42, s42, 8\nv_add_u32 v16, s42, v16\nv_max_i32 v16, 0, v16")
    a(f"v_lshl_add_u32 v16, v16, 4, v17\nv_lshlrev_b32 v16, 9, v16\nv_add_u32 v{A0}, {FG + K_QK*128}, v16")
    a(f"s_mul_i32 s41, s{p2.A_HQ}, 80\ns_add_u32 s43, s41, 79\ns_lshr_b32 s41, s41, 7\ns_lshr_b32 s43, s43, 7")
    a("s_add_u32 s41, s41, 11\ns_add_u32 s43, s43, 11")
    a("v_min_u32 v18, 19, v2\nv_and_b32 v17, 1, v18\nv_cmp_eq_u32 vcc, 1, v17\nv_mov_b32 v17, s41\nv_mov_b32 v19, s43\nv_cndmask_b32 v17, v17, v19, vcc")
    a("v_lshrrev_b32 v16, 1, v18\nv_add_u32 v16, s42, v16\nv_max_i32 v16, 0, v16")
    a(f"v_lshl_add_u32 v16, v16, 4, v17\nv_lshlrev_b32 v16, 9, v16\nv_add_u32 v{A1}, {FG + K_V*128}, v16")
    a("s_and_b32 s43, s2, 7\ns_lshr_b32 s41, s2, 3")
    a("s_and_b32 s42, s43, 1\ns_lshl_b32 s42, s42, 2\ns_and_b32 s40, s41, 3\ns_add_u32 s40, s42, s40")
    a("s_lshr_b32 s42, s43, 1\ns_lshl_b32 s42, s42, 3\ns_lshr_b32 s41, s41, 2\ns_add_u32 s41, s42, s41")
    a(f"s_lshl_b32 s40, s40, 7\ns_add_u32 s40, s40, {FW}\nv_and_b32 v16, 31, v2\nv_lshlrev_b32 v16, 10, v16\nv_add_u32 v{A2}, s40, v16")
    a(f"s_lshl_b32 s41, s41, 14\ns_add_u32 s41, s41, {FG + K_H0*128}")
    a("v_and_b32 v16, 15, v2\nv_min_u32 v16, 10, v16\nv_bfe_u32 v17, v2, 4, 1\nv_lshl_add_u32 v16, v17, 4, v16\nv_lshlrev_b32 v16, 9, v16")
    a(f"v_add_u32 v{A3}, s41, v16")
    for i in range(4): a(f"buffer_load_dword v{PP_R+i}, v{PP_A+i}, {WS}, 0 offen sc1")
    return 4
def prepoll_check(a, i, lab, fallback):
    a(f"v_cmp_eq_u32 vcc, s{S_NONCE}, v{PP_R+i}\ns_nop 0\ns_cmp_eq_u64 vcc, -1\ns_cbranch_scc1 {lab}_pk")
    fallback()
    a(f"{lab}_pk:")
def dma5_dyn(a, slds, vregs, soff, step4):
    a(f"s_mov_b32 m0, s{slds}\ns_nop 0")
    for p in range(4):
        a(f"buffer_load_dwordx4 v{vregs[p]}, {WS}, s{soff} offen offset:{p*1024} sc1 lds")
    a(f"s_add_u32 m0, s{slds}, 4096")
    a(f"s_add_u32 s{soff}, s{soff}, 4096" if step4 else "s_nop 0")
    a(f"buffer_load_dwordx4 v{vregs[4]}, {WS}, s{soff} offen sc1 lds")
def qk_job(a, i, vb):
    a(f"s_add_u32 s64, s57, {4*i}\ns_mul_i32 s67, s64, 5120\ns_add_u32 s67, s67, {L_Q}")
    a(f"s_lshl_b32 s65, s{p2.A_TB2}, 1\ns_add_u32 s65, s65, s64")
    a(f"s_sub_i32 s66, s65, 10\ns_max_i32 s66, s66, 0")
    if i == 0:
        a(f"s_cmp_lt_u32 s64, 2\ns_cselect_b32 s65, s65, s66\ns_mov_b32 s66, {KS}\ns_cselect_b32 s66, {QS}, s66")
        a(f"s_mul_i32 s65, s65, {QS_T}\ns_add_u32 s65, s65, s66")
    else:
        a(f"s_mul_i32 s65, s66, {QS_T}\ns_add_u32 s65, s65, {KS}")
    a(f"s_mul_i32 s66, s{p2.A_HQ}, 5120\ns_add_u32 s65, s65, s66")
    dma5_dyn(a, 67, [vb+5]*5, 65, True)
def v_job(a, i, vb):
    a(f"s_add_u32 s64, s57, {4*i}\ns_mul_i32 s67, s64, 5120\ns_add_u32 s67, s67, {L_V}")
    a(f"s_lshl_b32 s65, s{p2.A_TB2}, 1\ns_add_u32 s65, s65, s64\ns_sub_i32 s65, s65, 8\ns_max_i32 s65, s65, 0")
    a(f"s_mul_i32 s65, s65, {VT_T}\ns_mul_i32 s66, s{p2.A_HQ}, 1280\ns_add_u32 s65, s65, s66\ns_add_u32 s65, s65, {VT - 4096}")
    dma5_dyn(a, 67, [vb+p for p in range(5)], 65, False)

from p3 import K_TB2, K_FB, K_WT, K_H0 as KS_H0, K_O0, K_KAP, K_A, K_B0, K_B1, BUF, NBUF, V_LA, V_LA2, V_LB, k_mfmas
def k_addr(kap_expr_lines, o_part):
    b = K_O0 if o_part else KS_H0
    stride = OS_T if o_part else HS_T
    return [f"s_mul_i32 s{K_A}, s{K_KAP}, {WT_K}", f"s_lshl_b32 s{K_B0}, s{K_KAP}, 11", f"s_add_u32 s{K_A}, s{K_A}, s{K_WT}",
            f"s_add_u32 s{K_B0}, s{K_B0}, s{b}", f"s_add_u32 s{K_B1}, s{K_B0}, {stride}"]
def k_wt(b):
    r = BUF + 36 * b
    return [f"buffer_load_dwordx4 v[{r+4*ft}:{r+3+4*ft}], v{V_LA if ft < 4 else V_LA2}, {WS}, s{K_A} offen offset:{(ft%4)*1024} sc1" for ft in range(5)]
def k_act(b):
    r = BUF + 36 * b
    return [f"buffer_load_dwordx4 v[{r+20+4*tt}:{r+23+4*tt}], v{V_LB}, {WS}, s{K_B0 if tt < 2 else K_B1} offen offset:{(tt%2)*256} sc1" for tt in range(4)]

def poll_fw(a, lab):
    a(f"v_lshlrev_b32 v16, 10, v2\ns_lshl_b32 s43, s{K_FB}, 7\ns_add_u32 s43, s43, {FW}")
    poll(a, 16, 43, -1, 0, lab, 18)
def poll_fh(a, lab, kind):
    a(f"s_lshl_b32 s43, s{K_TB2}, 14\ns_add_u32 s43, s43, {FG}\nv_lshlrev_b32 v250, 9, v2")
    m = 0x07ff07ff if kind == K_H0 else -1
    poll(a, 250, 43, m, 0, lab, 251, off=kind * 128)
def poll_fo(a, lab):
    a(f"s_lshl_b32 s43, s{K_TB2}, 12\ns_add_u32 s43, s43, {FO}\nv_lshlrev_b32 v16, 7, v2")
    poll(a, 16, 43, -1, 0, lab, 18)

def h_stream(a, st, role, mid=None, eh=0):
    J = 57
    e = Emit(a)
    def set_kap(n):
        if n <= 4:   return [f"s_add_u32 s{K_KAP}, s56, {8*n}"]
        if n == 5:   return [f"s_mov_b32 s{K_KAP}, s55"]
        if n <= 10:  return [f"s_add_u32 s{K_KAP}, s54, {8*(n-6)}"]
        return [f"s_add_u32 s{K_KAP}, s{J}, {44 + 4*(n-11)}"] + ([f"s_min_u32 s{K_KAP}, s{K_KAP}, 53"] if n == 13 else [])
    h_bases(a, J)
    NI = 14; pf = 3; LATE = 5
    if role == "pre" and XOPT.get("ehm"):
        for n in range(eh):
            for x in k_mfmas(n % NBUF, n == 0): a(x)
        for i, n in enumerate(range(eh, eh + pf)):
            if mid is not None and i == mid[0]: mid[1](e)
            e(set_kap(n) + k_addr(None, False)); e(k_wt(n % NBUF), ("wt", n))
            if n < LATE: e(k_act(n % NBUF), ("act", n))
        if mid is not None and mid[0] >= pf: mid[1](e)
        return e
    if role == "pre":
        for n in range(pf):
            if mid is not None and n == mid[0]: mid[1](e)
            if n < eh: continue
            e(set_kap(n) + k_addr(None, False))
            if n >= XOPT.get("wtr", 0): e(k_wt(n % NBUF), ("wt", n))
            e(k_act(n % NBUF), ("act", n))
        if mid is not None and mid[0] >= pf: mid[1](e)
        return e
    return None

def h_stream_main(a, e, st, bv_at, eh=0, h1pp=-1):
    J = 57; NI = 14; pf = 3; LATE = 5
    def set_kap(n):
        if n <= 4:   return [f"s_add_u32 s{K_KAP}, s56, {8*n}"]
        if n == 5:   return [f"s_mov_b32 s{K_KAP}, s55"]
        if n <= 10:  return [f"s_add_u32 s{K_KAP}, s54, {8*(n-6)}"]
        return [f"s_add_u32 s{K_KAP}, s{J}, {44 + 4*(n-11)}"] + ([f"s_min_u32 s{K_KAP}, s{K_KAP}, 53"] if n == 13 else [])
    lab = a.label("HS")
    for n in range(NI):
        if n == bv_at: a("s_barrier")
        if n == LATE - 1:
            a.extend(st.now(12))
            if h1pp >= 0:
                a(f"s_waitcnt vmcnt({min(63, e.vm_after(lambda t: t == ('h1',)))})")
                a(f"v_cmp_eq_u32 vcc, s{S_NONCE}, v251\ns_nop 0\ns_cmp_eq_u64 vcc, -1\ns_cbranch_scc1 {lab}_h1k")
                poll_fh(a, lab + "_fh1", K_H1)
                a(f"{lab}_h1k:")
            else:
                poll_fh(a, lab + "_fh1", K_H1)
                e.vm = []
            a.extend(st.now(13))
            if XOPT.get("hpf") == 1:
                L = hpf_lines(); e(L[:-1]); e(L[-1], ("hpf",))
            for m in range(LATE, n + pf):
                e(set_kap(m) + k_addr(None, False)); e(k_act(m % NBUF), ("act", m))
            if XOPT.get("hpf") == 2:
                L = hpf_lines(); e(L[:-1]); e(L[-1], ("hpf",))
        w1 = e.vm_after(lambda t: t == ("wt", n)); w2 = e.vm_after(lambda t: t == ("act", n))
        ws_ = [x for x in (w1, w2) if x is not None]
        if ws_: a(f"s_waitcnt vmcnt({min(63, min(ws_))})")
        if n == NI - 1: a(f"s_cmp_ge_u32 s{J}, 2\ns_cbranch_scc1 {lab}_skip")
        m = k_mfmas(n % NBUF, n == 0)
        if XOPT.get("nohm"): m = ["s_nop 0"] * len(m)
        ld = []
        nn = n + pf
        if n == h1pp:
            ld += [(f"s_lshl_b32 s43, s{K_TB2}, 14", None), (f"s_add_u32 s43, s43, {FG}", None), ("v_and_b32 v250, 31, v2", None), ("v_lshlrev_b32 v250, 9, v250", None),
                   (f"buffer_load_dword v251, v250, {WS}, s43 offen offset:{K_H1 * 128} sc1", ("h1",))]
        if nn < NI and nn >= eh:
            ld += [(x, None) for x in set_kap(nn) + k_addr(None, False)] + [(x, ("wt", nn)) for x in k_wt(nn % NBUF)]
            if not (LATE <= nn < LATE - 1 + pf): ld += [(x, ("act", nn)) for x in k_act(nn % NBUF)]
        li = 0
        for x in m:
            a(x)
            if li < len(ld): e(ld[li][0], ld[li][1]); li += 1
        while li < len(ld): e(ld[li][0], ld[li][1]); li += 1
    a(f"{lab}_skip:")

def o_stream(a, st):
    e = Emit(a)
    NI = 5; pf = 3
    def set_kap(n): return [f"s_add_u32 s{K_KAP}, s3, {54 + 4*n}"]
    for n in range(pf):
        e(set_kap(n) + k_addr(None, True)); e(k_wt(n), ("wt", n))
    a.extend(st.now(12))
    poll_fo(a, "FOp")
    e.vm = []
    a.extend(st.now(13))
    for n in range(pf):
        e(set_kap(n) + k_addr(None, True)); e(k_act(n), ("act", n))
    for n in range(NI):
        w1 = e.vm_after(lambda t: t == ("wt", n)); w2 = e.vm_after(lambda t: t == ("act", n))
        ws_ = [x for x in (w1, w2) if x is not None]
        a(f"s_waitcnt vmcnt({min(63, min(ws_))})")
        m = k_mfmas(n % NBUF, n == 0)
        ld = []
        nn = n + pf
        if nn < NI:
            ld = [(x, None) for x in set_kap(nn) + k_addr(None, True)] + [(x, ("wt", nn)) for x in k_wt(nn % NBUF)] + [(x, ("act", nn)) for x in k_act(nn % NBUF)]
        li = 0
        for x in m:
            a(x)
            if li < len(ld): e(ld[li][0], ld[li][1]); li += 1
        while li < len(ld): e(ld[li][0], ld[li][1]); li += 1

def k3_setup(a):
    p3.k3_params(a)
    p3.k3_setup(a)

def reduce_phase(a, lab, st):
    from p3 import ACC as KACC, V_XO, V_XO2, K_XO, VX
    a(f"v_lshlrev_b32 v9, 4, v2")
    a("s_nop 7")
    a(f"s_cmp_lt_u32 s3, 4\ns_cbranch_scc1 {lab}_lo")
    a.extend(st.now(14))
    lds_poll4(a, CT_ATT, lab + "_wa", 96)
    a(f"s_sub_u32 s40, s3, 4\ns_mul_i32 s40, s40, 20480\nv_add_u32 v10, s40, v9")
    for t in range(20): a(f"ds_write_b128 v10, v[{KACC+4*t}:{KACC+4*t+3}] offset:{L_R1 + 1024*t}")
    a.extend(st.now(15))
    a(f"s_waitcnt lgkmcnt(0)\ns_barrier\ns_barrier\ns_branch {lab}_end")
    a(f"{lab}_lo:")
    a(f"s_mul_i32 s40, s3, 20480\nv_add_u32 v10, s40, v9")
    a.extend(st.now(14))
    a("s_barrier")
    a.extend(st.now(15))
    for half in range(2):
        for t in range(10): a(f"ds_read_b128 v[{BUF+4*t}:{BUF+4*t+3}], v10 offset:{L_R1 + 1024*(10*half+t)}")
        for t in range(10):
            a(f"s_waitcnt lgkmcnt({9-t})")
            for r in range(4): a(f"v_add_f32 v{KACC+4*(10*half+t)+r}, v{KACC+4*(10*half+t)+r}, v{BUF+4*t+r}")
    a(f"v_add_u32 v11, {L_R2}, v10")
    for tt in range(4):
        a(f"s_cmp_eq_u32 s3, {tt}\ns_cbranch_scc1 {lab}_w{tt}")
        for ft in range(5): a(f"ds_write_b128 v11, v[{KACC+4*(tt*5+ft)}:{KACC+4*(tt*5+ft)+3}] offset:{1024*(tt*5+ft)}")
        a(f"{lab}_w{tt}:")
    OWN = BUF + 100
    for tt in range(4):
        a(f"s_cmp_lg_u32 s3, {tt}\ns_cbranch_scc1 {lab}_m{tt}")
        for q in range(20): a(f"v_mov_b32 v{OWN+q}, v{KACC+20*tt+q}")
        a(f"{lab}_m{tt}:")
    a("s_waitcnt lgkmcnt(0)\ns_barrier")
    a(f"s_mul_i32 s41, s3, 5120")
    for d in range(1, 4):
        a(f"s_add_u32 s40, s3, {d}\ns_and_b32 s40, s40, 3\ns_mul_i32 s40, s40, 20480\ns_add_u32 s40, s40, s41\ns_add_u32 s40, s40, {L_R2}\nv_add_u32 v{11+d}, s40, v9")
        for ft in range(5): a(f"ds_read_b128 v[{BUF+20*(d-1)+4*ft}:{BUF+20*(d-1)+4*ft+3}], v{11+d} offset:{1024*ft}")
    for d in range(1, 4):
        a(f"s_waitcnt lgkmcnt({5*(3-d)})")
        for q in range(20): a(f"v_add_f32 v{OWN+q}, v{OWN+q}, v{BUF+20*(d-1)+q}")
    a("s_waitcnt vmcnt(0)")
    for q in range(10):
        a(f"v_lshlrev_b32 v{BUF+2*q}, 16, v{VX+q}\nv_and_b32 v{BUF+2*q+1}, 0xffff0000, v{VX+q}")
    for q in range(20): a(f"v_add_f32 v{OWN+q}, v{OWN+q}, v{BUF+q}")
    for q in range(10): a(f"v_cvt_pk_bf16_f32 v{BUF+24+q}, v{OWN+2*q}, v{OWN+2*q+1}")
    o = BUF + 24
    osc = OUT_SC
    a(f"buffer_store_dwordx4 v[{o}:{o+3}], v{V_XO}, s[{SRD_B}:{SRD_B+3}], s{K_XO} offen{osc}")
    a(f"buffer_store_dwordx4 v[{o+4}:{o+7}], v{V_XO}, s[{SRD_B}:{SRD_B+3}], s{K_XO} offen offset:64{osc}")
    a(f"buffer_store_dwordx2 v[{o+8}:{o+9}], v{V_XO2}, s[{SRD_B}:{SRD_B+3}], s{K_XO} offen{osc}")
    a(f"{lab}_end:")

CT_H = 48
def k_mfmas_o1(b):
    from p3 import ACC as KACC
    r = BUF + 36 * b
    L = []
    for ft in range(5):
        for tt in range(2):
            ac = KACC + (tt * 5 + ft) * 4
            L.append(f"v_mfma_f32_16x16x32_bf16 v[{ac}:{ac+3}], v[{r+4*ft}:{r+3+4*ft}], v[{r+20+4*tt}:{r+23+4*tt}], v[{ac}:{ac+3}]")
    return L
def h_stream_main2(a, e, st, h1pp, o1pp, o1chk):
    J = 57; NH = 14; NI = 19; pf = 3; LATE = 5
    def set_kap(n):
        if n <= 4:   return [f"s_add_u32 s{K_KAP}, s56, {8*n}"]
        if n == 5:   return [f"s_mov_b32 s{K_KAP}, s55"]
        if n <= 10:  return [f"s_add_u32 s{K_KAP}, s54, {8*(n-6)}"]
        if n <= 13:  return [f"s_add_u32 s{K_KAP}, s{J}, {44 + 4*(n-11)}"] + ([f"s_min_u32 s{K_KAP}, s{K_KAP}, 53"] if n == 13 else [])
        return [f"s_add_u32 s{K_KAP}, s{J}, {54 + 4*(n-14)}"]
    def addr(n): return set_kap(n) + k_addr(None, n >= NH)
    def act(n): return k_act(n % NBUF)[:2] if n >= NH else k_act(n % NBUF)
    lab = a.label("HS")
    assert 0 <= h1pp < LATE - 1 and LATE <= o1pp < o1chk and NH - pf <= o1chk <= NH
    for n in range(NI):
        if n == LATE - 1:
            a.extend(st.now(12))
            a(f"s_waitcnt vmcnt({min(63, e.vm_after(lambda t: t == ('h1',)))})")
            a(f"v_cmp_eq_u32 vcc, s{S_NONCE}, v251\ns_nop 0\ns_cmp_eq_u64 vcc, -1\ns_cbranch_scc1 {lab}_h1k")
            poll_fh(a, lab + "_fh1", K_H1)
            a(f"{lab}_h1k:")
            a.extend(st.now(13))
            for m in range(LATE, n + pf):
                e(set_kap(m) + k_addr(None, False)); e(k_act(m % NBUF), ("act", m))
        if XOPT.get("hst") and 5 <= n <= 11: a.extend(st.now(n - 4))
        if n == o1chk:
            a.extend(st.now(18))
            a(f"s_waitcnt vmcnt({min(63, e.vm_after(lambda t: t == ('o1',)))})")
            a(f"v_cmp_eq_u32 vcc, s{S_NONCE}, v251\ns_nop 0\ns_cmp_eq_u64 vcc, -1\ns_cbranch_scc1 {lab}_o1k")
            a(f"s_lshl_b32 s43, s{K_TB2}, 12\ns_add_u32 s43, s43, {FO}")
            poll(a, 250, 43, -1, 0, lab + "_fo1", 251, off=64)
            a(f"{lab}_o1k:")
            a.extend(st.now(17))
            for m in range(NH, n + pf):
                e(addr(m)); e(act(m), ("act", m))
        w1 = e.vm_after(lambda t: t == ("wt", n)); w2 = e.vm_after(lambda t: t == ("act", n))
        ws_ = [x for x in (w1, w2) if x is not None]
        m = k_mfmas(n % NBUF, n == 0) if n < NH else k_mfmas_o1(n % NBUF)
        ld = []
        nn = n + pf
        if n == h1pp:
            ld += [(f"s_lshl_b32 s43, s{K_TB2}, 14", None), (f"s_add_u32 s43, s43, {FG}", None), ("v_and_b32 v250, 31, v2", None), ("v_lshlrev_b32 v250, 9, v250", None),
                   (f"buffer_load_dword v251, v250, {WS}, s43 offen offset:{K_H1 * 128} sc1", ("h1",))]
        if n == o1pp:
            ld += [(f"s_lshl_b32 s43, s{K_TB2}, 12", None), (f"s_add_u32 s43, s43, {FO}", None), ("v_and_b32 v250, 31, v2", None), ("v_lshlrev_b32 v250, 7, v250", None),
                   (f"buffer_load_dword v251, v250, {WS}, s43 offen offset:64 sc1", ("o1",))]
        if nn < NI:
            ld += [(x, None) for x in addr(nn)] + [(x, ("wt", nn)) for x in k_wt(nn % NBUF)]
            deferred = (LATE <= nn < LATE - 1 + pf) or (NH <= nn < o1chk + pf)
            if not deferred: ld += [(x, ("act", nn)) for x in act(nn)]
        if n == NH - 1:
            for x in ld: e(x[0], x[1])
            w1 = e.vm_after(lambda t: t == ("wt", n)); w2 = e.vm_after(lambda t: t == ("act", n))
            a(f"s_cmp_ge_u32 s{J}, 2\ns_cbranch_scc1 {lab}_skip")
            a(f"s_waitcnt vmcnt({min(63, min(w1, w2))})")
            for x in m: a(x)
            a(f"{lab}_skip:")
            continue
        if ws_: a(f"s_waitcnt vmcnt({min(63, min(ws_))})")
        li = 0
        for x in m:
            a(x)
            if li < len(ld): e(ld[li][0], ld[li][1]); li += 1
        while li < len(ld): e(ld[li][0], ld[li][1]); li += 1

def tail2_loader_reduce(a, st):
    from p3 import ACC as KACC
    a(f"v_lshlrev_b32 v9, 4, v2")
    a("s_nop 7")
    a.extend(st.now(14))
    lds_poll4(a, CT_ATT, "R2_wa", 96)
    a(f"s_sub_u32 s40, s3, 4\ns_mul_i32 s41, s40, 20480\nv_add_u32 v10, s41, v9")
    a(f"s_lshl_b32 s40, s40, 2\ns_add_u32 s40, s40, {CT_H}\nv_mov_b32 v11, s40\nv_mov_b32 v12, 1")
    for t in range(20): a(f"ds_write_b128 v10, v[{KACC+4*t}:{KACC+4*t+3}] offset:{L_R1 + 1024*t}")
    a("s_waitcnt lgkmcnt(0)\nds_write_b32 v11, v12")
    a.extend(st.now(15))
    a("s_waitcnt lgkmcnt(0)\ns_barrier")

def tail2_compute(a, st, opt):
    from p3 import V_XO, V_XO2, K_XO, VX
    WB = lambda n: 96 + 20 * n
    AB = lambda n: 196 + 8 * n
    A2 = 16; HSUM = 56; T1 = 76; S_X2 = 70; VX2 = 250
    def set_kap(n): return [f"s_add_u32 s{K_KAP}, s3, {54 + 4*n}"]
    p3.x_loads(a, SRD_A)
    a(f"s_add_u32 s{S_X2}, s{K_XO}, 40960\ns_cmp_lt_u32 s3, 2\ns_cselect_b32 s{S_X2}, s{S_X2}, s{K_XO}")
    a(f"buffer_load_dwordx4 v[{VX2}:{VX2+3}], v{V_XO}, s[{SRD_A}:{SRD_A+3}], s{S_X2} offen offset:64")
    for n in range(5):
        a.extend(set_kap(n) + k_addr(None, True))
        for ft in range(5):
            a(f"buffer_load_dwordx4 v[{WB(n)+4*ft}:{WB(n)+3+4*ft}], v{V_LA if ft < 4 else V_LA2}, {WS}, s{K_A} offen offset:{(ft%4)*1024} sc1")
    a("s_waitcnt vmcnt(29)")
    a(flag_store(58))
    a.extend(st.now(11))
    poll_fo(a, "FOp")
    a.extend(st.now(13))
    for n in range(5):
        a.extend(set_kap(n) + k_addr(None, True))
        for t in range(2):
            a(f"buffer_load_dwordx4 v[{AB(n)+4*t}:{AB(n)+3+4*t}], v{V_LB}, {WS}, s{K_B1} offen offset:{t*256} sc1")
    a(f"v_lshlrev_b32 v9, 4, v2\ns_mul_i32 s40, s3, 5120\nv_add_u32 v10, s40, v9\nv_add_u32 v11, 40960, v10")
    lds_poll4(a, CT_H, "T2_wh", T1)
    a.extend(st.now(12))
    for j, dst in ((0, HSUM), (1, T1), (2, A2)):
        for ft in range(5): a(f"ds_read_b128 v[{dst+4*ft}:{dst+4*ft+3}], v{10 if j < 2 else 11} offset:{L_R1 + (j % 2) * 20480 + 1024*ft}")
    a("s_waitcnt lgkmcnt(5)")
    for ft in range(5): a(f"ds_read_b128 v[{A2+20+4*ft}:{A2+20+4*ft+3}], v11 offset:{L_R1 + 20480 + 1024*ft}")
    for q in range(20): a(f"v_add_f32 v{HSUM+q}, v{HSUM+q}, v{T1+q}")
    a("s_waitcnt lgkmcnt(5)")
    for q in range(20): a(f"v_add_f32 v{HSUM+q}, v{HSUM+q}, v{A2+q}")
    a("s_waitcnt lgkmcnt(0)")
    for q in range(20): a(f"v_add_f32 v{HSUM+q}, v{HSUM+q}, v{A2+20+q}")
    a(f"v_add_u32 v13, {L_R2}, v9")
    osc = OUT_SC
    for w in range(4):
        if w < 3: a(f"s_cmp_lg_u32 s3, {w}\ns_cbranch_scc1 T2_n{w}")
        nst = 0
        if w < 2:
            for q in range(10): a(f"v_lshlrev_b32 v{T1+2*q}, 16, v{VX+q}\nv_and_b32 v{T1+2*q+1}, 0xffff0000, v{VX+q}")
            for q in range(20): a(f"v_add_f32 v{HSUM+q}, v{HSUM+q}, v{T1+q}")
            for q in range(10): a(f"v_cvt_pk_bf16_f32 v{T1+q}, v{HSUM+2*q}, v{HSUM+2*q+1}")
            a(f"buffer_store_dwordx4 v[{T1}:{T1+3}], v{V_XO}, s[{SRD_B}:{SRD_B+3}], s{K_XO} offen{osc}")
            a(f"buffer_store_dwordx4 v[{T1+4}:{T1+7}], v{V_XO}, s[{SRD_B}:{SRD_B+3}], s{K_XO} offen offset:64{osc}")
            a(f"buffer_store_dwordx2 v[{T1+8}:{T1+9}], v{V_XO2}, s[{SRD_B}:{SRD_B+3}], s{K_XO} offen{osc}")
            nst = 3
        for n in range(5):
            a(f"s_waitcnt vmcnt({2 * (4 - n) + nst})")
            for ft in range(5):
                for t in range(2):
                    ac = A2 + (t * 5 + ft) * 4
                    c = f"v[{ac}:{ac+3}]" if n else (f"v[{HSUM+4*ft}:{HSUM+4*ft+3}]" if t == w - 2 else "0")
                    a(f"v_mfma_f32_16x16x32_bf16 v[{ac}:{ac+3}], v[{WB(n)+4*ft}:{WB(n)+3+4*ft}], v[{AB(n)+4*t}:{AB(n)+3+4*t}], {c}")
        if w == 0: a.extend(st.now(14))
        else: a.extend(st.sync()); a.extend(st.now(14))
        owner = lambda t, ft: (2 + t) if ft in (0, 1, 4) else t
        mine = [(t, ft) for t in range(2) for ft in range(5) if owner(t, ft) == w]
        wr = [(t, ft) for ft in range(5) for t in range(2) if owner(t, ft) != w]
        a("s_nop 7\ns_nop 1")
        for (t, ft) in wr:
            ac = A2 + (t * 5 + ft) * 4
            a(f"ds_write_b128 v13, v[{ac}:{ac+3}] offset:{w * 10240 + (t * 5 + ft) * 1024}")
        a("s_waitcnt lgkmcnt(0)\ns_barrier")
        a.extend(st.now(15))
        tmp = 56
        srcs = [x for x in range(4) if x != w]
        for si, src in enumerate(srcs):
            for k, (t, ft) in enumerate(mine):
                d = tmp + 4 * (si * len(mine) + k)
                a(f"ds_read_b128 v[{d}:{d+3}], v13 offset:{src * 10240 + (t * 5 + ft) * 1024}")
        xs = {}
        for k, (t, ft) in enumerate(mine):
            if w >= 2: src0 = VX + 2 * ft
            else: src0 = VX2 + 2 * (ft - 2)
            u = 96 + 4 * k
            a(f"v_lshlrev_b32 v{u}, 16, v{src0}\nv_and_b32 v{u+1}, 0xffff0000, v{src0}\nv_lshlrev_b32 v{u+2}, 16, v{src0+1}\nv_and_b32 v{u+3}, 0xffff0000, v{src0+1}")
            ac = A2 + (t * 5 + ft) * 4
            for r in range(4): a(f"v_add_f32 v{ac+r}, v{ac+r}, v{u+r}")
        for si in range(3):
            a(f"s_waitcnt lgkmcnt({len(mine) * (2 - si)})")
            for k, (t, ft) in enumerate(mine):
                ac = A2 + (t * 5 + ft) * 4; d = tmp + 4 * (si * len(mine) + k)
                for r in range(4): a(f"v_add_f32 v{ac+r}, v{ac+r}, v{d+r}")
        o = 120
        for k, (t, ft) in enumerate(mine):
            ac = A2 + (t * 5 + ft) * 4
            a(f"v_cvt_pk_bf16_f32 v{o+2*k}, v{ac}, v{ac+1}\nv_cvt_pk_bf16_f32 v{o+2*k+1}, v{ac+2}, v{ac+3}")
        if w >= 2:
            assert [ft for _, ft in mine] == [0, 1, 4]
            a(f"buffer_store_dwordx4 v[{o}:{o+3}], v{V_XO}, s[{SRD_B}:{SRD_B+3}], s{K_XO} offen{osc}")
            a(f"buffer_store_dwordx2 v[{o+4}:{o+5}], v{V_XO2}, s[{SRD_B}:{SRD_B+3}], s{K_XO} offen{osc}")
        else:
            assert [ft for _, ft in mine] == [2, 3]
            a(f"buffer_store_dwordx4 v[{o}:{o+3}], v{V_XO}, s[{SRD_B}:{SRD_B+3}], s{S_X2} offen offset:64{osc}")
        a("s_branch F_fin")
        if w < 3: a(f"T2_n{w}:")

CT_HB = 64
def o_regs(m):
    if m < 4:
        b = BUF + 36 * ((m + (11 if XOPT.get('hc') else 14)) % 4)
        return [b + 4 * ft for ft in range(5)], [b + 20, b + 24]
    sp = [BUF + 36 * k + 28 for k in range(4)]
    return [sp[0], sp[0] + 4, sp[1], sp[1] + 4, sp[2]], [sp[2] + 4, sp[3]]
def o_wt(m):
    w, _ = o_regs(m)
    return [f"buffer_load_dwordx4 v[{w[ft]}:{w[ft]+3}], v{V_LA if ft < 4 else V_LA2}, {WS}, s{K_A} offen offset:{(ft%4)*1024} sc1" for ft in range(5)]
def o_act(m, half):
    _, c = o_regs(m)
    return [f"buffer_load_dwordx4 v[{c[t]}:{c[t]+3}], v{V_LB}, {WS}, s{K_B1 if half else K_B0} offen offset:{t*256} sc1" for t in range(2)]
def o_mfma(m, half):
    from p3 import ACC as KACC
    w, c = o_regs(m)
    L = []
    for ft in range(5):
        for t in range(2):
            ac = KACC + ((2 * half + t) * 5 + ft) * 4
            L.append(f"v_mfma_f32_16x16x32_bf16 v[{ac}:{ac+3}], v[{w[ft]}:{w[ft]+3}], v[{c[t]}:{c[t]+3}], v[{ac}:{ac+3}]")
    return L
def h_stream_main3(a, e, st, h1pp, o1pp, o1chk):
    from p3 import ACC as KACC
    J = 57; NH = 11 if XOPT.get('hc') else 14; pf = 3; LATE = 5
    def set_kap(n):
        if n <= 4:   return [f"s_add_u32 s{K_KAP}, s56, {8*n}"]
        if n == 5:   return [f"s_mov_b32 s{K_KAP}, s55"]
        if n <= 10:  return [f"s_add_u32 s{K_KAP}, s54, {8*(n-6)}"]
        return [f"s_add_u32 s{K_KAP}, s{J}, {44 + 4*(n-11)}"] + ([f"s_min_u32 s{K_KAP}, s{K_KAP}, 53"] if n == 13 else [])
    def oaddr(m): return [f"s_add_u32 s{K_KAP}, s{J}, {54 + 4*m}"] + k_addr(None, True)
    lab = a.label("HS")
    assert 0 <= h1pp < LATE - 1 and LATE <= o1pp < o1chk and 11 <= o1chk <= NH
    def o1_check():
        a(f"s_waitcnt vmcnt({min(63, e.vm_after(lambda t: t == ('o1',)))})")
        a(f"v_cmp_eq_u32 vcc, s{S_NONCE}, v251\ns_nop 0\ns_cmp_eq_u64 vcc, -1\ns_cbranch_scc1 {lab}_o1k")
        a(f"s_lshl_b32 s43, s{K_TB2}, 12\ns_add_u32 s43, s43, {FO}")
        poll(a, 250, 43, -1, 0, lab + "_fo1", 251, off=64)
        a(f"{lab}_o1k:")
        a.extend(st.now(17))
    E0 = XOPT.get("eh", 0) if XOPT.get("ehm") else 0
    if E0 > h1pp:
        e([f"s_lshl_b32 s43, s{K_TB2}, 14", f"s_add_u32 s43, s43, {FG}", "v_and_b32 v250, 31, v2", "v_lshlrev_b32 v250, 9, v250"])
        e([f"buffer_load_dword v251, v250, {WS}, s43 offen offset:{K_H1 * 128} sc1"], ("h1",))
    for n in range(E0, NH):
        if n == LATE - 1:
            a.extend(st.now(12))
            a(f"s_waitcnt vmcnt({min(63, e.vm_after(lambda t: t == ('h1',)))})")
            a(f"v_cmp_eq_u32 vcc, s{S_NONCE}, v251\ns_nop 0\ns_cmp_eq_u64 vcc, -1\ns_cbranch_scc1 {lab}_h1k")
            poll_fh(a, lab + "_fh1", K_H1)
            a(f"{lab}_h1k:")
            a.extend(st.now(13))
            for m in range(LATE, n + pf):
                e(set_kap(m) + k_addr(None, False)); e(k_act(m % NBUF), ("act", m))
        if n == o1chk:
            o1_check()
            for m in range(0, n - 11):
                e(oaddr(m)); e(o_act(m, 0), ("oa", m))
        w1 = e.vm_after(lambda t: t == ("wt", n)); w2 = e.vm_after(lambda t: t == ("act", n))
        ws_ = [x for x in (w1, w2) if x is not None]
        mf = k_mfmas(n % NBUF, n == 0)
        ld = []
        nn = n + pf
        if n == h1pp:
            ld += [(f"s_lshl_b32 s43, s{K_TB2}, 14", None), (f"s_add_u32 s43, s43, {FG}", None), ("v_and_b32 v250, 31, v2", None), ("v_lshlrev_b32 v250, 9, v250", None),
                   (f"buffer_load_dword v251, v250, {WS}, s43 offen offset:{K_H1 * 128} sc1", ("h1",))]
        if n == o1pp:
            ld += [(f"s_lshl_b32 s43, s{K_TB2}, 12", None), (f"s_add_u32 s43, s43, {FO}", None), ("v_and_b32 v250, 31, v2", None), ("v_lshlrev_b32 v250, 7, v250", None),
                   (f"buffer_load_dword v251, v250, {WS}, s43 offen offset:64 sc1", ("o1",))]
        if nn < NH:
            ld += [(x, None) for x in set_kap(nn) + k_addr(None, False)]
            if nn >= XOPT.get("wtr", 0): ld += [(x, ("wt", nn)) for x in k_wt(nn % NBUF)]
            if not (LATE <= nn < LATE - 1 + pf): ld += [(x, ("act", nn)) for x in k_act(nn % NBUF)]
        else:
            m = nn - NH
            ld += [(x, None) for x in oaddr(m)] + [(x, ("ow", m)) for x in o_wt(m)]
            if n >= o1chk: ld += [(x, ("oa", m)) for x in o_act(m, 0)]
        if n == NH - 1 and NH == 14:
            for x in ld: e(x[0], x[1])
            w1 = e.vm_after(lambda t: t == ("wt", n)); w2 = e.vm_after(lambda t: t == ("act", n))
            a(f"s_cmp_ge_u32 s{J}, 2\ns_cbranch_scc1 {lab}_skip")
            a(f"s_waitcnt vmcnt({min(63, min(w1, w2))})")
            for x in mf: a(x)
            a(f"{lab}_skip:")
            continue
        if ws_: a(f"s_waitcnt vmcnt({min(63, min(ws_))})")
        li = 0
        for x in mf:
            a(x)
            if li < len(ld): e(ld[li][0], ld[li][1]); li += 1
        while li < len(ld): e(ld[li][0], ld[li][1]); li += 1
    if o1chk == NH:
        o1_check()
        for m in range(3): e(oaddr(m)); e(o_act(m, 0), ("oa", m))
    for m in (3, 4):
        e(oaddr(m)); e(o_wt(m), ("ow", m)); e(o_act(m, 0), ("oa", m))
    e([f"s_lshl_b32 s43, s{K_TB2}, 12", f"s_add_u32 s43, s43, {FO}", "v_and_b32 v250, 31, v2", "v_lshlrev_b32 v250, 7, v250"])
    a.extend(st.now(14))
    for m in range(5):
        w1 = e.vm_after(lambda t: t == ("ow", m)); w2 = e.vm_after(lambda t: t == ("oa", m))
        a(f"s_waitcnt vmcnt({min(63, min(w1, w2))})")
        if m == XOPT.get("o2pp", 3): a(f"buffer_load_dword v251, v250, {WS}, s43 offen sc1"); e.vm.append(("o2",))
        for x in o_mfma(m, 0): a(x)
    a(f"v_lshlrev_b32 v9, 4, v2")
    lds_poll4(a, CT_ATT, "R3_wa", 8 + 2)
    a(f"s_sub_u32 s40, s3, 4\ns_mul_i32 s41, s40, 20480\nv_add_u32 v10, s41, v9")
    a(f"s_lshl_b32 s40, s40, 2\ns_add_u32 s41, s40, {CT_H}\nv_mov_b32 v11, s41\nv_mov_b32 v12, 1\ns_add_u32 s41, s40, {CT_HB}\nv_mov_b32 v13, s41")
    a(f"s_waitcnt vmcnt({min(63, e.vm_after(lambda t: t == ('o2',)))})")
    a(f"v_cmp_eq_u32 vcc, s{S_NONCE}, v251\ns_nop 0\ns_cmp_eq_u64 vcc, -1\ns_cbranch_scc1 {lab}_o2e")
    for t in range(10): a(f"ds_write_b128 v10, v[{KACC+4*t}:{KACC+4*t+3}] offset:{L_R1 + 1024*t}")
    a("s_waitcnt lgkmcnt(0)\nds_write_b32 v11, v12")
    poll(a, 250, 43, -1, 0, lab + "_fo2", 251, off=0)
    a.extend(st.now(18))
    for m in range(5):
        for x in oaddr(m) + o_act(m, 1): a(x)
    a(f"s_branch {lab}_o2j")
    a(f"{lab}_o2e:")
    a.extend(st.now(18))
    for m in range(5):
        for x in oaddr(m) + o_act(m, 1): a(x)
    for t in range(10): a(f"ds_write_b128 v10, v[{KACC+4*t}:{KACC+4*t+3}] offset:{L_R1 + 1024*t}")
    a("s_waitcnt lgkmcnt(0)\nds_write_b32 v11, v12")
    a(f"{lab}_o2j:")
    for m in range(5):
        a(f"s_waitcnt vmcnt({2 * (4 - m)})")
        for x in o_mfma(m, 1): a(x)
    a.extend(st.now(19))
    a("s_nop 7\ns_nop 1")
    for ft in range(5):
        for t in range(2):
            k = (2 + t) * 5 + ft
            a(f"ds_write_b128 v10, v[{KACC+4*k}:{KACC+4*k+3}] offset:{L_R1 + 1024*k}")
    a.extend(st.now(15))
    a("s_waitcnt lgkmcnt(0)\ns_barrier")

def o_regs4(m):
    sp = [BUF + 36 * k + 28 for k in range(4)]
    if m < 4:
        b = BUF + 36 * ((m + 2) % 4)
        c = [b + 20, b + 24]
        return [b + 4 * ft for ft in range(5)], c, ([sp[1], sp[1] + 4] if m == 3 else c)
    c = [sp[0], sp[0] + 4]
    return [sp[2], sp[2] + 4, sp[3], sp[3] + 4, 240], c, c
def o_wt4(m):
    w = o_regs4(m)[0]
    return [f"buffer_load_dwordx4 v[{w[ft]}:{w[ft]+3}], v{V_LA if ft < 4 else V_LA2}, {WS}, s{K_A} offen offset:{(ft%4)*1024} sc1" for ft in range(5)]
def o_act4(m, half):
    c = o_regs4(m)[1 + half]
    return [f"buffer_load_dwordx4 v[{c[t]}:{c[t]+3}], v{V_LB}, {WS}, s{K_B1 if half else K_B0} offen offset:{t*256} sc1" for t in range(2)]
def o_mfma4(m, half):
    from p3 import ACC as KACC
    w = o_regs4(m)[0]; c = o_regs4(m)[1 + half]
    L = []
    for ft in range(5):
        for t in range(2):
            ac = KACC + ((2 * half + t) * 5 + ft) * 4
            L.append(f"v_mfma_f32_16x16x32_bf16 v[{ac}:{ac+3}], v[{w[ft]}:{w[ft]+3}], v[{c[t]}:{c[t]+3}], v[{ac}:{ac+3}]")
    return L
def h_stream_main4(a, e, st, h1pp, o1pp, o1chk, o2at):
    from p3 import ACC as KACC
    J = 57; NH = 14; pf = 3; LATE = 5
    def set_kap(n):
        if n <= 4:   return [f"s_add_u32 s{K_KAP}, s56, {8*n}"]
        if n == 5:   return [f"s_mov_b32 s{K_KAP}, s55"]
        if n <= 10:  return [f"s_add_u32 s{K_KAP}, s54, {8*(n-6)}"]
        return [f"s_add_u32 s{K_KAP}, s{J}, {44 + 4*(n-11)}"] + ([f"s_min_u32 s{K_KAP}, s{K_KAP}, 53"] if n == 13 else [])
    def oaddr(m): return [f"s_add_u32 s{K_KAP}, s{J}, {54 + 4*m}"] + k_addr(None, True)
    lab = a.label("HS")
    assert 0 <= h1pp < LATE - 1 and LATE <= o1pp < o1chk and 12 <= o1chk <= NH and o2at in (12, 13)
    FOA = [f"s_lshl_b32 s43, s{K_TB2}, 12", f"s_add_u32 s43, s43, {FO}"]
    def o1_check():
        a(f"s_waitcnt vmcnt({min(63, e.vm_after(lambda t: t == ('o1',)))})")
        a(f"v_cmp_eq_u32 vcc, s{S_NONCE}, v251\ns_nop 0\ns_cmp_eq_u64 vcc, -1\ns_cbranch_scc1 {lab}_o1k")
        for x in FOA: a(x)
        poll(a, 250, 43, -1, 0, lab + "_fo1", 251, off=64)
        a(f"{lab}_o1k:")
        a.extend(st.now(17))
    wt_done = []; act_done = []
    for n in range(NH):
        if n == LATE - 1:
            a.extend(st.now(12))
            a(f"s_waitcnt vmcnt({min(63, e.vm_after(lambda t: t == ('h1',)))})")
            a(f"v_cmp_eq_u32 vcc, s{S_NONCE}, v251\ns_nop 0\ns_cmp_eq_u64 vcc, -1\ns_cbranch_scc1 {lab}_h1k")
            poll_fh(a, lab + "_fh1", K_H1)
            a(f"{lab}_h1k:")
            a.extend(st.now(13))
            for m in range(LATE, n + pf):
                e(set_kap(m) + k_addr(None, False)); e(k_act(m % NBUF), ("act", m))
        if n == o1chk:
            o1_check()
            for m in wt_done:
                if m == 4 and n < 13: continue
                e(oaddr(m)); e(o_act4(m, 0), ("oa", m)); act_done.append(m)
        w1 = e.vm_after(lambda t: t == ("wt", n)); w2 = e.vm_after(lambda t: t == ("act", n))
        ws_ = [x for x in (w1, w2) if x is not None]
        mf = k_mfmas(n % NBUF, n == 0)
        ld = []
        nn = n + pf
        if n == h1pp:
            ld += [(f"s_lshl_b32 s43, s{K_TB2}, 14", None), (f"s_add_u32 s43, s43, {FG}", None), ("v_and_b32 v250, 31, v2", None), ("v_lshlrev_b32 v250, 9, v250", None),
                   (f"buffer_load_dword v251, v250, {WS}, s43 offen offset:{K_H1 * 128} sc1", ("h1",))]
        if n == o1pp:
            ld += [(x, None) for x in FOA] + [("v_and_b32 v250, 31, v2", None), ("v_lshlrev_b32 v250, 7, v250", None),
                   (f"buffer_load_dword v251, v250, {WS}, s43 offen offset:64 sc1", ("o1",))]
        if nn < NH:
            ld += [(x, None) for x in set_kap(nn) + k_addr(None, False)] + [(x, ("wt", nn)) for x in k_wt(nn % NBUF)]
            if not (LATE <= nn < LATE - 1 + pf): ld += [(x, ("act", nn)) for x in k_act(nn % NBUF)]
        else:
            m = nn - NH
            ld += [(x, None) for x in oaddr(m)] + [(x, ("ow", m)) for x in o_wt4(m)]; wt_done.append(m)
            if n >= o1chk: ld += [(x, ("oa", m)) for x in o_act4(m, 0)]; act_done.append(m)
            if n == 12:
                ld += [(x, None) for x in oaddr(4)] + [(x, ("ow", 4)) for x in o_wt4(4)]; wt_done.append(4)
            if n == 13 and n >= o1chk and 4 not in act_done:
                ld += [(x, None) for x in oaddr(4)] + [(x, ("oa", 4)) for x in o_act4(4, 0)]; act_done.append(4)
        if n == o2at:
            ld += [(x, None) for x in FOA] + [("v_and_b32 v248, 31, v2", None), ("v_lshlrev_b32 v248, 7, v248", None),
                   (f"buffer_load_dword v249, v248, {WS}, s43 offen sc1", ("o2",))]
        if n == NH - 1:
            for x in ld: e(x[0], x[1])
            w1 = e.vm_after(lambda t: t == ("wt", n)); w2 = e.vm_after(lambda t: t == ("act", n))
            a(f"s_cmp_ge_u32 s{J}, 2\ns_cbranch_scc1 {lab}_skip")
            a(f"s_waitcnt vmcnt({min(63, min(w1, w2))})")
            for x in mf: a(x)
            a(f"{lab}_skip:")
            continue
        if ws_: a(f"s_waitcnt vmcnt({min(63, min(ws_))})")
        li = 0
        for x in mf:
            a(x)
            if li < len(ld): e(ld[li][0], ld[li][1]); li += 1
        while li < len(ld): e(ld[li][0], ld[li][1]); li += 1
    e(oaddr(3)); e(o_wt4(3), ("ow", 3))
    if o1chk == NH: o1_check()
    e(oaddr(3)); e(o_act4(3, 0), ("oa", 3)); act_done.append(3)
    for m in (0, 1, 2, 4):
        if m not in act_done: e(oaddr(m)); e(o_act4(m, 0), ("oa", m)); act_done.append(m)
    a.extend(st.now(14))
    ORDER = (4, 0, 1, 2, 3)
    base = {m: min(e.vm_after(lambda t: t == ("ow", m)), e.vm_after(lambda t: t == ("oa", m))) for m in ORDER}
    def partial_setup(tag):
        a(f"v_lshlrev_b32 v9, 4, v2")
        lds_poll4(a, CT_ATT, f"R3_wa{tag}", 8 + 2)
        a(f"s_sub_u32 s40, s3, 4\ns_mul_i32 s41, s40, 20480\nv_add_u32 v10, s41, v9")
        a(f"s_lshl_b32 s40, s40, 2\ns_add_u32 s41, s40, {CT_H}\nv_mov_b32 v11, s41\nv_mov_b32 v12, 1")
        a("s_nop 7\ns_nop 1")
        for t in range(10): a(f"ds_write_b128 v10, v[{KACC+4*t}:{KACC+4*t+3}] offset:{L_R1 + 1024*t}")
        a("s_waitcnt lgkmcnt(0)\nds_write_b32 v11, v12")
    a(f"s_waitcnt vmcnt({min(63, e.vm_after(lambda t: t == ('o2',)))})")
    a(f"v_cmp_eq_u32 vcc, s{S_NONCE}, v249\ns_nop 0\ns_cmp_eq_u64 vcc, -1\ns_cbranch_scc0 {lab}_slow")
    a.extend(st.now(18))
    for x in oaddr(3) + o_act4(3, 1): a(x)
    extra = 2
    for m in ORDER:
        a(f"s_waitcnt vmcnt({min(63, base[m] + extra)})")
        for x in o_mfma4(m, 0): a(x)
        if m != 3:
            for x in oaddr(m) + o_act4(m, 1): a(x)
            extra += 2
    partial_setup("f")
    a(f"s_branch {lab}_join")
    a(f"{lab}_slow:")
    for m in ORDER:
        a(f"s_waitcnt vmcnt({min(63, base[m])})")
        for x in o_mfma4(m, 0): a(x)
    partial_setup("s")
    for x in FOA: a(x)
    a("v_mov_b32 v250, v248")
    poll(a, 250, 43, -1, 0, lab + "_fo2", 251, off=0)
    a.extend(st.now(18))
    for m in (3, 4, 0, 1, 2):
        for x in oaddr(m) + o_act4(m, 1): a(x)
    a(f"{lab}_join:")
    for i, m in enumerate((3, 4, 0, 1, 2)):
        a(f"s_waitcnt vmcnt({2 * (4 - i)})")
        for x in o_mfma4(m, 1): a(x)
    a.extend(st.now(19))
    a("s_nop 7\ns_nop 1")
    for ft in range(5):
        for t in range(2):
            k = (2 + t) * 5 + ft
            a(f"ds_write_b128 v10, v[{KACC+4*k}:{KACC+4*k+3}] offset:{L_R1 + 1024*k}")
    a.extend(st.now(15))
    a("s_waitcnt lgkmcnt(0)\ns_barrier")

def tail3_compute(a, st, opt):
    from p3 import V_XO, V_XO2, K_XO
    VXP = 240; VXQ = 246; S_XQ = 70
    a(f"buffer_load_dwordx4 v[{VXP}:{VXP+3}], v{V_XO}, s[{SRD_A}:{SRD_A+3}], s{K_XO} offen")
    a(f"buffer_load_dwordx2 v[{VXP+4}:{VXP+5}], v{V_XO2}, s[{SRD_A}:{SRD_A+3}], s{K_XO} offen")
    a(f"s_add_u32 s{S_XQ}, s{K_XO}, 40960\ns_sub_u32 s41, s{K_XO}, 40960\ns_cmp_lt_u32 s3, 2\ns_cselect_b32 s{S_XQ}, s{S_XQ}, s41")
    a(f"buffer_load_dwordx4 v[{VXQ}:{VXQ+3}], v{V_XO}, s[{SRD_A}:{SRD_A+3}], s{S_XQ} offen offset:64")
    a("s_waitcnt vmcnt(3)")
    a(flag_store(58))
    a.extend(st.now(11))
    osc = OUT_SC
    a(f"v_lshlrev_b32 v9, 4, v2\nv_add_u32 v11, 40960, v9")
    HC = XOPT.get("hc"); YP, YQ = 216, 228
    def owned(w): return [(w, ft) for ft in (0, 1, 4)] + [(w ^ 2, ft) for ft in (2, 3)]
    if HC:
        from p3 import ACC as KACC
        L_R2 = L_R1 + 4 * 20480
        poll_fh(a, "T3_h1", K_H1)
        for i_ in range(3):
            L = [f"s_add_u32 s{K_KAP}, s3, {44 + 4*i_}"] + ([f"s_min_u32 s{K_KAP}, s{K_KAP}, 53"] if i_ == 2 else []) + k_addr(None, False) + k_wt(i_) + k_act(i_)
            for x in L: a(x)
        lds_poll4(a, CT_ATT, "T3_wa", 204)
        for i_ in range(3):
            a(f"s_waitcnt vmcnt({9 * (2 - i_)})")
            if i_ == 2: a("s_cmp_ge_u32 s3, 2\ns_cbranch_scc1 T3_hsk")
            for x in k_mfmas(i_, i_ == 0): a(x)
        a("T3_hsk:\ns_nop 7\ns_nop 1")
        a(f"v_add_u32 v12, {L_R2}, v9\ns_lshl_b32 s40, s3, 2\ns_add_u32 s40, s40, {CT_HB}\nv_mov_b32 v13, s40\nv_mov_b32 v14, 1")
        allt = [(t, ft) for t in range(4) for ft in range(5)]
        slot = {w: {x: k for k, x in enumerate([y for y in allt if y not in owned(w)])} for w in range(4)}
        for w in range(4):
            if w < 3: a(f"s_cmp_lg_u32 s3, {w}\ns_cbranch_scc1 T3_x{w}")
            for (t, ft), k in slot[w].items():
                ac = KACC + 4 * (t * 5 + ft)
                a(f"ds_write_b128 v12, v[{ac}:{ac+3}] offset:{w * 15360 + k * 1024}")
            a("s_waitcnt lgkmcnt(0)\nds_write_b32 v13, v14")
            lds_poll4(a, CT_HB, f"T3_wb{w}", 204)
            oth = [x for x in range(4) if x != w]
            for s_, wo in enumerate(oth):
                for k, x in enumerate(owned(w)):
                    d = 96 + 4 * (s_ * 5 + k)
                    a(f"ds_read_b128 v[{d}:{d+3}], v12 offset:{wo * 15360 + slot[wo][x] * 1024}")
            for s_ in range(3):
                a(f"s_waitcnt lgkmcnt({5 * (2 - s_)})")
                for k, (t, ft) in enumerate(owned(w)):
                    ac = KACC + 4 * (t * 5 + ft); d = 96 + 4 * (s_ * 5 + k)
                    for r in range(4): a(f"v_add_f32 v{YP+4*k+r}, v{ac+r if s_ == 0 else YP+4*k+r}, v{d+r}")
            if w < 3: a(f"s_branch T3_xe\nT3_x{w}:")
        a("T3_xe:")
        a.extend(st.now(14))
    def fin(w, kind, lab):
        tt = w if kind == "P" else w ^ 2
        fts = [0, 1, 4] if kind == "P" else [2, 3]
        nf = len(fts); T = 16
        for j in range(4):
            for k, ft in enumerate(fts):
                d = T + 4 * (j * nf + k)
                a(f"ds_read_b128 v[{d}:{d+3}], v{9 if j < 2 else 11} offset:{L_R1 + (j % 2) * 20480 + (tt * 5 + ft) * 1024}")
        X = 80; vx = VXP if kind == "P" else VXQ
        for q in range(2 * nf): a(f"v_lshlrev_b32 v{X+2*q}, 16, v{vx+q}\nv_and_b32 v{X+2*q+1}, 0xffff0000, v{vx+q}")
        if HC:
            for q in range(4 * nf): a(f"v_add_f32 v{X+q}, v{X+q}, v{(YP if kind == 'P' else YQ)+q}")
        for j in range(4):
            a(f"s_waitcnt lgkmcnt({nf * (3 - j)})")
            for q in range(4 * nf): a(f"v_add_f32 v{X+q}, v{X+q}, v{T + 4*j*nf + q}")
        o = 96
        for q in range(2 * nf): a(f"v_cvt_pk_bf16_f32 v{o+q}, v{X+2*q}, v{X+2*q+1}")
        if kind == "P":
            a(f"buffer_store_dwordx4 v[{o}:{o+3}], v{V_XO}, s[{SRD_B}:{SRD_B+3}], s{K_XO} offen{osc}")
            a(f"buffer_store_dwordx2 v[{o+4}:{o+5}], v{V_XO2}, s[{SRD_B}:{SRD_B+3}], s{K_XO} offen{osc}")
        else:
            a(f"buffer_store_dwordx4 v[{o}:{o+3}], v{V_XO}, s[{SRD_B}:{SRD_B+3}], s{S_XQ} offen offset:64{osc}")
    lds_poll4(a, CT_H, "T3_wh", 16)
    a.extend(st.now(12))
    a("s_waitcnt vmcnt(0)")
    for w in range(4):
        if w < 3: a(f"s_cmp_lg_u32 s3, {w}\ns_cbranch_scc1 T3_n{w}")
        fin(w, "P" if w < 2 else "Q", f"T3a{w}")
        a.extend(st.now(13))
        a("s_barrier")
        a.extend(st.now(15))
        fin(w, "Q" if w < 2 else "P", f"T3b{w}")
        a("s_branch F_fin")
        if w < 3: a(f"T3_n{w}:")

XOPT = {}
def kernel(name, stamps=False, opt=None):
    XOPT.clear(); XOPT.update(opt or {})
    opt = opt or {}
    p1.ORD = opt.get("ord", 0)
    global OUT_SC, NO_BV, X4
    X4 = None
    X4_NODMA[0] = opt.get("x4nodma", 0)
    if opt.get("front", 0) == 4:
        X4 = dict(nx=opt.get("nx", 4), xe=opt.get("xe", 0), bar0=opt.get("bar0", 8), bar0_n=opt.get("bar0_n", 160),
                  nb0=opt.get("nb0", 3), corr=opt.get("corr", 0))
    NO_BV = opt.get("tail", 0) == 1
    OUT_SC = {0: "", 1: " sc1", 2: " sc0 sc1", 3: " nt", 4: " sc1 nt", 5: " sc0 sc1 nt"}[opt.get("osc", 0)]
    a = Asm()
    st = Stamper(stamps, bool(opt.get("cyc")))
    a(kernel_begin(name))
    a("s_cmp_ge_u32 s2, 256\ns_cbranch_scc1 F_exit")
    XIT = opt.get("xit", 0)
    if XIT == 1 and not stamps: a("s_branch F_exit")
    a("s_load_dwordx16 s[4:19], s[0:1], 0\ns_load_dwordx4 s[20:23], s[0:1], 64\ns_memrealtime s[46:47]")
    a("v_lshrrev_b32 v1, 6, v0\nv_and_b32 v2, 63, v0\nv_readfirstlane_b32 s3, v1")
    a("s_waitcnt lgkmcnt(0)")
    FRONT = opt.get("front", 0)
    if FRONT == 0: p0.p0_x_loads(a)
    elif FRONT in (3, 4):
        srd(a, p0.SRD_A, P_X, S * D * 2)
        p1.IL0 = 1
    else:
        srd(a, p0.SRD_A, P_X, S * D * 2)
        a("s_cmp_ge_u32 s3, 4\ns_cbranch_scc1 F_nx")
        p0.ln2_loads(a)
        a("F_nx:")
    srd(a, SRD_WS, P_WS, WS_BYTES)
    if stamps:
        a(f"v_mov_b32 v{V_STAMP}, 0\nv_writelane_b32 v{V_STAMP}, s46, 0")
        if opt.get("cyc"): a.extend(st.now(17))
    srd(a, SRD_C, P_DBG, 256)
    a("s_cmp_lg_u32 s3, 3\ns_cbranch_scc1 F_n0")
    a("s_cmp_lg_u32 s2, 0\ns_cbranch_scc1 F_n0")
    a(f"s_or_b32 s46, s46, 1\nv_mov_b32 v4, s46\nv_mov_b32 v5, 0\ns_mov_b64 exec, 1\nbuffer_store_dword v4, v5, s[{SRD_C}:{SRD_C+3}], 0 offen sc1\ns_mov_b64 exec, -1")
    a("F_n0:")
    p1.setup_common(a)
    a("s_cmp_ge_u32 s3, 4\ns_cbranch_scc1 F_ldr0")
    def get_nonce():
        a(f"v_cmp_eq_u32 vcc, 0, v2\nv_mov_b32 v15, {CT_NONCE}\nv_mov_b32 v{V_Z}, 0x80000000\nds_read_b32 v{V_NONCE}, v15\nv_cndmask_b32 v{V_Z}, v{V_Z}, 0, vcc")
        a(f"s_waitcnt lgkmcnt(0)\nv_readfirstlane_b32 s{S_NONCE}, v{V_NONCE}")
    def nonce_spin():
        a(f"s_mov_b32 s{S_SPIN}, {SPIN}\nv_mov_b32 v5, 0")
        a(f"F_np:\nbuffer_load_dword v4, v5, s[{SRD_C}:{SRD_C+3}], 0 offen sc1\ns_waitcnt vmcnt(0)\nv_readfirstlane_b32 s40, v4\ns_cmp_lg_u32 s40, 0\ns_cbranch_scc1 F_np1")
        a(f"s_sub_u32 s{S_SPIN}, s{S_SPIN}, 1\ns_cmp_lg_u32 s{S_SPIN}, 0\ns_cbranch_scc1 F_np")
    if FRONT in (3, 4): pass
    elif FRONT < 2:
        a("s_cmp_lg_u32 s3, 0\ns_cbranch_scc1 F_c0")
        a("v_mov_b32 v4, 0\nv_lshlrev_b32 v5, 2, v2\nds_write_b32 v5, v4")
        a("F_c0:")
        a("s_waitcnt vmcnt(0)")
        a.extend(st.now(1))
        if FRONT == 0: p0.p0_ln(a)
        else: p0.ln2(a)
        a("s_waitcnt lgkmcnt(0)\ns_barrier")
        p0.p0_xn_stores(a, "sc1")
        a("s_cmp_lg_u32 s3, 3\ns_cbranch_scc1 F_c1")
        nonce_spin()
        a(f"F_np1:\nv_mov_b32 v5, {CT_NONCE}\nds_write_b32 v5, v4")
        a("F_c1:")
        a("s_waitcnt vmcnt(0) lgkmcnt(0)")
        a.extend(st.now(2))
        a("s_barrier")
        get_nonce()
        a("s_cmp_lg_u32 s3, 0\ns_cbranch_scc1 F_c2")
        a(f"s_lshl_b32 s40, s2, 7\ns_add_u32 s40, s40, {FX}")
        a(flag_store(40))
        a("F_c2:")
    else:
        a("s_cmp_lg_u32 s3, 0\ns_cbranch_scc1 F_c0")
        a("v_mov_b32 v4, 0\nv_lshlrev_b32 v5, 2, v2\ns_mov_b64 exec, -2\nds_write_b32 v5, v4\ns_mov_b64 exec, -1")
        a("F_c0:")
        a("s_waitcnt vmcnt(0)")
        a.extend(st.now(1))
        p0.ln2(a)
        a.extend(st.now(18))
        a("s_waitcnt lgkmcnt(0)\ns_barrier")
        a.extend(st.now(19))
        a(f"v_mov_b32 v5, 0\nbuffer_load_dword v46, v5, s[{SRD_C}:{SRD_C+3}], 0 offen sc1")
        p0.p0_xn_stores(a, "sc1")
        a("s_barrier")
        a(f"v_cmp_eq_u32 vcc, 0, v2\nv_mov_b32 v{V_Z}, 0x80000000")
        a(f"s_lshl_b32 s41, s2, 5\ns_add_u32 s41, s41, s3\ns_lshl_b32 s41, s41, 2\ns_add_u32 s41, s41, {FX}")
        a(f"v_cndmask_b32 v{V_Z}, v{V_Z}, 0, vcc")
        a("s_waitcnt vmcnt(0)")
        a.extend(st.now(20))
        if stamps: a(f"s_mov_b32 s{S_SPIN}, {SPIN}")
        a("v_mov_b32 v4, v46\nv_readfirstlane_b32 s40, v46\ns_cmp_lg_u32 s40, 0\ns_cbranch_scc1 F_np1")
        nonce_spin()
        a(f"F_np1:\nv_mov_b32 v{V_NONCE}, v4\ns_mov_b32 s{S_NONCE}, s40")
        a(flag_store(41))
        if stamps: a(f"s_sub_u32 s42, {SPIN+1}, s{S_SPIN}\nv_writelane_b32 v{V_STAMP}, s42, 21")
        a("s_cmp_lg_u32 s3, 3\ns_cbranch_scc1 F_c1")
        a(f"v_mov_b32 v5, {CT_NONCE}\nds_write_b32 v5, v4\ns_waitcnt lgkmcnt(0)")
        a("F_c1:")
        a.extend(st.now(2))
    if XIT == 2: a("s_waitcnt vmcnt(0)\ns_branch F_fin")
    metas = {}
    a(f"s_cmp_ge_u32 s{S_FB}, 11\ns_cbranch_scc1 F_cC\ns_cmp_ge_u32 s{S_FB}, 8\ns_cbranch_scc1 F_cB")
    for ty in "ABC":
        a(f"F_c{ty}:")
        if FRONT == 3:
            Pp = ring_plan(ty)
            x_batch1(a, Pp)
            setup_compute(a, ty)
            x_columns(a, Pp, st, opt)
            metas[ty] = gen_compute(a, ty, st, opt)
            a("s_branch F_att")
            continue
        if FRONT == 4:
            Pp = ring_plan(ty)
            x4_batch1(a, Pp)
            setup_compute(a, ty)
            x4_setup(a, Pp)
            metas[ty] = gen_compute(a, ty, st, opt)
            a("s_branch F_att")
            continue
        setup_compute(a, ty)
        if FRONT < 2:
            a(f"s_lshl_b32 s43, s{S_T32}, 9\ns_add_u32 s43, s43, {FX}\nv_lshlrev_b32 v16, 7, v2")
            poll(a, 16, 43, 0xf, 0, f"FXp{ty}", 17)
        else:
            a(f"s_lshl_b32 s43, s{S_T32}, 9\ns_add_u32 s43, s43, {FX}\nv_lshrrev_b32 v16, 2, v2\nv_lshlrev_b32 v16, 7, v16\nv_and_b32 v17, 3, v2\nv_lshl_add_u32 v16, v17, 2, v16")
            poll(a, 16, 43, 0xffff, 0, f"FXp{ty}", 17)
        a.extend(st.now(3))
        metas[ty] = gen_compute(a, ty, st, opt)
        a("s_branch F_att")
    a("F_att:")
    if opt.get("prio_att"): a(f"s_setprio {opt['prio_att']}")
    a.extend(st.now(9))
    p2.attn_params(a)
    a(f"s_mov_b32 s{p2.A_QSEL}, 0\ns_mov_b32 s{p2.A_HH}, s3")
    p2.attn_setup(a)
    global H1_EARLY
    H1_EARLY = opt.get("h1early", 0)
    if H1_EARLY:
        a("s_waitcnt vmcnt(0)")
        a(flag_store(S_FL, K_H1 * 128))
    a("s_barrier")
    if XIT == 3: a("s_waitcnt vmcnt(0)\ns_branch F_fin")
    a.extend(st.now(10))
    if opt.get("nt"):
        a(f"s_lshl_b32 s40, s{p2.A_TB2}, 3\ns_add_u32 s40, s40, s{p2.A_HQ}\ns_lshl_b32 s40, s40, 2\ns_add_u32 s40, s40, s3\ns_lshl_b32 s40, s40, 7\ns_add_u32 s58, s40, {FO}")
    a("s_mov_b32 s59, 0")
    a("F_task:")
    attn_task(a, "AT", st)
    a(f"s_cmp_lg_u32 s59, 0\ns_cbranch_scc1 F_att_done")
    if opt.get("xst"): a.extend(st.now(18))
    a(f"s_mov_b32 s59, 1\ns_mov_b32 s{p2.A_QSEL}, 1")
    a(f"v_add_u32 v{p2.V_AK}, 5120, v{p2.V_AK}\nv_add_u32 v{p2.V_AS}, 5120, v{p2.V_AS}\nv_lshl_add_u32 v{p2.V_AV}, v{p2.V_SV}, 1, v{p2.V_AV}")
    a("s_branch F_task")
    a("F_att_done:")
    if opt.get("xst"): st.prev = None; a.extend(st.now(19))
    if opt.get("prio_att") and not opt.get("prio_keep"): a("s_setprio 0")
    a(f"s_lshl_b32 s40, s3, 2\ns_add_u32 s40, s40, {CT_ATT}\nv_mov_b32 v4, s40\nv_mov_b32 v5, 1\nds_write_b32 v4, v5")
    a(f"s_lshl_b32 s40, s{p2.A_TB2}, 3\ns_add_u32 s40, s40, s{p2.A_HQ}\ns_lshl_b32 s40, s40, 2\ns_add_u32 s40, s40, s3\ns_lshl_b32 s40, s40, 7\ns_add_u32 s58, s40, {FO}")
    k3_setup(a)
    srd(a, SRD_A, P_X, S * D * 2)
    srd(a, SRD_B, P_OUT, S * D * 2)
    if opt.get("nt") in (2, 3):
        tail3_compute(a, st, opt)
    elif opt.get("nt"):
        tail2_compute(a, st, opt)
    else:
        a("s_waitcnt vmcnt(0)")
        a(flag_store(58))
        a.extend(st.now(11))
        p3.x_loads(a, SRD_A)
        o_stream(a, st)
        a("s_branch F_red")
    a("F_ldr0:")
    a(f"s_cmp_ge_u32 s{S_FB}, 11\ns_cbranch_scc1 F_lC\ns_cmp_ge_u32 s{S_FB}, 8\ns_cbranch_scc1 F_lB")
    for ty in "ABC":
        P = metas[ty]
        a(f"F_l{ty}:")
        tmp = Asm(); p1.setup_loader(tmp, ty)
        for l in tmp.lines:
            a(re.sub(r"\bv1([345])\b", lambda m: "v" + str(20 + int(m.group(1)) - 3), l))
        opt["_ty"] = ty
        if FRONT == 0:
            for s in range(NSLOT): loader_issue(a, P, s)
            npf = weight_prefetch(a, ty) if opt.get("wpf", 1) else 0
            srd(a, WT_SRD_D, P_D, F * D * 2)
            srd(a, WT_SRD_O, P_WO, D * D * 2)
            a(f"s_waitcnt vmcnt({32 + npf})")
            a.extend(st.now(1))
            p0.p0_ln(a)
            a("s_waitcnt lgkmcnt(0)\ns_barrier")
            a("s_barrier")
            get_nonce()
            a.extend(st.now(2))
        elif FRONT == 3:
            srd(a, WT_SRD_D, P_D, F * D * 2)
            srd(a, WT_SRD_O, P_WO, D * D * 2)
            if opt.get("epf", 0) >= 1: weight_prefetch(a, ty, "first")
            n1 = opt.get("pre_ln", 1); n2 = opt.get("pre_x", 2)
            assert n1 <= n2 <= 2 and opt.get("wt2_at", -1) >= 0 and opt.get("wpf", 1) != 1
            for s in range(n1): loader_issue(a, P, s)
            lab = a.label("LN")
            a(f"s_cmp_lg_u32 s3, 4\ns_cbranch_scc1 {lab}_c0")
            a("v_mov_b32 v24, 0\nv_lshlrev_b32 v25, 2, v2\ns_mov_b64 exec, -2\nds_write_b32 v25, v24\ns_mov_b64 exec, -1")
            a(f"{lab}_c0:")
            a(f"s_mov_b32 s{S_SPIN}, {SPIN}\nv_mov_b32 v25, 0")
            a(f"{lab}_np:\nbuffer_load_dword v24, v25, s[{SRD_C}:{SRD_C+3}], 0 offen sc1\ns_waitcnt vmcnt(0)\nv_readfirstlane_b32 s40, v24\ns_cmp_lg_u32 s40, 0\ns_cbranch_scc1 {lab}_n1")
            a(f"s_sub_u32 s{S_SPIN}, s{S_SPIN}, 1\ns_cmp_lg_u32 s{S_SPIN}, 0\ns_cbranch_scc1 {lab}_np")
            a(f"{lab}_n1:\nv_mov_b32 v{V_NONCE}, v24\ns_mov_b32 s{S_NONCE}, s40")
            a(f"v_cmp_eq_u32 vcc, 0, v2\nv_mov_b32 v{V_Z}, 0x80000000\ns_nop 0\nv_cndmask_b32 v{V_Z}, v{V_Z}, 0, vcc")
            a(f"s_cmp_lg_u32 s3, 4\ns_cbranch_scc1 {lab}_c1")
            a(f"v_mov_b32 v25, {CT_NONCE}\nds_write_b32 v25, v24")
            a(f"{lab}_c1:")
            a.extend(st.now(1))
            wt2_issue(a)
            for s in range(n1, n2): loader_issue(a, P, s)
            a("s_waitcnt lgkmcnt(0)")
            a.extend(st.now(2))
            a("s_barrier")
            for s in range(n2, NSLOT): loader_issue(a, P, s)
            npf = 0
            if opt.get("wpf", 1) == 2: npf += weight_prefetch(a, ty)
        elif FRONT == 4:
            nw = NSLOT - X4["nx"]
            q0 = []
            pf_pos = opt.get("pf_pos", nw)
            def pfs():
                n = 0
                if opt.get("xpf", 0):
                    c0 = opt.get("xpf_c", 4); nc = 10 - c0
                    srd(a, WT_SRD_D, P_X, S * D * 2)
                    a(f"s_lshr_b32 s40, s2, 6\ns_lshl_b32 s41, s{S_TB}, 2\ns_add_u32 s40, s40, s41\ns_mul_i32 s40, s40, 40960\ns_sub_u32 s41, s3, 4")
                    a(f"v_and_b32 v23, 31, v2\nv_mul_u32_u24 v23, 1280, v23\nv_lshrrev_b32 v25, 5, v2")
                    for r in range(-(-nc // 8)):
                        a(f"s_lshl_b32 s42, s41, 1\ns_add_u32 s42, s42, {c0 + 8 * r}\nv_add_u32 v26, s42, v25\nv_cmp_gt_u32 vcc, 10, v26\nv_lshl_add_u32 v26, v26, 7, v23")
                        a(f"v_mov_b32 v27, 0x80000000\nv_cndmask_b32 v26, v27, v26, vcc\nbuffer_load_dword v30, v26, s[{WT_SRD_D}:{WT_SRD_D+3}], s40 offen"); n += 1
                if opt.get("epf", 0) >= 1: n += weight_prefetch(a, ty, "first")
                return n
            for s in range(nw):
                if s == pf_pos: q0 += [("pf",)] * pfs()
                loader_issue(a, P, s); q0 += [("stage", s)] * 4
            if pf_pos >= nw: q0 += [("pf",)] * pfs()
            opt["_issued"] = nw; opt["_q0"] = q0
            srd(a, WT_SRD_D, P_D, F * D * 2)
            srd(a, WT_SRD_O, P_WO, D * D * 2)
            lab = a.label("L4")
            a(f"s_cmp_lg_u32 s3, 4\ns_cbranch_scc1 {lab}_c0")
            a("v_mov_b32 v24, 0\nv_lshlrev_b32 v25, 2, v2\ns_mov_b64 exec, -2\nds_write_b32 v25, v24\ns_mov_b64 exec, -1")
            a(f"v_mov_b32 v32, 0\nv_mov_b32 v33, 0\nv_mov_b32 v34, 0\nv_mov_b32 v35, 0\nv_lshlrev_b32 v25, 4, v2")
            for i in range(3): a(f"ds_write_b128 v25, v[32:35] offset:{CTAB + 1024 * i}")
            a(f"{lab}_c0:")
            a(f"v_cmp_eq_u32 vcc, 0, v2\nv_mov_b32 v{V_Z}, 0x80000000\ns_nop 0\nv_cndmask_b32 v{V_Z}, v{V_Z}, 0, vcc")
            a.extend(st.now(1))
            a("s_waitcnt lgkmcnt(0)")
            opt["_get_nonce"] = get_nonce
            npf = 0
        else:
            srd(a, WT_SRD_D, P_D, F * D * 2)
            srd(a, WT_SRD_O, P_WO, D * D * 2)
            npf0 = 0
            if opt.get("epf", 0) >= 1: weight_prefetch(a, ty, "first")
            if opt.get("epf", 0) >= 2: weight_prefetch(a, ty)
            wt2_issue(a)
            n1 = opt.get("pre_ln", 4); n2 = n1 + opt.get("mid_ln", NSLOT - n1)
            for s in range(n1): loader_issue(a, P, s)
            a.extend(st.now(1))
            a("s_barrier")
            for s in range(n1, n2): loader_issue(a, P, s)
            npf = weight_prefetch(a, ty) if opt.get("wpf", 1) == 1 else 0
            if FRONT >= 2: assert n2 == n1 and opt.get("wpf", 1) != 1
            a("s_barrier")
            for s in range(n2, NSLOT): loader_issue(a, P, s)
            assert npf == 0 or n2 == NSLOT
            if FRONT < 2: get_nonce()
            else: opt["_get_nonce"] = get_nonce; assert opt.get("wt2_at", -1) >= 0
            if opt.get("wt2_at", -1) < 0: wt2_finish(a, 32 + npf)
            if opt.get("wpf", 1) == 2: npf += weight_prefetch(a, ty)
            a.extend(st.now(2))
        if XIT == 2: a("s_waitcnt vmcnt(0)\ns_branch F_fin")
        gen_loader(a, P, st, opt, npf)
        a("s_branch F_ltail")
    a("F_ltail:")
    a.extend(st.now(8))
    if opt.get("tail", 0) >= 1:
        vb = 8
        a("s_sub_u32 s57, s3, 4\ns_waitcnt vmcnt(0)")
        prepoll_check(a, 0, "PQK", lambda: poll_qk(a, "PQK"))
        for i in range(3): qk_job(a, i, vb)
        a.extend(st.now(9))
        lds_poll4(a, CT_PROG, "PPR", 20)
        prepoll_check(a, 1, "PV", lambda: poll_v(a, "PV"))
        a("s_cmp_lg_u32 s3, 7\ns_cbranch_scc1 F_l1")
        a(f"v_mov_b32 v20, 0x3f803f80\nv_mov_b32 v21, 0x3f803f80\nv_mov_b32 v22, 0x3f803f80\nv_mov_b32 v23, 0x3f803f80\nv_mov_b32 v24, {L_ONES}")
        a("ds_write_b128 v24, v[20:23]")
        a("F_l1:")
        for i in range(2): v_job(a, i, vb)
        a("s_cmp_ge_u32 s57, 2\ns_cbranch_scc1 F_l2")
        v_job(a, 2, vb)
        a("F_l2:")
        a.extend(st.now(10))
        k3_setup(a)
        prepoll_check(a, 2, "PW", lambda: poll_fw(a, "PW"))
        prepoll_check(a, 3, "PH", lambda: poll_fh(a, "PH", K_H0))
        def bend(e):
            a(f"s_waitcnt vmcnt({len(e.vm) + (10 if opt['tail'] == 2 else 0)}) lgkmcnt(0)")
            a.extend(st.now(11))
            a("s_barrier")
            if XIT == 3: a("s_waitcnt vmcnt(0)\ns_branch F_fin")
        e = h_stream(a, st, "pre", (opt.get("hpre", 3), bend), eh=opt.get("eh", 0))
        assert opt["tail"] == 1 or opt.get("bv_at", 2) >= 1
        if opt.get("nt") == 3:
            h_stream_main4(a, e, st, opt["h1pp"], opt.get("o1pp", 11), opt.get("o1chk", 13), opt.get("o2at", 13))
            a("s_branch F_fin")
        elif opt.get("nt") == 2:
            h_stream_main3(a, e, st, opt["h1pp"], opt.get("o1pp", 9), opt.get("o1chk", 11))
            a("s_branch F_fin")
        elif opt.get("nt"):
            h_stream_main2(a, e, st, opt["h1pp"], opt.get("o1pp", 9), opt.get("o1chk", 11))
            tail2_loader_reduce(a, st)
            a("s_branch F_fin")
        else:
            h_stream_main(a, e, st, None if opt["tail"] == 1 else opt.get("bv_at", 2), eh=opt.get("eh", 0), h1pp=opt.get("h1pp", -1))
            a("s_branch F_red")
    if opt.get("tail", 0) == 0: old_tail(a, st, opt, XIT)
    if not opt.get("nt"):
        a("F_red:")
        reduce_phase(a, "RD", st)
    a("F_fin:")
    if stamps:
        a("s_waitcnt vmcnt(0)")
        a.extend(st.now(16))
        st.flush(a)
    a("F_exit:\ns_endpgm")
    return a, kernel_desc(name, 256, 102), (name, (256,1,1), (512,1,1), 163840), metas

def old_tail(a, st, opt, XIT):
    p2.attn_params(a)
    vb = 8
    a("s_cmp_ge_u32 s3, 6\ns_cbranch_scc1 F_lt67")
    p2.attn_dma_setup(a, vb)
    a("s_cmp_eq_u32 s3, 5\ns_cbranch_scc1 F_lt5")
    poll_qk(a, "PQK")
    a.extend(st.now(9))
    for m in range(2): attn_dma_dyn(a, "Q", m, vb, None, None)
    for m in range(10): attn_dma_dyn(a, "K", m, vb, None, None)
    k3_setup(a)
    a("s_sub_u32 s57, s3, 4")
    a("s_waitcnt vmcnt(0)")
    a.extend(st.now(10))
    a("s_barrier")
    if XIT == 3: a("s_waitcnt vmcnt(0)\ns_branch F_fin")
    a("s_branch F_lt45")
    a("F_lt5:")
    lds_poll4(a, CT_PROG, "PPR", 20)
    poll_v(a, "PV")
    a.extend(st.now(9))
    a(f"v_mov_b32 v20, 0x3f803f80\nv_mov_b32 v21, 0x3f803f80\nv_mov_b32 v22, 0x3f803f80\nv_mov_b32 v23, 0x3f803f80\nv_mov_b32 v24, {L_ONES}")
    a("ds_write_b128 v24, v[20:23]")
    for m in range(10): attn_dma_dyn(a, "V", m, vb, None, None)
    k3_setup(a)
    a("s_sub_u32 s57, s3, 4")
    a("s_waitcnt lgkmcnt(0)")
    a("s_barrier")
    if XIT == 3: a("s_waitcnt vmcnt(0)\ns_branch F_fin")
    a("F_lt45:")
    poll_fw(a, "PW45")
    poll_fh(a, "PH45", K_H0)
    a.extend(st.now(11))
    a("s_barrier")
    e = h_stream(a, st, "pre")
    h_stream_main(a, e, st, None)
    a("s_branch F_red")
    a("F_lt67:")
    k3_setup(a)
    a("s_sub_u32 s57, s3, 4")
    poll_fw(a, "PW67")
    poll_fh(a, "PH67", K_H0)
    a.extend(st.now(11))
    e = h_stream(a, st, "pre")
    a("s_barrier")
    if XIT == 3: a("s_waitcnt vmcnt(0)\ns_branch F_fin")
    h_stream_main(a, e, st, opt.get("bv_at", 2))

H1_EARLY = 0
def attn_task(a, lab, st):
    tmp = Asm()
    p2.attn_task(tmp, lab, "sc1")
    lines = tmp.lines
    idx = next(i for i, l in enumerate(lines) if l.startswith(f"{lab}_noneg:"))
    if XOPT.get("noexp"): lines = [l.replace("v_exp_f32", "v_mov_b32") for l in lines]
    a.extend(lines[:idx + 1])
    a(f"s_cmp_lg_u32 s59, 0\ns_cbranch_scc1 {lab}_nb")
    if not H1_EARLY:
        a("s_waitcnt vmcnt(0)")
        a(flag_store(S_FL, K_H1 * 128))
    if not NO_BV: a("s_barrier")
    a(f"{lab}_nb:")
    rest = lines[idx + 1:]
    if XOPT.get("nt"):
        ex = [i for i, l in enumerate(rest) if l.startswith("v_exp_f32") or (XOPT.get("noexp") and False)]
        at = ex[XOPT.get("o1at", 32)]
        a.extend(rest[:at])
        a(f"s_cmp_eq_u32 s59, 0\ns_cbranch_scc1 {lab}_no1\ns_waitcnt vmcnt(0)")
        a(flag_store(58, 64))
        a.extend(st.now(19))
        a(f"{lab}_no1:")
        rest = rest[at:]
    a.extend(rest)
```

```python
from core import *
import re
from layout import *
import p0, p1, p2, p3
from p0 import srd, SRD_WS, SRD_A, SRD_B, SRD_C, P_X, P_WQKV, P_WO, P_G, P_U, P_D, P_OUT, P_DBG, P_WS
from p1 import build_seq, epi_instrs, NSLOT, V_A, V_QK, V_V, V_H, FR, ACC, BF, PF
from p1 import S_TB, S_FB, S_T32, S_CQ0, S_CQ1, S_CP0, S_J, S_T

FX = 0x000000
FW = 0x010000
FO = 0x020000
FG = 0x080000
K_QK, K_V, K_H0, K_H1 = 0, 1, 2, 3
CT_NONCE, CT_PROG, CT_ATT = 0, 16, 32
RING = 32768
LN_LDS = 1024
L_Q = 512; L_K = L_Q + 10240; L_V = L_K + 51200; L_ONES = L_V + 51200
L_R1 = 512; L_R2 = L_R1 + 81920
p0.LN_LDS = LN_LDS
p2.L_Q, p2.L_K, p2.L_V, p2.L_ONES = L_Q, L_K, L_V, L_ONES
p3.L_R1, p3.L_R2 = L_R1, L_R2
S_NONCE, S_SPIN = 0, 1
S_ST = 10
S_FL = 58
V_NONCE, V_Z, V_STAMP = 0, 3, 1
SPIN = 20000
WS = f"s[{SRD_WS}:{SRD_WS+3}]"

class Stamper:
    def __init__(self, on, cyc=False): self.on = on; self.prev = None; self.ins = "s_memtime" if cyc else "s_memrealtime"
    def mark(self, i):
        if not self.on: return []
        L = []
        if self.prev is not None: L.append(f"v_writelane_b32 v{V_STAMP}, s{S_ST}, {self.prev}")
        L.append(f"{self.ins} s[{S_ST}:{S_ST+1}]")
        self.prev = i
        return L
    def sync(self):
        if not self.on or self.prev is None: return []
        L = ["s_waitcnt lgkmcnt(0)", f"v_writelane_b32 v{V_STAMP}, s{S_ST}, {self.prev}"]
        self.prev = None
        return L
    def now(self, i): return self.sync() + self.mark(i) + self.sync()
    def flush(self, a):
        if not self.on: return
        a.extend(self.sync())
        a(f"s_mov_b64 exec, -1\ns_lshl_b32 s40, s2, 3\ns_add_u32 s40, s40, s3\ns_lshl_b32 s40, s40, 7\ns_add_u32 s40, s40, {STAMPS}")
        a(f"v_mbcnt_lo_u32_b32 v4, -1, 0\nv_mbcnt_hi_u32_b32 v4, -1, v4\nv_lshlrev_b32 v4, 2, v4\ns_mov_b32 exec_hi, 0")
        a(f"buffer_store_dword v{V_STAMP}, v4, {WS}, s40 offen\ns_mov_b64 exec, -1")

def poll(a, vaddr, soff, mlo, mhi, lab, vt, off=0):
    a(f"s_mov_b32 s{S_SPIN}, {SPIN}\ns_mov_b32 exec_lo, {mlo}\ns_mov_b32 exec_hi, {mhi}")
    a(f"{lab}:")
    a(f"buffer_load_dword v{vt}, v{vaddr}, {WS}, s{soff} offen offset:{off} sc1")
    a(f"s_waitcnt vmcnt(0)\nv_cmp_eq_u32 vcc, s{S_NONCE}, v{vt}\ns_nop 0\ns_cmp_eq_u64 vcc, exec\ns_cbranch_scc1 {lab}_ok")
    a(f"s_sub_u32 s{S_SPIN}, s{S_SPIN}, 1\ns_cmp_lg_u32 s{S_SPIN}, 0\ns_cbranch_scc1 {lab}")
    a(f"{lab}_ok:\ns_mov_b64 exec, -1")

def lds_poll4(a, off, lab, vt, sleep=0):
    a(f"v_mov_b32 v{vt+4}, {off}\ns_mov_b32 s{S_SPIN}, {SPIN*8}")
    a(f"{lab}:\nds_read_b128 v[{vt}:{vt+3}], v{vt+4}\ns_waitcnt lgkmcnt(0)")
    a(f"v_min_u32 v{vt}, v{vt}, v{vt+1}\nv_min3_u32 v{vt}, v{vt}, v{vt+2}, v{vt+3}\ns_nop 0\nv_readfirstlane_b32 s40, v{vt}")
    sl = f"s_sleep {sleep}\n" if sleep else ""
    a(f"s_cmp_lg_u32 s40, 0\ns_cbranch_scc1 {lab}_ok\n{sl}s_sub_u32 s{S_SPIN}, s{S_SPIN}, 1\ns_cmp_lg_u32 s{S_SPIN}, 0\ns_cbranch_scc1 {lab}\n{lab}_ok:")

def flag_store(soff, off=0):
    return f"buffer_store_dword v{V_NONCE}, v{V_Z}, {WS}, s{soff} offen offset:{off} sc1"

class Emit:
    def __init__(self, a): self.a = a; self.vm = []; self.ds = []
    def __call__(self, ins, tag=None):
        for l in ins.split("\n") if isinstance(ins, str) else ins:
            l = l.strip()
            if not l: continue
            if l.startswith("buffer_"): self.vm.append(tag)
            elif l.startswith("ds_"): self.ds.append(tag)
            self.a(l)
    def vm_after(self, pred):
        for i in range(len(self.vm) - 1, -1, -1):
            if pred(self.vm[i]): return len(self.vm) - 1 - i
        return None
    def ds_after(self, pred):
        for i in range(len(self.ds) - 1, -1, -1):
            if pred(self.ds[i]): return len(self.ds) - 1 - i
        return None

X4 = None
XE_BASE = 16384
def ring_plan(ty, nb=3, bar_every=16):
    mf, stages, tiles = build_seq(ty, nb, corr=bool(X4 and X4["corr"]), nb0t=(X4["nb0"] if X4 else None))
    N = len(mf); ns = len(stages)
    phase = (-ns) % NSLOT
    nc = [k for k in range(N) if mf[k].get("corr") is None]
    bars = [-1]
    while True:
        pos = bars[-1] + PF + 1
        kind = tiles[mf[nc[min(pos, len(nc)-1)]]["tile"]]["kind"]
        step = 8 if kind == "QKH" else bar_every
        if X4 and pos < X4["bar0_n"]: step = X4["bar0"]
        nxt = bars[-1] + step if bars[-1] >= 0 else step - PF - 1
        if nxt >= len(nc) - PF - 1: break
        bars.append(nxt)
    bars = [-1] + [nc[b + PF + 1] - PF - 1 for b in bars[1:]]
    def done_at(b):
        d = -1
        for s in range(ns):
            if all(k <= b for k in range(N) if mf[k]["stage"] == s): d = s
            else: break
        return d
    out = []
    for b in bars:
        out.append(b)
        if done_at(b) >= ns - 6: break
    bars = out
    info = []
    for i, b in enumerate(bars):
        lo = b + PF + 1 if b >= 0 else 0
        hi = (bars[i+1] + PF) if i + 1 < len(bars) else N - 1
        need = max(mf[k]["stage"] for k in range(lo, hi + 1))
        info.append((need, done_at(b)))
    prog = max(k for k in range(N) if mf[k]["stage"] <= ns - 4)
    slot = [(s + phase) % NSLOT for s in range(ns)]
    prev = [s - NSLOT if s >= NSLOT else None for s in range(ns)]
    xb = None; xrd = None
    if X4:
        nx = X4["nx"]; nw = NSLOT - nx
        for s in range(nw + 8): slot[s] = (phase + s % nw) % NSLOT
        xs = [(phase + nw + i) % NSLOT for i in range(nx)]
        xb = ([XE_BASE] if X4["xe"] else []) + [RING + 16384 * i for i in xs]
        xrd = [min(k for k in range(N) if mf[k]["bf"] is not None and mf[k]["bf"] // 4 == m) - PF for m in range(10)]
        occ = {}
        for s in range(ns):
            if slot[s] in occ: prev[s] = occ[slot[s]]
            elif slot[s] in xs:
                last = max(m for m in range(10) if xb[m % len(xb)] == RING + 16384 * slot[s])
                prev[s] = ("x", xrd[last] + PF)
            else: prev[s] = None
            occ[slot[s]] = s
    return dict(mf=mf, stages=stages, tiles=tiles, N=N, ns=ns, phase=phase, bars=bars, info=info, prog=prog, slot=slot, prev=prev, xb=xb, xrd=xrd)

def gen_compute(a, ty, st, opt):
    P = ring_plan(ty)
    mf, stages, tiles, N, phase, bars = P["mf"], P["stages"], P["tiles"], P["N"], P["phase"], P["bars"]
    sc = "" if opt.get("nosc") else "sc1"
    e = Emit(a)
    PRE = opt.get("pre", 16); XRATE = opt.get("xrate", 2); FDELAY = opt.get("fdelay", 48)
    jobs = []
    for ti, t in enumerate(tiles):
        if t["kind"] == "P": groups = [(0, t["accs"][0:2]), (1, t["accs"][2:4])]
        elif t["kind"] == "QKH": groups = [(0, t["accs"][0:1])]
        else: groups = [(0, t["accs"][0:1]), (1, t["accs"][1:2])]
        for ft, ac in groups:
            last = max(i for i in range(t["m0"], t["m1"]) if mf[i]["acc"] in ac)
            nxt = [i for i in range(t["m1"], N) if mf[i]["acc"] in ac]
            dl = min(nxt) if nxt else N + 1000
            jobs.append(dict(ready=last, dl=dl, ins=epi_instrs(t["kind"], t["idx"], ft, [ACC[x] for x in ac], sc), tile=ti, kind=t["kind"]))
    jobs.sort(key=lambda j: j["ready"])
    fill = {g: [] for g in range(N)}
    tail = []
    cur = 0
    LOCAL = opt.get("front", 0) == 3
    L4 = opt.get("front", 0) == 4
    xpost = {g: [] for g in range(-1, N)}
    if L4:
        xb, xrd = P["xb"], P["xrd"]; nxs = len(xb)
        curb = x4_base(P)
        def addfill(g, L):
            for i_, x_ in enumerate(L): fill[g + i_ // 3].append(x_)
        for m in range(10):
            g = max(xrd[m], -1)
            xpost[g].append(("WAITX", m))
            d = xb[m % nxs] - curb
            if not 0 <= d <= 49152:
                xpost[g] += [(f"v_add_u32 v{X4_R+k_}, {d & 0xffffffff}, v{X4_R+k_}", None) for k_ in range(4)]
                curb = xb[m % nxs]; d = 0
            xpost[g] += [(f"ds_read_b128 v[{BF+16*m+4*k_}:{BF+16*m+4*k_+3}], v{X4_R+k_} offset:{d}", ("xr", m)) for k_ in range(4)]
            if m + nxs < 10:
                g2 = xrd[m] + PF
                for tg in range(4):
                    fill[g2 + tg] += [(x_, ("xd", m + nxs) if x_.startswith("buffer") else None) for x_ in x4_dma(P, m + nxs, tg)]
        g = xrd[9] + PF
        rs = x4_restore(ty)
        addfill(g, [(x_, None) for x_ in rs])
        cur = g + (len(rs) + 2) // 3
        nb_ = opt.get("nonce_bar", 6)
        fill[bars[nb_] + 1].append((f"ds_read_b32 v{V_NONCE}, v{V_NONCE}", ("nonce",)))
        fill[bars[nb_] + 8].append((f"v_readfirstlane_b32 s{S_NONCE}, v{V_NONCE}", None))
    npre = 0
    if LOCAL:
        D_ = [min(k for k in range(N) if mf[k]["bf"] == j) for j in range(40)]
        R = opt.get("nrate", 6)
        def plan(npre):
            seq = [(x_, D_[j]) for j in range(npre, 40) for x_ in norm_instrs(j)]
            g = 0; out = {}
            for i in range(0, len(seq), R):
                for x_, d in seq[i:i+R]:
                    if g > d - 2: return None
                    out.setdefault(g, []).append(x_)
                g += 1
            return out, g
        npre = 1
        while plan(npre) is None: npre += 1
        npre = max(npre, opt.get("npre", 0))
        out, g = plan(npre)
        for gg, L in out.items(): fill[gg] += [(x_, None) for x_ in L]
        rs = norm_restore()
        for i in range(0, len(rs), 4):
            fill[g] += [(x_, None) for x_ in rs[i:i+4]]; g += 1
        cur = g
        opt["_npre"] = npre
    for j in jobs:
        start = max(j["ready"] + 4, cur)
        n = len(j["ins"])
        tagged = [(x, ("st", j["tile"])) for x in j["ins"]]
        end = min(j["dl"] - 1, N)
        avail = end - start
        if start >= N - 1 or avail <= 0:
            assert j["dl"] > N, (ty, j["ready"], j["dl"], cur, N, n)
            tail += tagged; j["last_gap"] = N; continue
        if j["dl"] > N: end = N; avail = end - start
        per = max(-(-n // avail), min(3, n))
        g = start; k = 0
        while k < n and g < N:
            fill[g] += tagged[k:k+per]; k += per; g += 1
        if k < n:
            assert j["dl"] > N
            tail += tagged[k:]; g = N + 1
        assert g <= end + 1 or j["dl"] > N
        j["last_gap"] = g - 1
        cur = g
    if p1.ORD == 0:
        if ty == "A": groups = [(K_QK, [0, 1]), (K_H0, [2])]
        if ty == "B": groups = [(K_QK, [0]), (K_H0, [1])]
        if ty == "C": groups = [(K_QK, [0]), (K_V, [1, 2])]
    else:
        if ty == "A": groups = [(K_H0, [0]), (K_QK, [1, 2])]
        if ty == "B": groups = [(K_H0, [0]), (K_QK, [1])]
        if ty == "C": groups = [(K_V, [0, 1]), (K_QK, [2])]
    flags = {}
    for kind, tl in groups:
        lg = max(j["last_gap"] for j in jobs if j["tile"] in tl)
        g = lg + (opt.get("fdelay_qk", FDELAY) if kind == K_QK else FDELAY)
        assert g < N - 1, (ty, kind, g)
        flags.setdefault(g, []).append((kind, tl))
    barset = set(b for b in bars if b >= 0)
    def rd(k):
        x = mf[k]
        if x.get("corr") is not None: return [f"ds_read_b64 v[{FR + 4 * (k % PF)}:{FR + 4 * (k % PF) + 1}], v{V_CT} offset:{CTAB + 256 * x['corr']}"]
        slot = P["slot"][x["stage"]]
        adr = V_A + 2 * x["adr"] + slot // 4
        off = (slot % 4) * 16384 + x["ksp"] * 2048
        fr = FR + 4 * (k % PF)
        return [f"ds_read_b64_tr_b16 v[{fr}:{fr+1}], v{adr} offset:{off}", f"ds_read_b64_tr_b16 v[{fr+2}:{fr+3}], v{adr} offset:{off+512}"]
    def xn_load(ks):
        L = []
        if ks % 4 == 0 and ks > 0: L.append("s_add_u32 s50, s50, 4096")
        L.append(f"buffer_load_dwordx4 v[{BF+4*ks}:{BF+4*ks+3}], v{V_H}, {WS}, s50 offen offset:{(ks%4)*1024} sc1")
        return L
    if opt.get("prio_g1"): a(f"s_setprio {opt['prio_g1']}")
    nx = 0
    if LOCAL:
        nx = 40
        for j in range(npre): a.extend(norm_instrs(j))
        a(f"v_cmp_eq_u32 vcc, 0, v2\nv_mov_b32 v{V_Z}, 0x80000000\nv_mov_b32 v{V_NONCE}, {CT_NONCE}\nv_cndmask_b32 v{V_Z}, v{V_Z}, 0, vcc")
        a.extend(st.now(3))
    elif L4:
        nx = 40
        e.vm += [("xd", m) for m in range(len(P["xb"])) for _ in range(4) if not (X4_NODMA[0] and m >= X4_NODMA[0] - 1)]
        a(f"v_cmp_eq_u32 vcc, 0, v2\nv_mov_b32 v{V_Z}, 0x80000000\nv_mov_b32 v{V_NONCE}, {CT_NONCE}\nv_cndmask_b32 v{V_Z}, v{V_Z}, 0, vcc")
    else:
        a(f"s_mul_i32 s50, s{S_T32}, {XN_T}\ns_add_u32 s50, s50, {XN}")
        while nx < PRE: e(xn_load(nx), ("xn", nx)); nx += 1
    def xemit(L):
        out = []
        for ins, tag in L:
            if ins == "WAITX": out.append(("WAITX", tag))
            else: out.append((ins, tag))
        return out
    def emit1(ins, tag):
        if ins == "WAITX":
            if not opt.get("x4nowait") and not (X4_NODMA[0] and tag >= X4_NODMA[0] - 1): a(f"s_waitcnt vmcnt({min(63, e.vm_after(lambda t: t == ('xd', tag)))})")
            if tag == 2: a.extend(st.mark(2))
            if tag == 1: a.extend(st.mark(3))
            if tag == 3: a.extend(st.mark(18))
            if tag == 0: a.extend(st.now(1))
            if tag == 9: a.extend(st.mark(20))
            if tag == 5: a.extend(st.mark(19))
        else: e(ins, tag)
    if L4:
        for ins, tag in xpost[-1]: emit1(ins, tag)
    a("s_barrier")
    a.extend(st.mark(4))
    if LOCAL:
        e(f"ds_read_b32 v{V_NONCE}, v{V_NONCE}", ("nonce",))
        fill[1].append((f"v_readfirstlane_b32 s{S_NONCE}, v{V_NONCE}", None))
    for k in range(PF): e(rd(k), ("rd", k))
    seen_bf = -1
    m16cnt = {}
    tile_last = {t["m1"] - 1: i for i, t in enumerate(tiles)}
    for k in range(N):
        x = mf[k]
        w = f"lgkmcnt({e.ds_after(lambda t: t == ('rd', k))})"
        if not LOCAL and not L4 and x["bf"] is not None and x["bf"] > seen_bf:
            seen_bf = x["bf"]
            assert ("xn", x["bf"]) in e.vm
            w = f"vmcnt({min(63, e.vm_after(lambda t: t == ('xn', x['bf'])))}) " + w
        a("s_waitcnt " + w)
        fr = FR + 4 * (k % PF); ac = ACC[x["acc"]]; bf = BF + 4 * (x["bf"] or 0)
        c = "0" if x["first"] else f"v[{ac}:{ac+15}]"
        post = []
        if k in barset: post.append(("s_barrier", None))
        post += xpost[k]
        if k + PF < N: post += [(i_, ("rd", k + PF)) for i_ in rd(k + PF)]
        if nx < 40 and k % XRATE == XRATE - 1:
            post += [(i_, ("xn", nx)) for i_ in xn_load(nx)]; nx += 1
        post += list(fill[k])
        if opt.get("m16x"):
            if x["first"]: m16cnt[x["acc"]] = 0
            cn = m16cnt[x["acc"]]; m16cnt[x["acc"]] += 1
            nh = (len(post) + 1) // 2 if opt["m16x"] == 2 else (0 if opt["m16x"] == 1 else len(post) // 2)
            for h in range(2):
                q = ac + 8 * (cn & 1) + 4 * h
                c2 = "0" if cn < 2 else f"v[{q}:{q+3}]"
                b2 = BF + 4 * (x["bf"] ^ h)
                if x["swap"]: a(f"v_mfma_f32_16x16x32_bf16 v[{q}:{q+3}], v[{b2}:{b2+3}], v[{fr}:{fr+3}], {c2}")
                else:         a(f"v_mfma_f32_16x16x32_bf16 v[{q}:{q+3}], v[{fr}:{fr+3}], v[{b2}:{b2+3}], {c2}")
                if h == 0:
                    for ins, tag in post[:nh]: e(ins, tag)
                    post = post[nh:]
        elif x.get("corr") is not None:
            if x["swap"]: a(f"v_mfma_f32_32x32x8_bf16 v[{ac}:{ac+15}], v[{V_SF}:{V_SF+1}], v[{fr}:{fr+1}], {c}")
            else:         a(f"v_mfma_f32_32x32x8_bf16 v[{ac}:{ac+15}], v[{fr}:{fr+1}], v[{V_SF}:{V_SF+1}], {c}")
        elif x["swap"]: a(f"v_mfma_f32_32x32x16_bf16 v[{ac}:{ac+15}], v[{bf}:{bf+3}], v[{fr}:{fr+3}], {c}")
        else:         a(f"v_mfma_f32_32x32x16_bf16 v[{ac}:{ac+15}], v[{fr}:{fr+3}], v[{bf}:{bf+3}], {c}")
        for ins, tag in post: emit1(ins, tag)
        for kind, tl in flags.get(k, []):
            n = e.vm_after(lambda t: t is not None and t[0] == "st" and t[1] in tl)
            if not opt.get("nofw"): a(f"s_waitcnt vmcnt({min(63, n)})")
            e(flag_store(S_FL, kind * 128), ("flag", kind))
        if k == P["prog"]:
            e(f"ds_write_b32 v13, v{V_NONCE if L4 else 14}", ("prog",))
        if k in tile_last: a.extend(st.mark(5 + tile_last[k]))
    if tail:
        a("s_nop 7\ns_nop 3")
        for ins, tag in tail: e(ins, tag)
    a.extend(st.sync())
    if opt.get("dumpxn"):
        a(f"s_mul_i32 s50, s{S_T32}, {XN_T}\ns_add_u32 s50, s50, {XN}")
        for ks in range(40):
            a(f"buffer_store_dwordx4 v[{BF+4*ks}:{BF+4*ks+3}], v{V_H}, {WS}, s50 offen\ns_add_u32 s50, s50, 1024")
        a("s_waitcnt vmcnt(0)")
    return P

def setup_compute(a, ty):
    p1.setup_compute(a, ty)
    for r in range(4, 10): a(f"v_add_u32 v{r}, {RING}, v{r}")
    a(f"s_lshl_b32 s{S_FL}, s{S_T32}, 4\ns_add_u32 s{S_FL}, s{S_FL}, s{S_FB}\ns_lshl_b32 s{S_FL}, s{S_FL}, 9\ns_add_u32 s{S_FL}, s{S_FL}, {FG}")
    a(f"s_lshl_b32 s40, s3, 2\ns_add_u32 s40, s40, {CT_PROG}\nv_mov_b32 v13, s40\nv_mov_b32 v14, 1")

S_XB, S_XW, S_XT = 72, 73, 74
V_XD, V_XR = 20, 22
V_NR, V_NC, V_NT = 10, 11, 12
def x_slot(P, m): return (P["phase"] + 2 + m % 6) % NSLOT
def x_dma(a, P, m):
    for tg in range(4):
        a(f"s_add_u32 m0, s{S_XW}, {x_slot(P, m) * 16384 + tg * 1024}")
        a(f"s_add_u32 s{S_XT}, s{S_XB}, {tg * 10240 + m * 128}")
        a(f"buffer_load_dwordx4 v{V_XD + (tg & 1)}, s[{p0.SRD_A}:{p0.SRD_A+3}], s{S_XT} offen lds")
def x_batch1(a, P):
    a(f"s_lshl_b32 s40, s{S_TB}, 2\ns_add_u32 s40, s40, s3\ns_mul_i32 s{S_XB}, s40, 40960\ns_lshl_b32 s40, s3, 12\ns_add_u32 s{S_XW}, s40, {RING}")
    a("v_lshrrev_b32 v16, 3, v2\nv_mul_u32_u24 v16, 1280, v16\nv_lshrrev_b32 v17, 4, v2\nv_and_b32 v18, 7, v2\nv_xor_b32 v18, v18, v17")
    a(f"v_lshl_add_u32 v{V_XD}, v18, 4, v16\nv_xor_b32 v{V_XD+1}, 64, v{V_XD}")
    for m in range(6): x_dma(a, P, m)
    a("v_bfe_u32 v16, v2, 3, 2\nv_lshlrev_b32 v16, 10, v16\nv_and_b32 v17, 7, v2\nv_lshl_add_u32 v16, v17, 7, v16")
    a(f"v_bfe_u32 v17, v2, 1, 3\nv_lshrrev_b32 v18, 5, v2\nv_xor_b32 v17, v17, v18\nv_lshl_add_u32 v16, v17, 4, v16\nv_add_u32 v{V_XR}, s{S_XW}, v16")
    for k in range(1, 4): a(f"v_xor_b32 v{V_XR+k}, {32*k}, v{V_XR}")
    for k in range(4): a(f"v_add_u32 v{V_XR+4+k}, 0x10000, v{V_XR+k}")
def x_stats(a, m):
    for i in range(16):
        r = BF + 16 * m + i
        if m == 0 and i < 2:
            a(f"v_dot2_f32_bf16 v{32+i}, v{r}, s75, 0\nv_dot2_f32_bf16 v{34+i}, v{r}, v{r}, 0")
        else:
            a(f"v_dot2c_f32_bf16 v{32+(i&1)}, s75, v{r}\nv_dot2c_f32_bf16 v{34+(i&1)}, v{r}, v{r}")
        if m == 0 and i == 1: a("s_nop 2")
def x_columns(a, P, st, opt):
    a("s_mov_b32 s75, 0x3f803f80")
    issued = 24
    for m in range(10):
        a(f"s_waitcnt vmcnt({issued - 4 * (m + 1)})")
        if m == 0: a.extend(st.now(1))
        if m == 9: a.extend(st.now(20))
        sl = x_slot(P, m)
        for k in range(4):
            r = BF + 16 * m + 4 * k
            a(f"ds_read_b128 v[{r}:{r+3}], v{V_XR + k + (4 if sl >= 4 else 0)} offset:{(sl % 4) * 16384}")
        if m > 0: x_stats(a, m - 1)
        a("s_waitcnt lgkmcnt(0)")
        if m <= 3: x_dma(a, P, m + 6); issued += 4
    a("s_barrier")
    a.extend(st.now(19))
    x_stats(a, 9)
    rnd = p0.rnd
    a("s_nop 2\nv_add_f32 v32, v32, v33\nv_add_f32 v34, v34, v35\nv_mov_b32 v33, v32\nv_mov_b32 v35, v34\ns_nop 1")
    a("v_permlane32_swap_b32 v32, v33\nv_permlane32_swap_b32 v34, v35\ns_nop 1\nv_add_f32 v32, v32, v33\nv_add_f32 v34, v34, v35")
    a("v_mul_f32 v32, 0x3acccccd, v32\nv_mul_f32 v34, 0x3acccccd, v34")
    a("v_fma_f32 v34, -v32, v32, v34\nv_max_f32 v34, 0, v34")
    rnd(a, 32); rnd(a, 34)
    a("v_add_f32 v34, 0x3727c5ac, v34")
    rnd(a, 34)
    a("v_sqrt_f32 v34, v34\ns_nop 0")
    rnd(a, 34)
    a(f"v_rcp_f32 v{V_NR}, v34\ns_nop 0\nv_mul_f32 v{V_NC}, v32, v{V_NR}\nv_sub_f32 v{V_NC}, 0, v{V_NC}")
    a.extend(st.now(18))
def norm_instrs(j):
    L = []
    for p in range(2):
        r0, r1 = BF + 4 * j + 2 * p, BF + 4 * j + 2 * p + 1
        t = V_NT
        L += [f"v_lshlrev_b32 v{t}, 16, v{r0}", f"v_and_b32 v{t+1}, 0xffff0000, v{r0}", f"v_lshlrev_b32 v{t+2}, 16, v{r1}", f"v_and_b32 v{t+3}, 0xffff0000, v{r1}"]
        L += [f"v_fma_f32 v{t+q}, v{t+q}, v{V_NR}, v{V_NC}" for q in range(4)]
        L += [f"v_cvt_pk_bf16_f32 v{r0}, v{t}, v{t+1}", f"v_cvt_pk_bf16_f32 v{r1}, v{t+2}, v{t+3}"]
    return L
def norm_restore():
    return [f"v_lshlrev_b32 v{V_QK}, 3, v2", f"v_lshlrev_b32 v{V_H}, 4, v2", "v_lshrrev_b32 v13, 5, v2", f"v_mul_u32_u24 v13, {VT_HF}, v13", "v_and_b32 v14, 31, v2",
            f"v_lshl_add_u32 v{V_V}, v14, 4, v13", "v_mov_b32 v13, s3", "v_lshlrev_b32 v13, 2, v13", f"v_add_u32 v13, {CT_PROG}, v13", "v_mov_b32 v14, 1"]

X4_R, X4_D = 8, 12
V_SF, V_CT = 14, 10
CTAB = 1024
S_HX = 79
def x4_base(P): return min(P["xb"]) if max(P["xb"]) - min(P["xb"]) <= 49152 else P["xb"][0]
def x4_dma(P, m, tg):
    return [f"s_add_u32 m0, s{S_XW}, {P['xb'][m % len(P['xb'])] + tg * 1024}", f"s_add_u32 s{S_XT}, s{S_XB}, {tg * 10240 + m * 128}",
            f"buffer_load_dwordx4 v{X4_D + (tg & 1)}, s[{p0.SRD_A}:{p0.SRD_A+3}], s{S_XT} offen lds" if not (X4_NODMA[0] and m >= X4_NODMA[0] - 1) else "s_nop 0"]
X4_NODMA = [0]
def x4_batch1(a, P):
    a(f"s_lshl_b32 s40, s{S_TB}, 2\ns_add_u32 s40, s40, s3\ns_mul_i32 s{S_XB}, s40, 40960\ns_lshl_b32 s{S_XW}, s3, 12")
    a("v_lshrrev_b32 v16, 3, v2\nv_mul_u32_u24 v16, 1280, v16\nv_lshrrev_b32 v17, 4, v2\nv_and_b32 v18, 7, v2\nv_xor_b32 v18, v18, v17")
    a(f"v_lshl_add_u32 v{X4_D}, v18, 4, v16\nv_xor_b32 v{X4_D+1}, 64, v{X4_D}")
    for m in range(len(P["xb"])):
        for tg in range(4): a.extend(x4_dma(P, m, tg))
    a(f"v_mov_b32 v20, v{X4_D}\nv_mov_b32 v21, v{X4_D+1}")
def x4_setup(a, P):
    a("v_bfe_u32 v16, v2, 3, 2\nv_lshlrev_b32 v16, 10, v16\nv_and_b32 v17, 7, v2\nv_lshl_add_u32 v16, v17, 7, v16")
    a(f"v_bfe_u32 v17, v2, 1, 3\nv_lshrrev_b32 v18, 5, v2\nv_xor_b32 v17, v17, v18\nv_lshl_add_u32 v16, v17, 4, v16")
    a(f"s_add_u32 s40, s{S_XW}, {x4_base(P)}\nv_add_u32 v{X4_R}, s40, v16\ns_lshl_b32 s{S_HX}, s49, 6")
    for k in range(1, 4): a(f"v_xor_b32 v{X4_R+k}, {32*k}, v{X4_R}")
    a(f"v_mov_b32 v{X4_D}, v20\nv_mov_b32 v{X4_D+1}, v21\nv_mov_b32 v{V_SF}, 0\nv_mov_b32 v{V_SF+1}, 0")
def x4_restore(ty):
    L = [f"v_lshlrev_b32 v{V_QK}, 3, v2", f"v_lshlrev_b32 v{V_H}, 4, v2", "v_lshrrev_b32 v13, 5, v2", f"v_mul_u32_u24 v13, {VT_HF}, v13", "v_and_b32 v14, 31, v2",
         f"v_lshl_add_u32 v{V_V}, v14, 4, v13", "v_mov_b32 v13, s3", "v_lshlrev_b32 v13, 2, v13", f"v_add_u32 v13, {CT_PROG}, v13", "v_mov_b32 v14, 0"]
    if ty == "A": L += [f"v_xor_b32 v8, s{S_HX}, v4", f"v_xor_b32 v9, s{S_HX}, v5"]
    return L

WT_VB = 32
WT_SRD_D, WT_SRD_O = 80, 84
def wt_loads(a, n, sw):
    vb = WT_VB
    g_, l16, gh, gl, col, row, pa = vb, vb+1, vb+2, vb+3, vb+4, vb+5, vb+6
    t = vb + 8
    if n == 0:
        a(f"v_lshrrev_b32 v{g_}, 4, v2\nv_and_b32 v{l16}, 15, v2\nv_lshrrev_b32 v{gh}, 1, v{g_}\nv_and_b32 v{gl}, 1, v{g_}")
        a(f"v_lshrrev_b32 v{pa}, 2, v{l16}\nv_lshlrev_b32 v{pa}, 3, v{pa}\nv_and_b32 v{pa+1}, 3, v{l16}\nv_add_u32 v{pa}, v{pa}, v{pa+1}")
        a("s_and_b32 s41, s2, 7\ns_lshr_b32 s42, s2, 3\ns_mul_i32 s43, s41, 80")
    lab = f"WT_{n}_{a.label('x')}"
    G = 96 + 8 * n
    a(f"s_add_u32 s50, s{sw}, {4*n}\ns_mul_i32 s51, s50, 52\ns_lshr_b32 s51, s51, 8")
    a("s_mul_i32 s52, s51, 5\ns_sub_u32 s52, s50, s52")
    a("s_lshl_b32 s53, s51, 5\ns_add_u32 s53, s53, s42")
    a(f"s_mov_b32 s{44+n}, -1")
    a(f"s_cmp_ge_u32 s50, 15\ns_cbranch_scc1 {lab}_skip\ns_cmp_ge_u32 s53, 74\ns_cbranch_scc1 {lab}_skip")
    a(f"s_mul_i32 s54, s41, {WT_F}\ns_mul_i32 s55, s53, {WT_K}\ns_add_u32 s54, s54, s55\ns_lshl_b32 s55, s52, 10\ns_add_u32 s54, s54, s55\ns_add_u32 s{44+n}, s54, {WT}")
    a("s_lshr_b32 s55, s52, 1\ns_lshl_b32 s55, s55, 5\ns_and_b32 s56, s52, 1\ns_lshl_b32 s56, s56, 2\ns_add_u32 s55, s55, s56\ns_add_u32 s55, s55, s43")
    a(f"s_cmp_eq_u32 s52, 4\ns_cselect_b64 s[56:57], -1, 0\nv_cndmask_b32 v{col}, v{pa}, v{l16}, s[56:57]\nv_add_u32 v{col}, s55, v{col}\nv_lshlrev_b32 v{col}, 1, v{col}")
    a(f"s_cmp_ge_u32 s53, 54\ns_cbranch_scc1 {lab}_o")
    a(f"s_lshl_b32 s55, s53, 5\nv_lshlrev_b32 v{row}, 4, v{gh}\nv_lshl_add_u32 v{row}, v{gl}, 2, v{row}\nv_add_u32 v{row}, s55, v{row}")
    a(f"s_movk_i32 s56, 1280\nv_mul_lo_u32 v{row}, v{row}, s56\nv_add_u32 v{row}, v{row}, v{col}\nv_add_u32 v{col}, 10240, v{row}")
    for j in range(8):
        a(f"buffer_load_ushort v{G+j}, v{row if j < 4 else col}, s[{WT_SRD_D}:{WT_SRD_D+3}], 0 offen offset:{(j%4)*1280}")
    a(f"s_branch {lab}_skip\n{lab}_o:")
    a(f"s_sub_u32 s55, s53, 54\ns_lshl_b32 s55, s55, 1\nv_add_u32 v{t}, s55, v{gh}")
    a(f"v_mul_u32_u24 v{t+1}, 52, v{t}\nv_lshrrev_b32 v{t+1}, 8, v{t+1}")
    a(f"v_mul_u32_u24 v{t+2}, 5, v{t+1}\nv_sub_u32 v{t+2}, v{t}, v{t+2}")
    a(f"v_lshlrev_b32 v{t+1}, 2, v{t+1}")
    a(f"v_add_u32 v{t+3}, v{t+1}, v{t+2}\nv_mul_u32_u24 v{t+3}, 20, v{t+3}\nv_lshl_add_u32 v{t+3}, v{gl}, 2, v{t+3}")
    a(f"v_add_u32 v{t+4}, v{t+1}, v{gl}\nv_mul_u32_u24 v{t+4}, 20, v{t+4}\nv_add_u32 v{t+4}, 16, v{t+4}")
    a(f"v_cmp_eq_u32 vcc, 4, v{t+2}\nv_mov_b32 v{t+5}, 8\nv_mov_b32 v{t+6}, 40\nv_cndmask_b32 v{t+3}, v{t+3}, v{t+4}, vcc\nv_cndmask_b32 v{t+5}, v{t+5}, v{t+6}, vcc")
    a(f"s_movk_i32 s56, 1280\nv_mul_lo_u32 v{row}, v{t+3}, s56\nv_mul_lo_u32 v{t+5}, v{t+5}, s56\nv_add_u32 v{row}, v{row}, v{col}\nv_add_u32 v{col}, v{row}, v{t+5}")
    for j in range(8):
        a(f"buffer_load_ushort v{G+j}, v{row if j < 4 else col}, s[{WT_SRD_O}:{WT_SRD_O+3}], 0 offen offset:{(j%4)*1280}")
    a(f"{lab}_skip:")

def wt_stores(a):
    a(f"v_lshlrev_b32 v{WT_VB+15}, 4, v2")
    for n in range(4):
        lab = a.label("WTS")
        G = 96 + 8 * n
        a(f"s_cmp_eq_u32 s{44+n}, -1\ns_cbranch_scc1 {lab}")
        for q in range(4): a(f"v_lshl_or_b32 v{128+4*n+q}, v{G+2*q+1}, 16, v{G+2*q}")
        a(f"buffer_store_dwordx4 v[{128+4*n}:{131+4*n}], v{WT_VB+15}, {WS}, s{44+n} offen sc1")
        a(f"{lab}:")

WT_LDS = 12288
def wt2_issue(a):
    lab = a.label("W2")
    a("s_mov_b32 s88, -1\ns_sub_u32 s50, s3, 4\ns_lshr_b32 s42, s2, 3\ns_lshl_b32 s53, s50, 5\ns_add_u32 s53, s53, s42")
    a(f"s_cmp_ge_u32 s53, 74\ns_cbranch_scc1 {lab}_skip")
    a(f"s_and_b32 s41, s2, 7\ns_mul_i32 s54, s41, {WT_F}\ns_mul_i32 s55, s53, {WT_K}\ns_add_u32 s54, s54, s55\ns_add_u32 s88, s54, {WT}")
    a(f"s_mul_i32 s43, s41, 160\ns_mul_i32 s51, s50, 5120\ns_add_u32 s51, s51, {WT_LDS}")
    for p in range(5):
        a(f"v_add_u32 v{40+p}, {64*p}, v2\nv_mul_u32_u24 v{32+p}, 205, v{40+p}\nv_lshrrev_b32 v{32+p}, 11, v{32+p}")
        a(f"v_mul_u32_u24 v46, 10, v{32+p}\nv_sub_u32 v{40+p}, v{40+p}, v46\nv_lshlrev_b32 v{40+p}, 4, v{40+p}")
    a(f"s_cmp_ge_u32 s53, 54\ns_cbranch_scc1 {lab}_o")
    a("s_mul_i32 s55, s53, 40960\ns_add_u32 s55, s55, s43")
    for p in range(5):
        a(f"v_mul_u32_u24 v46, 1280, v{32+p}\nv_add_u32 v{40+p}, v{40+p}, v46")
        a(f"s_add_u32 m0, s51, {1024*p}\ns_nop 0")
        a(f"buffer_load_dwordx4 v{40+p}, s[{WT_SRD_D}:{WT_SRD_D+3}], s55 offen lds")
    a(f"s_branch {lab}_skip\n{lab}_o:")
    for gh in range(2):
        a(f"s_sub_u32 s55, s53, 54\ns_lshl_b32 s55, s55, 1\ns_add_u32 s55, s55, {gh}\ns_mul_i32 s56, s55, 52\ns_lshr_b32 s56, s56, 8")
        a(f"s_mul_i32 s57, s56, 5\ns_sub_u32 s57, s55, s57\ns_lshl_b32 s56, s56, 2")
        a(f"s_add_u32 s55, s56, s57\ns_mul_i32 s55, s55, 20\ns_mul_i32 s56, s56, 20\ns_add_u32 s56, s56, 16")
        a(f"s_cmp_eq_u32 s57, 4\ns_cselect_b32 s{58+2*gh}, s56, s55\ns_cselect_b32 s{59+2*gh}, 1, 0")
    a("v_mov_b32 v47, s58\nv_mov_b32 v48, s60\nv_mov_b32 v49, s59\nv_mov_b32 v50, s61")
    for p in range(5):
        a(f"v_and_b32 v51, 15, v{32+p}\nv_lshrrev_b32 v52, 2, v51\nv_mul_u32_u24 v52, 20, v52\nv_and_b32 v53, 3, v51\nv_add_u32 v52, v52, v53")
        a(f"v_cmp_le_u32 vcc, 16, v{32+p}\ns_nop 1\nv_cndmask_b32 v53, v47, v48, vcc\nv_cndmask_b32 v54, v49, v50, vcc")
        a(f"v_cmp_eq_u32 vcc, 1, v54\ns_nop 1\nv_cndmask_b32 v51, v51, v52, vcc\nv_add_u32 v51, v51, v53")
        a(f"v_mul_u32_u24 v51, 1280, v51\nv_add_u32 v{40+p}, v{40+p}, v51")
        a(f"s_add_u32 m0, s51, {1024*p}\ns_nop 0")
        a(f"buffer_load_dwordx4 v{40+p}, s[{WT_SRD_O}:{WT_SRD_O+3}], s43 offen lds")
    a(f"{lab}_skip:")

def wt2_finish(a, nyounger):
    lab = a.label("W2F")
    a(f"s_cmp_eq_u32 s88, -1\ns_cbranch_scc1 {lab}")
    a("v_lshrrev_b32 v32, 5, v2\nv_lshlrev_b32 v32, 4, v32\nv_bfe_u32 v33, v2, 4, 1\nv_lshl_add_u32 v32, v33, 2, v32\nv_bfe_u32 v33, v2, 2, 2\nv_add_u32 v32, v32, v33")
    a(f"s_sub_u32 s50, s3, 4\ns_mul_i32 s51, s50, 5120\ns_add_u32 s51, s51, {WT_LDS}")
    a("v_mul_u32_u24 v32, 160, v32\nv_add_u32 v32, s51, v32\nv_and_b32 v33, 3, v2\nv_lshl_add_u32 v34, v33, 4, v32\nv_lshl_add_u32 v35, v33, 3, v32\nv_lshlrev_b32 v36, 4, v2")
    a(f"s_waitcnt vmcnt({nyounger})")
    for ft in range(5):
        adr, off = (34, (ft >> 1) * 64 + (ft & 1) * 8) if ft < 4 else (35, 128)
        a(f"ds_read_b64_tr_b16 v[{64+4*ft}:{65+4*ft}], v{adr} offset:{off}\nds_read_b64_tr_b16 v[{66+4*ft}:{67+4*ft}], v{adr} offset:{off+1280}")
    a("s_add_u32 s52, s88, 4096")
    for ft in range(5):
        a(f"s_waitcnt lgkmcnt({2*(4-ft)})")
        a(f"buffer_store_dwordx4 v[{64+4*ft}:{67+4*ft}], v36, {WS}, s{88 if ft < 4 else 52} offen offset:{(ft%4)*1024} sc1")
    a(f"{lab}:")

def loader_issue(a, P, s):
    kind, idx, stg = P["stages"][s]
    slot = P["slot"][s]
    for i in range(4):
        if kind == "P":
            base = S_CP0 + idx; off = (64 * stg + 8 * i) * 3456; vo, sr = 5, SRD_B
        else:
            base = {"QK": S_CQ0, "QKH": S_CQ1, "V": S_CQ1 + idx}[kind]; off = (128 * stg + 8 * i) * 3840; vo, sr = 4, SRD_A
        a(f"s_add_u32 m0, s{S_J}, {RING + slot*16384 + i*1024}")
        a(f"s_add_u32 s{S_T}, s{base}, {off}")
        a(f"buffer_load_dwordx4 v{vo}, s[{sr}:{sr+3}], s{S_T} offen lds")

def weight_prefetch(a, ty, which="rest"):
    n = 0
    a("s_lshr_b32 s40, s2, 3\ns_and_b32 s40, s40, 7\ns_mul_i32 s40, s40, 80\ns_sub_u32 s41, s3, 4")
    a("s_mul_i32 s42, s41, 20\ns_add_u32 s42, s42, s40\nv_add_u32 v23, s42, v2\nv_mul_u32_u24 v23, 3840, v23")
    a("v_mov_b32 v25, 0x80000000\nv_cmp_gt_u32 vcc, 20, v2\ns_nop 1\nv_cndmask_b32 v23, v25, v23, vcc")
    a("s_and_b32 s42, s41, 1\ns_mul_i32 s42, s42, 40\ns_add_u32 s42, s42, s40\nv_add_u32 v24, s42, v2\nv_mul_u32_u24 v24, 3456, v24")
    a("v_cmp_gt_u32 vcc, 40, v2\ns_nop 1\nv_cndmask_b32 v24, v25, v24, vcc")
    qs = {"A": [45], "B": [], "C": [45, 46]}[ty]
    ps = {"A": [47, 48], "B": [47, 48], "C": [47]}[ty]
    if p1.ORD == 1:
        qs = {"A": [44, 45], "B": [44], "C": [44]}[ty]
        ps = {"A": [48], "B": [48], "C": [47]}[ty]
        if which == "first":
            qs = {"A": [], "B": [], "C": [45, 46]}[ty]
            ps = {"A": [47], "B": [47], "C": []}[ty]
    for q in qs:
        a(f"s_lshl_b32 s42, s{q}, 7\nbuffer_load_dword v26, v23, s[{SRD_A}:{SRD_A+3}], s42 offen"); n += 1
    for q in ps:
        a(f"s_lshl_b32 s42, s{q}, 7\nbuffer_load_dword v27, v24, s[{SRD_B}:{SRD_B+3}], s42 offen"); n += 1
    return n

def wtpf_flag(a):
    a("s_and_b32 s43, s2, 7\ns_lshr_b32 s41, s2, 3\ns_and_b32 s42, s43, 1\ns_lshl_b32 s42, s42, 2\ns_and_b32 s40, s41, 3\ns_add_u32 s40, s42, s40")
    a(f"s_lshl_b32 s42, s40, 7\ns_add_u32 s42, s42, {FW}\nv_and_b32 v93, 31, v2\nv_lshlrev_b32 v93, 10, v93\nv_add_u32 v92, s42, v93")
    a(f"buffer_load_dword v94, v92, {WS}, 0 offen sc1")
    a(f"s_lshr_b32 s41, s41, 2\ns_mul_i32 s41, s41, 370\ns_sub_u32 s42, s3, 4\ns_lshl_b32 s42, s42, 7\ns_add_u32 s41, s41, s42")
    a(f"v_add_u32 v93, s41, v2\nv_add_u32 v92, 64, v93\nv_min_u32 v93, {74*40-1}, v93\nv_min_u32 v92, {74*40-1}, v92")
    a(f"s_mul_i32 s40, s40, {WT_F}\ns_add_u32 s40, s40, {WT}\nv_lshlrev_b32 v93, 7, v93\nv_lshlrev_b32 v92, 7, v92")
    a(f"v_add_u32 v93, s40, v93\nv_add_u32 v92, s40, v92")
    return 1
def wtpf_issue(a, nyounger):
    a(f"s_waitcnt vmcnt({min(63, nyounger)})")
    a(f"v_cmp_eq_u32 vcc, s{S_NONCE}, v94\ns_nop 0\ns_cmp_eq_u64 vcc, -1\ns_cselect_b32 s40, 0, 0x80000000")
    a("v_or_b32 v93, s40, v93\nv_or_b32 v92, s40, v92")
    a(f"buffer_load_dword v94, v93, {WS}, 0 offen sc1\nbuffer_load_dword v95, v92, {WS}, 0 offen sc1")
    return 2
def hpf_lines():
    return [f"s_and_b32 s40, s{K_FB}, 3", "s_lshl_b32 s40, s40, 2", "s_add_u32 s40, s40, s57",
            "s_lshl_b32 s41, s40, 2", "s_add_u32 s41, s41, 14", "s_lshl_b32 s42, s40, 1", "s_add_u32 s42, s42, 28", "s_min_u32 s42, s42, 52",
            "s_cmp_lt_u32 s40, 8", "s_cselect_b32 s41, s41, s42", "s_lshl_b32 s41, s41, 11", f"s_add_u32 s41, s41, s{KS_H0}",
            "v_lshrrev_b32 v252, 5, v2", f"v_mul_u32_u24 v252, {HS_T}, v252", "v_and_b32 v253, 31, v2", "v_lshl_add_u32 v252, v253, 7, v252",
            f"buffer_load_dword v253, v252, {WS}, s41 offen sc1"]

EH_A, EH_R = 92, 94
def eh_prepoll(a):
    a("s_and_b32 s43, s2, 7\ns_lshr_b32 s41, s2, 3")
    a("s_and_b32 s42, s43, 1\ns_lshl_b32 s42, s42, 2\ns_and_b32 s40, s41, 3\ns_add_u32 s44, s42, s40")
    a("s_lshr_b32 s42, s43, 1\ns_lshl_b32 s42, s42, 3\ns_lshr_b32 s41, s41, 2\ns_add_u32 s45, s42, s41")
    a(f"s_lshl_b32 s40, s44, 7\ns_add_u32 s40, s40, {FW}\nv_and_b32 v16, 31, v2\nv_lshlrev_b32 v16, 10, v16\nv_add_u32 v{EH_A}, s40, v16")
    a(f"s_lshl_b32 s41, s45, 14\ns_add_u32 s41, s41, {FG + K_H0*128}")
    a("v_and_b32 v16, 15, v2\nv_min_u32 v16, 10, v16\nv_bfe_u32 v17, v2, 4, 1\nv_lshl_add_u32 v16, v17, 4, v16\nv_lshlrev_b32 v16, 9, v16")
    a(f"v_add_u32 v{EH_A+1}, s41, v16")
    for i in range(2): a(f"buffer_load_dword v{EH_R+i}, v{EH_A+i}, {WS}, 0 offen sc1")
    return 2
def eh_setup(a, nyounger):
    lab = a.label("EH")
    a(f"s_sub_u32 s57, s3, 4\ns_mul_i32 s{K_WT}, s44, {WT_F}\ns_add_u32 s{K_WT}, s{K_WT}, {WT}")
    a(f"s_lshl_b32 s40, s45, 1\ns_mul_i32 s{KS_H0}, s40, {HS_T}\ns_add_u32 s{KS_H0}, s{KS_H0}, {HS}")
    a(f"v_lshlrev_b32 v{V_LA}, 4, v2\nv_add_u32 v{V_LA2}, 4096, v{V_LA}")
    a(f"v_lshrrev_b32 v16, 4, v2\nv_and_b32 v17, 15, v2\nv_lshlrev_b32 v{V_LB}, 9, v16\nv_lshl_add_u32 v{V_LB}, v17, 4, v{V_LB}")
    h_bases(a)
    a(f"s_waitcnt vmcnt({min(63, nyounger)})")
    for i in range(2):
        a(f"v_cmp_eq_u32 vcc, s{S_NONCE}, v{EH_R+i}\ns_nop 0\ns_cmp_eq_u64 vcc, -1\ns_cbranch_scc1 {lab}_{i}")
        a("s_mov_b32 s43, 0")
        poll(a, EH_A + i, 43, -1, -1, f"{lab}_p{i}", EH_R + i)
        a(f"{lab}_{i}:")
WTR_A, WTR_F = 244, 246
def wtr_fb(a):
    a("s_and_b32 s43, s2, 1\ns_lshl_b32 s43, s43, 2\ns_lshr_b32 s41, s2, 3\ns_and_b32 s41, s41, 3\ns_add_u32 s43, s43, s41")
def wtr_prepoll(a):
    wtr_fb(a)
    a(f"s_lshl_b32 s40, s43, 7\ns_add_u32 s40, s40, {FW}\nv_and_b32 v{WTR_F}, 31, v2\nv_lshlrev_b32 v{WTR_F}, 10, v{WTR_F}\nv_add_u32 v{WTR_F}, s40, v{WTR_F}")
    a(f"v_lshlrev_b32 v{WTR_A}, 4, v2\nv_add_u32 v{WTR_A+1}, 4096, v{WTR_A}")
    a(f"buffer_load_dword v{WTR_F+1}, v{WTR_F}, {WS}, 0 offen sc1")
    return 1
def wtr_check(a, nyounger):
    lab = a.label("WR")
    a(f"s_waitcnt vmcnt({min(63, nyounger)})")
    a(f"v_cmp_eq_u32 vcc, s{S_NONCE}, v{WTR_F+1}\ns_nop 0\ns_cmp_eq_u64 vcc, -1\ns_cbranch_scc1 {lab}_k")
    a("s_mov_b32 s43, 0")
    poll(a, WTR_F, 43, -1, -1, f"{lab}_p", WTR_F + 1)
    a(f"{lab}_k:")
def wtr_item(a, n):
    assert n <= 3
    wtr_fb(a)
    a(f"s_mul_i32 s43, s43, {WT_F}\ns_add_u32 s43, s43, {WT}")
    a(f"s_sub_u32 s40, s3, 4\ns_lshr_b32 s41, s40, 1\ns_lshl_b32 s41, s41, 2\ns_and_b32 s40, s40, 1\ns_add_u32 s40, s40, s41\ns_add_u32 s40, s40, {8*n}")
    a(f"s_mul_i32 s40, s40, {WT_K}\ns_add_u32 s43, s43, s40")
    r = BUF + 36 * n
    for ft in range(5):
        a(f"buffer_load_dwordx4 v[{r+4*ft}:{r+3+4*ft}], v{WTR_A if ft < 4 else WTR_A+1}, {WS}, s43 offen offset:{(ft%4)*1024} sc1")
    return 5
def h_bases(a, J=57):
    a(f"s_lshr_b32 s40, s{J}, 1\ns_lshl_b32 s40, s40, 2\ns_and_b32 s41, s{J}, 1\ns_add_u32 s56, s40, s41")
    a(f"s_add_u32 s42, s{J}, 40\ns_cmp_lt_u32 s{J}, 2\ns_cselect_b32 s55, s42, s{J}")
    a(f"s_add_u32 s40, s{J}, 2\ns_lshr_b32 s40, s40, 1\ns_lshl_b32 s40, s40, 2\ns_add_u32 s54, s40, s41\ns_add_u32 s54, s54, 2")
def eh_item(a, n):
    L = [f"s_add_u32 s{K_KAP}, s56, {8*n}"] + k_addr(None, False) + k_wt(n % NBUF) + k_act(n % NBUF)
    assert n <= 4
    for x in L: a(x)
    return 9

def slot_free(P, s, bi):
    p = P["prev"][s]
    if p is None: return True
    if bi < 0: return False
    if isinstance(p, tuple): return P["bars"][bi] >= p[1]
    return P["info"][bi][1] >= p
def gen_loader(a, P, st, opt, npf=0):
    info, ns = P["info"], P["ns"]
    issued = opt.get("_issued", NSLOT)
    q = [("stage", s) for s in range(issued) for _ in range(4)] + [("pf",)] * npf
    if "_q0" in opt: q = list(opt["_q0"])
    WT_LD = opt.get("wt_ld", 2); WT_ST = WT_LD + opt.get("wt_gap", 9); WT_FL = WT_ST + 9
    nb = len(info)
    new_wt = opt.get("front", 0) >= 1
    WT2_AT = opt.get("wt2_at", -1)
    fw_done = False
    if new_wt:
        WT_LD = WT_ST = -1; wt_mark2 = NSLOT
        WT_FL = min(bi for bi, (need, done) in enumerate(info) if need >= NSLOT)
        if WT2_AT >= 0: WT_FL = -2; wt_mark2 = 1000
    assert WT_FL < nb - 1
    EH = opt.get("eh", 0); eh_plan = {}
    if EH:
        i_ = issued; bL = None
        for bi in range(nb):
            while i_ < ns and slot_free(P, i_, bi - 1): i_ += 1
            if i_ == ns and bL is None: bL = bi
        if opt["_ty"] in ("A" if opt.get("eh_bc", 0) == 0 else "ABC"):
            first = bL + opt.get("eh_at", 0); ppb = first - opt.get("eh_pp", 2)
            for n in range(EH): eh_plan.setdefault(min(first + n * opt.get("eh_step", 1), nb - 1), []).append(n)
        else:
            ppb = nb - 2
            eh_plan[nb - 1] = list(range(EH))
        assert ppb >= 1 and min(eh_plan) >= bL
        eh_mark = None
    L4 = opt.get("front", 0) == 4
    NB_ = opt.get("nonce_bar", 6); WT2_ISS = opt.get("wt2_iss", 0); w2_first = None; w2_fin = False; n_first = None
    for bi, (need, done) in enumerate(info):
        while issued < ns and slot_free(P, issued, bi - 1):
            loader_issue(a, P, issued); q += [("stage", issued)] * 4; issued += 1
        if bi == nb - 1:
            assert issued == ns
            need = ns - 1
        assert issued > need
        last = max(i for i, t in enumerate(q) if t == ("stage", need))
        a(f"s_waitcnt vmcnt({min(63, len(q) - 1 - last)})")
        if L4 and bi == NB_:
            lab = a.label("NN")
            a(f"s_cmp_lg_u32 s3, 4\ns_cbranch_scc1 {lab}_x\ns_waitcnt vmcnt({min(63, len(q) - n_first)})")
            a(f"v_readfirstlane_b32 s40, v28\ns_cmp_lg_u32 s40, 0\ns_cbranch_scc1 {lab}_1\ns_mov_b32 s{S_SPIN}, {SPIN}\nv_mov_b32 v29, 0")
            a(f"{lab}_p:\nbuffer_load_dword v28, v29, s[{SRD_C}:{SRD_C+3}], 0 offen sc1\ns_waitcnt vmcnt(0)\nv_readfirstlane_b32 s40, v28\ns_cmp_lg_u32 s40, 0\ns_cbranch_scc1 {lab}_1")
            a(f"s_sub_u32 s{S_SPIN}, s{S_SPIN}, 1\ns_cmp_lg_u32 s{S_SPIN}, 0\ns_cbranch_scc1 {lab}_p")
            a(f"{lab}_1:\nv_mov_b32 v29, {CT_NONCE}\nds_write_b32 v29, v28\ns_waitcnt lgkmcnt(0)\n{lab}_x:")
        a("s_barrier")
        if bi == 0 and opt.get("front", 0) == 2: opt["_get_nonce"]()
        if L4:
            if bi == NB_: opt["_get_nonce"]()
            if bi == 0:
                lab = a.label("NL")
                a(f"s_cmp_lg_u32 s3, 4\ns_cbranch_scc1 {lab}\nv_mov_b32 v29, 0\nbuffer_load_dword v28, v29, s[{SRD_C}:{SRD_C+3}], 0 offen sc1\n{lab}:")
                n_first = len(q)
            if bi == WT2_ISS: wt2_issue(a); w2_first = issued
            elif w2_first is not None and not w2_fin and need >= w2_first and bi >= WT2_AT:
                wt2_finish(a, 63); w2_fin = True; wt_mark2 = issued
            elif w2_fin and not fw_done and need >= wt_mark2 and bi > NB_:
                WT_FL = bi; fw_done = True
                assert bi < nb - 1
        if bi == WT_LD:
            a(f"s_sub_u32 s59, s3, 4")
            if not opt.get("nowt"):
                for n in range(4): wt_loads(a, n, 59)
            wt_mark = issued
        if bi == WT_ST:
            last = max(i for i, t in enumerate(q) if t == ("stage", wt_mark))
            a(f"s_waitcnt vmcnt({min(63, len(q) - 1 - last)})")
            if not opt.get("nowt"): wt_stores(a)
            wt_mark2 = issued
        if EH and bi == ppb:
            n = eh_prepoll(a); q += [("pf",)] * n; eh_mark = len(q)
        pp_first = opt.get("pp_first", 0)
        if pp_first and opt.get("tail", 0) >= 1 and bi == nb - 1 - opt.get("pp_back", 3):
            n = prepoll_issue(a); q += [("pf",)] * n
        for n in eh_plan.get(bi, []):
            if n == 0: eh_setup(a, len(q) - eh_mark)
            q += [("pf",)] * eh_item(a, n)
        if not pp_first and opt.get("tail", 0) >= 1 and bi == nb - 1 - opt.get("pp_back", 3):
            n = prepoll_issue(a); q += [("pf",)] * n
        WTR = opt.get("wtr", 0)
        if WTR:
            b0 = opt.get("wtr_pp", 10); b1 = b0 + opt.get("wtr_d", 2); stp = opt.get("wtr_step", 1)
            assert b1 + stp * (WTR - 1) < nb - 1 - opt.get("pp_back", 3)
            if bi == b0: n = wtr_prepoll(a); q += [("pf",)] * n; wtr_mark = len(q)
            if bi == b1: wtr_check(a, len(q) - wtr_mark)
            if bi >= b1 and (bi - b1) % stp == 0 and (bi - b1) // stp < WTR: n = wtr_item(a, (bi - b1) // stp); q += [("pf",)] * n
        if opt.get("wtpf") and bi == nb - 1 - opt["wtpf"]:
            assert bi > WT_FL >= 0 or True
            n = wtpf_flag(a); q += [("pf",)] * n; wtpf_mark = len(q)
        if opt.get("wtpf") and bi == nb - 1 - opt["wtpf"] + opt.get("wtpf_d", 2):
            n = wtpf_issue(a, len(q) - wtpf_mark); q += [("pf",)] * n
        if bi == opt.get("wpf_at", -1) and opt.get("wpf", 1) == 3:
            n = weight_prefetch(a, opt["_ty"]); q += [("pf",)] * n
        if new_wt and WT2_AT >= 0 and not L4:
            if bi == WT2_AT:
                wt2_finish(a, 63)
                wt_mark2 = issued
            elif bi > WT2_AT and not fw_done and need >= wt_mark2:
                WT_FL = bi; fw_done = True
                assert bi < nb - 1
        if bi == WT_FL:
            assert need >= wt_mark2, (need, wt_mark2)
            lab = a.label("FW")
            a(f"s_cmp_lg_u32 s3, 4\ns_cbranch_scc1 {lab}\ns_lshl_b32 s40, s2, 7\ns_add_u32 s40, s40, {FW}")
            a(flag_store(40))
            a(f"{lab}:")

def attn_dma_dyn(a, kind, m, vb, sj, sj5):
    t = 64
    if kind == "Q":
        a(f"s_lshl_b32 s{t}, s{p2.A_TB2}, 1\ns_add_u32 s{t}, s{t}, {m}")
        a(f"s_mul_i32 s{t+1}, s{t}, {QS_T}\ns_mul_i32 s{t}, s{p2.A_HQ}, 5120\ns_add_u32 s{t+1}, s{t+1}, s{t}\ns_add_u32 s{t+1}, s{t+1}, {QS}")
        p2.dma5(a, L_Q + m * 5120, [vb+5]*5, t+1, "sc1", True)
    elif kind == "K": p2.dma_k(a, m, vb, "sc1", t)
    else: p2.dma_v(a, m, vb, "sc1", t)

def qk_producers(hq):
    def fbs(q):
        if q < 8: return [q]
        if q < 12: return [q - 8, q - 4]
        return [q - 4]
    t1, t2 = (80 * hq) >> 6, (80 * hq + 79) >> 6
    L = []
    for q in (t1, t2, 10 + t1, 10 + t2):
        for f in fbs(q):
            if f not in L: L.append(f)
    while len(L) < 6: L.append(L[0])
    assert len(L) == 6
    return L

def poll_qk(a, lab):
    tab = [sum(f << (4 * i) for i, f in enumerate(qk_producers(h))) for h in range(8)]
    a(f"s_mov_b32 s41, {tab[0]}")
    for h in range(1, 8):
        a(f"s_mov_b32 s42, {tab[h]}\ns_cmp_eq_u32 s{p2.A_HQ}, {h}\ns_cselect_b32 s41, s42, s41")
    a("v_mul_u32_u24 v16, 43, v2\nv_lshrrev_b32 v16, 8, v16")
    a("v_mul_u32_u24 v17, 6, v16\nv_sub_u32 v17, v2, v17\nv_lshlrev_b32 v17, 2, v17")
    a("v_lshrrev_b32 v17, v17, s41\nv_and_b32 v17, 15, v17")
    a(f"s_lshl_b32 s42, s{p2.A_TB2}, 1\ns_sub_i32 s42, s42, 8\nv_add_u32 v16, s42, v16\nv_max_i32 v16, 0, v16")
    a("v_lshl_add_u32 v16, v16, 4, v17\nv_lshlrev_b32 v16, 9, v16")
    a(f"s_mov_b32 s43, {FG}")
    poll(a, 16, 43, -1, 0x0fffffff, lab, 18, off=K_QK * 128)

def poll_v(a, lab):
    a(f"s_mul_i32 s41, s{p2.A_HQ}, 80\ns_add_u32 s42, s41, 79\ns_lshr_b32 s41, s41, 7\ns_lshr_b32 s42, s42, 7")
    a("s_add_u32 s41, s41, 11\ns_add_u32 s42, s42, 11")
    a("v_and_b32 v17, 1, v2\nv_cmp_eq_u32 vcc, 1, v17\nv_mov_b32 v17, s41\nv_mov_b32 v18, s42\nv_cndmask_b32 v17, v17, v18, vcc")
    a(f"v_lshrrev_b32 v16, 1, v2\ns_lshl_b32 s42, s{p2.A_TB2}, 1\ns_sub_i32 s42, s42, 8\nv_add_u32 v16, s42, v16\nv_max_i32 v16, 0, v16")
    a("v_lshl_add_u32 v16, v16, 4, v17\nv_lshlrev_b32 v16, 9, v16")
    a(f"s_mov_b32 s43, {FG}")
    poll(a, 16, 43, 0xfffff, 0, lab, 18, off=K_V * 128)

PP_A, PP_R = 84, 88
def prepoll_issue(a):
    p2.attn_params(a)
    p2.attn_dma_setup(a, 8)
    tab = [sum(f << (4 * i) for i, f in enumerate(qk_producers(h))) for h in range(8)]
    a(f"s_mov_b32 s41, {tab[0]}")
    for h in range(1, 8):
        a(f"s_mov_b32 s42, {tab[h]}\ns_cmp_eq_u32 s{p2.A_HQ}, {h}\ns_cselect_b32 s41, s42, s41")
    A0, A1, A2, A3 = PP_A, PP_A + 1, PP_A + 2, PP_A + 3
    a(f"v_min_u32 v18, 59, v2\nv_mul_u32_u24 v16, 43, v18\nv_lshrrev_b32 v16, 8, v16")
    a("v_mul_u32_u24 v17, 6, v16\nv_sub_u32 v17, v18, v17\nv_lshlrev_b32 v17, 2, v17")
    a("v_lshrrev_b32 v17, v17, s41\nv_and_b32 v17, 15, v17")
    a(f"s_lshl_b32 s42, s{p2.A_TB2}, 1\ns_sub_i32 s42, s42, 8\nv_add_u32 v16, s42, v16\nv_max_i32 v16, 0, v16")
    a(f"v_lshl_add_u32 v16, v16, 4, v17\nv_lshlrev_b32 v16, 9, v16\nv_add_u32 v{A0}, {FG + K_QK*128}, v16")
    a(f"s_mul_i32 s41, s{p2.A_HQ}, 80\ns_add_u32 s43, s41, 79\ns_lshr_b32 s41, s41, 7\ns_lshr_b32 s43, s43, 7")
    a("s_add_u32 s41, s41, 11\ns_add_u32 s43, s43, 11")
    a("v_min_u32 v18, 19, v2\nv_and_b32 v17, 1, v18\nv_cmp_eq_u32 vcc, 1, v17\nv_mov_b32 v17, s41\nv_mov_b32 v19, s43\nv_cndmask_b32 v17, v17, v19, vcc")
    a("v_lshrrev_b32 v16, 1, v18\nv_add_u32 v16, s42, v16\nv_max_i32 v16, 0, v16")
    a(f"v_lshl_add_u32 v16, v16, 4, v17\nv_lshlrev_b32 v16, 9, v16\nv_add_u32 v{A1}, {FG + K_V*128}, v16")
    a("s_and_b32 s43, s2, 7\ns_lshr_b32 s41, s2, 3")
    a("s_and_b32 s42, s43, 1\ns_lshl_b32 s42, s42, 2\ns_and_b32 s40, s41, 3\ns_add_u32 s40, s42, s40")
    a("s_lshr_b32 s42, s43, 1\ns_lshl_b32 s42, s42, 3\ns_lshr_b32 s41, s41, 2\ns_add_u32 s41, s42, s41")
    a(f"s_lshl_b32 s40, s40, 7\ns_add_u32 s40, s40, {FW}\nv_and_b32 v16, 31, v2\nv_lshlrev_b32 v16, 10, v16\nv_add_u32 v{A2}, s40, v16")
    a(f"s_lshl_b32 s41, s41, 14\ns_add_u32 s41, s41, {FG + K_H0*128}")
    a("v_and_b32 v16, 15, v2\nv_min_u32 v16, 10, v16\nv_bfe_u32 v17, v2, 4, 1\nv_lshl_add_u32 v16, v17, 4, v16\nv_lshlrev_b32 v16, 9, v16")
    a(f"v_add_u32 v{A3}, s41, v16")
    for i in range(4): a(f"buffer_load_dword v{PP_R+i}, v{PP_A+i}, {WS}, 0 offen sc1")
    return 4
def prepoll_check(a, i, lab, fallback):
    a(f"v_cmp_eq_u32 vcc, s{S_NONCE}, v{PP_R+i}\ns_nop 0\ns_cmp_eq_u64 vcc, -1\ns_cbranch_scc1 {lab}_pk")
    fallback()
    a(f"{lab}_pk:")
def dma5_dyn(a, slds, vregs, soff, step4):
    a(f"s_mov_b32 m0, s{slds}\ns_nop 0")
    for p in range(4):
        a(f"buffer_load_dwordx4 v{vregs[p]}, {WS}, s{soff} offen offset:{p*1024} sc1 lds")
    a(f"s_add_u32 m0, s{slds}, 4096")
    a(f"s_add_u32 s{soff}, s{soff}, 4096" if step4 else "s_nop 0")
    a(f"buffer_load_dwordx4 v{vregs[4]}, {WS}, s{soff} offen sc1 lds")
def qk_job(a, i, vb):
    a(f"s_add_u32 s64, s57, {4*i}\ns_mul_i32 s67, s64, 5120\ns_add_u32 s67, s67, {L_Q}")
    a(f"s_lshl_b32 s65, s{p2.A_TB2}, 1\ns_add_u32 s65, s65, s64")
    a(f"s_sub_i32 s66, s65, 10\ns_max_i32 s66, s66, 0")
    if i == 0:
        a(f"s_cmp_lt_u32 s64, 2\ns_cselect_b32 s65, s65, s66\ns_mov_b32 s66, {KS}\ns_cselect_b32 s66, {QS}, s66")
        a(f"s_mul_i32 s65, s65, {QS_T}\ns_add_u32 s65, s65, s66")
    else:
        a(f"s_mul_i32 s65, s66, {QS_T}\ns_add_u32 s65, s65, {KS}")
    a(f"s_mul_i32 s66, s{p2.A_HQ}, 5120\ns_add_u32 s65, s65, s66")
    dma5_dyn(a, 67, [vb+5]*5, 65, True)
def v_job(a, i, vb):
    a(f"s_add_u32 s64, s57, {4*i}\ns_mul_i32 s67, s64, 5120\ns_add_u32 s67, s67, {L_V}")
    a(f"s_lshl_b32 s65, s{p2.A_TB2}, 1\ns_add_u32 s65, s65, s64\ns_sub_i32 s65, s65, 8\ns_max_i32 s65, s65, 0")
    a(f"s_mul_i32 s65, s65, {VT_T}\ns_mul_i32 s66, s{p2.A_HQ}, 1280\ns_add_u32 s65, s65, s66\ns_add_u32 s65, s65, {VT - 4096}")
    dma5_dyn(a, 67, [vb+p for p in range(5)], 65, False)

from p3 import K_TB2, K_FB, K_WT, K_H0 as KS_H0, K_O0, K_KAP, K_A, K_B0, K_B1, BUF, NBUF, V_LA, V_LA2, V_LB, k_mfmas
def k_addr(kap_expr_lines, o_part):
    b = K_O0 if o_part else KS_H0
    stride = OS_T if o_part else HS_T
    return [f"s_mul_i32 s{K_A}, s{K_KAP}, {WT_K}", f"s_lshl_b32 s{K_B0}, s{K_KAP}, 11", f"s_add_u32 s{K_A}, s{K_A}, s{K_WT}",
            f"s_add_u32 s{K_B0}, s{K_B0}, s{b}", f"s_add_u32 s{K_B1}, s{K_B0}, {stride}"]
def k_wt(b):
    r = BUF + 36 * b
    return [f"buffer_load_dwordx4 v[{r+4*ft}:{r+3+4*ft}], v{V_LA if ft < 4 else V_LA2}, {WS}, s{K_A} offen offset:{(ft%4)*1024} sc1" for ft in range(5)]
def k_act(b):
    r = BUF + 36 * b
    return [f"buffer_load_dwordx4 v[{r+20+4*tt}:{r+23+4*tt}], v{V_LB}, {WS}, s{K_B0 if tt < 2 else K_B1} offen offset:{(tt%2)*256} sc1" for tt in range(4)]

def poll_fw(a, lab):
    a(f"v_lshlrev_b32 v16, 10, v2\ns_lshl_b32 s43, s{K_FB}, 7\ns_add_u32 s43, s43, {FW}")
    poll(a, 16, 43, -1, 0, lab, 18)
def poll_fh(a, lab, kind):
    a(f"s_lshl_b32 s43, s{K_TB2}, 14\ns_add_u32 s43, s43, {FG}\nv_lshlrev_b32 v250, 9, v2")
    m = 0x07ff07ff if kind == K_H0 else -1
    poll(a, 250, 43, m, 0, lab, 251, off=kind * 128)
def poll_fo(a, lab):
    a(f"s_lshl_b32 s43, s{K_TB2}, 12\ns_add_u32 s43, s43, {FO}\nv_lshlrev_b32 v16, 7, v2")
    poll(a, 16, 43, -1, 0, lab, 18)

def h_stream(a, st, role, mid=None, eh=0):
    J = 57
    e = Emit(a)
    def set_kap(n):
        if n <= 4:   return [f"s_add_u32 s{K_KAP}, s56, {8*n}"]
        if n == 5:   return [f"s_mov_b32 s{K_KAP}, s55"]
        if n <= 10:  return [f"s_add_u32 s{K_KAP}, s54, {8*(n-6)}"]
        return [f"s_add_u32 s{K_KAP}, s{J}, {44 + 4*(n-11)}"] + ([f"s_min_u32 s{K_KAP}, s{K_KAP}, 53"] if n == 13 else [])
    h_bases(a, J)
    NI = 14; pf = 3; LATE = 5
    if role == "pre" and XOPT.get("ehm"):
        for n in range(eh):
            for x in k_mfmas(n % NBUF, n == 0): a(x)
        for i, n in enumerate(range(eh, eh + pf)):
            if mid is not None and i == mid[0]: mid[1](e)
            e(set_kap(n) + k_addr(None, False)); e(k_wt(n % NBUF), ("wt", n))
            if n < LATE: e(k_act(n % NBUF), ("act", n))
        if mid is not None and mid[0] >= pf: mid[1](e)
        return e
    if role == "pre":
        for n in range(pf):
            if mid is not None and n == mid[0]: mid[1](e)
            if n < eh: continue
            e(set_kap(n) + k_addr(None, False))
            if n >= XOPT.get("wtr", 0): e(k_wt(n % NBUF), ("wt", n))
            e(k_act(n % NBUF), ("act", n))
        if mid is not None and mid[0] >= pf: mid[1](e)
        return e
    return None

def h_stream_main(a, e, st, bv_at, eh=0, h1pp=-1):
    J = 57; NI = 14; pf = 3; LATE = 5
    def set_kap(n):
        if n <= 4:   return [f"s_add_u32 s{K_KAP}, s56, {8*n}"]
        if n == 5:   return [f"s_mov_b32 s{K_KAP}, s55"]
        if n <= 10:  return [f"s_add_u32 s{K_KAP}, s54, {8*(n-6)}"]
        return [f"s_add_u32 s{K_KAP}, s{J}, {44 + 4*(n-11)}"] + ([f"s_min_u32 s{K_KAP}, s{K_KAP}, 53"] if n == 13 else [])
    lab = a.label("HS")
    for n in range(NI):
        if n == bv_at: a("s_barrier")
        if n == LATE - 1:
            a.extend(st.now(12))
            if h1pp >= 0:
                a(f"s_waitcnt vmcnt({min(63, e.vm_after(lambda t: t == ('h1',)))})")
                a(f"v_cmp_eq_u32 vcc, s{S_NONCE}, v251\ns_nop 0\ns_cmp_eq_u64 vcc, -1\ns_cbranch_scc1 {lab}_h1k")
                poll_fh(a, lab + "_fh1", K_H1)
                a(f"{lab}_h1k:")
            else:
                poll_fh(a, lab + "_fh1", K_H1)
                e.vm = []
            a.extend(st.now(13))
            if XOPT.get("hpf") == 1:
                L = hpf_lines(); e(L[:-1]); e(L[-1], ("hpf",))
            for m in range(LATE, n + pf):
                e(set_kap(m) + k_addr(None, False)); e(k_act(m % NBUF), ("act", m))
            if XOPT.get("hpf") == 2:
                L = hpf_lines(); e(L[:-1]); e(L[-1], ("hpf",))
        w1 = e.vm_after(lambda t: t == ("wt", n)); w2 = e.vm_after(lambda t: t == ("act", n))
        ws_ = [x for x in (w1, w2) if x is not None]
        if ws_: a(f"s_waitcnt vmcnt({min(63, min(ws_))})")
        if n == NI - 1: a(f"s_cmp_ge_u32 s{J}, 2\ns_cbranch_scc1 {lab}_skip")
        m = k_mfmas(n % NBUF, n == 0)
        if XOPT.get("nohm"): m = ["s_nop 0"] * len(m)
        ld = []
        nn = n + pf
        if n == h1pp:
            ld += [(f"s_lshl_b32 s43, s{K_TB2}, 14", None), (f"s_add_u32 s43, s43, {FG}", None), ("v_and_b32 v250, 31, v2", None), ("v_lshlrev_b32 v250, 9, v250", None),
                   (f"buffer_load_dword v251, v250, {WS}, s43 offen offset:{K_H1 * 128} sc1", ("h1",))]
        if nn < NI and nn >= eh:
            ld += [(x, None) for x in set_kap(nn) + k_addr(None, False)] + [(x, ("wt", nn)) for x in k_wt(nn % NBUF)]
            if not (LATE <= nn < LATE - 1 + pf): ld += [(x, ("act", nn)) for x in k_act(nn % NBUF)]
        li = 0
        for x in m:
            a(x)
            if li < len(ld): e(ld[li][0], ld[li][1]); li += 1
        while li < len(ld): e(ld[li][0], ld[li][1]); li += 1
    a(f"{lab}_skip:")

def o_stream(a, st):
    e = Emit(a)
    NI = 5; pf = 3
    def set_kap(n): return [f"s_add_u32 s{K_KAP}, s3, {54 + 4*n}"]
    for n in range(pf):
        e(set_kap(n) + k_addr(None, True)); e(k_wt(n), ("wt", n))
    a.extend(st.now(12))
    poll_fo(a, "FOp")
    e.vm = []
    a.extend(st.now(13))
    for n in range(pf):
        e(set_kap(n) + k_addr(None, True)); e(k_act(n), ("act", n))
    for n in range(NI):
        w1 = e.vm_after(lambda t: t == ("wt", n)); w2 = e.vm_after(lambda t: t == ("act", n))
        ws_ = [x for x in (w1, w2) if x is not None]
        a(f"s_waitcnt vmcnt({min(63, min(ws_))})")
        m = k_mfmas(n % NBUF, n == 0)
        ld = []
        nn = n + pf
        if nn < NI:
            ld = [(x, None) for x in set_kap(nn) + k_addr(None, True)] + [(x, ("wt", nn)) for x in k_wt(nn % NBUF)] + [(x, ("act", nn)) for x in k_act(nn % NBUF)]
        li = 0
        for x in m:
            a(x)
            if li < len(ld): e(ld[li][0], ld[li][1]); li += 1
        while li < len(ld): e(ld[li][0], ld[li][1]); li += 1

def k3_setup(a):
    p3.k3_params(a)
    p3.k3_setup(a)

def reduce_phase(a, lab, st):
    from p3 import ACC as KACC, V_XO, V_XO2, K_XO, VX
    a(f"v_lshlrev_b32 v9, 4, v2")
    a("s_nop 7")
    a(f"s_cmp_lt_u32 s3, 4\ns_cbranch_scc1 {lab}_lo")
    a.extend(st.now(14))
    lds_poll4(a, CT_ATT, lab + "_wa", 96)
    a(f"s_sub_u32 s40, s3, 4\ns_mul_i32 s40, s40, 20480\nv_add_u32 v10, s40, v9")
    for t in range(20): a(f"ds_write_b128 v10, v[{KACC+4*t}:{KACC+4*t+3}] offset:{L_R1 + 1024*t}")
    a.extend(st.now(15))
    a(f"s_waitcnt lgkmcnt(0)\ns_barrier\ns_barrier\ns_branch {lab}_end")
    a(f"{lab}_lo:")
    a(f"s_mul_i32 s40, s3, 20480\nv_add_u32 v10, s40, v9")
    a.extend(st.now(14))
    a("s_barrier")
    a.extend(st.now(15))
    for half in range(2):
        for t in range(10): a(f"ds_read_b128 v[{BUF+4*t}:{BUF+4*t+3}], v10 offset:{L_R1 + 1024*(10*half+t)}")
        for t in range(10):
            a(f"s_waitcnt lgkmcnt({9-t})")
            for r in range(4): a(f"v_add_f32 v{KACC+4*(10*half+t)+r}, v{KACC+4*(10*half+t)+r}, v{BUF+4*t+r}")
    a(f"v_add_u32 v11, {L_R2}, v10")
    for tt in range(4):
        a(f"s_cmp_eq_u32 s3, {tt}\ns_cbranch_scc1 {lab}_w{tt}")
        for ft in range(5): a(f"ds_write_b128 v11, v[{KACC+4*(tt*5+ft)}:{KACC+4*(tt*5+ft)+3}] offset:{1024*(tt*5+ft)}")
        a(f"{lab}_w{tt}:")
    OWN = BUF + 100
    for tt in range(4):
        a(f"s_cmp_lg_u32 s3, {tt}\ns_cbranch_scc1 {lab}_m{tt}")
        for q in range(20): a(f"v_mov_b32 v{OWN+q}, v{KACC+20*tt+q}")
        a(f"{lab}_m{tt}:")
    a("s_waitcnt lgkmcnt(0)\ns_barrier")
    a(f"s_mul_i32 s41, s3, 5120")
    for d in range(1, 4):
        a(f"s_add_u32 s40, s3, {d}\ns_and_b32 s40, s40, 3\ns_mul_i32 s40, s40, 20480\ns_add_u32 s40, s40, s41\ns_add_u32 s40, s40, {L_R2}\nv_add_u32 v{11+d}, s40, v9")
        for ft in range(5): a(f"ds_read_b128 v[{BUF+20*(d-1)+4*ft}:{BUF+20*(d-1)+4*ft+3}], v{11+d} offset:{1024*ft}")
    for d in range(1, 4):
        a(f"s_waitcnt lgkmcnt({5*(3-d)})")
        for q in range(20): a(f"v_add_f32 v{OWN+q}, v{OWN+q}, v{BUF+20*(d-1)+q}")
    a("s_waitcnt vmcnt(0)")
    for q in range(10):
        a(f"v_lshlrev_b32 v{BUF+2*q}, 16, v{VX+q}\nv_and_b32 v{BUF+2*q+1}, 0xffff0000, v{VX+q}")
    for q in range(20): a(f"v_add_f32 v{OWN+q}, v{OWN+q}, v{BUF+q}")
    for q in range(10): a(f"v_cvt_pk_bf16_f32 v{BUF+24+q}, v{OWN+2*q}, v{OWN+2*q+1}")
    o = BUF + 24
    osc = OUT_SC
    a(f"buffer_store_dwordx4 v[{o}:{o+3}], v{V_XO}, s[{SRD_B}:{SRD_B+3}], s{K_XO} offen{osc}")
    a(f"buffer_store_dwordx4 v[{o+4}:{o+7}], v{V_XO}, s[{SRD_B}:{SRD_B+3}], s{K_XO} offen offset:64{osc}")
    a(f"buffer_store_dwordx2 v[{o+8}:{o+9}], v{V_XO2}, s[{SRD_B}:{SRD_B+3}], s{K_XO} offen{osc}")
    a(f"{lab}_end:")

CT_H = 48
def k_mfmas_o1(b):
    from p3 import ACC as KACC
    r = BUF + 36 * b
    L = []
    for ft in range(5):
        for tt in range(2):
            ac = KACC + (tt * 5 + ft) * 4
            L.append(f"v_mfma_f32_16x16x32_bf16 v[{ac}:{ac+3}], v[{r+4*ft}:{r+3+4*ft}], v[{r+20+4*tt}:{r+23+4*tt}], v[{ac}:{ac+3}]")
    return L
def h_stream_main2(a, e, st, h1pp, o1pp, o1chk):
    J = 57; NH = 14; NI = 19; pf = 3; LATE = 5
    def set_kap(n):
        if n <= 4:   return [f"s_add_u32 s{K_KAP}, s56, {8*n}"]
        if n == 5:   return [f"s_mov_b32 s{K_KAP}, s55"]
        if n <= 10:  return [f"s_add_u32 s{K_KAP}, s54, {8*(n-6)}"]
        if n <= 13:  return [f"s_add_u32 s{K_KAP}, s{J}, {44 + 4*(n-11)}"] + ([f"s_min_u32 s{K_KAP}, s{K_KAP}, 53"] if n == 13 else [])
        return [f"s_add_u32 s{K_KAP}, s{J}, {54 + 4*(n-14)}"]
    def addr(n): return set_kap(n) + k_addr(None, n >= NH)
    def act(n): return k_act(n % NBUF)[:2] if n >= NH else k_act(n % NBUF)
    lab = a.label("HS")
    assert 0 <= h1pp < LATE - 1 and LATE <= o1pp < o1chk and NH - pf <= o1chk <= NH
    for n in range(NI):
        if n == LATE - 1:
            a.extend(st.now(12))
            a(f"s_waitcnt vmcnt({min(63, e.vm_after(lambda t: t == ('h1',)))})")
            a(f"v_cmp_eq_u32 vcc, s{S_NONCE}, v251\ns_nop 0\ns_cmp_eq_u64 vcc, -1\ns_cbranch_scc1 {lab}_h1k")
            poll_fh(a, lab + "_fh1", K_H1)
            a(f"{lab}_h1k:")
            a.extend(st.now(13))
            for m in range(LATE, n + pf):
                e(set_kap(m) + k_addr(None, False)); e(k_act(m % NBUF), ("act", m))
        if XOPT.get("hst") and 5 <= n <= 11: a.extend(st.now(n - 4))
        if n == o1chk:
            a.extend(st.now(18))
            a(f"s_waitcnt vmcnt({min(63, e.vm_after(lambda t: t == ('o1',)))})")
            a(f"v_cmp_eq_u32 vcc, s{S_NONCE}, v251\ns_nop 0\ns_cmp_eq_u64 vcc, -1\ns_cbranch_scc1 {lab}_o1k")
            a(f"s_lshl_b32 s43, s{K_TB2}, 12\ns_add_u32 s43, s43, {FO}")
            poll(a, 250, 43, -1, 0, lab + "_fo1", 251, off=64)
            a(f"{lab}_o1k:")
            a.extend(st.now(17))
            for m in range(NH, n + pf):
                e(addr(m)); e(act(m), ("act", m))
        w1 = e.vm_after(lambda t: t == ("wt", n)); w2 = e.vm_after(lambda t: t == ("act", n))
        ws_ = [x for x in (w1, w2) if x is not None]
        m = k_mfmas(n % NBUF, n == 0) if n < NH else k_mfmas_o1(n % NBUF)
        ld = []
        nn = n + pf
        if n == h1pp:
            ld += [(f"s_lshl_b32 s43, s{K_TB2}, 14", None), (f"s_add_u32 s43, s43, {FG}", None), ("v_and_b32 v250, 31, v2", None), ("v_lshlrev_b32 v250, 9, v250", None),
                   (f"buffer_load_dword v251, v250, {WS}, s43 offen offset:{K_H1 * 128} sc1", ("h1",))]
        if n == o1pp:
            ld += [(f"s_lshl_b32 s43, s{K_TB2}, 12", None), (f"s_add_u32 s43, s43, {FO}", None), ("v_and_b32 v250, 31, v2", None), ("v_lshlrev_b32 v250, 7, v250", None),
                   (f"buffer_load_dword v251, v250, {WS}, s43 offen offset:64 sc1", ("o1",))]
        if nn < NI:
            ld += [(x, None) for x in addr(nn)] + [(x, ("wt", nn)) for x in k_wt(nn % NBUF)]
            deferred = (LATE <= nn < LATE - 1 + pf) or (NH <= nn < o1chk + pf)
            if not deferred: ld += [(x, ("act", nn)) for x in act(nn)]
        if n == NH - 1:
            for x in ld: e(x[0], x[1])
            w1 = e.vm_after(lambda t: t == ("wt", n)); w2 = e.vm_after(lambda t: t == ("act", n))
            a(f"s_cmp_ge_u32 s{J}, 2\ns_cbranch_scc1 {lab}_skip")
            a(f"s_waitcnt vmcnt({min(63, min(w1, w2))})")
            for x in m: a(x)
            a(f"{lab}_skip:")
            continue
        if ws_: a(f"s_waitcnt vmcnt({min(63, min(ws_))})")
        li = 0
        for x in m:
            a(x)
            if li < len(ld): e(ld[li][0], ld[li][1]); li += 1
        while li < len(ld): e(ld[li][0], ld[li][1]); li += 1

def tail2_loader_reduce(a, st):
    from p3 import ACC as KACC
    a(f"v_lshlrev_b32 v9, 4, v2")
    a("s_nop 7")
    a.extend(st.now(14))
    lds_poll4(a, CT_ATT, "R2_wa", 96)
    a(f"s_sub_u32 s40, s3, 4\ns_mul_i32 s41, s40, 20480\nv_add_u32 v10, s41, v9")
    a(f"s_lshl_b32 s40, s40, 2\ns_add_u32 s40, s40, {CT_H}\nv_mov_b32 v11, s40\nv_mov_b32 v12, 1")
    for t in range(20): a(f"ds_write_b128 v10, v[{KACC+4*t}:{KACC+4*t+3}] offset:{L_R1 + 1024*t}")
    a("s_waitcnt lgkmcnt(0)\nds_write_b32 v11, v12")
    a.extend(st.now(15))
    a("s_waitcnt lgkmcnt(0)\ns_barrier")

def tail2_compute(a, st, opt):
    from p3 import V_XO, V_XO2, K_XO, VX
    WB = lambda n: 96 + 20 * n
    AB = lambda n: 196 + 8 * n
    A2 = 16; HSUM = 56; T1 = 76; S_X2 = 70; VX2 = 250
    def set_kap(n): return [f"s_add_u32 s{K_KAP}, s3, {54 + 4*n}"]
    p3.x_loads(a, SRD_A)
    a(f"s_add_u32 s{S_X2}, s{K_XO}, 40960\ns_cmp_lt_u32 s3, 2\ns_cselect_b32 s{S_X2}, s{S_X2}, s{K_XO}")
    a(f"buffer_load_dwordx4 v[{VX2}:{VX2+3}], v{V_XO}, s[{SRD_A}:{SRD_A+3}], s{S_X2} offen offset:64")
    for n in range(5):
        a.extend(set_kap(n) + k_addr(None, True))
        for ft in range(5):
            a(f"buffer_load_dwordx4 v[{WB(n)+4*ft}:{WB(n)+3+4*ft}], v{V_LA if ft < 4 else V_LA2}, {WS}, s{K_A} offen offset:{(ft%4)*1024} sc1")
    a("s_waitcnt vmcnt(29)")
    a(flag_store(58))
    a.extend(st.now(11))
    poll_fo(a, "FOp")
    a.extend(st.now(13))
    for n in range(5):
        a.extend(set_kap(n) + k_addr(None, True))
        for t in range(2):
            a(f"buffer_load_dwordx4 v[{AB(n)+4*t}:{AB(n)+3+4*t}], v{V_LB}, {WS}, s{K_B1} offen offset:{t*256} sc1")
    a(f"v_lshlrev_b32 v9, 4, v2\ns_mul_i32 s40, s3, 5120\nv_add_u32 v10, s40, v9\nv_add_u32 v11, 40960, v10")
    lds_poll4(a, CT_H, "T2_wh", T1)
    a.extend(st.now(12))
    for j, dst in ((0, HSUM), (1, T1), (2, A2)):
        for ft in range(5): a(f"ds_read_b128 v[{dst+4*ft}:{dst+4*ft+3}], v{10 if j < 2 else 11} offset:{L_R1 + (j % 2) * 20480 + 1024*ft}")
    a("s_waitcnt lgkmcnt(5)")
    for ft in range(5): a(f"ds_read_b128 v[{A2+20+4*ft}:{A2+20+4*ft+3}], v11 offset:{L_R1 + 20480 + 1024*ft}")
    for q in range(20): a(f"v_add_f32 v{HSUM+q}, v{HSUM+q}, v{T1+q}")
    a("s_waitcnt lgkmcnt(5)")
    for q in range(20): a(f"v_add_f32 v{HSUM+q}, v{HSUM+q}, v{A2+q}")
    a("s_waitcnt lgkmcnt(0)")
    for q in range(20): a(f"v_add_f32 v{HSUM+q}, v{HSUM+q}, v{A2+20+q}")
    a(f"v_add_u32 v13, {L_R2}, v9")
    osc = OUT_SC
    for w in range(4):
        if w < 3: a(f"s_cmp_lg_u32 s3, {w}\ns_cbranch_scc1 T2_n{w}")
        nst = 0
        if w < 2:
            for q in range(10): a(f"v_lshlrev_b32 v{T1+2*q}, 16, v{VX+q}\nv_and_b32 v{T1+2*q+1}, 0xffff0000, v{VX+q}")
            for q in range(20): a(f"v_add_f32 v{HSUM+q}, v{HSUM+q}, v{T1+q}")
            for q in range(10): a(f"v_cvt_pk_bf16_f32 v{T1+q}, v{HSUM+2*q}, v{HSUM+2*q+1}")
            a(f"buffer_store_dwordx4 v[{T1}:{T1+3}], v{V_XO}, s[{SRD_B}:{SRD_B+3}], s{K_XO} offen{osc}")
            a(f"buffer_store_dwordx4 v[{T1+4}:{T1+7}], v{V_XO}, s[{SRD_B}:{SRD_B+3}], s{K_XO} offen offset:64{osc}")
            a(f"buffer_store_dwordx2 v[{T1+8}:{T1+9}], v{V_XO2}, s[{SRD_B}:{SRD_B+3}], s{K_XO} offen{osc}")
            nst = 3
        for n in range(5):
            a(f"s_waitcnt vmcnt({2 * (4 - n) + nst})")
            for ft in range(5):
                for t in range(2):
                    ac = A2 + (t * 5 + ft) * 4
                    c = f"v[{ac}:{ac+3}]" if n else (f"v[{HSUM+4*ft}:{HSUM+4*ft+3}]" if t == w - 2 else "0")
                    a(f"v_mfma_f32_16x16x32_bf16 v[{ac}:{ac+3}], v[{WB(n)+4*ft}:{WB(n)+3+4*ft}], v[{AB(n)+4*t}:{AB(n)+3+4*t}], {c}")
        if w == 0: a.extend(st.now(14))
        else: a.extend(st.sync()); a.extend(st.now(14))
        owner = lambda t, ft: (2 + t) if ft in (0, 1, 4) else t
        mine = [(t, ft) for t in range(2) for ft in range(5) if owner(t, ft) == w]
        wr = [(t, ft) for ft in range(5) for t in range(2) if owner(t, ft) != w]
        a("s_nop 7\ns_nop 1")
        for (t, ft) in wr:
            ac = A2 + (t * 5 + ft) * 4
            a(f"ds_write_b128 v13, v[{ac}:{ac+3}] offset:{w * 10240 + (t * 5 + ft) * 1024}")
        a("s_waitcnt lgkmcnt(0)\ns_barrier")
        a.extend(st.now(15))
        tmp = 56
        srcs = [x for x in range(4) if x != w]
        for si, src in enumerate(srcs):
            for k, (t, ft) in enumerate(mine):
                d = tmp + 4 * (si * len(mine) + k)
                a(f"ds_read_b128 v[{d}:{d+3}], v13 offset:{src * 10240 + (t * 5 + ft) * 1024}")
        xs = {}
        for k, (t, ft) in enumerate(mine):
            if w >= 2: src0 = VX + 2 * ft
            else: src0 = VX2 + 2 * (ft - 2)
            u = 96 + 4 * k
            a(f"v_lshlrev_b32 v{u}, 16, v{src0}\nv_and_b32 v{u+1}, 0xffff0000, v{src0}\nv_lshlrev_b32 v{u+2}, 16, v{src0+1}\nv_and_b32 v{u+3}, 0xffff0000, v{src0+1}")
            ac = A2 + (t * 5 + ft) * 4
            for r in range(4): a(f"v_add_f32 v{ac+r}, v{ac+r}, v{u+r}")
        for si in range(3):
            a(f"s_waitcnt lgkmcnt({len(mine) * (2 - si)})")
            for k, (t, ft) in enumerate(mine):
                ac = A2 + (t * 5 + ft) * 4; d = tmp + 4 * (si * len(mine) + k)
                for r in range(4): a(f"v_add_f32 v{ac+r}, v{ac+r}, v{d+r}")
        o = 120
        for k, (t, ft) in enumerate(mine):
            ac = A2 + (t * 5 + ft) * 4
            a(f"v_cvt_pk_bf16_f32 v{o+2*k}, v{ac}, v{ac+1}\nv_cvt_pk_bf16_f32 v{o+2*k+1}, v{ac+2}, v{ac+3}")
        if w >= 2:
            assert [ft for _, ft in mine] == [0, 1, 4]
            a(f"buffer_store_dwordx4 v[{o}:{o+3}], v{V_XO}, s[{SRD_B}:{SRD_B+3}], s{K_XO} offen{osc}")
            a(f"buffer_store_dwordx2 v[{o+4}:{o+5}], v{V_XO2}, s[{SRD_B}:{SRD_B+3}], s{K_XO} offen{osc}")
        else:
            assert [ft for _, ft in mine] == [2, 3]
            a(f"buffer_store_dwordx4 v[{o}:{o+3}], v{V_XO}, s[{SRD_B}:{SRD_B+3}], s{S_X2} offen offset:64{osc}")
        a("s_branch F_fin")
        if w < 3: a(f"T2_n{w}:")

CT_HB = 64
def o_regs(m):
    if m < 4:
        b = BUF + 36 * ((m + (11 if XOPT.get('hc') else 14)) % 4)
        return [b + 4 * ft for ft in range(5)], [b + 20, b + 24]
    sp = [BUF + 36 * k + 28 for k in range(4)]
    return [sp[0], sp[0] + 4, sp[1], sp[1] + 4, sp[2]], [sp[2] + 4, sp[3]]
def o_wt(m):
    w, _ = o_regs(m)
    return [f"buffer_load_dwordx4 v[{w[ft]}:{w[ft]+3}], v{V_LA if ft < 4 else V_LA2}, {WS}, s{K_A} offen offset:{(ft%4)*1024} sc1" for ft in range(5)]
def o_act(m, half):
    _, c = o_regs(m)
    return [f"buffer_load_dwordx4 v[{c[t]}:{c[t]+3}], v{V_LB}, {WS}, s{K_B1 if half else K_B0} offen offset:{t*256} sc1" for t in range(2)]
def o_mfma(m, half):
    from p3 import ACC as KACC
    w, c = o_regs(m)
    L = []
    for ft in range(5):
        for t in range(2):
            ac = KACC + ((2 * half + t) * 5 + ft) * 4
            L.append(f"v_mfma_f32_16x16x32_bf16 v[{ac}:{ac+3}], v[{w[ft]}:{w[ft]+3}], v[{c[t]}:{c[t]+3}], v[{ac}:{ac+3}]")
    return L
def h_stream_main3(a, e, st, h1pp, o1pp, o1chk):
    from p3 import ACC as KACC
    J = 57; NH = 11 if XOPT.get('hc') else 14; pf = 3; LATE = 5
    def set_kap(n):
        if n <= 4:   return [f"s_add_u32 s{K_KAP}, s56, {8*n}"]
        if n == 5:   return [f"s_mov_b32 s{K_KAP}, s55"]
        if n <= 10:  return [f"s_add_u32 s{K_KAP}, s54, {8*(n-6)}"]
        return [f"s_add_u32 s{K_KAP}, s{J}, {44 + 4*(n-11)}"] + ([f"s_min_u32 s{K_KAP}, s{K_KAP}, 53"] if n == 13 else [])
    def oaddr(m): return [f"s_add_u32 s{K_KAP}, s{J}, {54 + 4*m}"] + k_addr(None, True)
    if XOPT.get("lprio"): a(f"s_setprio {XOPT['lprio']}")
    lab = a.label("HS")
    assert 0 <= h1pp < LATE - 1 and LATE <= o1pp < o1chk and 11 <= o1chk <= NH
    def o1_check():
        a(f"s_waitcnt vmcnt({min(63, e.vm_after(lambda t: t == ('o1',)))})")
        a(f"v_cmp_eq_u32 vcc, s{S_NONCE}, v251\ns_nop 0\ns_cmp_eq_u64 vcc, -1\ns_cbranch_scc1 {lab}_o1k")
        a(f"s_lshl_b32 s43, s{K_TB2}, 12\ns_add_u32 s43, s43, {FO}")
        poll(a, 250, 43, -1, 0, lab + "_fo1", 251, off=64)
        a(f"{lab}_o1k:")
        a.extend(st.now(17))
    E0 = XOPT.get("eh", 0) if XOPT.get("ehm") else 0
    if E0 > h1pp:
        e([f"s_lshl_b32 s43, s{K_TB2}, 14", f"s_add_u32 s43, s43, {FG}", "v_and_b32 v250, 31, v2", "v_lshlrev_b32 v250, 9, v250"])
        e([f"buffer_load_dword v251, v250, {WS}, s43 offen offset:{K_H1 * 128} sc1"], ("h1",))
    for n in range(E0, NH):
        if n == LATE - 1:
            a.extend(st.now(12))
            a(f"s_waitcnt vmcnt({min(63, e.vm_after(lambda t: t == ('h1',)))})")
            a(f"v_cmp_eq_u32 vcc, s{S_NONCE}, v251\ns_nop 0\ns_cmp_eq_u64 vcc, -1\ns_cbranch_scc1 {lab}_h1k")
            poll_fh(a, lab + "_fh1", K_H1)
            a(f"{lab}_h1k:")
            a.extend(st.now(13))
            for m in range(LATE, n + pf):
                e(set_kap(m) + k_addr(None, False)); e(k_act(m % NBUF), ("act", m))
        if n == o1chk:
            o1_check()
            for m in range(0, n - 11):
                e(oaddr(m)); e(o_act(m, 0), ("oa", m))
        w1 = e.vm_after(lambda t: t == ("wt", n)); w2 = e.vm_after(lambda t: t == ("act", n))
        ws_ = [x for x in (w1, w2) if x is not None]
        mf = k_mfmas(n % NBUF, n == 0)
        ld = []
        nn = n + pf
        if n == h1pp:
            ld += [(f"s_lshl_b32 s43, s{K_TB2}, 14", None), (f"s_add_u32 s43, s43, {FG}", None), ("v_and_b32 v250, 31, v2", None), ("v_lshlrev_b32 v250, 9, v250", None),
                   (f"buffer_load_dword v251, v250, {WS}, s43 offen offset:{K_H1 * 128} sc1", ("h1",))]
        if n == o1pp:
            ld += [(f"s_lshl_b32 s43, s{K_TB2}, 12", None), (f"s_add_u32 s43, s43, {FO}", None), ("v_and_b32 v250, 31, v2", None), ("v_lshlrev_b32 v250, 7, v250", None),
                   (f"buffer_load_dword v251, v250, {WS}, s43 offen offset:64 sc1", ("o1",))]
        if nn < NH:
            ld += [(x, None) for x in set_kap(nn) + k_addr(None, False)]
            if nn >= XOPT.get("wtr", 0): ld += [(x, ("wt", nn)) for x in k_wt(nn % NBUF)]
            if not (LATE <= nn < LATE - 1 + pf): ld += [(x, ("act", nn)) for x in k_act(nn % NBUF)]
        else:
            m = nn - NH
            ld += [(x, None) for x in oaddr(m)] + [(x, ("ow", m)) for x in o_wt(m)]
            if n >= o1chk: ld += [(x, ("oa", m)) for x in o_act(m, 0)]
        if n == NH - 1 and NH == 14:
            for x in ld: e(x[0], x[1])
            w1 = e.vm_after(lambda t: t == ("wt", n)); w2 = e.vm_after(lambda t: t == ("act", n))
            a(f"s_cmp_ge_u32 s{J}, 2\ns_cbranch_scc1 {lab}_skip")
            a(f"s_waitcnt vmcnt({min(63, min(w1, w2))})")
            for x in mf: a(x)
            a(f"{lab}_skip:")
            continue
        if ws_: a(f"s_waitcnt vmcnt({min(63, min(ws_))})")
        li = 0
        for x in mf:
            a(x)
            if li < len(ld): e(ld[li][0], ld[li][1]); li += 1
        while li < len(ld): e(ld[li][0], ld[li][1]); li += 1
    if o1chk == NH:
        o1_check()
        for m in range(3): e(oaddr(m)); e(o_act(m, 0), ("oa", m))
    for m in (3, 4):
        e(oaddr(m)); e(o_wt(m), ("ow", m)); e(o_act(m, 0), ("oa", m))
    e([f"s_lshl_b32 s43, s{K_TB2}, 12", f"s_add_u32 s43, s43, {FO}", "v_and_b32 v250, 31, v2", "v_lshlrev_b32 v250, 7, v250"])
    a.extend(st.now(14))
    for m in range(5):
        w1 = e.vm_after(lambda t: t == ("ow", m)); w2 = e.vm_after(lambda t: t == ("oa", m))
        a(f"s_waitcnt vmcnt({min(63, min(w1, w2))})")
        if m == XOPT.get("o2pp", 3): a(f"buffer_load_dword v251, v250, {WS}, s43 offen sc1"); e.vm.append(("o2",))
        for x in o_mfma(m, 0): a(x)
    a(f"v_lshlrev_b32 v9, 4, v2")
    lds_poll4(a, CT_ATT, "R3_wa", 8 + 2)
    a(f"s_sub_u32 s40, s3, 4\ns_mul_i32 s41, s40, 20480\nv_add_u32 v10, s41, v9")
    a(f"s_lshl_b32 s40, s40, 2\ns_add_u32 s41, s40, {CT_H}\nv_mov_b32 v11, s41\nv_mov_b32 v12, 1\ns_add_u32 s41, s40, {CT_HB}\nv_mov_b32 v13, s41")
    a(f"s_waitcnt vmcnt({min(63, e.vm_after(lambda t: t == ('o2',)))})")
    a(f"v_cmp_eq_u32 vcc, s{S_NONCE}, v251\ns_nop 0\ns_cmp_eq_u64 vcc, -1\ns_cbranch_scc1 {lab}_o2e")
    for t in range(10): a(f"ds_write_b128 v10, v[{KACC+4*t}:{KACC+4*t+3}] offset:{L_R1 + 1024*t}")
    a("s_waitcnt lgkmcnt(0)\nds_write_b32 v11, v12")
    poll(a, 250, 43, -1, 0, lab + "_fo2", 251, off=0)
    a.extend(st.now(18))
    for m in range(5):
        for x in oaddr(m) + o_act(m, 1): a(x)
    a(f"s_branch {lab}_o2j")
    a(f"{lab}_o2e:")
    a.extend(st.now(18))
    for m in range(5):
        for x in oaddr(m) + o_act(m, 1): a(x)
    for t in range(10): a(f"ds_write_b128 v10, v[{KACC+4*t}:{KACC+4*t+3}] offset:{L_R1 + 1024*t}")
    a("s_waitcnt lgkmcnt(0)\nds_write_b32 v11, v12")
    a(f"{lab}_o2j:")
    for m in range(5):
        a(f"s_waitcnt vmcnt({2 * (4 - m)})")
        for x in o_mfma(m, 1): a(x)
    a.extend(st.now(19))
    a("s_nop 7\ns_nop 1")
    for ft in range(5):
        for t in range(2):
            k = (2 + t) * 5 + ft
            a(f"ds_write_b128 v10, v[{KACC+4*k}:{KACC+4*k+3}] offset:{L_R1 + 1024*k}")
    a.extend(st.now(15))
    a("s_waitcnt lgkmcnt(0)\ns_barrier")

def o_regs4(m):
    sp = [BUF + 36 * k + 28 for k in range(4)]
    if m < 4:
        b = BUF + 36 * ((m + 2) % 4)
        c = [b + 20, b + 24]
        return [b + 4 * ft for ft in range(5)], c, ([sp[1], sp[1] + 4] if m == 3 else c)
    c = [sp[0], sp[0] + 4]
    return [sp[2], sp[2] + 4, sp[3], sp[3] + 4, 240], c, c
def o_wt4(m):
    w = o_regs4(m)[0]
    return [f"buffer_load_dwordx4 v[{w[ft]}:{w[ft]+3}], v{V_LA if ft < 4 else V_LA2}, {WS}, s{K_A} offen offset:{(ft%4)*1024} sc1" for ft in range(5)]
def o_act4(m, half):
    c = o_regs4(m)[1 + half]
    return [f"buffer_load_dwordx4 v[{c[t]}:{c[t]+3}], v{V_LB}, {WS}, s{K_B1 if half else K_B0} offen offset:{t*256} sc1" for t in range(2)]
def o_mfma4(m, half):
    from p3 import ACC as KACC
    w = o_regs4(m)[0]; c = o_regs4(m)[1 + half]
    L = []
    for ft in range(5):
        for t in range(2):
            ac = KACC + ((2 * half + t) * 5 + ft) * 4
            L.append(f"v_mfma_f32_16x16x32_bf16 v[{ac}:{ac+3}], v[{w[ft]}:{w[ft]+3}], v[{c[t]}:{c[t]+3}], v[{ac}:{ac+3}]")
    return L
def h_stream_main4(a, e, st, h1pp, o1pp, o1chk, o2at):
    from p3 import ACC as KACC
    J = 57; NH = 14; pf = 3; LATE = 5
    def set_kap(n):
        if n <= 4:   return [f"s_add_u32 s{K_KAP}, s56, {8*n}"]
        if n == 5:   return [f"s_mov_b32 s{K_KAP}, s55"]
        if n <= 10:  return [f"s_add_u32 s{K_KAP}, s54, {8*(n-6)}"]
        return [f"s_add_u32 s{K_KAP}, s{J}, {44 + 4*(n-11)}"] + ([f"s_min_u32 s{K_KAP}, s{K_KAP}, 53"] if n == 13 else [])
    def oaddr(m): return [f"s_add_u32 s{K_KAP}, s{J}, {54 + 4*m}"] + k_addr(None, True)
    lab = a.label("HS")
    assert 0 <= h1pp < LATE - 1 and LATE <= o1pp < o1chk and 12 <= o1chk <= NH and o2at in (12, 13)
    FOA = [f"s_lshl_b32 s43, s{K_TB2}, 12", f"s_add_u32 s43, s43, {FO}"]
    def o1_check():
        a(f"s_waitcnt vmcnt({min(63, e.vm_after(lambda t: t == ('o1',)))})")
        a(f"v_cmp_eq_u32 vcc, s{S_NONCE}, v251\ns_nop 0\ns_cmp_eq_u64 vcc, -1\ns_cbranch_scc1 {lab}_o1k")
        for x in FOA: a(x)
        poll(a, 250, 43, -1, 0, lab + "_fo1", 251, off=64)
        a(f"{lab}_o1k:")
        a.extend(st.now(17))
    wt_done = []; act_done = []
    for n in range(NH):
        if n == LATE - 1:
            a.extend(st.now(12))
            a(f"s_waitcnt vmcnt({min(63, e.vm_after(lambda t: t == ('h1',)))})")
            a(f"v_cmp_eq_u32 vcc, s{S_NONCE}, v251\ns_nop 0\ns_cmp_eq_u64 vcc, -1\ns_cbranch_scc1 {lab}_h1k")
            poll_fh(a, lab + "_fh1", K_H1)
            a(f"{lab}_h1k:")
            a.extend(st.now(13))
            for m in range(LATE, n + pf):
                e(set_kap(m) + k_addr(None, False)); e(k_act(m % NBUF), ("act", m))
        if n == o1chk:
            o1_check()
            for m in wt_done:
                if m == 4 and n < 13: continue
                e(oaddr(m)); e(o_act4(m, 0), ("oa", m)); act_done.append(m)
        w1 = e.vm_after(lambda t: t == ("wt", n)); w2 = e.vm_after(lambda t: t == ("act", n))
        ws_ = [x for x in (w1, w2) if x is not None]
        mf = k_mfmas(n % NBUF, n == 0)
        ld = []
        nn = n + pf
        if n == h1pp:
            ld += [(f"s_lshl_b32 s43, s{K_TB2}, 14", None), (f"s_add_u32 s43, s43, {FG}", None), ("v_and_b32 v250, 31, v2", None), ("v_lshlrev_b32 v250, 9, v250", None),
                   (f"buffer_load_dword v251, v250, {WS}, s43 offen offset:{K_H1 * 128} sc1", ("h1",))]
        if n == o1pp:
            ld += [(x, None) for x in FOA] + [("v_and_b32 v250, 31, v2", None), ("v_lshlrev_b32 v250, 7, v250", None),
                   (f"buffer_load_dword v251, v250, {WS}, s43 offen offset:64 sc1", ("o1",))]
        if nn < NH:
            ld += [(x, None) for x in set_kap(nn) + k_addr(None, False)] + [(x, ("wt", nn)) for x in k_wt(nn % NBUF)]
            if not (LATE <= nn < LATE - 1 + pf): ld += [(x, ("act", nn)) for x in k_act(nn % NBUF)]
        else:
            m = nn - NH
            ld += [(x, None) for x in oaddr(m)] + [(x, ("ow", m)) for x in o_wt4(m)]; wt_done.append(m)
            if n >= o1chk: ld += [(x, ("oa", m)) for x in o_act4(m, 0)]; act_done.append(m)
            if n == 12:
                ld += [(x, None) for x in oaddr(4)] + [(x, ("ow", 4)) for x in o_wt4(4)]; wt_done.append(4)
            if n == 13 and n >= o1chk and 4 not in act_done:
                ld += [(x, None) for x in oaddr(4)] + [(x, ("oa", 4)) for x in o_act4(4, 0)]; act_done.append(4)
        if n == o2at:
            ld += [(x, None) for x in FOA] + [("v_and_b32 v248, 31, v2", None), ("v_lshlrev_b32 v248, 7, v248", None),
                   (f"buffer_load_dword v249, v248, {WS}, s43 offen sc1", ("o2",))]
        if n == NH - 1:
            for x in ld: e(x[0], x[1])
            w1 = e.vm_after(lambda t: t == ("wt", n)); w2 = e.vm_after(lambda t: t == ("act", n))
            a(f"s_cmp_ge_u32 s{J}, 2\ns_cbranch_scc1 {lab}_skip")
            a(f"s_waitcnt vmcnt({min(63, min(w1, w2))})")
            for x in mf: a(x)
            a(f"{lab}_skip:")
            continue
        if ws_: a(f"s_waitcnt vmcnt({min(63, min(ws_))})")
        li = 0
        for x in mf:
            a(x)
            if li < len(ld): e(ld[li][0], ld[li][1]); li += 1
        while li < len(ld): e(ld[li][0], ld[li][1]); li += 1
    e(oaddr(3)); e(o_wt4(3), ("ow", 3))
    if o1chk == NH: o1_check()
    e(oaddr(3)); e(o_act4(3, 0), ("oa", 3)); act_done.append(3)
    for m in (0, 1, 2, 4):
        if m not in act_done: e(oaddr(m)); e(o_act4(m, 0), ("oa", m)); act_done.append(m)
    a.extend(st.now(14))
    ORDER = (4, 0, 1, 2, 3)
    base = {m: min(e.vm_after(lambda t: t == ("ow", m)), e.vm_after(lambda t: t == ("oa", m))) for m in ORDER}
    def partial_setup(tag):
        a(f"v_lshlrev_b32 v9, 4, v2")
        lds_poll4(a, CT_ATT, f"R3_wa{tag}", 8 + 2)
        a(f"s_sub_u32 s40, s3, 4\ns_mul_i32 s41, s40, 20480\nv_add_u32 v10, s41, v9")
        a(f"s_lshl_b32 s40, s40, 2\ns_add_u32 s41, s40, {CT_H}\nv_mov_b32 v11, s41\nv_mov_b32 v12, 1")
        a("s_nop 7\ns_nop 1")
        for t in range(10): a(f"ds_write_b128 v10, v[{KACC+4*t}:{KACC+4*t+3}] offset:{L_R1 + 1024*t}")
        a("s_waitcnt lgkmcnt(0)\nds_write_b32 v11, v12")
    a(f"s_waitcnt vmcnt({min(63, e.vm_after(lambda t: t == ('o2',)))})")
    a(f"v_cmp_eq_u32 vcc, s{S_NONCE}, v249\ns_nop 0\ns_cmp_eq_u64 vcc, -1\ns_cbranch_scc0 {lab}_slow")
    a.extend(st.now(18))
    for x in oaddr(3) + o_act4(3, 1): a(x)
    extra = 2
    for m in ORDER:
        a(f"s_waitcnt vmcnt({min(63, base[m] + extra)})")
        for x in o_mfma4(m, 0): a(x)
        if m != 3:
            for x in oaddr(m) + o_act4(m, 1): a(x)
            extra += 2
    partial_setup("f")
    a(f"s_branch {lab}_join")
    a(f"{lab}_slow:")
    for m in ORDER:
        a(f"s_waitcnt vmcnt({min(63, base[m])})")
        for x in o_mfma4(m, 0): a(x)
    partial_setup("s")
    for x in FOA: a(x)
    a("v_mov_b32 v250, v248")
    poll(a, 250, 43, -1, 0, lab + "_fo2", 251, off=0)
    a.extend(st.now(18))
    for m in (3, 4, 0, 1, 2):
        for x in oaddr(m) + o_act4(m, 1): a(x)
    a(f"{lab}_join:")
    for i, m in enumerate((3, 4, 0, 1, 2)):
        a(f"s_waitcnt vmcnt({2 * (4 - i)})")
        for x in o_mfma4(m, 1): a(x)
    a.extend(st.now(19))
    a("s_nop 7\ns_nop 1")
    for ft in range(5):
        for t in range(2):
            k = (2 + t) * 5 + ft
            a(f"ds_write_b128 v10, v[{KACC+4*k}:{KACC+4*k+3}] offset:{L_R1 + 1024*k}")
    a.extend(st.now(15))
    a("s_waitcnt lgkmcnt(0)\ns_barrier")

def tail3_compute(a, st, opt):
    from p3 import V_XO, V_XO2, K_XO
    VXP = 240; VXQ = 246; S_XQ = 70
    a(f"buffer_load_dwordx4 v[{VXP}:{VXP+3}], v{V_XO}, s[{SRD_A}:{SRD_A+3}], s{K_XO} offen")
    a(f"buffer_load_dwordx2 v[{VXP+4}:{VXP+5}], v{V_XO2}, s[{SRD_A}:{SRD_A+3}], s{K_XO} offen")
    a(f"s_add_u32 s{S_XQ}, s{K_XO}, 40960\ns_sub_u32 s41, s{K_XO}, 40960\ns_cmp_lt_u32 s3, 2\ns_cselect_b32 s{S_XQ}, s{S_XQ}, s41")
    a(f"buffer_load_dwordx4 v[{VXQ}:{VXQ+3}], v{V_XO}, s[{SRD_A}:{SRD_A+3}], s{S_XQ} offen offset:64")
    a("s_waitcnt vmcnt(3)")
    a(flag_store(58))
    a.extend(st.now(11))
    osc = OUT_SC
    a(f"v_lshlrev_b32 v9, 4, v2\nv_add_u32 v11, 40960, v9")
    HC = XOPT.get("hc"); YP, YQ = 216, 228
    def owned(w): return [(w, ft) for ft in (0, 1, 4)] + [(w ^ 2, ft) for ft in (2, 3)]
    if HC:
        from p3 import ACC as KACC
        L_R2 = L_R1 + 4 * 20480
        poll_fh(a, "T3_h1", K_H1)
        for i_ in range(3):
            L = [f"s_add_u32 s{K_KAP}, s3, {44 + 4*i_}"] + ([f"s_min_u32 s{K_KAP}, s{K_KAP}, 53"] if i_ == 2 else []) + k_addr(None, False) + k_wt(i_) + k_act(i_)
            for x in L: a(x)
        lds_poll4(a, CT_ATT, "T3_wa", 204)
        for i_ in range(3):
            a(f"s_waitcnt vmcnt({9 * (2 - i_)})")
            if i_ == 2: a("s_cmp_ge_u32 s3, 2\ns_cbranch_scc1 T3_hsk")
            for x in k_mfmas(i_, i_ == 0): a(x)
        a("T3_hsk:\ns_nop 7\ns_nop 1")
        a(f"v_add_u32 v12, {L_R2}, v9\ns_lshl_b32 s40, s3, 2\ns_add_u32 s40, s40, {CT_HB}\nv_mov_b32 v13, s40\nv_mov_b32 v14, 1")
        allt = [(t, ft) for t in range(4) for ft in range(5)]
        slot = {w: {x: k for k, x in enumerate([y for y in allt if y not in owned(w)])} for w in range(4)}
        for w in range(4):
            if w < 3: a(f"s_cmp_lg_u32 s3, {w}\ns_cbranch_scc1 T3_x{w}")
            for (t, ft), k in slot[w].items():
                ac = KACC + 4 * (t * 5 + ft)
                a(f"ds_write_b128 v12, v[{ac}:{ac+3}] offset:{w * 15360 + k * 1024}")
            a("s_waitcnt lgkmcnt(0)\nds_write_b32 v13, v14")
            lds_poll4(a, CT_HB, f"T3_wb{w}", 204)
            oth = [x for x in range(4) if x != w]
            for s_, wo in enumerate(oth):
                for k, x in enumerate(owned(w)):
                    d = 96 + 4 * (s_ * 5 + k)
                    a(f"ds_read_b128 v[{d}:{d+3}], v12 offset:{wo * 15360 + slot[wo][x] * 1024}")
            for s_ in range(3):
                a(f"s_waitcnt lgkmcnt({5 * (2 - s_)})")
                for k, (t, ft) in enumerate(owned(w)):
                    ac = KACC + 4 * (t * 5 + ft); d = 96 + 4 * (s_ * 5 + k)
                    for r in range(4): a(f"v_add_f32 v{YP+4*k+r}, v{ac+r if s_ == 0 else YP+4*k+r}, v{d+r}")
            if w < 3: a(f"s_branch T3_xe\nT3_x{w}:")
        a("T3_xe:")
        a.extend(st.now(14))
    def fin(w, kind, lab):
        tt = w if kind == "P" else w ^ 2
        fts = [0, 1, 4] if kind == "P" else [2, 3]
        nf = len(fts); T = 16
        for j in range(4):
            for k, ft in enumerate(fts):
                d = T + 4 * (j * nf + k)
                a(f"ds_read_b128 v[{d}:{d+3}], v{9 if j < 2 else 11} offset:{L_R1 + (j % 2) * 20480 + (tt * 5 + ft) * 1024}")
        X = 80; vx = VXP if kind == "P" else VXQ
        for q in range(2 * nf): a(f"v_lshlrev_b32 v{X+2*q}, 16, v{vx+q}\nv_and_b32 v{X+2*q+1}, 0xffff0000, v{vx+q}")
        if HC:
            for q in range(4 * nf): a(f"v_add_f32 v{X+q}, v{X+q}, v{(YP if kind == 'P' else YQ)+q}")
        for j in range(4):
            a(f"s_waitcnt lgkmcnt({nf * (3 - j)})")
            for q in range(4 * nf): a(f"v_add_f32 v{X+q}, v{X+q}, v{T + 4*j*nf + q}")
        o = 96
        for q in range(2 * nf): a(f"v_cvt_pk_bf16_f32 v{o+q}, v{X+2*q}, v{X+2*q+1}")
        if kind == "P":
            a(f"buffer_store_dwordx4 v[{o}:{o+3}], v{V_XO}, s[{SRD_B}:{SRD_B+3}], s{K_XO} offen{osc}")
            a(f"buffer_store_dwordx2 v[{o+4}:{o+5}], v{V_XO2}, s[{SRD_B}:{SRD_B+3}], s{K_XO} offen{osc}")
        else:
            a(f"buffer_store_dwordx4 v[{o}:{o+3}], v{V_XO}, s[{SRD_B}:{SRD_B+3}], s{S_XQ} offen offset:64{osc}")
    lds_poll4(a, CT_H, "T3_wh", 16, XOPT.get("slp", 0))
    a.extend(st.now(12))
    a("s_waitcnt vmcnt(0)")
    for w in range(4):
        if w < 3: a(f"s_cmp_lg_u32 s3, {w}\ns_cbranch_scc1 T3_n{w}")
        fin(w, "P" if w < 2 else "Q", f"T3a{w}")
        a.extend(st.now(13))
        a("s_barrier")
        a.extend(st.now(15))
        fin(w, "Q" if w < 2 else "P", f"T3b{w}")
        a("s_branch F_fin")
        if w < 3: a(f"T3_n{w}:")

XOPT = {}
def kernel(name, stamps=False, opt=None):
    XOPT.clear(); XOPT.update(opt or {})
    opt = opt or {}
    p1.ORD = opt.get("ord", 0)
    global OUT_SC, NO_BV, X4
    X4 = None
    X4_NODMA[0] = opt.get("x4nodma", 0)
    if opt.get("front", 0) == 4:
        X4 = dict(nx=opt.get("nx", 4), xe=opt.get("xe", 0), bar0=opt.get("bar0", 8), bar0_n=opt.get("bar0_n", 160),
                  nb0=opt.get("nb0", 3), corr=opt.get("corr", 0))
    NO_BV = opt.get("tail", 0) == 1
    OUT_SC = {0: "", 1: " sc1", 2: " sc0 sc1", 3: " nt", 4: " sc1 nt", 5: " sc0 sc1 nt"}[opt.get("osc", 0)]
    a = Asm()
    st = Stamper(stamps, bool(opt.get("cyc")))
    a(kernel_begin(name))
    a("s_cmp_ge_u32 s2, 256\ns_cbranch_scc1 F_exit")
    XIT = opt.get("xit", 0)
    if XIT == 1 and not stamps: a("s_branch F_exit")
    a("s_load_dwordx16 s[4:19], s[0:1], 0\ns_load_dwordx4 s[20:23], s[0:1], 64\ns_memrealtime s[46:47]")
    a("v_lshrrev_b32 v1, 6, v0\nv_and_b32 v2, 63, v0\nv_readfirstlane_b32 s3, v1")
    a("s_waitcnt lgkmcnt(0)")
    FRONT = opt.get("front", 0)
    if FRONT == 0: p0.p0_x_loads(a)
    elif FRONT in (3, 4):
        srd(a, p0.SRD_A, P_X, S * D * 2)
        p1.IL0 = 1
    else:
        srd(a, p0.SRD_A, P_X, S * D * 2)
        a("s_cmp_ge_u32 s3, 4\ns_cbranch_scc1 F_nx")
        p0.ln2_loads(a)
        a("F_nx:")
    srd(a, SRD_WS, P_WS, WS_BYTES)
    if stamps:
        a(f"v_mov_b32 v{V_STAMP}, 0\nv_writelane_b32 v{V_STAMP}, s46, 0")
        if opt.get("cyc"): a.extend(st.now(17))
    srd(a, SRD_C, P_DBG, 256)
    a("s_cmp_lg_u32 s3, 3\ns_cbranch_scc1 F_n0")
    a("s_cmp_lg_u32 s2, 0\ns_cbranch_scc1 F_n0")
    a(f"s_or_b32 s46, s46, 1\nv_mov_b32 v4, s46\nv_mov_b32 v5, 0\ns_mov_b64 exec, 1\nbuffer_store_dword v4, v5, s[{SRD_C}:{SRD_C+3}], 0 offen sc1\ns_mov_b64 exec, -1")
    a("F_n0:")
    p1.setup_common(a)
    a("s_cmp_ge_u32 s3, 4\ns_cbranch_scc1 F_ldr0")
    def get_nonce():
        a(f"v_cmp_eq_u32 vcc, 0, v2\nv_mov_b32 v15, {CT_NONCE}\nv_mov_b32 v{V_Z}, 0x80000000\nds_read_b32 v{V_NONCE}, v15\nv_cndmask_b32 v{V_Z}, v{V_Z}, 0, vcc")
        a(f"s_waitcnt lgkmcnt(0)\nv_readfirstlane_b32 s{S_NONCE}, v{V_NONCE}")
    def nonce_spin():
        a(f"s_mov_b32 s{S_SPIN}, {SPIN}\nv_mov_b32 v5, 0")
        a(f"F_np:\nbuffer_load_dword v4, v5, s[{SRD_C}:{SRD_C+3}], 0 offen sc1\ns_waitcnt vmcnt(0)\nv_readfirstlane_b32 s40, v4\ns_cmp_lg_u32 s40, 0\ns_cbranch_scc1 F_np1")
        a(f"s_sub_u32 s{S_SPIN}, s{S_SPIN}, 1\ns_cmp_lg_u32 s{S_SPIN}, 0\ns_cbranch_scc1 F_np")
    if FRONT in (3, 4): pass
    elif FRONT < 2:
        a("s_cmp_lg_u32 s3, 0\ns_cbranch_scc1 F_c0")
        a("v_mov_b32 v4, 0\nv_lshlrev_b32 v5, 2, v2\nds_write_b32 v5, v4")
        a("F_c0:")
        a("s_waitcnt vmcnt(0)")
        a.extend(st.now(1))
        if FRONT == 0: p0.p0_ln(a)
        else: p0.ln2(a)
        a("s_waitcnt lgkmcnt(0)\ns_barrier")
        p0.p0_xn_stores(a, "sc1")
        a("s_cmp_lg_u32 s3, 3\ns_cbranch_scc1 F_c1")
        nonce_spin()
        a(f"F_np1:\nv_mov_b32 v5, {CT_NONCE}\nds_write_b32 v5, v4")
        a("F_c1:")
        a("s_waitcnt vmcnt(0) lgkmcnt(0)")
        a.extend(st.now(2))
        a("s_barrier")
        get_nonce()
        a("s_cmp_lg_u32 s3, 0\ns_cbranch_scc1 F_c2")
        a(f"s_lshl_b32 s40, s2, 7\ns_add_u32 s40, s40, {FX}")
        a(flag_store(40))
        a("F_c2:")
    else:
        a("s_cmp_lg_u32 s3, 0\ns_cbranch_scc1 F_c0")
        a("v_mov_b32 v4, 0\nv_lshlrev_b32 v5, 2, v2\ns_mov_b64 exec, -2\nds_write_b32 v5, v4\ns_mov_b64 exec, -1")
        a("F_c0:")
        a("s_waitcnt vmcnt(0)")
        a.extend(st.now(1))
        p0.ln2(a)
        a.extend(st.now(18))
        a("s_waitcnt lgkmcnt(0)\ns_barrier")
        a.extend(st.now(19))
        a(f"v_mov_b32 v5, 0\nbuffer_load_dword v46, v5, s[{SRD_C}:{SRD_C+3}], 0 offen sc1")
        p0.p0_xn_stores(a, "sc1")
        a("s_barrier")
        a(f"v_cmp_eq_u32 vcc, 0, v2\nv_mov_b32 v{V_Z}, 0x80000000")
        a(f"s_lshl_b32 s41, s2, 5\ns_add_u32 s41, s41, s3\ns_lshl_b32 s41, s41, 2\ns_add_u32 s41, s41, {FX}")
        a(f"v_cndmask_b32 v{V_Z}, v{V_Z}, 0, vcc")
        a("s_waitcnt vmcnt(0)")
        a.extend(st.now(20))
        if stamps: a(f"s_mov_b32 s{S_SPIN}, {SPIN}")
        a("v_mov_b32 v4, v46\nv_readfirstlane_b32 s40, v46\ns_cmp_lg_u32 s40, 0\ns_cbranch_scc1 F_np1")
        nonce_spin()
        a(f"F_np1:\nv_mov_b32 v{V_NONCE}, v4\ns_mov_b32 s{S_NONCE}, s40")
        a(flag_store(41))
        if stamps: a(f"s_sub_u32 s42, {SPIN+1}, s{S_SPIN}\nv_writelane_b32 v{V_STAMP}, s42, 21")
        a("s_cmp_lg_u32 s3, 3\ns_cbranch_scc1 F_c1")
        a(f"v_mov_b32 v5, {CT_NONCE}\nds_write_b32 v5, v4\ns_waitcnt lgkmcnt(0)")
        a("F_c1:")
        a.extend(st.now(2))
    if XIT == 2: a("s_waitcnt vmcnt(0)\ns_branch F_fin")
    metas = {}
    a(f"s_cmp_ge_u32 s{S_FB}, 11\ns_cbranch_scc1 F_cC\ns_cmp_ge_u32 s{S_FB}, 8\ns_cbranch_scc1 F_cB")
    for ty in "ABC":
        a(f"F_c{ty}:")
        if FRONT == 3:
            Pp = ring_plan(ty)
            x_batch1(a, Pp)
            setup_compute(a, ty)
            x_columns(a, Pp, st, opt)
            metas[ty] = gen_compute(a, ty, st, opt)
            a("s_branch F_att")
            continue
        if FRONT == 4:
            Pp = ring_plan(ty)
            x4_batch1(a, Pp)
            setup_compute(a, ty)
            x4_setup(a, Pp)
            metas[ty] = gen_compute(a, ty, st, opt)
            a("s_branch F_att")
            continue
        setup_compute(a, ty)
        if FRONT < 2:
            a(f"s_lshl_b32 s43, s{S_T32}, 9\ns_add_u32 s43, s43, {FX}\nv_lshlrev_b32 v16, 7, v2")
            poll(a, 16, 43, 0xf, 0, f"FXp{ty}", 17)
        else:
            a(f"s_lshl_b32 s43, s{S_T32}, 9\ns_add_u32 s43, s43, {FX}\nv_lshrrev_b32 v16, 2, v2\nv_lshlrev_b32 v16, 7, v16\nv_and_b32 v17, 3, v2\nv_lshl_add_u32 v16, v17, 2, v16")
            poll(a, 16, 43, 0xffff, 0, f"FXp{ty}", 17)
        a.extend(st.now(3))
        metas[ty] = gen_compute(a, ty, st, opt)
        a("s_branch F_att")
    a("F_att:")
    if opt.get("prio_att"): a(f"s_setprio {opt['prio_att']}")
    a.extend(st.now(9))
    p2.attn_params(a)
    a(f"s_mov_b32 s{p2.A_QSEL}, 0\ns_mov_b32 s{p2.A_HH}, s3")
    p2.attn_setup(a)
    global H1_EARLY
    H1_EARLY = opt.get("h1early", 0)
    if H1_EARLY:
        a("s_waitcnt vmcnt(0)")
        a(flag_store(S_FL, K_H1 * 128))
    a("s_barrier")
    if XIT == 3: a("s_waitcnt vmcnt(0)\ns_branch F_fin")
    a.extend(st.now(10))
    if opt.get("nt"):
        a(f"s_lshl_b32 s40, s{p2.A_TB2}, 3\ns_add_u32 s40, s40, s{p2.A_HQ}\ns_lshl_b32 s40, s40, 2\ns_add_u32 s40, s40, s3\ns_lshl_b32 s40, s40, 7\ns_add_u32 s58, s40, {FO}")
    a("s_mov_b32 s59, 0")
    a("F_task:")
    attn_task(a, "AT", st)
    a(f"s_cmp_lg_u32 s59, 0\ns_cbranch_scc1 F_att_done")
    if opt.get("xst"): a.extend(st.now(18))
    a(f"s_mov_b32 s59, 1\ns_mov_b32 s{p2.A_QSEL}, 1")
    a(f"v_add_u32 v{p2.V_AK}, 5120, v{p2.V_AK}\nv_add_u32 v{p2.V_AS}, 5120, v{p2.V_AS}\nv_lshl_add_u32 v{p2.V_AV}, v{p2.V_SV}, 1, v{p2.V_AV}")
    a("s_branch F_task")
    a("F_att_done:")
    if opt.get("xst"): st.prev = None; a.extend(st.now(19))
    if opt.get("prio_att") and not opt.get("prio_keep"): a("s_setprio 0")
    a(f"s_lshl_b32 s40, s3, 2\ns_add_u32 s40, s40, {CT_ATT}\nv_mov_b32 v4, s40\nv_mov_b32 v5, 1\nds_write_b32 v4, v5")
    a(f"s_lshl_b32 s40, s{p2.A_TB2}, 3\ns_add_u32 s40, s40, s{p2.A_HQ}\ns_lshl_b32 s40, s40, 2\ns_add_u32 s40, s40, s3\ns_lshl_b32 s40, s40, 7\ns_add_u32 s58, s40, {FO}")
    k3_setup(a)
    srd(a, SRD_A, P_X, S * D * 2)
    srd(a, SRD_B, P_OUT, S * D * 2)
    if opt.get("nt") in (2, 3):
        tail3_compute(a, st, opt)
    elif opt.get("nt"):
        tail2_compute(a, st, opt)
    else:
        a("s_waitcnt vmcnt(0)")
        a(flag_store(58))
        a.extend(st.now(11))
        p3.x_loads(a, SRD_A)
        o_stream(a, st)
        a("s_branch F_red")
    a("F_ldr0:")
    a(f"s_cmp_ge_u32 s{S_FB}, 11\ns_cbranch_scc1 F_lC\ns_cmp_ge_u32 s{S_FB}, 8\ns_cbranch_scc1 F_lB")
    for ty in "ABC":
        P = metas[ty]
        a(f"F_l{ty}:")
        tmp = Asm(); p1.setup_loader(tmp, ty)
        for l in tmp.lines:
            a(re.sub(r"\bv1([345])\b", lambda m: "v" + str(20 + int(m.group(1)) - 3), l))
        opt["_ty"] = ty
        if FRONT == 0:
            for s in range(NSLOT): loader_issue(a, P, s)
            npf = weight_prefetch(a, ty) if opt.get("wpf", 1) else 0
            srd(a, WT_SRD_D, P_D, F * D * 2)
            srd(a, WT_SRD_O, P_WO, D * D * 2)
            a(f"s_waitcnt vmcnt({32 + npf})")
            a.extend(st.now(1))
            p0.p0_ln(a)
            a("s_waitcnt lgkmcnt(0)\ns_barrier")
            a("s_barrier")
            get_nonce()
            a.extend(st.now(2))
        elif FRONT == 3:
            srd(a, WT_SRD_D, P_D, F * D * 2)
            srd(a, WT_SRD_O, P_WO, D * D * 2)
            if opt.get("epf", 0) >= 1: weight_prefetch(a, ty, "first")
            n1 = opt.get("pre_ln", 1); n2 = opt.get("pre_x", 2)
            assert n1 <= n2 <= 2 and opt.get("wt2_at", -1) >= 0 and opt.get("wpf", 1) != 1
            for s in range(n1): loader_issue(a, P, s)
            lab = a.label("LN")
            a(f"s_cmp_lg_u32 s3, 4\ns_cbranch_scc1 {lab}_c0")
            a("v_mov_b32 v24, 0\nv_lshlrev_b32 v25, 2, v2\ns_mov_b64 exec, -2\nds_write_b32 v25, v24\ns_mov_b64 exec, -1")
            a(f"{lab}_c0:")
            a(f"s_mov_b32 s{S_SPIN}, {SPIN}\nv_mov_b32 v25, 0")
            a(f"{lab}_np:\nbuffer_load_dword v24, v25, s[{SRD_C}:{SRD_C+3}], 0 offen sc1\ns_waitcnt vmcnt(0)\nv_readfirstlane_b32 s40, v24\ns_cmp_lg_u32 s40, 0\ns_cbranch_scc1 {lab}_n1")
            a(f"s_sub_u32 s{S_SPIN}, s{S_SPIN}, 1\ns_cmp_lg_u32 s{S_SPIN}, 0\ns_cbranch_scc1 {lab}_np")
            a(f"{lab}_n1:\nv_mov_b32 v{V_NONCE}, v24\ns_mov_b32 s{S_NONCE}, s40")
            a(f"v_cmp_eq_u32 vcc, 0, v2\nv_mov_b32 v{V_Z}, 0x80000000\ns_nop 0\nv_cndmask_b32 v{V_Z}, v{V_Z}, 0, vcc")
            a(f"s_cmp_lg_u32 s3, 4\ns_cbranch_scc1 {lab}_c1")
            a(f"v_mov_b32 v25, {CT_NONCE}\nds_write_b32 v25, v24")
            a(f"{lab}_c1:")
            a.extend(st.now(1))
            wt2_issue(a)
            for s in range(n1, n2): loader_issue(a, P, s)
            a("s_waitcnt lgkmcnt(0)")
            a.extend(st.now(2))
            a("s_barrier")
            for s in range(n2, NSLOT): loader_issue(a, P, s)
            npf = 0
            if opt.get("wpf", 1) == 2: npf += weight_prefetch(a, ty)
        elif FRONT == 4:
            nw = NSLOT - X4["nx"]
            q0 = []
            pf_pos = opt.get("pf_pos", nw)
            def pfs():
                n = 0
                if opt.get("xpf", 0):
                    c0 = opt.get("xpf_c", 4); nc = 10 - c0
                    srd(a, WT_SRD_D, P_X, S * D * 2)
                    a(f"s_lshr_b32 s40, s2, 6\ns_lshl_b32 s41, s{S_TB}, 2\ns_add_u32 s40, s40, s41\ns_mul_i32 s40, s40, 40960\ns_sub_u32 s41, s3, 4")
                    a(f"v_and_b32 v23, 31, v2\nv_mul_u32_u24 v23, 1280, v23\nv_lshrrev_b32 v25, 5, v2")
                    for r in range(-(-nc // 8)):
                        a(f"s_lshl_b32 s42, s41, 1\ns_add_u32 s42, s42, {c0 + 8 * r}\nv_add_u32 v26, s42, v25\nv_cmp_gt_u32 vcc, 10, v26\nv_lshl_add_u32 v26, v26, 7, v23")
                        a(f"v_mov_b32 v27, 0x80000000\nv_cndmask_b32 v26, v27, v26, vcc\nbuffer_load_dword v30, v26, s[{WT_SRD_D}:{WT_SRD_D+3}], s40 offen"); n += 1
                if opt.get("epf", 0) >= 1: n += weight_prefetch(a, ty, "first")
                return n
            for s in range(nw):
                if s == pf_pos: q0 += [("pf",)] * pfs()
                loader_issue(a, P, s); q0 += [("stage", s)] * 4
            if pf_pos >= nw: q0 += [("pf",)] * pfs()
            opt["_issued"] = nw; opt["_q0"] = q0
            srd(a, WT_SRD_D, P_D, F * D * 2)
            srd(a, WT_SRD_O, P_WO, D * D * 2)
            lab = a.label("L4")
            a(f"s_cmp_lg_u32 s3, 4\ns_cbranch_scc1 {lab}_c0")
            a("v_mov_b32 v24, 0\nv_lshlrev_b32 v25, 2, v2\ns_mov_b64 exec, -2\nds_write_b32 v25, v24\ns_mov_b64 exec, -1")
            a(f"v_mov_b32 v32, 0\nv_mov_b32 v33, 0\nv_mov_b32 v34, 0\nv_mov_b32 v35, 0\nv_lshlrev_b32 v25, 4, v2")
            for i in range(3): a(f"ds_write_b128 v25, v[32:35] offset:{CTAB + 1024 * i}")
            a(f"{lab}_c0:")
            a(f"v_cmp_eq_u32 vcc, 0, v2\nv_mov_b32 v{V_Z}, 0x80000000\ns_nop 0\nv_cndmask_b32 v{V_Z}, v{V_Z}, 0, vcc")
            a.extend(st.now(1))
            a("s_waitcnt lgkmcnt(0)")
            opt["_get_nonce"] = get_nonce
            npf = 0
        else:
            srd(a, WT_SRD_D, P_D, F * D * 2)
            srd(a, WT_SRD_O, P_WO, D * D * 2)
            npf0 = 0
            if opt.get("epf", 0) >= 1: weight_prefetch(a, ty, "first")
            if opt.get("epf", 0) >= 2: weight_prefetch(a, ty)
            wt2_issue(a)
            n1 = opt.get("pre_ln", 4); n2 = n1 + opt.get("mid_ln", NSLOT - n1)
            for s in range(n1): loader_issue(a, P, s)
            a.extend(st.now(1))
            a("s_barrier")
            for s in range(n1, n2): loader_issue(a, P, s)
            npf = weight_prefetch(a, ty) if opt.get("wpf", 1) == 1 else 0
            if FRONT >= 2: assert n2 == n1 and opt.get("wpf", 1) != 1
            a("s_barrier")
            for s in range(n2, NSLOT): loader_issue(a, P, s)
            assert npf == 0 or n2 == NSLOT
            if FRONT < 2: get_nonce()
            else: opt["_get_nonce"] = get_nonce; assert opt.get("wt2_at", -1) >= 0
            if opt.get("wt2_at", -1) < 0: wt2_finish(a, 32 + npf)
            if opt.get("wpf", 1) == 2: npf += weight_prefetch(a, ty)
            a.extend(st.now(2))
        if XIT == 2: a("s_waitcnt vmcnt(0)\ns_branch F_fin")
        gen_loader(a, P, st, opt, npf)
        a("s_branch F_ltail")
    a("F_ltail:")
    a.extend(st.now(8))
    if opt.get("tail", 0) >= 1:
        vb = 8
        a("s_sub_u32 s57, s3, 4\ns_waitcnt vmcnt(0)")
        prepoll_check(a, 0, "PQK", lambda: poll_qk(a, "PQK"))
        for i in range(3): qk_job(a, i, vb)
        a.extend(st.now(9))
        lds_poll4(a, CT_PROG, "PPR", 20)
        prepoll_check(a, 1, "PV", lambda: poll_v(a, "PV"))
        a("s_cmp_lg_u32 s3, 7\ns_cbranch_scc1 F_l1")
        a(f"v_mov_b32 v20, 0x3f803f80\nv_mov_b32 v21, 0x3f803f80\nv_mov_b32 v22, 0x3f803f80\nv_mov_b32 v23, 0x3f803f80\nv_mov_b32 v24, {L_ONES}")
        a("ds_write_b128 v24, v[20:23]")
        a("F_l1:")
        for i in range(2): v_job(a, i, vb)
        a("s_cmp_ge_u32 s57, 2\ns_cbranch_scc1 F_l2")
        v_job(a, 2, vb)
        a("F_l2:")
        a.extend(st.now(10))
        k3_setup(a)
        prepoll_check(a, 2, "PW", lambda: poll_fw(a, "PW"))
        prepoll_check(a, 3, "PH", lambda: poll_fh(a, "PH", K_H0))
        def bend(e):
            a(f"s_waitcnt vmcnt({len(e.vm) + (10 if opt['tail'] == 2 else 0)}) lgkmcnt(0)")
            a.extend(st.now(11))
            a("s_barrier")
            if XIT == 3: a("s_waitcnt vmcnt(0)\ns_branch F_fin")
        e = h_stream(a, st, "pre", (opt.get("hpre", 3), bend), eh=opt.get("eh", 0))
        assert opt["tail"] == 1 or opt.get("bv_at", 2) >= 1
        if opt.get("nt") == 3:
            h_stream_main4(a, e, st, opt["h1pp"], opt.get("o1pp", 11), opt.get("o1chk", 13), opt.get("o2at", 13))
            a("s_branch F_fin")
        elif opt.get("nt") == 2:
            h_stream_main3(a, e, st, opt["h1pp"], opt.get("o1pp", 9), opt.get("o1chk", 11))
            a("s_branch F_fin")
        elif opt.get("nt"):
            h_stream_main2(a, e, st, opt["h1pp"], opt.get("o1pp", 9), opt.get("o1chk", 11))
            tail2_loader_reduce(a, st)
            a("s_branch F_fin")
        else:
            h_stream_main(a, e, st, None if opt["tail"] == 1 else opt.get("bv_at", 2), eh=opt.get("eh", 0), h1pp=opt.get("h1pp", -1))
            a("s_branch F_red")
    if opt.get("tail", 0) == 0: old_tail(a, st, opt, XIT)
    if not opt.get("nt"):
        a("F_red:")
        reduce_phase(a, "RD", st)
    a("F_fin:")
    if stamps:
        a("s_waitcnt vmcnt(0)")
        a.extend(st.now(16))
        st.flush(a)
    a("F_exit:\ns_endpgm")
    return a, kernel_desc(name, 256, 102), (name, (256,1,1), (512,1,1), 163840), metas

def old_tail(a, st, opt, XIT):
    p2.attn_params(a)
    vb = 8
    a("s_cmp_ge_u32 s3, 6\ns_cbranch_scc1 F_lt67")
    p2.attn_dma_setup(a, vb)
    a("s_cmp_eq_u32 s3, 5\ns_cbranch_scc1 F_lt5")
    poll_qk(a, "PQK")
    a.extend(st.now(9))
    for m in range(2): attn_dma_dyn(a, "Q", m, vb, None, None)
    for m in range(10): attn_dma_dyn(a, "K", m, vb, None, None)
    k3_setup(a)
    a("s_sub_u32 s57, s3, 4")
    a("s_waitcnt vmcnt(0)")
    a.extend(st.now(10))
    a("s_barrier")
    if XIT == 3: a("s_waitcnt vmcnt(0)\ns_branch F_fin")
    a("s_branch F_lt45")
    a("F_lt5:")
    lds_poll4(a, CT_PROG, "PPR", 20)
    poll_v(a, "PV")
    a.extend(st.now(9))
    a(f"v_mov_b32 v20, 0x3f803f80\nv_mov_b32 v21, 0x3f803f80\nv_mov_b32 v22, 0x3f803f80\nv_mov_b32 v23, 0x3f803f80\nv_mov_b32 v24, {L_ONES}")
    a("ds_write_b128 v24, v[20:23]")
    for m in range(10): attn_dma_dyn(a, "V", m, vb, None, None)
    k3_setup(a)
    a("s_sub_u32 s57, s3, 4")
    a("s_waitcnt lgkmcnt(0)")
    a("s_barrier")
    if XIT == 3: a("s_waitcnt vmcnt(0)\ns_branch F_fin")
    a("F_lt45:")
    poll_fw(a, "PW45")
    poll_fh(a, "PH45", K_H0)
    a.extend(st.now(11))
    a("s_barrier")
    e = h_stream(a, st, "pre")
    h_stream_main(a, e, st, None)
    a("s_branch F_red")
    a("F_lt67:")
    k3_setup(a)
    a("s_sub_u32 s57, s3, 4")
    poll_fw(a, "PW67")
    poll_fh(a, "PH67", K_H0)
    a.extend(st.now(11))
    e = h_stream(a, st, "pre")
    a("s_barrier")
    if XIT == 3: a("s_waitcnt vmcnt(0)\ns_branch F_fin")
    h_stream_main(a, e, st, opt.get("bv_at", 2))

H1_EARLY = 0
def attn_task(a, lab, st):
    tmp = Asm()
    p2.attn_task(tmp, lab, "sc1")
    lines = tmp.lines
    idx = next(i for i, l in enumerate(lines) if l.startswith(f"{lab}_noneg:"))
    if XOPT.get("noexp"): lines = [l.replace("v_exp_f32", "v_mov_b32") for l in lines]
    a.extend(lines[:idx + 1])
    a(f"s_cmp_lg_u32 s59, 0\ns_cbranch_scc1 {lab}_nb")
    if not H1_EARLY:
        a("s_waitcnt vmcnt(0)")
        a(flag_store(S_FL, K_H1 * 128))
    if not NO_BV: a("s_barrier")
    a(f"{lab}_nb:")
    rest = lines[idx + 1:]
    if XOPT.get("nt"):
        ex = [i for i, l in enumerate(rest) if l.startswith("v_exp_f32") or (XOPT.get("noexp") and False)]
        at = ex[XOPT.get("o1at", 32)]
        a.extend(rest[:at])
        a(f"s_cmp_eq_u32 s59, 0\ns_cbranch_scc1 {lab}_no1\ns_waitcnt vmcnt(0)")
        a(flag_store(58, 64))
        a.extend(st.now(19))
        a(f"{lab}_no1:")
        rest = rest[at:]
    a.extend(rest)
```
